```python
import torch

def _softmax(x, axis=-1):
    return torch.softmax(x, dim=axis)

def _gelu(x):
    return torch.nn.functional.gelu(x, approximate='tanh')

def _silu(x):
    return torch.nn.functional.silu(x)

def _sigmoid(x):
    return torch.sigmoid(x)

def _layernorm(x, axis=-1, eps=1e-05):
    m = x.mean(dim=axis, keepdim=True)
    v = x.var(dim=axis, keepdim=True, unbiased=False)
    return (x - m) / torch.sqrt(v + eps)

def _scatter_add(tgt, idx, src, axis=0):
    return tgt.clone().index_add_(axis, idx, src)

def _segment_sum(src, seg, n):
    out = torch.zeros((n,) + src.shape[1:], dtype=src.dtype)
    return out.index_add_(0, seg, src)

def _pad(x, pw):
    flat = tuple((v for pair in reversed(pw) for v in pair))
    return torch.nn.functional.pad(x, flat)
kernel_name = 'adaLN_cond__memory_aug_recurrent_mem_tr__glu_gated_geglu__prompt'

def setup_inputs():

    _w = lambda a: (lambda t: t.to(torch.bfloat16) if t.is_floating_point() else t)(torch.as_tensor(a))

    def _A_setup():
        B, S, Dm = (1, 2048, 640)
        H, Dh = (32, 192)
        M, seg = (8, 32)
        seg = min(seg, S)
        S = S // seg * seg
        return {'x': _w((lambda *s: torch.randn(*s, dtype=torch.bfloat16) * 0.05)(B, S, Dm)), 'mem0': _w((lambda *s: torch.randn(*s, dtype=torch.bfloat16) * 0.8)(B, M, Dm)), 'Wq': _w((lambda *s: torch.randn(*s, dtype=torch.bfloat16) * 0.8)(Dm, H, Dh) * Dm ** (-0.5)), 'Wk': _w((lambda *s: torch.randn(*s, dtype=torch.bfloat16) * 0.8)(Dm, H, Dh) * Dm ** (-0.5)), 'Wv': _w((lambda *s: torch.randn(*s, dtype=torch.bfloat16) * 0.8)(Dm, H, Dh) * Dm ** (-0.5)), 'Wo': _w((lambda *s: torch.randn(*s, dtype=torch.bfloat16) * 0.8)(H, Dh, Dm) * (H * Dh) ** (-0.5)), 'seg_len': seg}
    _A_in = _A_setup()

    def _B_setup():
        B, S, Dm, Df = (1, 2048, 640, 1536)
        return {'x': _w((lambda *s: torch.randn(*s, dtype=torch.bfloat16) * 0.05)(B, S, Dm)), 'w_gate': _w((lambda *s: torch.randn(*s, dtype=torch.bfloat16) * 0.4)(Dm, Df) * Dm ** (-0.5)), 'w_up': _w((lambda *s: torch.randn(*s, dtype=torch.bfloat16) * 0.4)(Dm, Df) * Dm ** (-0.5)), 'w_down': _w((lambda *s: torch.randn(*s, dtype=torch.bfloat16) * 0.4)(Df, Dm) * Df ** (-0.5))}
    _B_in = _B_setup()
    return {'A_x': _A_in['x'], 'A_mem0': _A_in['mem0'], 'A_Wq': _A_in['Wq'], 'A_Wk': _A_in['Wk'], 'A_Wv': _A_in['Wv'], 'A_Wo': _A_in['Wo'], 'A_seg_len': _A_in['seg_len'], 'B_x': _B_in['x'], 'B_w_gate': _B_in['w_gate'], 'B_w_up': _B_in['w_up'], 'B_w_down': _B_in['w_down'], 'c': _w((lambda *s: torch.randn(*s, dtype=torch.bfloat16) * 0.2)(1, 640) * 8.0), 'w_mod': _w((lambda *s: torch.randn(*s, dtype=torch.bfloat16) * 0.2)(640, 6 * 640) * 640 ** (-0.5) * 8.0)}

def reference(A_x, A_mem0, A_Wq, A_Wk, A_Wv, A_Wo, A_seg_len, B_x, B_w_gate, B_w_up, B_w_down, c, w_mod):

    def _A_ref(x, mem0, Wq, Wk, Wv, Wo, seg_len):
        B, S, Dm = x.shape
        H, Dh = (Wq.shape[1], Wq.shape[2])
        M = mem0.shape[1]
        scale = Dh ** (-0.5)
        n_seg = S // seg_len
        L = M + seg_len
        idx = torch.arange(L)
        mask = (idx[:, None] < M) | (idx[:, None] >= idx[None, :])
        mem = mem0
        outs = []
        for s in range(n_seg):
            xs = x[:, s * seg_len:(s + 1) * seg_len, :].clone()
            h = torch.concatenate([mem, xs], axis=1)
            q = torch.einsum('btd,dhe->bhte', h, Wq)
            k = torch.einsum('btd,dhe->bhte', h, Wk)
            v = torch.einsum('btd,dhe->bhte', h, Wv)
            scores = torch.einsum('bhqe,bhke->bhqk', q, k) * scale
            scores = torch.where(mask[None, None], scores, -1000000000.0)
            p = _softmax(scores, axis=-1)
            o = torch.einsum('bhqk,bhke->bhqe', p, v)
            o = torch.einsum('bhte,hed->btd', o, Wo)
            mem = o[:, :M, :].clone()
            outs.append(o[:, M:, :])
        return torch.concatenate(outs, axis=1)

    def _B_ref(x, w_gate, w_up, w_down):
        g = torch.einsum('bsd,df->bsf', x, w_gate)
        u = torch.einsum('bsd,df->bsf', x, w_up)
        h = _gelu(g) * u
        return torch.einsum('bsf,fd->bsd', h, w_down)
    x = A_x
    mod = (_silu(c) @ w_mod).reshape(c.shape[0], 6, 1, -1)
    sa, ca, ga, sb, cb, gb = (mod[:, 0].clone(), mod[:, 1].clone(), mod[:, 2].clone(), mod[:, 3].clone(), mod[:, 4].clone(), mod[:, 5].clone())
    h = _layernorm(x, axis=-1) * (1 + ca) + sa
    x = x + ga * _A_ref(h, A_mem0, A_Wq, A_Wk, A_Wv, A_Wo, A_seg_len)
    h = _layernorm(x, axis=-1) * (1 + cb) + sb
    x = x + gb * _B_ref(h, B_w_gate, B_w_up, B_w_down)
    return x
```

```python
import re
class Asm:
    def __init__(self):
        self.lines = []
        self.uid = 0
    def __call__(self, s=''):
        for l in s.strip('\n').split('\n'):
            l = l.strip()
            if getattr(self, 'filt', None) and self.filt(l): continue
            if l.startswith('buffer_') or l.startswith('global_'):
                m = re.search(r'offset:(\d+)', l)
                if m: assert int(m.group(1)) < 4096, l
            if l.startswith('ds_'):
                m = re.search(r'offset:(\d+)', l)
                if m: assert int(m.group(1)) < 65536, l
            self.lines.append('    ' + l)
    def label(self, l):
        self.lines.append(l + ':')
    def newlabel(self, base='L'):
        self.uid += 1
        return f'{base}_{self.uid}'
    def comment(self, s):
        self.lines.append('    ; ' + s)
    def raw(self, s):
        self.lines.append(s)
    def text(self):
        return '\n'.join(self.lines) + '\n'

def vr(b, n=1):
    return f'v{b}' if n == 1 else f'v[{b}:{b+n-1}]'
def ar(b, n=1):
    return f'a{b}' if n == 1 else f'a[{b}:{b+n-1}]'
def sr(b, n=1):
    return f's{b}' if n == 1 else f's[{b}:{b+n-1}]'

def kernel_header(a, name):
    a.raw(f'.globl {name}')
    a.raw('.p2align 8')
    a.raw(f'.type {name},@function')
    a.label(name)

def kernel_desc(name, vgpr, sgpr, accum, wg_y=False):
    s = f'''.amdhsa_kernel {name}
  .amdhsa_next_free_vgpr {vgpr}
  .amdhsa_next_free_sgpr {sgpr}
  .amdhsa_accum_offset {accum}
  .amdhsa_group_segment_fixed_size 0
  .amdhsa_kernarg_size 128
  .amdhsa_user_sgpr_count 2
  .amdhsa_user_sgpr_kernarg_segment_ptr 1
  .amdhsa_system_sgpr_workgroup_id_x 1
'''
    if wg_y:
        s += '  .amdhsa_system_sgpr_workgroup_id_y 1\n'
    s += '.end_amdhsa_kernel\n'
    return s

KA = dict(x=0, mem0=8, wq=16, wk=24, wv=32, wo=40, seglen=48, bx=56, wg=64, wu=72, wd=80, c=88, wmod=96, out=104, dbg=112, ws=120)

def make_srd(a, s, ptr_s, nbytes, off=0):
    if off:
        a(f's_add_u32 s{s}, s{ptr_s}, {off}')
        a(f's_addc_u32 s{s+1}, s{ptr_s+1}, 0')
    else:
        a(f's_mov_b32 s{s}, s{ptr_s}')
        a(f's_mov_b32 s{s+1}, s{ptr_s+1}')
    a(f's_mov_b32 s{s+2}, {nbytes}')
    a(f's_mov_b32 s{s+3}, 0x00020000')
```

```python
from asmlib import *
from layout import *
from k_t1 import lane_decomp, OPT
import os

L_FLAG = 0
L_PX = 256
L_PM = 1280
L_QK = 2048
L_MEM = 4096
LDS_CHAIN = 147456
NSTEP = 64
WA = 96
WB = 176
MFB = 16
ACA = 40
ACB = 44
T0 = 48

D_MEM = int(os.environ.get('D_MEM', '8'))
D_SC = int(os.environ.get('D_SC', '2'))
D_Z = int(os.environ.get('D_Z', '4'))

SB = 20
def stamp(a, i):
    if 'stamp' not in OPT: return
    l = a.newlabel('ST')
    a('s_cmp_lg_u32 s84, 30')
    a(f's_cbranch_scc1 {l}')
    a('s_memtime s[96:97]')
    a('s_waitcnt lgkmcnt(0)')
    a(f's_mov_b32 s{SB+i}, s96')
    a.label(l)

def poll_loop(a, lbl, loads, check_regs, mode, vtmp, tag_s=None):
    a.label(lbl)
    loads()
    a('s_waitcnt vmcnt(0)')
    rs = list(check_regs)
    if mode == 'sent':
        a(f'v_max_u32 v{vtmp}, v{rs[0]}, v{rs[1]}')
        rs = rs[2:]
        while len(rs) >= 2:
            a(f'v_max3_u32 v{vtmp}, v{vtmp}, v{rs[0]}, v{rs[1]}'); rs = rs[2:]
        if rs:
            a(f'v_max_u32 v{vtmp}, v{vtmp}, v{rs[0]}')
        a(f'v_cmp_eq_u32 vcc, -1, v{vtmp}')
    else:
        a(f'v_xor_b32 v{vtmp}, s{tag_s}, v{rs[0]}')
        for r in rs[1:]:
            a(f'v_bitop3_b32 v{vtmp}, v{vtmp}, v{r}, s{tag_s} bitop3:0xf6')
        a(f'v_and_b32 v{vtmp}, 1, v{vtmp}')
        a(f'v_cmp_ne_u32 vcc, 0, v{vtmp}')
    a('s_add_u32 s88, s88, 1')
    a('s_cmp_lt_u32 s88, 0x100000')
    a('s_cselect_b64 s[90:91], vcc, 0')
    a('s_cmp_lg_u64 s[90:91], 0')
    a(f's_cbranch_scc1 {lbl}')

def lds_spin(a, lbl, reads, flag_regs, vtmp):
    a.label(lbl)
    reads()
    a('s_waitcnt lgkmcnt(0)')
    a(f'v_cmp_ne_u32 vcc, s89, v{flag_regs[0]}')
    for f in flag_regs[1:]:
        a(f'v_cmp_ne_u32 s[90:91], s89, v{f}')
        a('s_or_b64 vcc, vcc, s[90:91]')
    a('s_add_u32 s88, s88, 1')
    a('s_cmp_lt_u32 s88, 0x100000')
    a('s_cselect_b64 s[90:91], vcc, 0')
    a('s_cmp_lg_u64 s[90:91], 0')
    a(f's_cbranch_scc1 {lbl}')

def role_assign(a, nwg, per_xcd):
    a('s_getreg_b32 s54, hwreg(HW_REG_XCC_ID)')
    a('s_and_b32 s54, s54, 7')
    l0 = a.newlabel('RA'); l1 = a.newlabel('RA'); l2 = a.newlabel('RA')
    a('s_cmp_lg_u32 s40, 0')
    a(f's_cbranch_scc1 {l0}')
    a('s_mov_b64 exec, 1')
    a('v_mov_b32 v4, 1')
    a('s_lshl_b32 s42, s54, 2')
    a(f's_add_u32 s42, s42, {WS_CNT}')
    a('v_mov_b32 v5, 0')
    a('buffer_atomic_add v4, v5, s[32:35], s42 offen sc0')
    a('s_waitcnt vmcnt(0)')
    a('v_mov_b32 v6, 1')
    a(f's_mov_b32 s42, {WS_CNT + 32}')
    a('buffer_atomic_add v6, v5, s[32:35], s42 offen sc0')
    a('s_waitcnt vmcnt(0)')
    a.label(l1)
    a('buffer_load_dword v7, v5, s[32:35], s42 offen sc1')
    a('s_waitcnt vmcnt(0)')
    a('v_readfirstlane_b32 s43, v7')
    a('s_add_u32 s88, s88, 1')
    a('s_cmp_ge_u32 s88, 0x100000')
    a(f's_cbranch_scc1 {l2}')
    a(f's_cmp_lt_u32 s43, {nwg}')
    a(f's_cbranch_scc1 {l1}')
    a.label(l2)
    a(f's_mov_b32 s42, {WS_CNT}')
    a('buffer_load_dwordx4 v[8:11], v5, s[32:35], s42 offen sc1')
    a('buffer_load_dwordx4 v[12:15], v5, s[32:35], s42 offen offset:16 sc1')
    a('s_waitcnt vmcnt(0)')
    a(f'v_xor_b32 v7, {per_xcd}, v8')
    for r in range(9, 16):
        a(f'v_xor_b32 v16, {per_xcd}, v{r}')
        a('v_or_b32 v7, v7, v16')
    a('ds_write_b32 v5, v4 offset:16')
    a('ds_write_b32 v5, v6 offset:20')
    a('ds_write_b32 v5, v7 offset:24')
    a('s_waitcnt lgkmcnt(0)')
    a('s_mov_b64 exec, -1')
    a.label(l0)
    a('s_barrier')
    a('v_mov_b32 v5, 0')
    a('ds_read_b32 v4, v5 offset:16')
    a('ds_read_b32 v6, v5 offset:20')
    a('ds_read_b32 v7, v5 offset:24')
    a('s_waitcnt lgkmcnt(0)')
    a('v_readfirstlane_b32 s55, v4')
    a('v_readfirstlane_b32 s42, v6')
    a('v_readfirstlane_b32 s43, v7')
    a('s_cmp_eq_u32 s43, 0')
    a('s_cselect_b32 s92, 1, 0')
    a('s_and_b32 s43, s42, 7')
    a('s_lshr_b32 s42, s42, 3')
    a('s_cmp_eq_u32 s92, 1')
    a('s_cselect_b32 s54, s54, s43')
    a('s_cselect_b32 s55, s55, s42')
    a('s_barrier')

def pub(a, instrs):
    l0 = a.newlabel('PB'); l1 = a.newlabel('PB')
    a('s_cmp_eq_u32 s92, 0')
    a(f's_cbranch_scc1 {l0}')
    for i in instrs: a(i)
    a(f's_branch {l1}')
    a.label(l0)
    for i in instrs: a(i + ' sc1')
    a.label(l1)

def k_chain(a):
    name = 'chain_kernel'
    kernel_header(a, name)
    a('s_cmp_ge_u32 s2, 128')
    a('s_cbranch_scc1 CH_END')
    a(f's_load_dwordx4 s[4:7], s[0:1], {KA["wq"]}')
    a(f's_load_dwordx2 s[52:53], s[0:1], {KA["ws"]}')
    lane_decomp(a)
    a('s_waitcnt lgkmcnt(0)')
    NW = 640 * 6144 * 2
    make_srd(a, 8, 4, NW)
    make_srd(a, 12, 6, NW)
    make_srd(a, 32, 52, WS_SIZE)
    a('s_mov_b32 s88, 0')
    role_assign(a, 128, 16)
    chain_body(a)
    a.label('CH_END')
    a('s_endpgm')
    return name, kernel_desc(name, 256, 100, 256)

def chain_body(a):
    NW = 640 * 6144 * 2
    a('s_lshr_b32 s56, s55, 3')
    a('s_and_b32 s57, s55, 7')
    a('s_lshl_b32 s58, s54, 1')
    a('s_add_u32 s58, s58, s56')
    a('s_lshr_b32 s59, s57, 2')
    a('s_lshl_b32 s60, s58, 1')
    a('s_add_u32 s59, s59, s60')
    a('s_and_b32 s61, s57, 3')
    a('s_and_b32 s41, s40, 3')
    a('s_cmp_lt_u32 s40, 4')
    a('s_cselect_b32 s24, s8, s12')
    a('s_cselect_b32 s25, s9, s13')
    a(f's_mov_b32 s26, {NW}')
    a('s_mov_b32 s27, 0x00020000')
    a('s_mul_i32 s42, s59, 384')
    a('s_mul_i32 s43, s61, 96')
    a('s_add_u32 s62, s42, s43')
    a('s_mul_i32 s42, s41, 960')
    for i in range(15):
        a(f's_add_u32 s43, s42, {64*i}')
        a('v_add_u32 v4, s43, v1')
        a('v_mul_u32_u24 v5, 10923, v4')
        a('v_lshrrev_b32 v5, 16, v5')
        a('v_mul_u32_u24 v6, 6, v5')
        a('v_sub_u32 v6, v4, v6')
        a('v_mul_u32_u24 v5, 12288, v5')
        a('v_lshl_add_u32 v5, v6, 4, v5')
        a('s_mul_i32 s43, s40, 15360')
        a(f's_add_u32 m0, s43, {1024*i}')
        a('s_nop 0')
        a('buffer_load_dwordx4 v5, s[24:27], s62 offen lds')
    a('v_lshlrev_b32 v15, 4, v1')
    a('s_sub_u32 s74, s40, 3')
    a('s_mul_i32 s75, s57, 5')
    a('s_add_u32 s75, s75, s74')
    a('s_cmp_lt_u32 s40, 3')
    a('s_cbranch_scc1 CH_NOUW')
    a('s_lshl_b32 s42, s58, 1')
    a('s_mul_i32 s42, s42, 819200')
    a('s_mul_i32 s43, s75, 20480')
    a('s_add_u32 s42, s42, s43')
    a(f's_add_u32 s42, s42, {WS_BF}')
    for hh, base in ((0, WA), (1, WB)):
        for t in range(20):
            if t % 4 == 0:
                a(f's_add_u32 s43, s42, {hh*819200 + t*1024}')
            f = base + 4 * t
            a(f'buffer_load_dwordx4 v[{f}:{f+3}], v15, s[32:35], s43 offen offset:{(t%4)*1024}')
    a.label('CH_NOUW')
    a('s_waitcnt vmcnt(0)')
    a('s_barrier')
    a('s_cmp_ge_u32 s40, 3')
    a('s_cbranch_scc1 CH_NOSW')
    a('v_lshrrev_b32 v4, 2, v2')
    a('v_lshl_add_u32 v4, v3, 2, v4')
    a('v_mul_u32_u24 v4, 96, v4')
    a('v_and_b32 v5, 3, v2')
    a('v_lshl_add_u32 v4, v5, 3, v4')
    a('s_lshl_b32 s42, s40, 5')
    a('v_add_u32 v4, s42, v4')
    a('v_add_u32 v5, 61440, v4')
    for mat, base, ad in ((0, WA, 4), (1, WB, 5)):
        for t in range(20):
            f = base + 4 * t
            a(f'ds_read_b64_tr_b16 v[{f}:{f+1}], v{ad} offset:{t*3072}')
            a(f'ds_read_b64_tr_b16 v[{f+2}:{f+3}], v{ad} offset:{t*3072+1536}')
            if t % 4 == 3:
                a('s_waitcnt lgkmcnt(0)')
    a.label('CH_NOSW')
    a('s_barrier')
    a('v_and_b32 v5, 7, v2')
    a('v_lshlrev_b32 v4, 7, v3')
    a('v_lshl_add_u32 v4, v5, 4, v4')
    a('v_lshrrev_b32 v7, 3, v2')
    a('v_mul_u32_u24 v8, 6144, v7')
    a('v_add_u32 v9, v8, v4')
    a('v_mul_u32_u24 v8, 20480, v7')
    a('v_add_u32 v10, v8, v4')
    a('v_lshlrev_b32 v12, 6, v3')
    a('v_lshl_add_u32 v12, v5, 3, v12')
    a('v_lshlrev_b32 v13, 3, v1')
    a('v_mov_b32 v11, 0')
    a(f'v_add_u32 v6, {L_MEM}, v4')
    a('v_cmp_gt_u32 vcc, 8, v2')
    a('s_mov_b64 s[64:65], vcc')
    a('s_mov_b32 s66, -1')
    a('s_mov_b32 s67, 0')
    a('ds_write_b32 v11, v11')
    a('ds_write_b32 v11, v11 offset:4')
    a('ds_write_b32 v11, v11 offset:8')
    a('s_mul_i32 s68, s54, 655360')
    a(f's_add_u32 s68, s68, {WS_MEMF}')
    a('s_lshl_b32 s42, s74, 11')
    a('s_add_u32 s69, s68, s42')
    a('s_mul_i32 s70, s59, 12288')
    a('s_mul_i32 s42, s61, 3072')
    a('s_add_u32 s70, s70, s42')
    a(f's_add_u32 s70, s70, {WS_KF}')
    a('s_lshl_b32 s71, s59, 2')
    a('s_add_u32 s71, s71, s61')
    a('s_mul_i32 s71, s71, 768')
    a('s_lshl_b32 s42, s40, 8')
    a('s_add_u32 s71, s71, s42')
    a(f's_add_u32 s71, s71, {WS_KM}')
    a('s_lshl_b32 s72, s59, 2')
    a('s_add_u32 s72, s72, s61')
    a('s_mul_i32 s72, s72, 1536')
    a(f's_add_u32 s72, s72, {WS_SC}')
    a('s_mul_i32 s73, s58, 12288')
    a(f's_add_u32 s73, s73, {WS_SC}')
    a('s_mul_i32 s76, s58, 81920')
    a('s_lshl_b32 s42, s75, 10')
    a('s_add_u32 s76, s76, s42')
    a(f's_add_u32 s76, s76, {WS_YF}')
    a('s_mul_i32 s77, s58, 20480')
    a('s_lshl_b32 s42, s75, 8')
    a('s_add_u32 s77, s77, s42')
    a(f's_add_u32 s77, s77, {WS_UF}')
    a('s_mul_i32 s78, s58, 40')
    a('s_add_u32 s78, s78, s75')
    a('s_lshl_b32 s78, s78, 9')
    a(f's_add_u32 s78, s78, {WS_ZP}')
    a('s_lshl_b32 s80, s40, 4')
    a('s_add_u32 s80, s80, s55')
    a('s_lshl_b32 s81, s80, 9')
    a(f's_add_u32 s81, s81, {WS_ZP}')
    a('s_lshr_b32 s82, s80, 1')
    a('s_lshl_b32 s82, s82, 9')
    a('s_and_b32 s42, s80, 1')
    a('s_lshl_b32 s42, s42, 3')
    a('s_add_u32 s82, s82, s42')
    a('s_add_u32 s82, s82, s68')
    a('s_add_u32 s82, s82, 10240')
    a('s_mov_b32 s84, 0')
    a('s_mov_b32 s85, 0')
    a('s_mov_b32 s86, 0')
    a('s_mov_b32 s89, 1')
    a(f's_mov_b32 s87, {f2u(192 ** -0.5 * LOG2E):#x}')
    a('s_waitcnt lgkmcnt(0)')
    KFR = 80
    YFR = 80
    def lbl(n): return f'CH_{n}'
    def mm_loop(first_a):
        NB = 6
        def rd(t):
            b = MFB + 4 * (t % NB)
            a(f'ds_read_b128 v[{b}:{b+3}], v6 offset:{512*t}')
        for t in range(5): rd(t)
        for t in range(20):
            a(f's_waitcnt lgkmcnt({min(4, 19 - t)})')
            b = MFB + 4 * (t % NB)
            for acc, W in ((ACA, WA), (ACB, WB)):
                c = '0' if t == 0 else f'v[{acc}:{acc+3}]'
                w = W + 4 * t
                if first_a:
                    a(f'v_mfma_f32_16x16x32_bf16 v[{acc}:{acc+3}], v[{w}:{w+3}], v[{b}:{b+3}], {c}')
                else:
                    a(f'v_mfma_f32_16x16x32_bf16 v[{acc}:{acc+3}], v[{b}:{b+3}], v[{w}:{w+3}], {c}')
            if t + 5 < 20: rd(t + 5)

    a('s_cmp_ge_u32 s40, 3')
    a(f's_cbranch_scc1 {lbl("UWAVE")}')
    a('s_setprio 3')
    a('s_cmp_lg_u32 s40, 0')
    a(f's_cbranch_scc1 {lbl("SLOOP")}')
    for i in range(3):
        a(f'buffer_load_dwordx4 v[{KFR+4*i}:{KFR+4*i+3}], v15, s[32:35], s70 offen offset:{1024*i}')
    a.label(lbl('SLOOP'))
    stamp(a, 0)
    a('s_barrier')
    stamp(a, 1)
    mm_loop(True)
    a('s_nop 7')
    a('s_nop 1')
    QP, KP = T0, T0 + 2
    for r in range(4):
        a(f'v_mul_f32 v{ACA+r}, s87, v{ACA+r}')
    a(f'v_cvt_pk_bf16_f32 v{KP}, v{ACB}, v{ACB+1}')
    a(f'v_cvt_pk_bf16_f32 v{KP+1}, v{ACB+2}, v{ACB+3}')
    a(f'v_cvt_pk_bf16_f32 v{QP}, v{ACA}, v{ACA+1}')
    a(f'v_cvt_pk_bf16_f32 v{QP+1}, v{ACA+2}, v{ACA+3}')
    stamp(a, 2)
    a('s_cmp_eq_u32 s40, 0')
    a(f's_cbranch_scc1 {lbl("SCORE")}')
    a('s_lshl_b32 s42, s40, 10')
    a('v_add_u32 v14, s42, v13')
    a('v_mov_b32 v52, s89')
    a('s_lshl_b32 s42, s40, 2')
    a('v_mov_b32 v53, s42')
    a(f'ds_write_b64 v14, v[{QP}:{QP+1}] offset:{L_QK - 1024}')
    a(f'ds_write_b64 v14, v[{KP}:{KP+1}] offset:{L_QK - 1024 + 512}')
    a(f'ds_write_b32 v53, v52 offset:{L_FLAG - 4 + 65536 - 65536}') if False else a(f'v_subrev_u32 v53, 4, v53')
    a(f'ds_write_b32 v53, v52 offset:{L_FLAG}')
    a('s_mov_b64 exec, s[64:65]')
    a(f'buffer_store_dwordx2 v[{KP}:{KP+1}], v12, s[32:35], s71 offen')
    a('s_mov_b64 exec, -1')
    a('s_cmp_eq_u32 s40, 2')
    a(f's_cbranch_scc1 {lbl("SRED")}')
    a(f's_cmp_ge_u32 s84, {NSTEP-1}')
    a(f's_cbranch_scc1 {lbl("DONE")}')
    SM = T0
    a('s_mul_i32 s42, s86, 196608')
    a('s_add_u32 s42, s42, s73')
    a('s_add_u32 s43, s42, 3072')
    if D_SC: a(f's_sleep {D_SC}')
    def ld_sc():
        for fq in range(4):
            for kt in range(3):
                r = SM + (fq * 3 + kt) * 4
                so = 42 if fq < 2 else 43
                a(f'buffer_load_dwordx4 v[{r}:{r+3}], v9, s[32:35], s{so} offen offset:{(fq&1)*1536 + kt*512} sc1')
    poll_loop(a, lbl('POLLS'), ld_sc, [SM + 4 * i for i in range(12)], 'tag', 14, 85)
    stamp(a, 5)
    for r in range(0, 12, 2):
        a(f'v_pk_add_f32 v[{SM+r}:{SM+r+1}], v[{SM+r}:{SM+r+1}], v[{SM+12+r}:{SM+12+r+1}]')
        a(f'v_pk_add_f32 v[{SM+24+r}:{SM+24+r+1}], v[{SM+24+r}:{SM+24+r+1}], v[{SM+36+r}:{SM+36+r+1}]')
    for r in range(0, 12, 2):
        a(f'v_pk_add_f32 v[{SM+r}:{SM+r+1}], v[{SM+r}:{SM+r+1}], v[{SM+24+r}:{SM+24+r+1}]')
    a('v_cmp_lt_u32 vcc, 1, v3')
    a(f'v_mov_b32 v14, {f2u(-1e30):#x}')
    for r in range(4):
        a(f'v_cndmask_b32 v{SM+r}, v{SM+r}, v14, vcc')
    M = SM + 12
    a(f'v_max3_f32 v{M}, v{SM}, v{SM+1}, v{SM+2}')
    a(f'v_max3_f32 v{M+1}, v{SM+3}, v{SM+4}, v{SM+5}')
    a(f'v_max3_f32 v{M+2}, v{SM+6}, v{SM+7}, v{SM+8}')
    a(f'v_max3_f32 v{M+3}, v{SM+9}, v{SM+10}, v{SM+11}')
    a(f'v_max3_f32 v{M}, v{M}, v{M+1}, v{M+2}')
    a(f'v_max_f32 v{M}, v{M}, v{M+3}')
    def xg(op, v, t):
        a(f'v_mov_b32 v{t}, v{v}')
        a('s_nop 1')
        a(f'v_permlane32_swap_b32 v{v}, v{t}')
        a('s_nop 1')
        a(f'v_{op}_f32 v{v}, v{v}, v{t}')
        a(f'v_mov_b32 v{t}, v{v}')
        a('s_nop 1')
        a(f'v_permlane16_swap_b32 v{v}, v{t}')
        a('s_nop 1')
        a(f'v_{op}_f32 v{v}, v{v}, v{t}')
    xg('max', M, M + 1)
    for r in range(12):
        a(f'v_sub_f32 v{SM+r}, v{SM+r}, v{M}')
    for r in range(12):
        a(f'v_exp_f32 v{SM+r}, v{SM+r}')
    a('s_nop 0')
    L = M + 2
    a(f'v_add_f32 v{L}, v{SM}, v{SM+1}')
    a(f'v_add_f32 v{L+1}, v{SM+2}, v{SM+3}')
    a(f'v_add_f32 v{L+2}, v{SM+4}, v{SM+5}')
    a(f'v_add_f32 v{L+3}, v{SM+6}, v{SM+7}')
    a(f'v_add_f32 v{L+4}, v{SM+8}, v{SM+9}')
    a(f'v_add_f32 v{L+5}, v{SM+10}, v{SM+11}')
    a(f'v_add_f32 v{L}, v{L}, v{L+1}')
    a(f'v_add_f32 v{L+2}, v{L+2}, v{L+3}')
    a(f'v_add_f32 v{L+4}, v{L+4}, v{L+5}')
    a(f'v_add_f32 v{L}, v{L}, v{L+2}')
    a(f'v_add_f32 v{L}, v{L}, v{L+4}')
    xg('add', L, L + 1)
    a(f'v_rcp_f32 v{L}, v{L}')
    a('s_nop 0')
    for r in range(12):
        a(f'v_mul_f32 v{SM+r}, v{SM+r}, v{L}')
    PO = SM + 24
    a(f'v_cvt_pk_bf16_f32 v{PO}, v{SM+4}, v{SM+5}')
    a(f'v_cvt_pk_bf16_f32 v{PO+1}, v{SM+6}, v{SM+7}')
    a(f'v_cvt_pk_bf16_f32 v{PO+2}, v{SM+8}, v{SM+9}')
    a(f'v_cvt_pk_bf16_f32 v{PO+3}, v{SM+10}, v{SM+11}')
    a(f'v_cvt_pk_bf16_f32 v{PO+4}, v{SM}, v{SM+1}')
    a(f'v_cvt_pk_bf16_f32 v{PO+5}, v{SM+2}, v{SM+3}')
    a('v_mov_b32 v52, s89')
    a(f'ds_write_b128 v15, v[{PO}:{PO+3}] offset:{L_PX}')
    a(f'ds_write_b64 v13, v[{PO+4}:{PO+5}] offset:{L_PM}')
    a(f'ds_write_b32 v11, v52 offset:{L_FLAG + 8}')
    stamp(a, 6)
    a(f's_branch {lbl("SRED")}')
    a.label(lbl('SCORE'))
    a('s_mov_b64 exec, s[64:65]')
    a(f'buffer_store_dwordx2 v[{KP}:{KP+1}], v12, s[32:35], s71 offen')
    a('s_mov_b64 exec, -1')
    Q1, K1, Q2, K2 = T0 + 4, T0 + 6, T0 + 8, T0 + 10
    F1, F2 = T0 + 12, T0 + 13
    def rd_qk():
        a(f'ds_read_b32 v{F1}, v11 offset:{L_FLAG}')
        a(f'ds_read_b32 v{F2}, v11 offset:{L_FLAG + 4}')
        a(f'ds_read_b64 v[{Q1}:{Q1+1}], v13 offset:{L_QK}')
        a(f'ds_read_b64 v[{K1}:{K1+1}], v13 offset:{L_QK + 512}')
        a(f'ds_read_b64 v[{Q2}:{Q2+1}], v13 offset:{L_QK + 1024}')
        a(f'ds_read_b64 v[{K2}:{K2+1}], v13 offset:{L_QK + 1536}')
    SCR = T0 + 16
    a('s_waitcnt vmcnt(1)')
    def sc_mfma(j, q, k, first):
        for kt in range(3):
            r = SCR + 4 * kt
            c = '0' if first else f'v[{r}:{r+3}]'
            A = k if kt == 0 else KFR + ((kt - 1) * 3 + j) * 2
            a(f'v_mfma_f32_16x16x16_bf16 v[{r}:{r+3}], v[{A}:{A+1}], v[{q}:{q+1}], {c}')
    sc_mfma(0, QP, KP, True)
    lds_spin(a, lbl('SPINQK'), rd_qk, [F1, F2], 14)
    sc_mfma(1, Q1, K1, False)
    sc_mfma(2, Q2, K2, False)
    a('s_nop 7')
    a('s_nop 1')
    for kt in range(3):
        a(f'v_bfi_b32 v{SCR+4*kt}, 1, s85, v{SCR+4*kt}')
    a('s_mul_i32 s42, s86, 196608')
    a('s_add_u32 s42, s42, s72')
    a('s_mov_b64 exec, s[64:65]')
    pub(a, [f'buffer_store_dwordx4 v[{SCR+4*kt}:{SCR+4*kt+3}], v4, s[32:35], s42 offen offset:{512*kt}' for kt in range(3)])
    a('s_mov_b64 exec, -1')
    stamp(a, 3)
    a(f's_cmp_ge_u32 s84, {NSTEP-1}')
    a(f's_cbranch_scc1 {lbl("DONE")}')
    a('s_add_u32 s70, s70, 393216')
    for i in range(3):
        a(f'buffer_load_dwordx4 v[{KFR+4*i}:{KFR+4*i+3}], v15, s[32:35], s70 offen offset:{1024*i}')
    a.label(lbl('SRED'))
    a(f's_cmp_ge_u32 s84, {NSTEP-1}')
    a(f's_cbranch_scc1 {lbl("DONE")}')
    a('s_cmp_ge_u32 s80, 40')
    a(f's_cbranch_scc1 {lbl("NORED")}')
    def rd_pf():
        a(f'ds_read_b32 v{T0}, v11 offset:{L_FLAG + 8}')
    lds_spin(a, lbl('SPINR'), rd_pf, [T0], 14)
    if D_Z: a(f's_sleep {D_Z}')
    RD = T0
    a('s_mul_i32 s42, s86, 327680')
    a('s_add_u32 s42, s42, s81')
    def ld_z():
        for i in range(8):
            a(f's_add_u32 s43, s42, {i*40960}')
            a(f'buffer_load_dwordx4 v[{RD+4*i}:{RD+4*i+3}], v10, s[32:35], s43 offen sc1')
    poll_loop(a, lbl('POLLZ'), ld_z, [RD + 4 * i for i in range(8)], 'tag', 14, 85)
    stamp(a, 8)
    for st in (4, 2, 1):
        for i in range(st):
            for r in range(0, 4, 2):
                a(f'v_pk_add_f32 v[{RD+4*i+r}:{RD+4*i+r+1}], v[{RD+4*i+r}:{RD+4*i+r+1}], v[{RD+4*(i+st)+r}:{RD+4*(i+st)+r+1}]')
    a('s_nop 1')
    for r in range(4):
        a(f'v_add_f32_dpp v{RD+r}, v{RD+r}, v{RD+r} row_ror:8 row_mask:0xf bank_mask:0xf')
    a('s_nop 0')
    a(f'v_cvt_pk_bf16_f32 v{RD+4}, v{RD}, v{RD+1}')
    a(f'v_cvt_pk_bf16_f32 v{RD+5}, v{RD+2}, v{RD+3}')
    a('s_mov_b64 exec, s[64:65]')
    pub(a, [f'buffer_store_dwordx2 v[{RD+4}:{RD+5}], v4, s[32:35], s82 offen'])
    a('s_mov_b64 exec, -1')
    a.label(lbl('NORED'))
    stamp(a, 9)
    a('s_add_u32 s82, s82, 10240')
    a('s_add_u32 s71, s71, 98304')
    a('s_add_u32 s84, s84, 1')
    a('s_add_u32 s89, s89, 1')
    a('s_and_b32 s86, s84, 1')
    a('s_lshr_b32 s85, s84, 1')
    a('s_and_b32 s85, s85, 1')
    a(f's_branch {lbl("SLOOP")}')
    a.label(lbl('UWAVE'))
    a(f'buffer_load_dwordx4 v[{YFR}:{YFR+3}], v15, s[32:35], s76 offen')
    a('s_add_u32 s42, s76, 40960')
    a(f'buffer_load_dwordx4 v[{YFR+4}:{YFR+7}], v15, s[32:35], s42 offen')
    a('s_lshl_b32 s42, s74, 11')
    a(f's_add_u32 s42, s42, {L_MEM}')
    a('v_add_u32 v8, s42, v15')
    a.label(lbl('ULOOP'))
    stamp(a, 0)
    def ld_mem():
        a(f'buffer_load_dwordx4 v[{T0}:{T0+3}], v15, s[32:35], s69 offen sc1')
        a(f'buffer_load_dwordx4 v[{T0+4}:{T0+7}], v15, s[32:35], s69 offen offset:1024 sc1')
    poll_loop(a, lbl('POLLM'), ld_mem, [T0 + 1, T0 + 3, T0 + 5, T0 + 7], 'sent', 14)
    a(f'ds_write_b128 v8, v[{T0}:{T0+3}]')
    a(f'ds_write_b128 v8, v[{T0+4}:{T0+7}] offset:1024')
    a('s_waitcnt lgkmcnt(0)')
    a('s_barrier')
    stamp(a, 1)
    mm_loop(False)
    a('s_nop 7')
    a('s_nop 1')
    UFR = T0 + 8
    a(f'v_cvt_pk_bf16_f32 v{UFR}, v{ACA}, v{ACA+1}')
    a(f'v_cvt_pk_bf16_f32 v{UFR+1}, v{ACA+2}, v{ACA+3}')
    a(f'v_cvt_pk_bf16_f32 v{UFR+2}, v{ACB}, v{ACB+1}')
    a(f'v_cvt_pk_bf16_f32 v{UFR+3}, v{ACB+2}, v{ACB+3}')
    a('s_mov_b64 exec, s[66:67]')
    a(f'buffer_store_dwordx2 v[{UFR}:{UFR+1}], v13, s[32:35], s77 offen')
    a('s_add_u32 s42, s77, 10240')
    a(f'buffer_store_dwordx2 v[{UFR+2}:{UFR+3}], v13, s[32:35], s42 offen')
    a('s_mov_b64 exec, -1')
    a('s_add_u32 s77, s77, 327680')
    stamp(a, 4)
    a(f's_cmp_ge_u32 s84, {NSTEP-1}')
    a(f's_cbranch_scc1 {lbl("DONE")}')
    PX, PM, PF = T0 + 12, T0 + 16, T0 + 18
    def rd_p():
        a(f'ds_read_b32 v{PF}, v11 offset:{L_FLAG + 8}')
        a(f'ds_read_b128 v[{PX}:{PX+3}], v15 offset:{L_PX}')
        a(f'ds_read_b64 v[{PM}:{PM+1}], v13 offset:{L_PM}')
    a('s_waitcnt vmcnt(2)')
    lds_spin(a, lbl('SPINP'), rd_p, [PF], 14)
    stamp(a, 6)
    ZA, ZB = ACA, ACB
    a(f'v_mfma_f32_16x16x32_bf16 v[{ZA}:{ZA+3}], v[{YFR}:{YFR+3}], v[{PX}:{PX+3}], 0')
    a(f'v_mfma_f32_16x16x32_bf16 v[{ZB}:{ZB+3}], v[{YFR+4}:{YFR+7}], v[{PX}:{PX+3}], 0')
    a(f'v_mfma_f32_16x16x16_bf16 v[{ZA}:{ZA+3}], v[{UFR}:{UFR+1}], v[{PM}:{PM+1}], v[{ZA}:{ZA+3}]')
    a(f'v_mfma_f32_16x16x16_bf16 v[{ZB}:{ZB+3}], v[{UFR+2}:{UFR+3}], v[{PM}:{PM+1}], v[{ZB}:{ZB+3}]')
    a('s_nop 7')
    a('s_nop 1')
    for r in range(4):
        a(f'v_add_f32_dpp v{ZA+r}, v{ZB+r}, v{ZA+r} row_ror:8 row_mask:0xf bank_mask:0xf')
    a('s_nop 0')
    a(f'v_bfi_b32 v{ZA}, 1, s85, v{ZA}')
    a('s_mul_i32 s42, s86, 327680')
    a('s_add_u32 s42, s42, s78')
    a('s_mov_b64 exec, s[64:65]')
    a(f'buffer_store_dwordx4 v[{ZA}:{ZA+3}], v4, s[32:35], s42 offen sc1')
    a('s_mov_b64 exec, -1')
    stamp(a, 7)
    a('s_add_u32 s76, s76, 1310720')
    a(f'buffer_load_dwordx4 v[{YFR}:{YFR+3}], v15, s[32:35], s76 offen')
    a('s_add_u32 s42, s76, 40960')
    a(f'buffer_load_dwordx4 v[{YFR+4}:{YFR+7}], v15, s[32:35], s42 offen')
    a('s_add_u32 s69, s69, 10240')
    a('s_add_u32 s84, s84, 1')
    a('s_add_u32 s89, s89, 1')
    a('s_and_b32 s86, s84, 1')
    a('s_lshr_b32 s85, s84, 1')
    a('s_and_b32 s85, s85, 1')
    if D_MEM: a(f's_sleep {D_MEM}')
    a(f's_branch {lbl("ULOOP")}')
    a.label(lbl('DONE'))
    if 'stamp' in OPT:
        l = a.newlabel('STP')
        a('s_cmp_lg_u32 s2, 9')
        a(f's_cbranch_scc1 {l}')
        a('s_mov_b32 s42, 99')
        for wv, sl in ((0, 0), (1, 1), (3, 2), (7, 3)):
            a(f's_cmp_eq_u32 s40, {wv}')
            a(f's_cselect_b32 s42, {sl}, s42')
        a('s_cmp_eq_u32 s42, 99')
        a(f's_cbranch_scc1 {l}')
        a(f's_load_dwordx2 s[96:97], s[0:1], {KA["dbg"]}')
        a('s_waitcnt lgkmcnt(0)')
        a('s_lshl_b32 s42, s42, 6')
        a('v_mov_b32 v4, s42')
        for i in range(10):
            a(f'v_mov_b32 v5, s{SB+i}')
            a(f'global_store_dword v4, v5, s[96:97] offset:{4*i}')
            a('s_nop 1')
        a.label(l)

def k_init(a):
    name = 'init_kernel'
    kernel_header(a, name)
    a('s_cmp_ge_u32 s2, 256')
    a('s_cbranch_scc1 IN_END')
    a(f's_load_dwordx2 s[52:53], s[0:1], {KA["ws"]}')
    a('s_waitcnt lgkmcnt(0)')
    make_srd(a, 32, 52, WS_SIZE)
    N = (FILL_END - FILL_BEG) // 256
    assert N == 32768
    a('v_lshlrev_b32 v1, 4, v0')
    for r in range(4):
        a(f'v_mov_b32 v{4+r}, -1')
    a('s_lshl_b32 s3, s2, 15')
    a(f's_add_u32 s3, s3, {FILL_BEG}')
    for i in range(8):
        a(f's_add_u32 s12, s3, {4096*i}')
        a('buffer_store_dwordx4 v[4:7], v1, s[32:35], s12 offen')
    a('s_cmp_lg_u32 s2, 0')
    a('s_cbranch_scc1 IN_END')
    for r in range(4):
        a(f'v_mov_b32 v{8+r}, 0')
    a(f's_mov_b32 s12, {WS_CNT}')
    a('buffer_store_dwordx4 v[8:11], v1, s[32:35], s12 offen')
    a.label('IN_END')
    a('s_endpgm')
    return name, kernel_desc(name, 64, 64, 64)

def k_mem0(a):
    name = 'mem0_kernel'
    kernel_header(a, name)
    a('s_cmp_ge_u32 s2, 8')
    a('s_cbranch_scc1 M0_END')
    a(f's_load_dwordx2 s[4:5], s[0:1], {KA["mem0"]}')
    a(f's_load_dwordx2 s[52:53], s[0:1], {KA["ws"]}')
    a('s_waitcnt lgkmcnt(0)')
    make_srd(a, 8, 4, 8 * 1280)
    make_srd(a, 32, 52, WS_SIZE)
    a('s_mul_i32 s3, s2, 655360')
    a(f's_add_u32 s3, s3, {WS_MEMF}')
    for i in range(3):
        l = a.newlabel('M0S')
        a(f'v_add_u32 v1, {256*i}, v0')
        a('v_cmp_gt_u32 vcc, 640, v1')
        a('s_and_saveexec_b64 s[20:21], vcc')
        a(f's_cbranch_execz {l}')
        a('v_lshrrev_b32 v2, 5, v1')
        a('v_bfe_u32 v3, v1, 3, 2')
        a('v_and_b32 v4, 7, v1')
        a('v_mul_u32_u24 v5, 1280, v4')
        a('v_lshl_add_u32 v5, v2, 6, v5')
        a('v_lshl_add_u32 v5, v3, 3, v5')
        a('buffer_load_dwordx2 v[8:9], v5, s[8:11], 0 offen')
        a('buffer_load_dwordx2 v[10:11], v5, s[8:11], 0 offen offset:32')
        a('v_lshlrev_b32 v6, 4, v1')
        a('s_waitcnt vmcnt(0)')
        a('buffer_store_dwordx4 v[8:11], v6, s[32:35], s3 offen')
        a.label(l)
        a('s_mov_b64 exec, s[20:21]')
    a.label('M0_END')
    a('s_endpgm')
    return name, kernel_desc(name, 64, 64, 64)
```

```python
from asmlib import *
from layout import *
from k_t1 import lane_decomp, OPT

def row_allreduce(a, op, v):
    for r in (8, 4, 2, 1):
        a('s_nop 1')
        a(f'v_{op}_f32_dpp v{v}, v{v}, v{v} row_ror:{r} row_mask:0xf bank_mask:0xf')
def wave_allreduce_add(a, v, s0):
    row_allreduce(a, 'add', v)
    a('s_nop 1')
    for i in range(4):
        a(f'v_readlane_b32 s{s0+i}, v{v}, {16*i}')
    a('s_nop 1')
    a(f'v_mov_b32 v{v}, s{s0}')
    for i in range(1, 4):
        a(f'v_add_f32 v{v}, s{s0+i}, v{v}')
def bf16_round_f32(a, v):
    a(f'v_cvt_pk_bf16_f32 v{v}, v{v}, v{v}')
    a(f'v_lshlrev_b32 v{v}, 16, v{v}')

def k_ln2(a):
    name = 'ln2_kernel'
    kernel_header(a, name)
    a('s_cmp_ge_u32 s2, 256')
    a('s_cbranch_scc1 L2_END')
    a(f's_load_dwordx2 s[4:5], s[0:1], {KA["x"]}')
    a(f's_load_dwordx2 s[8:9], s[0:1], {KA["ws"]}')
    a('s_waitcnt lgkmcnt(0)')
    make_srd(a, 12, 4, 2048 * 1280)
    make_srd(a, 16, 8, WS_SIZE)
    a('v_and_b32 v1, 63, v0')
    a('v_lshrrev_b32 v2, 6, v0')
    a('v_lshlrev_b32 v3, 3, v1')
    for idx, base in ((2, 60), (3, 40), (4, 50)):
        a(f's_mov_b32 s24, {WS_MOD + 2560*idx}')
        for i in range(5):
            a(f'buffer_load_dwordx2 v[{base+2*i}:{base+2*i+1}], v3, s[16:19], s24 offen offset:{512*i}')
    a('s_lshl_b32 s3, s2, 3')
    a('v_lshl_add_u32 v4, v2, 1, s3')
    a('v_mul_u32_u24 v5, 2560, v4')
    a('v_lshl_add_u32 v5, v1, 3, v5')
    a('v_mul_u32_u24 v4, 1280, v4')
    a('v_lshl_add_u32 v4, v1, 2, v4')
    a(f's_mov_b32 s24, {f2u(1.0/640):#x}')
    a(f's_mov_b32 s25, {f2u(1e-5):#x}')
    for r in range(2):
        for i in range(5):
            a(f'buffer_load_dword v{10+i}, v4, s[12:15], 0 offen offset:{1280*r+256*i}')
        for hg in range(4):
            a(f's_mov_b32 s26, {WS_OP + hg*5242880 + r*2560}')
            for i in range(5):
                a(f'buffer_load_dwordx2 v[{70+10*hg+2*i}:{71+10*hg+2*i}], v5, s[16:19], s26 offen offset:{512*i}')
        a('s_waitcnt vmcnt(0)')
        if r == 0:
            for i in range(10):
                a(f'v_add_f32 v{50+i}, 1.0, v{50+i}')
            for i in range(10):
                bf16_round_f32(a, 50 + i)
        for i in range(10):
            a(f'v_add_f32 v{70+i}, v{70+i}, v{80+i}')
            a(f'v_add_f32 v{90+i}, v{90+i}, v{100+i}')
        for i in range(10):
            a(f'v_add_f32 v{70+i}, v{70+i}, v{90+i}')
        for i in range(10):
            bf16_round_f32(a, 70 + i)
            a(f'v_mul_f32 v{70+i}, v{70+i}, v{60+i}')
            bf16_round_f32(a, 70 + i)
        for i in range(5):
            a(f'v_lshlrev_b32 v{20+2*i}, 16, v{10+i}')
            a(f'v_and_b32 v{21+2*i}, 0xffff0000, v{10+i}')
        for i in range(10):
            a(f'v_add_f32 v{20+i}, v{20+i}, v{70+i}')
        for i in range(5):
            a(f'v_cvt_pk_bf16_f32 v{32+i}, v{20+2*i}, v{21+2*i}')
        a(f's_mov_b32 s26, {WS_X1 + 1280*r}')
        for i in range(5):
            a(f'buffer_store_dword v{32+i}, v4, s[16:19], s26 offen offset:{256*i}')
        for i in range(5):
            a(f'v_lshlrev_b32 v{20+2*i}, 16, v{32+i}')
            a(f'v_and_b32 v{21+2*i}, 0xffff0000, v{32+i}')
        a('v_add_f32 v30, v20, v21')
        for i in range(2, 10):
            a(f'v_add_f32 v30, v30, v{20+i}')
        wave_allreduce_add(a, 30, 28)
        a('v_mul_f32 v30, s24, v30')
        for i in range(10):
            a(f'v_sub_f32 v{20+i}, v{20+i}, v30')
        a('v_mul_f32 v31, v20, v20')
        for i in range(1, 10):
            a(f'v_fmac_f32 v31, v{20+i}, v{20+i}')
        wave_allreduce_add(a, 31, 28)
        a('v_mul_f32 v31, s24, v31')
        a('v_add_f32 v31, s25, v31')
        a('v_rsq_f32 v31, v31')
        a('s_nop 0')
        for i in range(10):
            a(f'v_mul_f32 v{20+i}, v{20+i}, v31')
            a(f'v_fma_f32 v{20+i}, v{20+i}, v{50+i}, v{40+i}')
        for i in range(5):
            a(f'v_cvt_pk_bf16_f32 v{110+i}, v{20+2*i}, v{21+2*i}')
        a(f's_mov_b32 s26, {WS_H2 + 1280*r}')
        for i in range(5):
            a(f'buffer_store_dword v{110+i}, v4, s[16:19], s26 offen offset:{256*i}')
    a.label('L2_END')
    a('s_endpgm')
    return name, kernel_desc(name, 128, 40, 128)

def k_t3a(a):
    name = 't3a_kernel'
    SLOT = 24576
    kernel_header(a, name)
    a('s_cmp_ge_u32 s2, 192')
    a('s_cbranch_scc1 TA_END')
    a(f's_load_dwordx4 s[4:7], s[0:1], {KA["wg"]}')
    a(f's_load_dwordx2 s[52:53], s[0:1], {KA["ws"]}')
    lane_decomp(a)
    a('s_waitcnt lgkmcnt(0)')
    NW = 640 * 1536 * 2
    make_srd(a, 8, 4, NW)
    make_srd(a, 12, 6, NW)
    make_srd(a, 20, 52, 2048 * 1280, WS_H2)
    make_srd(a, 32, 52, WS_SIZE)
    a('s_mul_i32 s54, s2, 5462')
    a('s_lshr_b32 s56, s54, 16')
    a('s_mul_i32 s54, s56, 12')
    a('s_sub_u32 s57, s2, s54')
    a('s_mov_b32 s47, 0x78')
    a('v_lshl_add_u32 v4, s40, 2, v3')
    a('v_and_b32 v5, 3, v4')
    a('v_bfe_u32 v6, v4, 3, 1')
    a('v_lshl_or_b32 v5, v6, 2, v5')
    a('v_lshrrev_b32 v6, 1, v2')
    a('v_xor_b32 v6, v6, v5')
    a('v_and_b32 v7, 1, v2')
    a('v_mul_u32_u24 v88, 3072, v4')
    a('v_lshl_add_u32 v88, v6, 5, v88')
    a('v_lshl_add_u32 v88, v7, 4, v88')
    a('v_lshl_add_u32 v4, s40, 6, v1')
    a('v_lshrrev_b32 v5, 2, v4')
    a('v_and_b32 v6, 3, v4')
    a('v_bfe_u32 v7, v5, 2, 2')
    a('v_lshlrev_b32 v7, 1, v7')
    a('v_lshrrev_b32 v7, v7, s47')
    a('v_and_b32 v7, 3, v7')
    a('v_xor_b32 v6, v6, v7')
    a('s_lshl_b32 s43, s56, 7')
    a('v_add_u32 v5, s43, v5')
    a('v_mul_u32_u24 v90, 1280, v5')
    a('v_lshl_add_u32 v90, v6, 4, v90')
    a('s_lshl_b32 s44, s40, 10')
    a('s_lshl_b32 s66, s57, 8')
    a('s_mov_b32 s67, 0')
    a('v_lshrrev_b32 v4, 2, v2')
    a('v_lshlrev_b32 v4, 1, v4')
    a('v_lshrrev_b32 v4, v4, s47')
    a('v_and_b32 v4, 3, v4')
    a('v_xor_b32 v4, v4, v3')
    a('v_lshl_add_u32 v5, s39, 6, v2')
    a('v_lshlrev_b32 v5, 6, v5')
    a('v_lshl_add_u32 v5, v4, 4, v5')
    a('v_add_u32 v91, 16384, v5')
    a('v_lshrrev_b32 v4, 2, v2')
    a('v_lshl_add_u32 v5, v3, 3, v4')
    a('v_and_b32 v7, 1, v3')
    a('v_lshl_or_b32 v6, v7, 2, v4')
    a('v_and_b32 v7, 3, v2')
    a('v_lshlrev_b32 v8, 8, v5')
    a('v_lshl_add_u32 v8, v7, 3, v8')
    a('s_lshl_b32 s42, s41, 1')
    for j in range(2):
        a(f's_add_u32 s43, s42, {j}')
        a('v_xor_b32 v9, s43, v6')
        a(f'v_lshl_add_u32 v{92+j}, v9, 5, v8')
    def step_dmas(slot_s):
        def mk(j):
            def f():
                a(f's_add_u32 s45, s44, {8192*j}')
                a(f's_add_u32 m0, s45, s{slot_s}')
                a('s_nop 0')
                if j < 2:
                    a(f'buffer_load_dwordx4 v88, s[{8+4*j}:{11+4*j}], s66 offen lds')
                else:
                    a(f'buffer_load_dwordx4 v90, s[20:23], s67 offen lds')
                    a('s_add_u32 s66, s66, 98304')
                    a('s_add_u32 s67, s67, 64')
            return f
        return [mk(j) for j in range(3)]
    ACC = 112
    def accr(m, j, t4): return ACC + ((m * 2 + j) * 4 + t4) * 4
    for r in range(ACC, ACC + 64):
        a(f'v_mov_b32 v{r}, 0')
    NS = 4
    for sl in range(NS):
        a(f's_mov_b32 s70, {sl*SLOT}')
        for f in step_dmas(70): f()
    seq = [(m, j) for m in range(2) for j in range(2)]
    WF = 48
    def set_addr(e):
        a(f'v_add_u32 v95, {e}, v91')
        for j in range(2):
            a(f'v_add_u32 v{96+j}, {e}, v{92+j}')
    def rd_T(ts):
        for t4 in range(4):
            a(f'ds_read_b128 v[{16+16*ts+4*t4}:{19+16*ts+4*t4}], v95 offset:{1024*t4}')
    def rd_W(i, ws):
        m, j = seq[i]
        b = WF + 16 * ws + 4 * i
        a(f'ds_read_b64_tr_b16 v[{b}:{b+1}], v{96+j} offset:{m*8192}')
        a(f'ds_read_b64_tr_b16 v[{b+2}:{b+3}], v{96+j} offset:{m*8192+1024}')
    a(f's_waitcnt vmcnt({3*(NS-1)})')
    a('s_barrier')
    set_addr(0)
    rd_T(0)
    for i in range(4): rd_W(i, 0)
    a('s_mov_b32 s70, 0')
    a(f's_mov_b32 s71, {SLOT}')
    a('s_mov_b32 s72, 0')
    def step(ts, dma, vm, rd_next=True):
        a(f's_waitcnt vmcnt({vm}) lgkmcnt(0)')
        a('s_barrier')
        if rd_next:
            set_addr('s71')
            rd_T(ts ^ 1)
            for i in range(4): rd_W(i, ts ^ 1)
        dm = step_dmas(70) if dma else []
        for i in range(4):
            m, j = seq[i]
            b = WF + 16 * ts + 4 * i
            for t4 in range(4):
                r = accr(m, j, t4); tr = 16 + 16 * ts + 4 * t4
                a(f'v_mfma_f32_16x16x32_bf16 v[{r}:{r+3}], v[{b}:{b+3}], v[{tr}:{tr+3}], v[{r}:{r+3}]')
            if dm: dm.pop(0)()
    def advance():
        a('s_mov_b32 s70, s71')
        a(f's_add_u32 s71, s71, {SLOT}')
        a(f's_cmp_eq_u32 s71, {NS*SLOT}')
        a('s_cselect_b32 s71, 0, s71')
    a.label('TA_LOOP')
    step(0, True, 3 * (NS - 2)); advance()
    step(1, True, 3 * (NS - 2)); advance()
    a('s_add_u32 s72, s72, 1')
    a('s_cmp_lt_u32 s72, 8')
    a('s_cbranch_scc1 TA_LOOP')
    step(0, False, 6); advance()
    step(1, False, 3); advance()
    step(0, False, 0); advance()
    step(1, False, 0, rd_next=False)
    a('s_nop 7')
    a('s_nop 1')
    C1 = -2.0 * LOG2E * 0.7978845608028654
    a(f's_mov_b32 s60, {f2u(C1):#x}')
    a(f's_mov_b32 s61, {f2u(C1 * 0.044715):#x}')
    a('v_lshlrev_b32 v15, 4, v1')
    a('s_lshl_b32 s42, s56, 3')
    a('s_lshl_b32 s43, s39, 2')
    a('s_add_u32 s42, s42, s43')
    a('s_mul_i32 s42, s42, 49152')
    a('s_lshl_b32 s43, s57, 2')
    a('s_add_u32 s43, s43, s41')
    a('s_lshl_b32 s43, s43, 10')
    a('s_add_u32 s42, s42, s43')
    a(f's_add_u32 s42, s42, {WS_ACT}')
    for t4 in range(4):
        for j in range(2):
            for r in range(4):
                g = accr(0, j, t4) + r; u = accr(1, j, t4) + r
                a(f'v_cvt_pk_bf16_f32 v16, v{g}, v{u}')
                a(f'v_lshlrev_b32 v{g}, 16, v16')
                a(f'v_and_b32 v{u}, 0xffff0000, v16')
                a(f'v_mul_f32 v17, v{g}, v{g}')
                a(f'v_mov_b32 v18, s60')
                a(f'v_fmac_f32 v18, s61, v17')
                a(f'v_mul_f32 v18, v18, v{g}')
                a(f'v_exp_f32 v18, v18')
                a('s_nop 0')
                a(f'v_add_f32 v18, 1.0, v18')
                a(f'v_rcp_f32 v18, v18')
                a('s_nop 0')
                a(f'v_mul_f32 v18, v18, v{g}')
                a(f'v_cvt_pk_bf16_f32 v18, v18, v18')
                a(f'v_lshlrev_b32 v18, 16, v18')
                a(f'v_mul_f32 v{g}, v18, v{u}')
        pk = 20 + 4 * (t4 & 1)
        for j in range(2):
            g = accr(0, j, t4)
            a(f'v_cvt_pk_bf16_f32 v{pk+2*j}, v{g}, v{g+1}')
            a(f'v_cvt_pk_bf16_f32 v{pk+2*j+1}, v{g+2}, v{g+3}')
        a(f's_add_u32 s43, s42, {t4*49152}')
        a(f'buffer_store_dwordx4 v[{pk}:{pk+3}], v15, s[32:35], s43 offen')
    a.label('TA_END')
    a('s_endpgm')
    return name, kernel_desc(name, 256, 100, 256)

def k_t3b(a):
    name = 't3b_kernel'
    SLOT = 32768
    NS = 4
    kernel_header(a, name)
    a('s_cmp_ge_u32 s2, 160')
    a('s_cbranch_scc1 TB_END')
    a(f's_load_dwordx2 s[4:5], s[0:1], {KA["wd"]}')
    a(f's_load_dwordx2 s[6:7], s[0:1], {KA["out"]}')
    a(f's_load_dwordx2 s[52:53], s[0:1], {KA["ws"]}')
    lane_decomp(a)
    a('s_waitcnt lgkmcnt(0)')
    make_srd(a, 8, 4, 1536 * 1280)
    make_srd(a, 12, 6, 2048 * 1280)
    make_srd(a, 32, 52, WS_SIZE)
    a('s_mul_i32 s54, s2, 13108')
    a('s_lshr_b32 s56, s54, 16')
    a('s_mul_i32 s54, s56, 5')
    a('s_sub_u32 s57, s2, s54')
    a('v_lshl_add_u32 v4, s40, 2, v3')
    a('v_and_b32 v5, 7, v4')
    a('v_lshrrev_b32 v6, 1, v2')
    a('v_xor_b32 v6, v6, v5')
    a('v_and_b32 v7, 1, v2')
    a('v_mul_u32_u24 v88, 1280, v4')
    a('v_lshl_add_u32 v88, v6, 5, v88')
    a('v_lshl_add_u32 v88, v7, 4, v88')
    a('s_lshl_b32 s44, s40, 10')
    a('s_lshl_b32 s66, s57, 8')
    a('v_lshrrev_b32 v4, 2, v2')
    a('v_lshl_add_u32 v4, v3, 2, v4')
    a('v_and_b32 v5, 7, v4')
    a('v_and_b32 v6, 3, v2')
    a('v_lshlrev_b32 v7, 8, v4')
    a('v_lshl_add_u32 v7, v6, 3, v7')
    a('s_lshl_b32 s42, s41, 1')
    for j in range(2):
        a(f's_add_u32 s43, s42, {j}')
        a('v_xor_b32 v6, s43, v5')
        a(f'v_lshl_add_u32 v{92+j}, v6, 5, v7')
    a('v_lshlrev_b32 v15, 4, v1')
    a('s_lshl_b32 s42, s56, 2')
    a('s_lshl_b32 s43, s39, 1')
    a('s_add_u32 s42, s42, s43')
    a('s_mul_i32 s67, s42, 49152')
    a(f's_add_u32 s67, s67, {WS_ACT}')
    def dma(slot_s):
        for j in range(4):
            a(f's_add_u32 s45, s44, {8192*j}')
            a(f's_add_u32 m0, s45, s{slot_s}')
            a(f's_add_u32 s45, s66, {j*32*1280}')
            a(f'buffer_load_dwordx4 v88, s[8:11], s45 offen lds')
        a(f's_add_u32 s66, s66, {128*1280}')
    AF = [16, 48]
    def ld_act(b):
        for tt in range(2):
            a(f's_add_u32 s45, s67, {tt*49152}')
            for blk in range(4):
                r = b + (blk * 2 + tt) * 4
                a(f'buffer_load_dwordx4 v[{r}:{r+3}], v15, s[32:35], s45 offen offset:{blk*1024}')
        a('s_add_u32 s67, s67, 4096')
    ACC = 112
    for r in range(16):
        a(f'v_mov_b32 v{ACC+r}, 0')
    for sl in range(3):
        a(f's_mov_b32 s70, {sl*SLOT}')
        dma(70)
    ld_act(AF[0])
    WF = 128
    for st in range(12):
        if st == 0:
            a('s_waitcnt vmcnt(0)')
        else:
            a(f's_waitcnt vmcnt({4 if st + 2 < 12 else 0})')
        a('s_barrier')
        if st + 1 < 12:
            ld_act(AF[(st + 1) & 1])
        if st + 3 < 12:
            a(f's_mov_b32 s70, {((st + 3) % NS) * SLOT}')
            dma(70)
        slot = (st % NS) * SLOT
        a(f'v_add_u32 v96, {slot}, v92')
        a(f'v_add_u32 v97, {slot}, v93')
        for blk in range(4):
            for j in range(2):
                b = WF + (blk * 2 + j) * 4
                a(f'ds_read_b64_tr_b16 v[{b}:{b+1}], v{96+j} offset:{blk*8192}')
                a(f'ds_read_b64_tr_b16 v[{b+2}:{b+3}], v{96+j} offset:{blk*8192+4096}')
        af = AF[st & 1]
        for blk in range(4):
            for j in range(2):
                a(f's_waitcnt lgkmcnt({2*(7 - (blk*2+j))})')
                b = WF + (blk * 2 + j) * 4
                for tt in range(2):
                    r = ACC + (j * 2 + tt) * 4
                    f = af + (blk * 2 + tt) * 4
                    a(f'v_mfma_f32_16x16x32_bf16 v[{r}:{r+3}], v[{b}:{b+3}], v[{f}:{f+3}], v[{r}:{r+3}]')
    a('s_nop 7')
    a('s_nop 1')
    a('s_lshl_b32 s42, s56, 6')
    a('s_lshl_b32 s43, s39, 5')
    a('s_add_u32 s42, s42, s43')
    a('v_add_u32 v4, s42, v2')
    a('v_mul_u32_u24 v4, 1280, v4')
    a('s_lshl_b32 s42, s57, 8')
    a('s_lshl_b32 s43, s41, 6')
    a('s_add_u32 s42, s42, s43')
    a('v_lshl_add_u32 v4, v3, 3, v4')
    a('v_add_u32 v4, s42, v4')
    a('v_lshlrev_b32 v5, 4, v3')
    a('s_lshl_b32 s43, s42, 1')
    a(f's_add_u32 s43, s43, {WS_MOD + 5*2560}')
    for j in range(2):
        a(f'buffer_load_dwordx4 v[{16+4*j}:{19+4*j}], v5, s[32:35], s43 offen offset:{64*j}')
    a(f's_mov_b32 s42, {WS_X1}')
    a(f's_mov_b32 s43, {WS_X1 + 16*1280}')
    for j in range(2):
        for tt in range(2):
            r = 24 + (j * 2 + tt) * 2
            a(f'buffer_load_dwordx2 v[{r}:{r+1}], v4, s[32:35], s{42+tt} offen offset:{32*j}')
    a('s_waitcnt vmcnt(0)')
    a(f's_mov_b32 s43, {16*1280}')
    for j in range(2):
        for tt in range(2):
            acc = ACC + (j * 2 + tt) * 4
            xr = 24 + (j * 2 + tt) * 2
            for r in range(4):
                bf16_round_f32(a, acc + r)
                a(f'v_mul_f32 v{acc+r}, v{acc+r}, v{16+4*j+r}')
                bf16_round_f32(a, acc + r)
            a(f'v_lshlrev_b32 v40, 16, v{xr}')
            a(f'v_and_b32 v41, 0xffff0000, v{xr}')
            a(f'v_lshlrev_b32 v42, 16, v{xr+1}')
            a(f'v_and_b32 v43, 0xffff0000, v{xr+1}')
            for r in range(4):
                a(f'v_add_f32 v{acc+r}, v{acc+r}, v{40+r}')
            a(f'v_cvt_pk_bf16_f32 v{xr}, v{acc}, v{acc+1}')
            a(f'v_cvt_pk_bf16_f32 v{xr+1}, v{acc+2}, v{acc+3}')
            so = '0' if tt == 0 else 's43'
            a(f'buffer_store_dwordx2 v[{xr}:{xr+1}], v4, s[12:15], {so} offen offset:{32*j}')
    a.label('TB_END')
    a('s_endpgm')
    return name, kernel_desc(name, 256, 100, 256)
```

```python
from asmlib import *
from layout import *
import os
OPT = os.environ.get('OPT', '')

SLOT = 45056
W0BUF = 98304
W1BUF = 49152
VLBUF = 0
BLK = [(0, 1), (3, 4), (6, 7), (9, 10), (2, 5), (8, 11)]

def stamp(a, i):
    if 'stamp' not in OPT: return
    a('s_memtime s[96:97]')
    a('s_waitcnt lgkmcnt(0)')
    a(f's_mov_b32 s{80+i}, s96')
def stamp_rt(a, i):
    if 'stamp' not in OPT: return
    a('s_memrealtime s[96:97]')
    a('s_waitcnt lgkmcnt(0)')
    a(f's_mov_b32 s{80+i}, s96')
def stamp_out(a, n, wg):
    if 'stamp' not in OPT: return
    l = a.newlabel('STP')
    a(f's_cmp_lg_u32 s2, {wg}')
    a(f's_cbranch_scc1 {l}')
    a('s_cmp_lg_u32 s40, 0')
    a(f's_cbranch_scc1 {l}')
    a(f's_load_dwordx2 s[96:97], s[0:1], {KA["dbg"]}')
    a('s_waitcnt lgkmcnt(0)')
    a('v_mov_b32 v4, 0')
    for i in range(n):
        a(f'v_mov_b32 v5, s{80+i}')
        a(f'global_store_dword v4, v5, s[96:97] offset:{4*i}')
        a('s_nop 1')
    a.label(l)

def lane_decomp(a):
    a('v_lshrrev_b32 v1, 6, v0')
    a('s_nop 0')
    a('v_readfirstlane_b32 s40, v1')
    a('v_and_b32 v1, 63, v0')
    a('v_and_b32 v2, 15, v0')
    a('v_lshrrev_b32 v3, 4, v1')
    a('s_and_b32 s41, s40, 3')
    a('s_lshr_b32 s39, s40, 2')

def y_setup(a):
    a('v_lshl_add_u32 v4, s40, 2, v3')
    a('v_and_b32 v5, 7, v4')
    a('v_lshrrev_b32 v6, 1, v2')
    a('v_xor_b32 v6, v6, v5')
    a('v_and_b32 v7, 1, v2')
    a('v_mul_u32_u24 v10, 1280, v4')
    a('v_lshl_add_u32 v10, v6, 5, v10')
    a('v_lshl_add_u32 v10, v7, 4, v10')
    a('v_lshrrev_b32 v4, 2, v2')
    a('v_lshl_add_u32 v4, v3, 2, v4')
    a('v_and_b32 v5, 7, v4')
    a('v_and_b32 v6, 3, v2')
    a('v_lshlrev_b32 v7, 8, v4')
    a('v_lshl_add_u32 v7, v6, 3, v7')
    a('s_lshl_b32 s42, s41, 1')
    for jj in range(2):
        a(f's_add_u32 s43, s42, {jj}')
        a(f'v_xor_b32 v6, s43, v5')
        a(f'v_lshl_add_u32 v6, v6, 5, v7')
        a(f'v_add_u32 v{11+jj}, {W0BUF}, v6')
        a(f'v_add_u32 v{13+jj}, {W1BUF}, v6')
    a('v_lshlrev_b32 v15, 4, v1')

def wo_dma(a, srd, buf, s_soff_base, s_tmp, cc):
    for j in range(6):
        a(f's_add_u32 m0, s44, {buf + j*8192}')
        a(f's_add_u32 s{s_tmp}, s{s_soff_base}, {cc*256 + j*40960}')
        a(f'buffer_load_dwordx4 v10, s[{srd}:{srd+3}], s{s_tmp} offen lds')

def y_phase(a, VF, ACC, FB, srd_wo=28, s_wo_base=68, srd_ws=32, ct_stride=1024, seg_stride=0, first_wait=0):
    bufs = [W0BUF, W1BUF]
    for cc in range(5):
        if cc == 0:
            a(f's_waitcnt vmcnt({first_wait})')
        else:
            a('s_waitcnt vmcnt(4)')
        a('s_barrier')
        stamp(a, 4 + 2 * cc)
        if 1 <= cc < 4:
            wo_dma(a, srd_wo, bufs[(cc + 1) & 1], s_wo_base, 45, cc + 1)
        seq = [(jj, b) for jj in range(2) for b in range(6)]
        NB = 5
        def issue(i):
            jj, b = seq[i]
            r = FB + 4 * (i % NB)
            ar_ = (11 if (cc & 1) == 0 else 13) + jj
            ta, tb = BLK[b]
            a(f'ds_read_b64_tr_b16 v[{r}:{r+1}], v{ar_} offset:{4096*ta}')
            a(f'ds_read_b64_tr_b16 v[{r+2}:{r+3}], v{ar_} offset:{4096*tb}')
        for i in range(4):
            issue(i)
        for i in range(12):
            jj, b = seq[i]
            rem = min(3, 11 - i)
            a(f's_waitcnt lgkmcnt({2*rem})')
            r = FB + 4 * (i % NB)
            for sg in range(2):
                for tt in range(2):
                    acc = ACC + ((jj * 2 + sg) * 2 + tt) * 4
                    c = '0' if b == 0 else f'v[{acc}:{acc+3}]'
                    vf = VF + ((sg * 6 + b) * 2 + tt) * 4
                    a(f'v_mfma_f32_16x16x32_bf16 v[{acc}:{acc+3}], v[{vf}:{vf+3}], v[{r}:{r+3}], {c}')
            if i + 4 < 12:
                issue(i + 4)
        a('s_nop 7')
        a('s_nop 1')
        stamp(a, 5 + 2 * cc)
        PK = FB + 4 * NB
        for jj in range(2):
            for sg in range(2):
                pk = PK + 4 * sg
                a0 = ACC + ((jj * 2 + sg) * 2) * 4; a1 = a0 + 4
                a(f'v_cvt_pk_bf16_f32 v{pk}, v{a0}, v{a0+1}')
                a(f'v_cvt_pk_bf16_f32 v{pk+1}, v{a0+2}, v{a0+3}')
                a(f'v_cvt_pk_bf16_f32 v{pk+2}, v{a1}, v{a1+1}')
                a(f'v_cvt_pk_bf16_f32 v{pk+3}, v{a1+2}, v{a1+3}')
                a(f's_add_u32 s45, s46, {(cc*8 + jj) * ct_stride + sg * seg_stride}')
                a(f'buffer_store_dwordx4 v[{pk}:{pk+3}], v15, s[{srd_ws}:{srd_ws+3}], s45 offen')
            a('s_nop 1')

DM0 = int(os.environ.get('DM0', '1'))
def k_t1(a):
    name = 't1_kernel'
    kernel_header(a, name)
    a('s_cmp_ge_u32 s2, 512')
    a('s_cbranch_scc1 T1_END')
    a(f's_load_dwordx4 s[4:7], s[0:1], {KA["wq"]}')
    a(f's_load_dwordx4 s[48:51], s[0:1], {KA["wv"]}')
    a(f's_load_dwordx2 s[52:53], s[0:1], {KA["ws"]}')
    lane_decomp(a)
    a('s_waitcnt lgkmcnt(0)')
    NW = 640 * 6144 * 2
    make_srd(a, 8, 4, NW)
    make_srd(a, 12, 6, NW)
    make_srd(a, 16, 48, NW)
    make_srd(a, 28, 50, NW)
    make_srd(a, 20, 52, 2048 * 1280, WS_H1)
    make_srd(a, 32, 52, WS_SIZE)
    a('s_cmp_lt_u32 s40, 4')
    a('s_cselect_b32 s24, s8, s12')
    a('s_cselect_b32 s25, s9, s13')
    a(f's_mov_b32 s26, {NW}')
    a('s_mov_b32 s27, 0x00020000')
    a('s_and_b32 s54, s2, 7')
    a('s_lshr_b32 s55, s2, 3')
    a('s_and_b32 s56, s55, 15')
    a('s_lshr_b32 s55, s55, 4')
    a('s_lshl_b32 s55, s55, 3')
    a('s_add_u32 s57, s54, s55')
    a('s_mov_b32 s47, 0x78')
    def woff(dst, ii_s):
        a(f'v_lshl_add_u32 v4, s{ii_s}, 6, v1')
        a('v_mul_u32_u24 v5, 2731, v4')
        a('v_lshrrev_b32 v5, 16, v5')
        a('v_mul_u32_u24 v6, 24, v5')
        a('v_sub_u32 v6, v4, v6')
        a('v_lshrrev_b32 v7, 1, v6')
        a('v_and_b32 v6, 1, v6')
        a('v_bfe_u32 v8, v5, 1, 1')
        a('v_bfe_u32 v9, v5, 3, 1')
        a('v_lshl_or_b32 v8, v9, 1, v8')
        a('v_xor_b32 v7, v7, v8')
        a(f'v_mul_u32_u24 v{dst}, 12288, v5')
        a(f'v_lshl_add_u32 v{dst}, v7, 5, v{dst}')
        a(f'v_lshl_add_u32 v{dst}, v6, 4, v{dst}')
    woff(88, 40)
    a('s_add_u32 s42, s41, 8')
    woff(89, 42)
    a('v_lshl_add_u32 v4, s40, 6, v1')
    a('v_lshrrev_b32 v5, 2, v4')
    a('v_and_b32 v6, 3, v4')
    a('v_bfe_u32 v7, v5, 2, 2')
    a('v_lshlrev_b32 v7, 1, v7')
    a('v_lshrrev_b32 v7, v7, s47')
    a('v_and_b32 v7, 3, v7')
    a('v_xor_b32 v6, v6, v7')
    a('s_lshl_b32 s43, s56, 7')
    a('v_add_u32 v5, s43, v5')
    a('v_mul_u32_u24 v90, 1280, v5')
    a('v_lshl_add_u32 v90, v6, 4, v90')
    a('s_lshl_b32 s44, s40, 10')
    a('s_lshl_b32 s42, s42, 10')
    a('s_mov_b32 s60, s44')
    a('s_add_u32 s61, s44, 12288')
    a('s_add_u32 s62, s44, 24576')
    a('s_add_u32 s63, s44, 36864')
    a('s_cmp_lt_u32 s40, 4')
    a('s_cselect_b32 s64, 0, 12288')
    a('s_add_u32 s64, s64, s42')
    a('s_add_u32 s65, s42, 24576')
    a('s_mul_i32 s66, s57, 384')
    a('s_mov_b32 s67, 0')
    a('v_lshrrev_b32 v4, 2, v2')
    a('v_lshlrev_b32 v4, 1, v4')
    a('v_lshrrev_b32 v4, v4, s47')
    a('v_and_b32 v4, 3, v4')
    a('v_xor_b32 v4, v4, v3')
    a('v_lshl_add_u32 v5, s39, 6, v2')
    a('v_lshlrev_b32 v5, 6, v5')
    a('v_lshl_add_u32 v5, v4, 4, v5')
    a('v_add_u32 v91, 36864, v5')
    a('v_lshrrev_b32 v4, 2, v2')
    a('v_lshl_add_u32 v5, v3, 3, v4')
    a('v_lshrrev_b32 v6, 1, v4')
    a('v_and_b32 v7, 1, v3')
    a('v_lshl_or_b32 v6, v7, 1, v6')
    a('v_and_b32 v7, 3, v2')
    a('v_mul_u32_u24 v8, 384, v5')
    a('v_lshl_add_u32 v8, v7, 3, v8')
    a('s_mul_i32 s42, s41, 3')
    for j in range(3):
        a(f's_add_u32 s43, s42, {j}')
        a('v_xor_b32 v9, s43, v6')
        a(f'v_lshl_add_u32 v{92+j}, v9, 5, v8')
    if 'lin' in OPT:
        for j in range(3):
            a(f'v_lshlrev_b32 v{60+j}, 3, v1')
    if 'lint' in OPT:
        a(f'v_lshlrev_b32 v59, 4, v1')
    y_setup(a)
    a('s_mul_i32 s68, s57, 245760')

    def step_dmas(slot_s):
        srds = [8, 12, 16, 20, 24, 16]
        voff = [88, 88, 88, 90, 89, 89]
        def mk(j):
            def f():
                a(f's_add_u32 m0, s{60+j}, s{slot_s}')
                so = 67 if j == 3 else 66
                a('s_nop 0')
                if 'nodma' not in OPT:
                    a(f'buffer_load_dwordx4 v{voff[j]}, s[{srds[j]}:{srds[j]+3}], s{so} offen lds')
                if j == 5:
                    a('s_add_u32 s66, s66, 393216')
                    a('s_add_u32 s67, s67, 64')
            return f
        return [mk(j) for j in range(6)]
    def issue_step(slot_s):
        for f in step_dmas(slot_s): f()
    def wo_dmas(buf, cc):
        def mk(j):
            def f():
                a(f's_add_u32 m0, s44, {buf + j*8192}')
                a(f's_add_u32 s45, s68, {cc*256 + j*40960}')
                a(f'buffer_load_dwordx4 v10, s[28:31], s45 offen lds')
            return f
        return [mk(j) for j in range(6)]

    ACC = 112
    def accr(m, j, t4):
        return ACC + ((m * 3 + j) * 4 + t4) * 4
    stamp_rt(a, 14)
    stamp(a, 0)
    for r in range(ACC, 256):
        a(f'v_mov_b32 v{r}, 0')
    for sl in range(3):
        a(f's_mov_b32 s70, {sl*SLOT}')
        issue_step(70)
    seq = [(m, j) for m in range(3) for j in range(3)]
    WF = 48
    def set_addr(slot_expr):
        a(f'v_add_u32 v95, {slot_expr}, v91')
        for j in range(3):
            a(f'v_add_u32 v{96+j}, {slot_expr}, v{92+j}')
    def rd_T(ts):
        for t4 in range(4):
            a(f'ds_read_b128 v[{16+16*ts+4*t4}:{19+16*ts+4*t4}], v95 offset:{1024*t4}')
    def rd_W(i):
        m, j = seq[i]
        b = WF + 4 * i
        a(f'ds_read_b64_tr_b16 v[{b}:{b+1}], v{96+j} offset:{m*12288}')
        a(f'ds_read_b64_tr_b16 v[{b+2}:{b+3}], v{96+j} offset:{m*12288+1536}')
    a('s_waitcnt vmcnt(12)')
    a('s_barrier')
    set_addr(0)
    rd_T(0)
    for i in range(9): rd_W(i)
    a('s_mov_b32 s70, 0')
    a(f's_mov_b32 s71, {SLOT}')
    a('s_mov_b32 s72, 0')
    BG = 1
    def step(ts, dmas, vm, rd_next=True):
        dmas = list(dmas)
        for i in range(9):
            m, j = seq[i]
            b = WF + 4 * i
            if i == 0:
                a('s_waitcnt lgkmcnt(14)')
            if i == 1:
                a('s_waitcnt lgkmcnt(12)')
            for t4 in range(4):
                r = accr(m, j, t4)
                tr = 16 + 16 * ts + 4 * t4
                a(f'v_mfma_f32_16x16x32_bf16 v[{r}:{r+3}], v[{b}:{b+3}], v[{tr}:{tr+3}], v[{r}:{r+3}]')
            if i == BG:
                if vm is not None:
                    a(f's_waitcnt vmcnt({vm}) lgkmcnt(0)')
                else:
                    a('s_waitcnt lgkmcnt(0)')
                a('s_barrier')
                if rd_next:
                    set_addr('s71')
                    rd_T(ts ^ 1)
                    for k in range(BG + 1): rd_W(k)
            elif i > BG:
                if rd_next: rd_W(i)
                if dmas: dmas.pop(0)()
        assert not dmas
    def advance():
        a('s_mov_b32 s70, s71')
        a(f's_add_u32 s71, s71, {SLOT}')
        a(f's_cmp_eq_u32 s71, {3*SLOT}')
        a('s_cselect_b32 s71, 0, s71')
    a.label('T1_LOOP')
    step(0, step_dmas(70), 6); advance()
    step(1, step_dmas(70), 6); advance()
    a('s_add_u32 s72, s72, 1')
    a('s_cmp_lt_u32 s72, 8')
    a('s_cbranch_scc1 T1_LOOP')
    stamp(a, 1)
    step(0, step_dmas(70), 6); advance()
    step(1, wo_dmas(W0BUF, 0), 6); advance()
    step(0, [], 6); advance()
    step(1, wo_dmas(W1BUF, 1), None, rd_next=False)
    a('s_nop 7')
    a('s_nop 1')
    stamp(a, 2)
    FR = 16
    def fr(m, t4, j):
        return FR + m * 24 + (t4 * 3 + j) * 2
    for m in (2, 0, 1):
        for t4 in range(4):
            for j in range(3):
                f = fr(m, t4, j)
                a0 = accr(m, j, t4)
                a(f'v_cvt_pk_bf16_f32 v{f}, v{a0}, v{a0+1}')
                a(f'v_cvt_pk_bf16_f32 v{f+1}, v{a0+2}, v{a0+3}')
        if m == 2:
            a('s_mul_i32 s42, s39, 24576')
            a('s_mul_i32 s43, s41, 3072')
            a('s_add_u32 s42, s42, s43')
            a('v_lshlrev_b32 v5, 3, v1')
            a('v_add_u32 v4, s42, v5')
            for t4 in range(4):
                for j in range(3):
                    f = fr(2, t4, j)
                    a(f'ds_write_b64 v4, v[{f}:{f+1}] offset:{VLBUF + (t4>>1)*12288 + j*1024 + (t4&1)*512}')
    a('s_lshl_b32 s42, s39, 1')
    a('s_lshl_b32 s43, s56, 2')
    a('s_add_u32 s42, s42, s43')
    a('s_lshl_b32 s42, s42, 5')
    a('s_add_u32 s73, s42, s57')
    a('s_mul_i32 s42, s73, 12288')
    a('s_mul_i32 s43, s41, 3072')
    a('s_add_u32 s42, s42, s43')
    for m, base in ((0, WS_QF), (1, WS_KF)):
        for sg in range(2):
            a(f's_add_u32 s43, s42, {base + sg * 32 * 12288}')
            for i in range(3):
                f = FR + m * 24 + sg * 12 + 4 * i
                a(f'buffer_store_dwordx4 v[{f}:{f+3}], v15, s[32:35], s43 offen offset:{i*1024}')
    a('s_waitcnt lgkmcnt(0)')
    a('s_barrier')
    stamp(a, 3)
    VF = 112
    a('s_mul_i32 s42, s39, 24576')
    a('v_add_u32 v4, s42, v5')
    for sg in range(2):
        if sg == 1:
            a('v_add_u32 v4, 12288, v4')
        for b in range(6):
            for tt in range(2):
                f = VF + ((sg * 6 + b) * 2 + tt) * 4
                ta, tb = BLK[b]
                a(f'ds_read2st64_b64 v[{f}:{f+3}], v4 offset0:{2*ta+tt} offset1:{2*tb+tt}')
        a('s_waitcnt lgkmcnt(0)')
    a('s_mul_i32 s46, s73, 40960')
    a('s_lshl_b32 s43, s41, 11')
    a('s_add_u32 s46, s46, s43')
    a(f's_add_u32 s46, s46, {WS_YF}')
    y_phase(a, VF, ACC=208, FB=16, seg_stride=32 * 40960, first_wait=6 + 12)
    stamp_rt(a, 15)
    stamp_out(a, 16, 8)
    a.label('T1_END')
    a('s_endpgm')
    return name, kernel_desc(name, 256, 100, 256)

def k_merge(a):
    name = 'merge_kernel'
    kernel_header(a, name)
    a('s_cmp_ge_u32 s2, 160')
    a('s_cbranch_scc1 MG_END')
    a(f's_load_dwordx4 s[48:51], s[0:1], {KA["wv"]}')
    a(f's_load_dwordx2 s[52:53], s[0:1], {KA["ws"]}')
    lane_decomp(a)
    a('s_waitcnt lgkmcnt(0)')
    NW = 640 * 6144 * 2
    make_srd(a, 16, 48, NW)
    make_srd(a, 28, 50, NW)
    make_srd(a, 32, 52, WS_SIZE)
    a('s_and_b32 s57, s2, 31')
    a('s_lshr_b32 s56, s2, 5')
    a('s_lshl_b32 s44, s40, 10')
    y_setup(a)
    a('s_mul_i32 s68, s57, 245760')
    wo_dma(a, 28, W0BUF, 68, 45, 0)
    wo_dma(a, 28, W1BUF, 68, 45, 1)
    a('s_lshl_b32 s42, s39, 1')
    a('s_lshl_b32 s43, s56, 2')
    a('s_add_u32 s73, s42, s43')
    a('v_lshl_add_u32 v4, s73, 5, v2')
    a('v_mul_u32_u24 v4, 12288, v4')
    a('v_lshl_add_u32 v4, v3, 3, v4')
    a('s_mul_i32 s42, s57, 384')
    VF = 112
    for sg in range(2):
        for tt in range(2):
            a(f's_add_u32 s43, s42, {(sg*32 + tt*16)*12288}')
            for b in range(6):
                f = VF + ((sg * 6 + b) * 2 + tt) * 4
                ta, tb = BLK[b]
                a(f'buffer_load_dwordx2 v[{f}:{f+1}], v4, s[16:19], s43 offen offset:{32*ta}')
                a(f'buffer_load_dwordx2 v[{f+2}:{f+3}], v4, s[16:19], s43 offen offset:{32*tb}')
    a(f's_mul_i32 s46, s57, {40*20*1024}')
    a('s_lshl_b32 s43, s73, 10')
    a('s_add_u32 s46, s46, s43')
    a('s_mul_i32 s43, s41, 40960')
    a('s_add_u32 s46, s46, s43')
    a(f's_add_u32 s46, s46, {WS_BF}')
    y_phase(a, VF, ACC=208, FB=16, ct_stride=20480, seg_stride=1024, first_wait=0)
    a.label('MG_END')
    a('s_endpgm')
    return name, kernel_desc(name, 256, 100, 256)
```

```python
from asmlib import *
from layout import *
from k_t1 import lane_decomp, OPT

def xg_reduce(a, op, v, t):
    a(f'v_mov_b32 v{t}, v{v}')
    a('s_nop 1')
    a(f'v_permlane32_swap_b32 v{v}, v{t}')
    a('s_nop 1')
    a(f'v_{op}_f32 v{v}, v{v}, v{t}')
    a(f'v_mov_b32 v{t}, v{v}')
    a('s_nop 1')
    a(f'v_permlane16_swap_b32 v{v}, v{t}')
    a('s_nop 1')
    a(f'v_{op}_f32 v{v}, v{v}, v{t}')

def k_t2(a):
    name = 't2_kernel'
    kernel_header(a, name)
    a('s_cmp_ge_u32 s2, 256')
    a('s_cbranch_scc1 T2_END')
    a(f's_load_dwordx2 s[52:53], s[0:1], {KA["ws"]}')
    lane_decomp(a)
    a('s_waitcnt lgkmcnt(0)')
    make_srd(a, 32, 52, WS_SIZE)
    a('s_lshr_b32 s54, s2, 2')
    a('s_and_b32 s55, s2, 3')
    a('s_lshl_b32 s56, s55, 3')
    a('s_add_u32 s56, s56, s40')
    a('s_lshl_b32 s57, s54, 5')
    a('s_add_u32 s57, s57, s56')
    a('v_lshlrev_b32 v15, 4, v1')
    a('v_lshlrev_b32 v13, 3, v1')
    QR, KR, MR = 16, 64, 112
    a('s_mul_i32 s42, s57, 12288')
    a(f's_add_u32 s43, s42, {WS_QF}')
    a(f's_add_u32 s44, s42, {WS_KF}')
    for fq in range(4):
        for i in range(3):
            if i == 0 and fq:
                a('s_add_u32 s43, s43, 3072'); a('s_add_u32 s44, s44, 3072')
            a(f'buffer_load_dwordx4 v[{QR+12*fq+4*i}:{QR+12*fq+4*i+3}], v15, s[32:35], s43 offen offset:{1024*i}')
            a(f'buffer_load_dwordx4 v[{KR+12*fq+4*i}:{KR+12*fq+4*i+3}], v15, s[32:35], s44 offen offset:{1024*i}')
    a('v_and_b32 v5, 7, v2')
    a('v_lshlrev_b32 v12, 6, v3')
    a('v_lshl_add_u32 v12, v5, 3, v12')
    a('s_mul_i32 s42, s57, 3072')
    a(f's_add_u32 s42, s42, {WS_KM}')
    for fq in range(4):
        for j in range(3):
            r = MR + 6 * fq + 2 * j
            a(f'buffer_load_dwordx2 v[{r}:{r+1}], v12, s[32:35], s42 offen offset:{fq*768 + j*256}')
    YB = [176, 206]
    a('s_lshl_b32 s58, s54, 5')
    a('s_lshl_b32 s59, s55, 3')
    a('s_add_u32 s58, s58, s59')
    a('s_mul_i32 s59, s40, 5')
    a('s_mul_i32 s60, s58, 40960')
    a('s_lshl_b32 s42, s59, 10')
    a('s_add_u32 s60, s60, s42')
    a(f's_add_u32 s60, s60, {WS_YF}')
    a('s_mul_i32 s61, s58, 10240')
    a('s_lshl_b32 s42, s59, 8')
    a('s_add_u32 s61, s61, s42')
    a(f's_add_u32 s61, s61, {WS_UF}')
    a('v_and_b32 v11, 31, v1')
    a('v_lshlrev_b32 v11, 3, v11')
    def ld_yu(b):
        for c in range(5):
            if c < 4:
                a(f'buffer_load_dwordx4 v[{b+4*c}:{b+4*c+3}], v15, s[32:35], s60 offen offset:{1024*c}')
            else:
                a('s_add_u32 s42, s60, 4096')
                a(f'buffer_load_dwordx4 v[{b+4*c}:{b+4*c+3}], v15, s[32:35], s42 offen')
        for c in range(5):
            a(f'buffer_load_dwordx2 v[{b+20+2*c}:{b+20+2*c+1}], v11, s[32:35], s61 offen offset:{256*c}')
        a('s_add_u32 s60, s60, 40960')
        a('s_add_u32 s61, s61, 10240')
    ld_yu(YB[0])
    a('s_waitcnt vmcnt(10)')
    SC = 136
    tiles = [('m', 0), (0, 0), ('m', 1), (0, 1), (1, 1)]
    for fq in range(4):
        for ti, (kt, qt) in enumerate(tiles):
            r = SC + 4 * ti
            qa = QR + 12 * fq + 6 * qt
            ka = (MR + 6 * fq) if kt == 'm' else (KR + 12 * fq + 6 * kt)
            c = '0' if fq == 0 else f'v[{r}:{r+3}]'
            a(f'v_mfma_f32_16x16x32_bf16 v[{r}:{r+3}], v[{ka}:{ka+3}], v[{qa}:{qa+3}], {c}')
        for ti, (kt, qt) in enumerate(tiles):
            r = SC + 4 * ti
            qa = QR + 12 * fq + 6 * qt + 4
            ka = ((MR + 6 * fq) if kt == 'm' else (KR + 12 * fq + 6 * kt)) + 4
            a(f'v_mfma_f32_16x16x16_bf16 v[{r}:{r+3}], v[{ka}:{ka+1}], v[{qa}:{qa+1}], v[{r}:{r+3}]')
    a('s_nop 7')
    a('s_nop 1')
    a(f's_mov_b32 s62, {f2u(192 ** -0.5 * LOG2E):#x}')
    for r in range(20):
        a(f'v_mul_f32 v{SC+r}, s62, v{SC+r}')
    a(f'v_mov_b32 v14, {f2u(-1e30):#x}')
    a('v_cmp_lt_u32 vcc, 1, v3')
    for ti in (0, 2):
        for r in range(4):
            a(f'v_cndmask_b32 v{SC+4*ti+r}, v{SC+4*ti+r}, v14, vcc')
    a('v_lshlrev_b32 v4, 2, v3')
    for r in range(4):
        a(f'v_add_u32 v5, {r}, v4')
        a('v_cmp_gt_u32 vcc, v5, v2')
        for ti in (1, 4):
            a(f'v_cndmask_b32 v{SC+4*ti+r}, v{SC+4*ti+r}, v14, vcc')
    for qt, (lo, n) in enumerate([(SC, 8), (SC + 8, 12)]):
        M = 4
        a(f'v_max_f32 v{M}, v{lo}, v{lo+1}')
        for r in range(2, n, 2):
            a(f'v_max3_f32 v{M}, v{M}, v{lo+r}, v{lo+r+1}')
        xg_reduce(a, 'max', M, 5)
        for r in range(n):
            a(f'v_sub_f32 v{lo+r}, v{lo+r}, v{M}')
        for r in range(n):
            a(f'v_exp_f32 v{lo+r}, v{lo+r}')
        a('s_nop 0')
        a(f'v_add_f32 v{M}, v{lo}, v{lo+1}')
        for r in range(2, n):
            a(f'v_add_f32 v{M}, v{M}, v{lo+r}')
        xg_reduce(a, 'add', M, 5)
        a(f'v_rcp_f32 v{M}, v{M}')
        a('s_nop 0')
        for r in range(n):
            a(f'v_mul_f32 v{lo+r}, v{lo+r}, v{M}')
    P = 16
    a(f'v_cvt_pk_bf16_f32 v{P}, v{SC+4}, v{SC+5}')
    a(f'v_cvt_pk_bf16_f32 v{P+1}, v{SC+6}, v{SC+7}')
    a(f'v_mov_b32 v{P+2}, 0')
    a(f'v_mov_b32 v{P+3}, 0')
    a(f'v_cvt_pk_bf16_f32 v{P+4}, v{SC+12}, v{SC+13}')
    a(f'v_cvt_pk_bf16_f32 v{P+5}, v{SC+14}, v{SC+15}')
    a(f'v_cvt_pk_bf16_f32 v{P+6}, v{SC+16}, v{SC+17}')
    a(f'v_cvt_pk_bf16_f32 v{P+7}, v{SC+18}, v{SC+19}')
    a(f'v_cvt_pk_bf16_f32 v{P+8}, v{SC}, v{SC+1}')
    a(f'v_cvt_pk_bf16_f32 v{P+9}, v{SC+2}, v{SC+3}')
    a(f'v_cvt_pk_bf16_f32 v{P+10}, v{SC+8}, v{SC+9}')
    a(f'v_cvt_pk_bf16_f32 v{P+11}, v{SC+10}, v{SC+11}')
    a('s_mul_i32 s42, s40, 3072')
    a('v_add_u32 v4, s42, v15')
    a('v_add_u32 v5, s42, v13')
    a(f'ds_write_b128 v4, v[{P}:{P+3}]')
    a(f'ds_write_b128 v4, v[{P+4}:{P+7}] offset:1024')
    a(f'ds_write_b64 v5, v[{P+8}:{P+9}] offset:2048')
    a(f'ds_write_b64 v5, v[{P+10}:{P+11}] offset:2560')
    a('s_waitcnt lgkmcnt(0)')
    a('s_barrier')
    ACC = 64
    for r in range(40):
        a(f'v_mov_b32 v{ACC+r}, 0')
    PB = [16, 28]
    def ld_p(hh, b):
        a(f'ds_read_b128 v[{b}:{b+3}], v15 offset:{hh*3072}')
        a(f'ds_read_b128 v[{b+4}:{b+7}], v15 offset:{hh*3072+1024}')
        a(f'ds_read_b64 v[{b+8}:{b+9}], v13 offset:{hh*3072+2048}')
        a(f'ds_read_b64 v[{b+10}:{b+11}], v13 offset:{hh*3072+2560}')
    ld_p(0, PB[0])
    for hh in range(8):
        yb = YB[hh & 1]; pb = PB[hh & 1]
        if hh < 7:
            ld_yu(YB[(hh + 1) & 1])
            ld_p(hh + 1, PB[(hh + 1) & 1])
            a('s_waitcnt vmcnt(10) lgkmcnt(4)')
        else:
            a('s_waitcnt vmcnt(0) lgkmcnt(0)')
        for c in range(5):
            for qt in range(2):
                r = ACC + (c * 2 + qt) * 4
                a(f'v_mfma_f32_16x16x32_bf16 v[{r}:{r+3}], v[{yb+4*c}:{yb+4*c+3}], v[{pb+4*qt}:{pb+4*qt+3}], v[{r}:{r+3}]')
        for c in range(5):
            for qt in range(2):
                r = ACC + (c * 2 + qt) * 4
                a(f'v_mfma_f32_16x16x16_bf16 v[{r}:{r+3}], v[{yb+20+2*c}:{yb+20+2*c+1}], v[{pb+8+2*qt}:{pb+8+2*qt+1}], v[{r}:{r+3}]')
    a('s_nop 7')
    a('s_nop 1')
    a('v_mul_u32_u24 v4, 2560, v2')
    a('v_lshl_add_u32 v4, v3, 4, v4')
    a('s_mul_i32 s42, s55, 5242880')
    a('s_mul_i32 s43, s54, 81920')
    a('s_add_u32 s42, s42, s43')
    a('s_mul_i32 s43, s40, 320')
    a('s_add_u32 s42, s42, s43')
    a(f's_add_u32 s42, s42, {WS_OP}')
    a('s_add_u32 s43, s42, 40960')
    for c in range(5):
        for qt in range(2):
            r = ACC + (c * 2 + qt) * 4
            a(f'buffer_store_dwordx4 v[{r}:{r+3}], v4, s[32:35], s{42+qt} offen offset:{64*c}')
    a.label('T2_END')
    a('s_endpgm')
    return name, kernel_desc(name, 256, 100, 256)
```

```python
WS_MOD = 0x0000000
WS_H1  = 0x0100000
WS_H2  = 0x0400000
WS_X1  = 0x0700000
WS_ACT = 0x0D00000
WS_MEMF = 0x1400000
WS_SC  = 0x1A00000
WS_ZP  = 0x1B00000
WS_QF  = 0x2100000
WS_KF  = 0x3A00000
WS_BF  = 0x5300000
WS_UF  = 0x6C00000
WS_YF  = 0x8100000
WS_OP  = 0xD100000
WS_KM  = 0xE600000
WS_SIZE = 0x10000000
FILL_BEG = 0x1400000
FILL_END = 0x1C00000
LOG2E = 1.4426950408889634
import struct
def f2u(f):
    return struct.unpack('<I', struct.pack('<f', f))[0]
WS_CNT = 0x0010000
```

```python
import sys
sys.path.insert(0, 'dev')
from asmlib import *

NAME = 'adaLN_cond__memory_aug_recurrent_mem_tr__glu_gated_geglu__prompt'

from layout import *
from k_t1 import *
from k_chain import *
from k_t2 import *
from k_ffn import k_ln2, k_t3a, k_t3b

def row_allreduce(a, op, v, tmp=None):
    for r in (8, 4, 2, 1):
        a('s_nop 1')
        a(f'v_{op}_f32_dpp v{v}, v{v}, v{v} row_ror:{r} row_mask:0xf bank_mask:0xf')

def wave_allreduce_add(a, v, s0):
    row_allreduce(a, 'add', v)
    a('s_nop 1')
    for i in range(4):
        a(f'v_readlane_b32 s{s0+i}, v{v}, {16*i}')
    a('s_nop 1')
    a(f'v_mov_b32 v{v}, s{s0}')
    for i in range(1, 4):
        a(f'v_add_f32 v{v}, s{s0+i}, v{v}')

def bf16_round_f32(a, v, tmp):
    a(f'v_cvt_pk_bf16_f32 v{v}, v{v}, v{v}')
    a(f'v_lshlrev_b32 v{v}, 16, v{v}')

def k_mod(a):
    name = 'k0_mod_kernel'
    kernel_header(a, name)
    a('s_cmp_ge_u32 s2, 60')
    a('s_cbranch_scc1 K0_END')
    a(f's_load_dwordx2 s[4:5], s[0:1], {KA["c"]}')
    a(f's_load_dwordx2 s[6:7], s[0:1], {KA["wmod"]}')
    a(f's_load_dwordx2 s[8:9], s[0:1], {KA["ws"]}')
    a('s_waitcnt lgkmcnt(0)')
    make_srd(a, 12, 4, 1280)
    make_srd(a, 16, 6, 640 * 3840 * 2)
    make_srd(a, 20, 8, 15360, WS_MOD)
    a('v_lshlrev_b32 v1, 1, v0')
    a('buffer_load_ushort v2, v1, s[12:15], 0 offen')
    a('buffer_load_ushort v3, v1, s[12:15], 0 offen offset:512')
    a('buffer_load_ushort v4, v1, s[12:15], 0 offen offset:1024')
    a('s_waitcnt vmcnt(0)')
    a(f's_mov_b32 s24, {f2u(-LOG2E):#x}')
    for v in (2, 3, 4):
        a(f'v_lshlrev_b32 v{v}, 16, v{v}')
        a(f'v_mul_f32 v5, s24, v{v}')
        a('v_exp_f32 v5, v5')
        a('s_nop 0')
        a('v_add_f32 v5, 1.0, v5')
        a('v_rcp_f32 v5, v5')
        a('s_nop 0')
        a(f'v_mul_f32 v{v}, v{v}, v5')
        bf16_round_f32(a, v, 5)
    a('v_lshlrev_b32 v1, 2, v0')
    a('ds_write_b32 v1, v2')
    a('ds_write_b32 v1, v3 offset:1024')
    a('ds_write_b32 v1, v4 offset:2048')
    a('s_waitcnt lgkmcnt(0)')
    a('s_barrier')
    a('v_and_b32 v1, 63, v0')
    a('v_lshrrev_b32 v2, 6, v0')
    a('v_lshrrev_b32 v3, 4, v1')
    a('v_and_b32 v4, 15, v1')
    a('v_mul_u32_u24 v5, 160, v2')
    a('v_add_u32 v5, v5, v3')
    a('v_lshlrev_b32 v6, 2, v5')
    a('v_mul_u32_u24 v7, 7680, v5')
    a('s_lshl_b32 s3, s2, 7')
    a('v_lshlrev_b32 v8, 3, v4')
    a('v_add3_u32 v7, v7, v8, s3')
    for i in range(4):
        a(f'v_mov_b32 v{10+i}, 0')
    a('s_mov_b32 s25, 0')
    a('s_mov_b32 s26, 0')
    a.label('K0_LOOP')
    for u in range(8):
        a(f'buffer_load_dwordx2 v[{16+2*u}:{17+2*u}], v7, s[16:19], s25 offen')
        a(f'ds_read_b32 v{32+u}, v6 offset:{16*u}')
        a('s_add_u32 s25, s25, 30720')
    a('v_add_u32 v6, 128, v6')
    for u in range(8):
        a(f's_waitcnt vmcnt({7-u}) lgkmcnt({7-u})')
        lo, hi = 16 + 2 * u, 17 + 2 * u
        a(f'v_lshlrev_b32 v40, 16, v{lo}')
        a(f'v_and_b32 v41, 0xffff0000, v{lo}')
        a(f'v_lshlrev_b32 v42, 16, v{hi}')
        a(f'v_and_b32 v43, 0xffff0000, v{hi}')
        for i in range(4):
            a(f'v_fmac_f32 v{10+i}, v{32+u}, v{40+i}')
    a('s_add_u32 s26, s26, 1')
    a('s_cmp_lt_u32 s26, 5')
    a('s_cbranch_scc1 K0_LOOP')
    a('v_lshl_add_u32 v5, v2, 2, v3')
    a('v_lshlrev_b32 v5, 8, v5')
    a('v_lshl_add_u32 v5, v4, 4, v5')
    a('ds_write_b128 v5, v[10:13] offset:4096')
    a('s_waitcnt lgkmcnt(0)')
    a('s_barrier')
    a('v_cmp_gt_u32 vcc, 64, v0')
    a('s_and_saveexec_b64 s[28:29], vcc')
    a('s_cbranch_execz K0_END')
    a('v_lshlrev_b32 v5, 2, v0')
    for i in range(16):
        a(f'ds_read_b32 v{16+i}, v5 offset:{4096+256*i}')
    a('s_waitcnt lgkmcnt(0)')
    for i in range(1, 16):
        a(f'v_add_f32 v16, v16, v{16+i}')
    bf16_round_f32(a, 16, 17)
    a('s_lshl_b32 s3, s2, 8')
    a('v_add_u32 v5, s3, v5')
    a('buffer_store_dword v16, v5, s[20:23], 0 offen')
    a.label('K0_END')
    a('s_endpgm')
    return name, kernel_desc(name, 64, 32, 64)

def ln_rows(a, lbl, nrows_per_wave, src_is_f32, mod_shift_idx, mod_scale_idx):
    pass

def k_ln1(a):
    name = 'k1_ln1_kernel'
    kernel_header(a, name)
    a('s_cmp_ge_u32 s2, 256')
    a('s_cbranch_scc1 K1_END')
    a(f's_load_dwordx2 s[4:5], s[0:1], {KA["x"]}')
    a(f's_load_dwordx2 s[8:9], s[0:1], {KA["ws"]}')
    a('s_waitcnt lgkmcnt(0)')
    make_srd(a, 12, 4, 2048 * 1280)
    make_srd(a, 16, 8, 2048 * 1280, WS_H1)
    make_srd(a, 20, 8, 15360, WS_MOD)
    a('v_and_b32 v1, 63, v0')
    a('v_lshrrev_b32 v2, 6, v0')
    a('v_lshlrev_b32 v3, 3, v1')
    a('s_mov_b32 s24, 2560')
    for i in range(5):
        a(f'buffer_load_dwordx2 v[{40+2*i}:{41+2*i}], v3, s[20:23], 0 offen offset:{512*i}')
        a(f'buffer_load_dwordx2 v[{50+2*i}:{51+2*i}], v3, s[20:23], s24 offen offset:{512*i}')
    a('s_lshl_b32 s3, s2, 3')
    a('v_lshl_add_u32 v4, v2, 1, s3')
    a('v_mul_u32_u24 v4, 1280, v4')
    a('v_lshl_add_u32 v4, v1, 2, v4')
    for r in range(2):
        for i in range(5):
            a(f'buffer_load_dword v{10+5*r+i}, v4, s[12:15], 0 offen offset:{1280*r+256*i}')
    a('s_waitcnt vmcnt(10)')
    for i in range(10):
        a(f'v_add_f32 v{50+i}, 1.0, v{50+i}')
    for i in range(10):
        bf16_round_f32(a, 50 + i, 0)
    a('s_waitcnt vmcnt(0)')
    a(f's_mov_b32 s24, {f2u(1.0/640):#x}')
    a(f's_mov_b32 s25, {f2u(1e-5):#x}')
    for r in range(2):
        for i in range(5):
            a(f'v_lshlrev_b32 v{20+2*i}, 16, v{10+5*r+i}')
            a(f'v_and_b32 v{21+2*i}, 0xffff0000, v{10+5*r+i}')
        a('v_add_f32 v30, v20, v21')
        for i in range(2, 10):
            a(f'v_add_f32 v30, v30, v{20+i}')
        wave_allreduce_add(a, 30, 28)
        a('v_mul_f32 v30, s24, v30')
        for i in range(10):
            a(f'v_sub_f32 v{20+i}, v{20+i}, v30')
        a('v_mul_f32 v31, v20, v20')
        for i in range(1, 10):
            a(f'v_fmac_f32 v31, v{20+i}, v{20+i}')
        wave_allreduce_add(a, 31, 28)
        a('v_mul_f32 v31, s24, v31')
        a('v_add_f32 v31, s25, v31')
        a('v_rsq_f32 v31, v31')
        a('s_nop 0')
        for i in range(10):
            a(f'v_mul_f32 v{20+i}, v{20+i}, v31')
            a(f'v_fma_f32 v{20+i}, v{20+i}, v{50+i}, v{40+i}')
        for i in range(5):
            a(f'v_cvt_pk_bf16_f32 v{32+i}, v{20+2*i}, v{21+2*i}')
        for i in range(5):
            a(f'buffer_store_dword v{32+i}, v4, s[16:19], 0 offen offset:{1280*r+256*i}')
    a.label('K1_END')
    a('s_endpgm')
    return name, kernel_desc(name, 64, 40, 64)

def build(kernels, outpath):
    a = Asm()
    descs = []
    launches = []
    for fn, grid, block, lds in kernels:
        name, d = fn(a)
        descs.append(d)
        launches.append(f'; @launch kernel={name} grid=({grid},1,1) block=({block},1,1) lds={lds}')
    hdr = '\n'.join(launches) + '\n.amdgcn_target "amdgcn-amd-amdhsa--gfx950"\n.text\n'
    txt = hdr + a.text() + '.section .rodata,"a"\n.p2align 6\n' + '.p2align 6\n'.join(descs)
    open(outpath, 'w').write(txt)

if __name__ == '__main__':
    ks = [(k_init, 256, 256, 0), (k_mod, 60, 256, 8192 + 4096), (k_mem0, 8, 256, 0), (k_ln1, 256, 256, 0), (k_merge, 160, 512, 147456), (k_t1, 512, 512, 147456), (k_chain, 128, 512, 147456), (k_t2, 256, 512, 24576), (k_ln2, 256, 256, 0), (k_t3a, 192, 512, 98304), (k_t3b, 160, 512, 131072)]
    build(ks, sys.argv[1] if len(sys.argv) > 1 else 'test.s')
```

```python
from asmlib import *
from layout2 import *
from k_t1 import lane_decomp, OPT
from k_chain import role_assign, pub, lds_spin
import os

L_FLAG = 0
L_PX = 256
L_PM = 2304
L_MEM = 4096
L_VM = 14336
L_KX = 20480
L_VX = 69632
LDS_CHAIN3 = 147456
NSTEP = int(os.environ.get('NSTEP', '64'))
D_MEM = int(os.environ.get('D_MEM', '0'))
D_SC = int(os.environ.get('D_SC', '4'))
D_Z = int(os.environ.get('D_Z', '8'))
D_V = int(os.environ.get('D_V', '8'))
S_G1 = 196608
S_G2 = 98304
S_ZP = 163840

SB = 20
def stamp(a, i):
    if 'stamp' not in OPT: return
    l = a.newlabel('ST')
    a('s_cmp_lg_u32 s84, 30')
    a(f's_cbranch_scc1 {l}')
    a('s_memtime s[96:97]')
    a('s_waitcnt lgkmcnt(0)')
    a(f's_mov_b32 s{SB+i}, s96')
    a.label(l)

def stampc(a, i):
    if 'stamp' not in OPT: return
    l = a.newlabel('ST')
    a('s_cmp_lg_u32 s84, 30')
    a(f's_cbranch_scc1 {l}')
    a(f's_mov_b32 s{SB+i}, s88')
    a.label(l)

def poll_sent(a, lbl, loads, check_regs, vtmp):
    a.label(lbl)
    loads()
    a('s_waitcnt vmcnt(0)')
    rs = list(check_regs)
    a(f'v_max_u32 v{vtmp}, v{rs[0]}, v{rs[1]}')
    rs = rs[2:]
    while len(rs) >= 2:
        a(f'v_max3_u32 v{vtmp}, v{vtmp}, v{rs[0]}, v{rs[1]}'); rs = rs[2:]
    if rs:
        a(f'v_max_u32 v{vtmp}, v{vtmp}, v{rs[0]}')
    a(f'v_cmp_eq_u32 vcc, -1, v{vtmp}')
    a('s_add_u32 s88, s88, 1')
    a('s_cmp_lt_u32 s88, 0x100000')
    a('s_cselect_b64 s[90:91], vcc, 0')
    a('s_cmp_lg_u64 s[90:91], 0')
    a(f's_cbranch_scc1 {lbl}')

def k_chain3(a):
    name = 'chain3_kernel'
    kernel_header(a, name)
    a('s_cmp_ge_u32 s2, 128')
    a('s_cbranch_scc1 C3_END')
    a(f's_load_dwordx4 s[4:7], s[0:1], {KA["wq"]}')
    a(f's_load_dwordx4 s[48:51], s[0:1], {KA["wv"]}')
    a(f's_load_dwordx2 s[52:53], s[0:1], {KA["ws"]}')
    a(f's_load_dwordx2 s[94:95], s[0:1], {KA["mem0"]}')
    lane_decomp(a)
    a('s_waitcnt lgkmcnt(0)')
    NW = 640 * 6144 * 2
    make_srd(a, 8, 4, NW)
    make_srd(a, 12, 6, NW)
    make_srd(a, 16, 48, NW)
    make_srd(a, 28, 50, NW)
    make_srd(a, 32, 52, WS_SIZE)
    make_srd(a, 36, 94, 8 * 1280)
    a('s_mov_b32 s88, 0')
    role_assign(a, 128, 16)
    chain3_body(a)
    a.label('C3_END')
    a('s_endpgm')
    return name, kernel_desc(name, 256, 100, 256)

def chain3_body(a):
    NW = 640 * 6144 * 2
    def lbl(n): return f'C3_{n}'
    a('s_lshr_b32 s56, s55, 3')
    a('s_and_b32 s57, s55, 7')
    a('s_lshl_b32 s58, s54, 1')
    a('s_add_u32 s58, s58, s56')
    a('s_lshr_b32 s59, s57, 2')
    a('s_lshl_b32 s60, s58, 1')
    a('s_add_u32 s59, s59, s60')
    a('s_and_b32 s61, s57, 3')
    a('s_mul_i32 s42, s59, 384')
    a('s_mul_i32 s43, s61, 96')
    a('s_add_u32 s62, s42, s43')
    a('s_and_b32 s41, s40, 3')
    a('s_cmp_lt_u32 s40, 4')
    a('s_cselect_b32 s24, s8, s12')
    a('s_cselect_b32 s25, s9, s13')
    a(f's_mov_b32 s26, {NW}')
    a('s_mov_b32 s27, 0x00020000')
    a('s_mul_i32 s42, s41, 960')
    def wdma():
        for i in range(15):
            a(f's_add_u32 s43, s42, {64*i}')
            a('v_add_u32 v4, s43, v1')
            a('v_mul_u32_u24 v5, 10923, v4')
            a('v_lshrrev_b32 v5, 16, v5')
            a('v_mul_u32_u24 v6, 6, v5')
            a('v_sub_u32 v6, v4, v6')
            a('v_mul_u32_u24 v5, 12288, v5')
            a('v_lshl_add_u32 v5, v6, 4, v5')
            a('s_mul_i32 s43, s40, 15360')
            a(f's_add_u32 m0, s43, {1024*i}')
            a('s_nop 0')
            a('buffer_load_dwordx4 v5, s[24:27], s62 offen lds')
    wdma()
    a('v_lshlrev_b32 v15, 4, v1')
    a('v_lshlrev_b32 v13, 3, v1')
    a('s_waitcnt vmcnt(0)')
    a('s_barrier')
    WQ, WK = 20, 100
    a('v_lshrrev_b32 v4, 2, v2')
    a('v_lshl_add_u32 v4, v3, 2, v4')
    a('v_mul_u32_u24 v4, 96, v4')
    a('v_and_b32 v5, 3, v2')
    a('v_lshl_add_u32 v4, v5, 3, v4')
    a('s_cmp_ge_u32 s40, 3')
    a(f's_cbranch_scc1 {lbl("NOSW")}')
    a('s_lshl_b32 s42, s40, 5')
    a('v_add_u32 v8, s42, v4')
    a('v_add_u32 v9, 61440, v8')
    for base, ad in ((WQ, 8), (WK, 9)):
        for t in range(20):
            f = base + 4 * t
            a(f'ds_read_b64_tr_b16 v[{f}:{f+1}], v{ad} offset:{t*3072}')
            a(f'ds_read_b64_tr_b16 v[{f+2}:{f+3}], v{ad} offset:{t*3072+1536}')
            if t % 4 == 3:
                a('s_waitcnt lgkmcnt(0)')
    a.label(lbl('NOSW'))
    a('s_waitcnt lgkmcnt(0)')
    a('s_barrier')
    a('s_mul_i32 s42, s41, 960')
    a('s_cmp_ge_u32 s40, 4')
    a(f's_cbranch_scc1 {lbl("R2WO")}')
    a('s_mov_b32 s24, s16')
    a('s_mov_b32 s25, s17')
    wdma()
    a(f's_branch {lbl("R2END")}')
    a.label(lbl('R2WO'))
    a('s_mul_i32 s44, s58, 491520')
    a('s_mul_i32 s45, s57, 160')
    a('s_add_u32 s44, s44, s45')
    for i in range(15):
        a(f's_add_u32 s43, s42, {64*i}')
        a('v_add_u32 v5, s43, v1')
        a('v_mul_u32_u24 v6, 6554, v5')
        a('v_lshrrev_b32 v6, 16, v6')
        a('v_mul_u32_u24 v7, 10, v6')
        a('v_sub_u32 v7, v5, v7')
        a('v_mul_u32_u24 v6, 1280, v6')
        a('v_lshl_add_u32 v6, v7, 4, v6')
        a('s_mul_i32 s43, s40, 15360')
        a(f's_add_u32 m0, s43, {1024*i}')
        a('s_nop 0')
        a('buffer_load_dwordx4 v6, s[28:31], s44 offen lds')
    a.label(lbl('R2END'))
    a('s_waitcnt vmcnt(0)')
    a('s_barrier')
    WO, VW = 16, 64
    a('s_cmp_lt_u32 s40, 3')
    a(f's_cbranch_scc1 {lbl("NOZW")}')
    a('s_sub_u32 s74, s40, 3')
    a('v_lshrrev_b32 v5, 2, v2')
    a('v_lshl_add_u32 v5, v3, 2, v5')
    a('v_mul_u32_u24 v5, 160, v5')
    a('v_and_b32 v6, 3, v2')
    a('v_lshl_add_u32 v5, v6, 3, v5')
    a('s_lshl_b32 s42, s74, 5')
    a('s_add_u32 s42, s42, 61440')
    a('v_add_u32 v5, s42, v5')
    for hh in range(2):
        for b in range(6):
            f = WO + (hh * 6 + b) * 4
            ta, tb = BLK[b]
            a(f'ds_read_b64_tr_b16 v[{f}:{f+1}], v5 offset:{(hh*192 + 16*ta)*160}')
            a(f'ds_read_b64_tr_b16 v[{f+2}:{f+3}], v5 offset:{(hh*192 + 16*tb)*160}')
        a('s_waitcnt lgkmcnt(0)')
    a('s_mov_b32 s79, 99')
    for wv, tl in ((3, 0), (7, 1), (6, 2)):
        a(f's_cmp_eq_u32 s40, {wv}')
        a(f's_cselect_b32 s79, {tl}, s79')
    a('s_cmp_eq_u32 s79, 99')
    a(f's_cbranch_scc1 {lbl("NOZW")}')
    a('v_lshrrev_b32 v4, 2, v2')
    a('v_lshl_add_u32 v4, v3, 2, v4')
    a('v_mul_u32_u24 v4, 96, v4')
    a('v_and_b32 v5, 3, v2')
    a('v_lshl_add_u32 v4, v5, 3, v4')
    a('s_lshl_b32 s42, s79, 5')
    a('v_add_u32 v8, s42, v4')
    for t in range(20):
        f = VW + 4 * t
        a(f'ds_read_b64_tr_b16 v[{f}:{f+1}], v8 offset:{t*3072}')
        a(f'ds_read_b64_tr_b16 v[{f+2}:{f+3}], v8 offset:{t*3072+1536}')
        if t % 4 == 3:
            a('s_waitcnt lgkmcnt(0)')
    a.label(lbl('NOZW'))
    a('s_waitcnt lgkmcnt(0)')
    a('s_barrier')
    a('v_mov_b32 v11, 0')
    a('v_mov_b32 v12, -1')
    a('v_cmp_gt_u32 vcc, 8, v2')
    a('s_mov_b64 s[64:65], vcc')
    a('s_mov_b32 s66, -1')
    a('s_mov_b32 s67, 0')
    a('s_mov_b32 s98, 0')
    a('s_mov_b32 s99, -1')
    a('ds_write_b32 v11, v11 offset:8')
    a('ds_write_b32 v11, v11 offset:12')
    a('ds_write_b32 v11, v11 offset:32')
    for i in range(2):
        l = a.newlabel('M0S')
        a(f'v_add_u32 v4, {512*i}, v0')
        a('v_cmp_gt_u32 vcc, 640, v4')
        a('s_and_saveexec_b64 s[44:45], vcc')
        a(f's_cbranch_execz {l}')
        a('v_lshrrev_b32 v5, 6, v4')
        a('v_bfe_u32 v6, v4, 3, 1')
        a('v_mul_u32_u24 v6, 10, v6')
        a('v_add_u32 v5, v5, v6')
        a('v_bfe_u32 v6, v4, 4, 2')
        a('v_and_b32 v7, 7, v4')
        a('v_mul_u32_u24 v7, 1280, v7')
        a('v_lshl_add_u32 v7, v5, 6, v7')
        a('v_lshl_add_u32 v7, v6, 3, v7')
        a('buffer_load_dwordx2 v[8:9], v7, s[36:39], 0 offen')
        a('buffer_load_dwordx2 v[10:11], v7, s[36:39], 0 offen offset:32')
        a('v_lshlrev_b32 v6, 4, v4')
        a('s_waitcnt vmcnt(0)')
        a(f'ds_write_b128 v6, v[8:11] offset:{L_MEM}')
        a.label(l)
        a('s_mov_b64 exec, s[44:45]')
    a('v_mov_b32 v11, 0')
    a('s_mul_i32 s68, s54, 40960')
    a(f's_add_u32 s68, s68, {WS_MEMF}')
    a('s_mul_i32 s42, s58, 24576')
    a(f's_add_u32 s70, s42, {WS_KF}')
    a(f's_add_u32 s71, s42, {WS_VF}')
    a('s_sub_u32 s46, s40, 4')
    a('s_mul_i32 s46, s46, 6144')
    def dma_blk(src_s, lds_s):
        a(f's_add_u32 s43, s{src_s}, s46')
        a(f's_add_u32 s47, s{lds_s}, s46')
        for i in range(6):
            a(f's_add_u32 m0, s47, {1024*i}')
            if i:
                a('s_add_u32 s43, s43, 1024')
            else:
                a('s_nop 0')
            a(f'buffer_load_dwordx4 v15, s[32:35], s43 offen lds')
    a('s_cmp_lt_u32 s40, 4')
    a(f's_cbranch_scc1 {lbl("NOPD")}')
    a(f's_mov_b32 s45, {L_KX}')
    dma_blk(70, 45)
    a(f's_mov_b32 s45, {L_VX}')
    dma_blk(71, 45)
    a('s_add_u32 s71, s71, 393216')
    a(f's_mov_b32 s45, {L_VX + 24576}')
    dma_blk(71, 45)
    a.label(lbl('NOPD'))
    a('s_mul_i32 s42, s58, 24576')
    a(f's_add_u32 s70, s42, {WS_KF + 393216}')
    a(f's_add_u32 s71, s42, {WS_VF + 2*393216}')
    a('s_mov_b32 s84, 0')
    a('s_mov_b32 s86, 0')
    a('s_mov_b32 s89, 1')
    a('s_waitcnt vmcnt(0) lgkmcnt(0)')
    a('s_barrier')
    a('s_cmp_ge_u32 s40, 3')
    a(f's_cbranch_scc1 {lbl("ZWAVE")}')
    SEL = 16
    MF = 180
    AC = 220
    a('s_setprio 3')
    a(f's_mov_b32 s87, {f2u(192 ** -0.5 * LOG2E):#x}')
    for r in range(4):
        a(f'v_mov_b32 v{SEL+r}, 0')
        a(f'v_mov_b32 v4, 0x3f80')
        a(f'v_cmp_eq_u32 vcc, {2*r}, v2')
        a(f'v_cndmask_b32 v{SEL+r}, v{SEL+r}, v4, vcc')
        a(f'v_mov_b32 v4, 0x3f800000')
        a(f'v_cmp_eq_u32 vcc, {2*r+1}, v2')
        a(f'v_cndmask_b32 v{SEL+r}, v{SEL+r}, v4, vcc')
    a('s_lshr_b32 s42, s61, 1')
    a('s_add_u32 s42, s42, 4')
    a('s_and_b32 s43, s61, 1')
    a('s_cmp_eq_u32 s40, 2')
    a('s_cselect_b32 s42, s42, s61')
    a('s_cselect_b32 s43, s43, s40')
    a('s_lshl_b32 s42, s42, 10')
    a('s_lshl_b32 s43, s43, 3')
    a('s_add_u32 s42, s42, s43')
    a('s_mul_i32 s43, s59, 6144')
    a('s_add_u32 s42, s42, s43')
    a(f's_add_u32 s72, s42, {WS_G1}')
    a(f's_add_u32 s73, s42, {WS_HQK}')
    a('s_lshl_b32 s42, s58, 1')
    a('s_add_u32 s42, s42, s40')
    a('s_mul_i32 s42, s42, 6144')
    a(f's_add_u32 s75, s42, {WS_G1}')
    a('s_lshl_b32 s80, s40, 4')
    a('s_add_u32 s80, s80, s55')
    a('s_lshl_b32 s81, s80, 8')
    a(f's_add_u32 s81, s81, {WS_ZP}')
    a('v_mul_u32_u24 v10, 10240, v3')
    a('v_lshl_add_u32 v10, v2, 4, v10')
    a('s_lshr_b32 s42, s80, 1')
    a('s_cmp_ge_u32 s42, 10')
    a('s_cselect_b32 s43, 10, 0')
    a('s_cselect_b32 s44, 128, 0')
    a('s_sub_u32 s42, s42, s43')
    a('s_lshl_b32 s42, s42, 10')
    a('s_add_u32 s42, s42, s44')
    a('s_and_b32 s43, s80, 1')
    a('s_lshl_b32 s43, s43, 3')
    a('s_add_u32 s42, s42, s43')
    a('s_add_u32 s82, s42, s68')
    a(f'v_add_u32 v6, {L_MEM}, v15')
    a('s_mul_i32 s42, s40, 12288')
    a(f's_add_u32 s42, s42, {L_KX}')
    a('v_add_u32 v7, s42, v15')
    a('v_mov_b32 v8, -1')
    a('v_mov_b32 v9, -1')
    a('s_lshl_b32 s42, s40, 10')
    a(f's_add_u32 s42, s42, {L_PX}')
    a('v_add_u32 v5, s42, v15')
    a('s_cmp_eq_u32 s40, 0')
    a('s_cselect_b32 s42, 0, 256')
    a(f's_add_u32 s42, s42, {L_PM - 256}')
    a('v_add_u32 v4, s42, v13')
    a('s_lshl_b32 s42, s40, 2')
    a(f's_add_u32 s42, s42, {L_FLAG + 8}')
    a('v_mov_b32 v12, s42')
    a('s_mov_b32 s83, 0')
    a.label(lbl('SLOOP'))
    a('s_waitcnt vmcnt(0)')
    stamp(a, 0)
    a('s_barrier')
    stamp(a, 1)
    for t in range(10):
        a(f'ds_read_b128 v[{MF+4*t}:{MF+4*t+3}], v6 offset:{1024*t}')
    for t in range(10):
        a(f's_waitcnt lgkmcnt({9-t})')
        b = MF + 4 * t
        for ai, W in ((0, WQ + 4*t), (1, WQ + 4*(t+10)), (2, WK + 4*t), (3, WK + 4*(t+10))):
            acc = AC + 4 * ai
            c = '0' if t == 0 else f'v[{acc}:{acc+3}]'
            a(f'v_mfma_f32_16x16x32_bf16 v[{acc}:{acc+3}], v[{W}:{W+3}], v[{b}:{b+3}], {c}')
    a('s_mul_i32 s42, s86, 196608')
    a('s_add_u32 s42, s42, s72')
    a('s_nop 7')
    for r in range(4):
        a(f'v_add_f32_dpp v{AC+r}, v{AC+4+r}, v{AC+r} row_ror:8 row_mask:0xf bank_mask:0xf')
    for r in range(4):
        a(f'v_add_f32_dpp v{AC+12+r}, v{AC+8+r}, v{AC+12+r} row_ror:8 row_mask:0xf bank_mask:0xf')
    for r in range(4):
        a(f'v_mul_f32 v{AC+r}, s87, v{AC+r}')
    a('s_mov_b64 vcc, s[64:65]')
    for r in range(4):
        a(f'v_cndmask_b32 v{AC+r}, v{AC+12+r}, v{AC+r}, vcc')
    a(f'v_cvt_pk_bf16_f32 v{AC+4}, v{AC}, v{AC+1}')
    a(f'v_cvt_pk_bf16_f32 v{AC+5}, v{AC+2}, v{AC+3}')
    pub(a, [f'buffer_store_dwordx2 v[{AC+4}:{AC+5}], v15, s[32:35], s42 offen'])
    stamp(a, 2)
    a(f'buffer_store_dwordx2 v[{AC+4}:{AC+5}], v15, s[32:35], s73 offen')
    a('s_add_u32 s73, s73, 196608')
    a('s_add_u32 s43, s86, 2')
    a('s_and_b32 s43, s43, 3')
    a('s_mul_i32 s43, s43, 196608')
    a('s_add_u32 s43, s43, s72')
    pub(a, [f'buffer_store_dwordx2 v[8:9], v15, s[32:35], s43 offen'])
    a(f's_cmp_ge_u32 s84, {NSTEP-1}')
    a(f's_cbranch_scc1 {lbl("DONE")}')
    a('s_cmp_eq_u32 s40, 2')
    a(f's_cbranch_scc1 {lbl("SRED")}')
    R = 180
    KS = 204
    SC = 244
    def rd_k(i, slot):
        a(f'ds_read_b128 v[{KS+4*slot}:{KS+4*slot+3}], v7 offset:{1024*i}')
    for i in range(10): rd_k(i, i)
    a('s_mul_i32 s42, s86, 196608')
    a('s_add_u32 s42, s42, s75')
    a('s_add_u32 s43, s42, 4096')
    if D_SC: a(f's_sleep {D_SC}')
    def ld_g1():
        for b in range(6):
            so = 42 if b < 4 else 43
            a(f'buffer_load_dwordx4 v[{R+4*b}:{R+4*b+3}], v15, s[32:35], s{so} offen offset:{1024*(b%4)} sc1')
    poll_sent(a, lbl('POLLG'), ld_g1, [R + 4*b + o for b in range(6) for o in (0, 2)], 14)
    stamp(a, 3)
    a('s_waitcnt lgkmcnt(0)')
    for b in range(6):
        c = '0' if b == 0 else f'v[{SC+4}:{SC+7}]'
        a(f'v_mfma_f32_16x16x32_bf16 v[{SC+4}:{SC+7}], v[{KS+4*b}:{KS+4*b+3}], v[{R+4*b}:{R+4*b+3}], {c}')
    rd_k(10, 0); rd_k(11, 1)
    for b in range(6):
        c = '0' if b == 0 else f'v[{SC}:{SC+3}]'
        a(f'v_mfma_f32_16x16x32_bf16 v[{SC}:{SC+3}], v[{R+4*b}:{R+4*b+3}], v[{R+4*b}:{R+4*b+3}], {c}')
    a('s_waitcnt lgkmcnt(0)')
    for b in range(6):
        c = '0' if b == 0 else f'v[{SC+8}:{SC+11}]'
        sl = (6 + b) if b < 4 else (b - 4)
        a(f'v_mfma_f32_16x16x32_bf16 v[{SC+8}:{SC+11}], v[{KS+4*sl}:{KS+4*sl+3}], v[{R+4*b}:{R+4*b+3}], {c}')
    a(f'v_mov_b32 v14, {f2u(-1e30):#x}')
    a('v_cmp_gt_u32 vcc, 2, v3')
    a('s_nop 7')
    stamp(a, 4)
    for r in range(4):
        a(f'v_cndmask_b32 v{SC+r}, v{SC+r}, v14, vcc')
    M = 180
    a(f'v_max3_f32 v{M}, v{SC+4}, v{SC+5}, v{SC+6}')
    a(f'v_max3_f32 v{M+1}, v{SC+7}, v{SC+8}, v{SC+9}')
    a(f'v_max3_f32 v{M+2}, v{SC+10}, v{SC+11}, v{SC}')
    a(f'v_max3_f32 v{M+3}, v{SC+1}, v{SC+2}, v{SC+3}')
    a(f'v_max3_f32 v{M}, v{M}, v{M+1}, v{M+2}')
    a(f'v_max_f32 v{M}, v{M}, v{M+3}')
    def xg(op, v, t):
        a(f'v_mov_b32 v{t}, v{v}')
        a('s_nop 1')
        a(f'v_permlane32_swap_b32 v{v}, v{t}')
        a('s_nop 1')
        a(f'v_{op}_f32 v{v}, v{v}, v{t}')
        a(f'v_mov_b32 v{t}, v{v}')
        a('s_nop 1')
        a(f'v_permlane16_swap_b32 v{v}, v{t}')
        a('s_nop 1')
        a(f'v_{op}_f32 v{v}, v{v}, v{t}')
    xg('max', M, M + 1)
    for r in range(12):
        a(f'v_sub_f32 v{SC+r}, v{SC+r}, v{M}')
    for r in range(12):
        a(f'v_exp_f32 v{SC+r}, v{SC+r}')
    a('s_nop 0')
    L = M + 2
    a(f'v_add_f32 v{L}, v{SC}, v{SC+1}')
    a(f'v_add_f32 v{L+1}, v{SC+2}, v{SC+3}')
    a(f'v_add_f32 v{L+2}, v{SC+4}, v{SC+5}')
    a(f'v_add_f32 v{L+3}, v{SC+6}, v{SC+7}')
    a(f'v_add_f32 v{L+4}, v{SC+8}, v{SC+9}')
    a(f'v_add_f32 v{L+5}, v{SC+10}, v{SC+11}')
    a(f'v_add_f32 v{L}, v{L}, v{L+1}')
    a(f'v_add_f32 v{L+2}, v{L+2}, v{L+3}')
    a(f'v_add_f32 v{L+4}, v{L+4}, v{L+5}')
    a(f'v_add_f32 v{L}, v{L}, v{L+2}')
    a(f'v_add_f32 v{L}, v{L}, v{L+4}')
    xg('add', L, L + 1)
    a(f'v_rcp_f32 v{L}, v{L}')
    a('s_nop 0')
    for r in range(12):
        a(f'v_mul_f32 v{SC+r}, v{SC+r}, v{L}')
    if 'dbgp' in OPT:
        a('s_lshl_b32 s42, s58, 1')
        a('s_add_u32 s42, s42, s40')
        a('s_mul_i32 s42, s42, 3072')
        a(f's_add_u32 s42, s42, {WS_OF}')
        for i in range(3):
            a(f'buffer_store_dwordx4 v[{SC+4*i}:{SC+4*i+3}], v15, s[32:35], s42 offen offset:{1024*i}')
    PO = 192
    a(f'v_cvt_pk_bf16_f32 v{PO}, v{SC+4}, v{SC+5}')
    a(f'v_cvt_pk_bf16_f32 v{PO+1}, v{SC+6}, v{SC+7}')
    a(f'v_cvt_pk_bf16_f32 v{PO+2}, v{SC+8}, v{SC+9}')
    a(f'v_cvt_pk_bf16_f32 v{PO+3}, v{SC+10}, v{SC+11}')
    a(f'v_cvt_pk_bf16_f32 v{PO+4}, v{SC}, v{SC+1}')
    a(f'v_cvt_pk_bf16_f32 v{PO+5}, v{SC+2}, v{SC+3}')
    a('v_mov_b32 v14, s89')
    a(f'ds_write_b128 v5, v[{PO}:{PO+3}]')
    a('s_mov_b64 exec, s[98:99]')
    a(f'ds_write_b64 v4, v[{PO+4}:{PO+5}]')
    a('s_mov_b64 exec, -1')
    a(f'ds_write_b32 v12, v14')
    stamp(a, 5)
    a('s_xor_b32 s83, s83, 1')
    a('s_mul_i32 s42, s83, 24576')
    a('s_mul_i32 s43, s40, 12288')
    a('s_add_u32 s42, s42, s43')
    a(f's_add_u32 s42, s42, {L_KX}')
    a('v_add_u32 v7, s42, v15')
    a.label(lbl('SRED'))
    a('s_cmp_ge_u32 s80, 40')
    a(f's_cbranch_scc1 {lbl("NORED")}')
    def rd_pf():
        a(f'ds_read_b32 v{180}, v11 offset:{L_FLAG + 8}')
        a(f'ds_read_b32 v{181}, v11 offset:{L_FLAG + 12}')
    lds_spin(a, lbl('SPINR'), rd_pf, [180, 181], 14)
    if D_Z: a(f's_sleep {D_Z}')
    RD = 184
    a('s_mul_i32 s42, s86, 163840')
    a('s_add_u32 s42, s42, s81')
    def ld_z():
        for i in range(4):
            a(f's_add_u32 s43, s42, {i*40960}')
            a(f'buffer_load_dwordx4 v[{RD+4*i}:{RD+4*i+3}], v10, s[32:35], s43 offen sc1')
    stampc(a, 6)
    poll_sent(a, lbl('POLLZ'), ld_z, [RD + 4*i + o for i in range(4) for o in (0, 2)], 14)
    stampc(a, 7)
    stamp(a, 8)
    ZA = 200
    for i in range(4):
        c = '0' if i == 0 else f'v[{ZA}:{ZA+3}]'
        a(f'v_mfma_f32_16x16x32_bf16 v[{ZA}:{ZA+3}], v[{RD+4*i}:{RD+4*i+3}], v[{SEL}:{SEL+3}], {c}')
    a('s_add_u32 s43, s86, 1')
    a('s_and_b32 s43, s43, 3')
    a('s_mul_i32 s42, s43, 10240')
    a('s_add_u32 s42, s42, s82')
    a('s_add_u32 s43, s43, 2')
    a('s_and_b32 s43, s43, 3')
    a('s_mul_i32 s43, s43, 10240')
    a('s_add_u32 s43, s43, s82')
    a('s_nop 7')
    a(f'v_cvt_pk_bf16_f32 v{ZA+4}, v{ZA}, v{ZA+1}')
    a(f'v_cvt_pk_bf16_f32 v{ZA+5}, v{ZA+2}, v{ZA+3}')
    a('s_mov_b64 exec, s[64:65]')
    pub(a, [f'buffer_store_dwordx2 v[{ZA+4}:{ZA+5}], v15, s[32:35], s42 offen'])
    pub(a, [f'buffer_store_dwordx2 v[8:9], v15, s[32:35], s43 offen'])
    a('s_mov_b64 exec, -1')
    a.label(lbl('NORED'))
    stamp(a, 9)
    a('s_add_u32 s84, s84, 1')
    a('s_add_u32 s89, s89, 1')
    a('s_and_b32 s86, s84, 3')
    a(f's_branch {lbl("SLOOP")}')
    a.label(lbl('ZWAVE'))
    MF = 144; AC = 184; YF = 192; UC = 200; ST = 204; YA = 228; PF = 240
    SN = 8
    a('v_mov_b32 v12, 0')
    for r in (UC + 2, UC + 3, PF + 10, PF + 11):
        a(f'v_mov_b32 v{r}, 0')
    a('s_mul_i32 s75, s57, 5')
    a('s_add_u32 s75, s75, s74')
    a('s_mul_i32 s78, s58, 40')
    a('s_add_u32 s78, s78, s75')
    a('s_lshl_b32 s78, s78, 8')
    a(f's_add_u32 s78, s78, {WS_ZP}')
    a('s_lshl_b32 s42, s74, 11')
    a('s_add_u32 s69, s68, s42')
    a(f's_add_u32 s42, s42, {L_MEM}')
    a('v_add_u32 v7, s42, v15')
    a(f'v_add_u32 v6, {L_MEM}, v15')
    a('s_lshr_b32 s42, s61, 1')
    a('s_add_u32 s42, s42, 4')
    a('s_and_b32 s43, s61, 1')
    a('s_cmp_eq_u32 s79, 2')
    a('s_cselect_b32 s42, s42, s61')
    a('s_cselect_b32 s43, s43, s79')
    a('s_lshl_b32 s42, s42, 10')
    a('s_lshl_b32 s43, s43, 3')
    a('s_add_u32 s42, s42, s43')
    a('s_lshr_b32 s43, s57, 2')
    a('s_lshl_b32 s43, s43, 7')
    a('s_add_u32 s42, s42, s43')
    a('s_mul_i32 s43, s58, 6144')
    a('s_add_u32 s42, s42, s43')
    a(f's_add_u32 s72, s42, {WS_G2}')
    a(f's_add_u32 s73, s42, {WS_HV}')
    a(f's_add_u32 s76, s43, {WS_G2}')
    for r in range(8, 12):
        a(f'v_mov_b32 v{r}, -1')
    a('s_mov_b32 s83, 0')
    def y_compute():
        a('s_mul_i32 s42, s83, 24576')
        a(f's_add_u32 s42, s42, {L_VX}')
        a('v_add_u32 v5, s42, v15')
        seq = [(hh, tt, b) for hh in range(2) for tt in range(2) for b in range(6)]
        NB = 6
        def rd(i):
            hh, tt, b = seq[i]
            r = ST + 4 * (i % NB)
            a(f'ds_read_b128 v[{r}:{r+3}], v5 offset:{hh*12288 + tt*6144 + b*1024}')
        for i in range(5): rd(i)
        for i in range(24):
            hh, tt, b = seq[i]
            a(f's_waitcnt lgkmcnt({min(4, 23 - i)})')
            r = ST + 4 * (i % NB)
            acc = YA + (hh * 2 + tt) * 4
            c = '0' if b == 0 else f'v[{acc}:{acc+3}]'
            w = WO + (hh * 6 + b) * 4
            a(f'v_mfma_f32_16x16x32_bf16 v[{acc}:{acc+3}], v[{r}:{r+3}], v[{w}:{w+3}], {c}')
            if i + 5 < 24: rd(i + 5)
        a('s_nop 7')
        for q in range(4):
            acc = YA + 4 * q
            a(f'v_cvt_pk_bf16_f32 v{YF+2*q}, v{acc}, v{acc+1}')
            a(f'v_cvt_pk_bf16_f32 v{YF+2*q+1}, v{acc+2}, v{acc+3}')
        a('s_xor_b32 s83, s83, 1')
    y_compute()
    a.label(lbl('ZLOOP'))
    stamp(a, 0)
    a('s_barrier')
    stamp(a, 1)
    a('s_cmp_eq_u32 s40, 3')
    a(f's_cbranch_scc1 {lbl("NODMA")}')
    a('s_and_b32 s42, s84, 1')
    a('s_mul_i32 s44, s42, 24576')
    a(f's_add_u32 s45, s44, {L_VX}')
    a('s_xor_b32 s42, s42, 1')
    a('s_mul_i32 s44, s42, 24576')
    a(f's_add_u32 s44, s44, {L_KX}')
    if 'nodma' not in OPT:
        dma_blk(70, 44)
    a('s_add_u32 s70, s70, 393216')
    a.label(lbl('NODMA'))
    a('s_cmp_eq_u32 s79, 99')
    a(f's_cbranch_scc1 {lbl("NOV")}')
    for t in range(10):
        a(f'ds_read_b128 v[{MF+4*t}:{MF+4*t+3}], v6 offset:{1024*t}')
    for t in range(10):
        a(f's_waitcnt lgkmcnt({9-t})')
        b = MF + 4 * t
        for ai, W in ((0, VW + 4*t), (1, VW + 4*(t+10))):
            acc = AC + 4 * ai
            c = '0' if t == 0 else f'v[{acc}:{acc+3}]'
            a(f'v_mfma_f32_16x16x32_bf16 v[{acc}:{acc+3}], v[{W}:{W+3}], v[{b}:{b+3}], {c}')
    a('s_mul_i32 s42, s86, 98304')
    a('s_add_u32 s42, s42, s72')
    a('s_nop 7')
    for r in range(4):
        a(f'v_add_f32_dpp v{AC+r}, v{AC+4+r}, v{AC+r} row_ror:8 row_mask:0xf bank_mask:0xf')
    a('s_nop 0')
    a(f'v_cvt_pk_bf16_f32 v{AC+4}, v{AC}, v{AC+1}')
    a(f'v_cvt_pk_bf16_f32 v{AC+5}, v{AC+2}, v{AC+3}')
    a('s_add_u32 s43, s86, 2')
    a('s_and_b32 s43, s43, 3')
    a('s_mul_i32 s43, s43, 98304')
    a('s_add_u32 s43, s43, s72')
    a('s_mov_b64 exec, s[64:65]')
    pub(a, [f'buffer_store_dwordx2 v[{AC+4}:{AC+5}], v15, s[32:35], s42 offen'])
    a(f'buffer_store_dwordx2 v[{AC+4}:{AC+5}], v15, s[32:35], s73 offen')
    pub(a, [f'buffer_store_dwordx2 v[8:9], v15, s[32:35], s43 offen'])
    a('s_mov_b64 exec, -1')
    a('s_add_u32 s73, s73, 98304')
    a.label(lbl('NOV'))
    stamp(a, 2)
    a(f's_cmp_ge_u32 s84, {NSTEP-1}')
    a(f's_cbranch_scc1 {lbl("DONE")}')
    a('s_cmp_lg_u32 s40, 4')
    a(f's_cbranch_scc1 {lbl("NOVP")}')
    a('s_mul_i32 s42, s86, 98304')
    a('s_add_u32 s42, s42, s76')
    a('s_add_u32 s43, s42, 4096')
    if D_V: a(f's_sleep {D_V}')
    def ld_g2():
        for b in range(6):
            so = 42 if b < 4 else 43
            a(f'buffer_load_dwordx4 v[{MF+4*b}:{MF+4*b+3}], v15, s[32:35], s{so} offen offset:{1024*(b%4)} sc1')
    poll_sent(a, lbl('POLLV'), ld_g2, [MF + 4*b + o for b in range(6) for o in (0, 2)], 14)
    for b in range(6):
        a(f'ds_write_b128 v15, v[{MF+4*b}:{MF+4*b+3}] offset:{L_VM + 1024*b}')
    a('v_mov_b32 v14, s89')
    a(f'ds_write_b32 v12, v14 offset:{L_FLAG + 32}')
    a.label(lbl('NOVP'))
    def rd_vm():
        a(f'ds_read_b32 v{PF+12}, v12 offset:{L_FLAG + 32}')
        for b in range(6):
            a(f'ds_read_b128 v[{ST+4*b}:{ST+4*b+3}], v15 offset:{L_VM + 1024*b}')
    lds_spin(a, lbl('SPINV'), rd_vm, [PF + 12], 14)
    stamp(a, 3)
    a('s_cmp_eq_u32 s40, 3')
    a(f's_cbranch_scc1 {lbl("NODMA2")}')
    a('s_and_b32 s42, s84, 1')
    a('s_mul_i32 s44, s42, 24576')
    a(f's_add_u32 s45, s44, {L_VX}')
    if 'nodma' not in OPT:
        dma_blk(71, 45)
    a('s_add_u32 s71, s71, 393216')
    a.label(lbl('NODMA2'))
    for b in range(6):
        for hh in range(2):
            acc = YA + 4 * hh
            c = '0' if b == 0 else f'v[{acc}:{acc+3}]'
            w = WO + (hh * 6 + b) * 4
            a(f'v_mfma_f32_16x16x32_bf16 v[{acc}:{acc+3}], v[{ST+4*b}:{ST+4*b+3}], v[{w}:{w+3}], {c}')
    a('s_mov_b64 vcc, s[66:67]')
    a('s_nop 7')
    for r in range(4):
        a(f'v_cndmask_b32 v{YA+r}, v{YA+4+r}, v{YA+r}, vcc')
    a(f'v_cvt_pk_bf16_f32 v{UC}, v{YA}, v{YA+1}')
    a(f'v_cvt_pk_bf16_f32 v{UC+1}, v{YA+2}, v{YA+3}')
    stamp(a, 4)
    FA, FB_ = PF + 12, PF + 13
    def rd_p():
        a(f'ds_read_b32 v{FA}, v12 offset:{L_FLAG + 8}')
        a(f'ds_read_b32 v{FB_}, v12 offset:{L_FLAG + 12}')
        a(f'ds_read_b128 v[{PF}:{PF+3}], v15 offset:{L_PX}')
        a(f'ds_read_b128 v[{PF+4}:{PF+7}], v15 offset:{L_PX + 1024}')
        a(f'ds_read_b64 v[{PF+8}:{PF+9}], v13 offset:{L_PM}')
    lds_spin(a, lbl('SPINP'), rd_p, [FA, FB_], 14)
    stamp(a, 5)
    a(f'v_mfma_f32_16x16x32_bf16 v[{AC}:{AC+3}], v[{PF}:{PF+3}], v[{YF}:{YF+3}], 0')
    a(f'v_mfma_f32_16x16x32_bf16 v[{AC}:{AC+3}], v[{PF+4}:{PF+7}], v[{YF+4}:{YF+7}], v[{AC}:{AC+3}]')
    a(f'v_mfma_f32_16x16x32_bf16 v[{AC}:{AC+3}], v[{PF+8}:{PF+11}], v[{UC}:{UC+3}], v[{AC}:{AC+3}]')
    a('s_mul_i32 s42, s86, 163840')
    a('s_add_u32 s42, s42, s78')
    a('s_add_u32 s43, s86, 2')
    a('s_and_b32 s43, s43, 3')
    a('s_mul_i32 s43, s43, 163840')
    a('s_add_u32 s49, s43, s78')
    a('s_nop 7')
    a(f'v_cvt_pk_bf16_f32 v{AC+4}, v{AC}, v{AC+1}')
    a(f'v_cvt_pk_bf16_f32 v{AC+5}, v{AC+2}, v{AC+3}')
    a(f'v_mov_b32 v{AC+6}, v{AC+4}')
    a(f'v_mov_b32 v{AC+7}, v{AC+5}')
    a('s_nop 1')
    a(f'v_permlane16_swap_b32 v{AC+4}, v{AC+6}')
    a(f'v_permlane16_swap_b32 v{AC+5}, v{AC+7}')
    a('s_mov_b64 exec, 0xffff')
    a(f'buffer_store_dwordx4 v[{AC+4}:{AC+7}], v15, s[32:35], s42 offen sc1')
    a('s_mov_b64 exec, -1')
    stamp(a, 6)
    y_compute()
    a('s_mov_b64 exec, 0xffff')
    a(f'buffer_store_dwordx4 v[{SN}:{SN+3}], v15, s[32:35], s49 offen sc1')
    a('s_mov_b64 exec, -1')
    stamp(a, 7)
    a('s_add_u32 s84, s84, 1')
    a('s_add_u32 s89, s89, 1')
    a('s_and_b32 s86, s84, 3')
    a('s_mul_i32 s42, s86, 10240')
    a('s_add_u32 s42, s42, s69')
    if D_MEM: a(f's_sleep {D_MEM}')
    def ld_mem():
        a(f'buffer_load_dwordx4 v[{MF}:{MF+3}], v15, s[32:35], s42 offen sc1')
        a(f'buffer_load_dwordx4 v[{MF+4}:{MF+7}], v15, s[32:35], s42 offen offset:1024 sc1')
    poll_sent(a, lbl('POLLM'), ld_mem, [MF, MF + 2, MF + 4, MF + 6], 14)
    a(f'ds_write_b128 v7, v[{MF}:{MF+3}]')
    a(f'ds_write_b128 v7, v[{MF+4}:{MF+7}] offset:1024')
    a('s_waitcnt lgkmcnt(0)')
    stamp(a, 8)
    a(f's_branch {lbl("ZLOOP")}')
    a.label(lbl('DONE'))
    if 'stamp' in OPT:
        l = a.newlabel('STP')
        a('s_cmp_lg_u32 s2, 9')
        a(f's_cbranch_scc1 {l}')
        a('s_mov_b32 s42, 99')
        for wv, sl in ((0, 0), (1, 1), (3, 2), (4, 3)):
            a(f's_cmp_eq_u32 s40, {wv}')
            a(f's_cselect_b32 s42, {sl}, s42')
        a('s_cmp_eq_u32 s42, 99')
        a(f's_cbranch_scc1 {l}')
        a(f's_load_dwordx2 s[96:97], s[0:1], {KA["dbg"]}')
        a('s_waitcnt lgkmcnt(0)')
        a('s_lshl_b32 s42, s42, 6')
        a('v_mov_b32 v4, s42')
        for i in range(10):
            a(f'v_mov_b32 v5, s{SB+i}')
            a(f'global_store_dword v4, v5, s[96:97] offset:{4*i}')
            a('s_nop 1')
        a.label(l)
```

```python
from asmlib import *
from layout2 import *
import os
NSLAB = int(os.environ.get('NSLAB', '8'))
from k_t1 import lane_decomp, OPT

def row_allreduce(a, op, v):
    for r in (8, 4, 2, 1):
        a('s_nop 1')
        a(f'v_{op}_f32_dpp v{v}, v{v}, v{v} row_ror:{r} row_mask:0xf bank_mask:0xf')
def wave_allreduce_add(a, v, s0):
    row_allreduce(a, 'add', v)
    a('s_nop 1')
    for i in range(4):
        a(f'v_readlane_b32 s{s0+i}, v{v}, {16*i}')
    a('s_nop 1')
    a(f'v_mov_b32 v{v}, s{s0}')
    for i in range(1, 4):
        a(f'v_add_f32 v{v}, s{s0+i}, v{v}')
def bf16_round_f32(a, v):
    a(f'v_cvt_pk_bf16_f32 v{v}, v{v}, v{v}')
    a(f'v_lshlrev_b32 v{v}, 16, v{v}')

def k_ln2(a):
    name = 'ln2_kernel'
    kernel_header(a, name)
    a('s_cmp_ge_u32 s2, 256')
    a('s_cbranch_scc1 L2_END')
    a(f's_load_dwordx2 s[4:5], s[0:1], {KA["x"]}')
    a(f's_load_dwordx2 s[8:9], s[0:1], {KA["ws"]}')
    a('s_waitcnt lgkmcnt(0)')
    make_srd(a, 12, 4, 2048 * 1280)
    make_srd(a, 16, 8, WS_SIZE)
    a('v_and_b32 v1, 63, v0')
    a('v_lshrrev_b32 v2, 6, v0')
    a('v_lshlrev_b32 v3, 3, v1')
    for idx, base in ((2, 60), (3, 40), (4, 50)):
        a(f's_mov_b32 s24, {WS_MOD + 2560*idx}')
        for i in range(5):
            a(f'buffer_load_dwordx2 v[{base+2*i}:{base+2*i+1}], v3, s[16:19], s24 offen offset:{512*i}')
    a('s_lshl_b32 s3, s2, 3')
    a('v_lshl_add_u32 v4, v2, 1, s3')
    a('v_mul_u32_u24 v5, 2560, v4')
    a('v_lshl_add_u32 v5, v1, 3, v5')
    a('v_mul_u32_u24 v4, 1280, v4')
    a('v_lshl_add_u32 v4, v1, 2, v4')
    a(f's_mov_b32 s24, {f2u(1.0/640):#x}')
    a(f's_mov_b32 s25, {f2u(1e-5):#x}')
    for r in range(2):
        for i in range(5):
            a(f'buffer_load_dword v{10+i}, v4, s[12:15], 0 offen offset:{1280*r+256*i}')
        for half in range(NSLAB // 4):
            for hg in range(4):
                a(f's_mov_b32 s26, {WS_OP + (half*4 + hg)*5242880 + r*2560}')
                for i in range(5):
                    a(f'buffer_load_dwordx2 v[{70+10*hg+2*i}:{71+10*hg+2*i}], v5, s[16:19], s26 offen offset:{512*i}')
            a('s_waitcnt vmcnt(0)')
            if r == 0 and half == 0:
                for i in range(10):
                    a(f'v_add_f32 v{50+i}, 1.0, v{50+i}')
                for i in range(10):
                    bf16_round_f32(a, 50 + i)
            for i in range(10):
                a(f'v_add_f32 v{70+i}, v{70+i}, v{80+i}')
                a(f'v_add_f32 v{90+i}, v{90+i}, v{100+i}')
            for i in range(10):
                a(f'v_add_f32 v{70+i}, v{70+i}, v{90+i}')
            if NSLAB > 4:
                for i in range(10):
                    if half == 0:
                        a(f'v_mov_b32 v{112+i}, v{70+i}')
                    else:
                        a(f'v_add_f32 v{70+i}, v{70+i}, v{112+i}')
        for i in range(10):
            bf16_round_f32(a, 70 + i)
            a(f'v_mul_f32 v{70+i}, v{70+i}, v{60+i}')
            bf16_round_f32(a, 70 + i)
        for i in range(5):
            a(f'v_lshlrev_b32 v{20+2*i}, 16, v{10+i}')
            a(f'v_and_b32 v{21+2*i}, 0xffff0000, v{10+i}')
        for i in range(10):
            a(f'v_add_f32 v{20+i}, v{20+i}, v{70+i}')
        for i in range(5):
            a(f'v_cvt_pk_bf16_f32 v{32+i}, v{20+2*i}, v{21+2*i}')
        a(f's_mov_b32 s26, {WS_X1 + 1280*r}')
        for i in range(5):
            a(f'buffer_store_dword v{32+i}, v4, s[16:19], s26 offen offset:{256*i}')
        for i in range(5):
            a(f'v_lshlrev_b32 v{20+2*i}, 16, v{32+i}')
            a(f'v_and_b32 v{21+2*i}, 0xffff0000, v{32+i}')
        a('v_add_f32 v30, v20, v21')
        for i in range(2, 10):
            a(f'v_add_f32 v30, v30, v{20+i}')
        wave_allreduce_add(a, 30, 28)
        a('v_mul_f32 v30, s24, v30')
        for i in range(10):
            a(f'v_sub_f32 v{20+i}, v{20+i}, v30')
        a('v_mul_f32 v31, v20, v20')
        for i in range(1, 10):
            a(f'v_fmac_f32 v31, v{20+i}, v{20+i}')
        wave_allreduce_add(a, 31, 28)
        a('v_mul_f32 v31, s24, v31')
        a('v_add_f32 v31, s25, v31')
        a('v_rsq_f32 v31, v31')
        a('s_nop 0')
        for i in range(10):
            a(f'v_mul_f32 v{20+i}, v{20+i}, v31')
            a(f'v_fma_f32 v{20+i}, v{20+i}, v{50+i}, v{40+i}')
        for i in range(5):
            a(f'v_cvt_pk_bf16_f32 v{110+i}, v{20+2*i}, v{21+2*i}')
        a(f's_mov_b32 s26, {WS_H2 + 1280*r}')
        for i in range(5):
            a(f'buffer_store_dword v{110+i}, v4, s[16:19], s26 offen offset:{256*i}')
    a.label('L2_END')
    a('s_endpgm')
    return name, kernel_desc(name, 128, 40, 128)

def k_t3a(a):
    name = 't3a_kernel'
    SLOT = 24576
    kernel_header(a, name)
    a('s_cmp_ge_u32 s2, 192')
    a('s_cbranch_scc1 TA_END')
    a(f's_load_dwordx4 s[4:7], s[0:1], {KA["wg"]}')
    a(f's_load_dwordx2 s[52:53], s[0:1], {KA["ws"]}')
    lane_decomp(a)
    a('s_waitcnt lgkmcnt(0)')
    NW = 640 * 1536 * 2
    make_srd(a, 8, 4, NW)
    make_srd(a, 12, 6, NW)
    make_srd(a, 20, 52, 2048 * 1280, WS_H2)
    make_srd(a, 32, 52, WS_SIZE)
    a('s_mul_i32 s54, s2, 5462')
    a('s_lshr_b32 s56, s54, 16')
    a('s_mul_i32 s54, s56, 12')
    a('s_sub_u32 s57, s2, s54')
    a('s_mov_b32 s47, 0x78')
    a('v_lshl_add_u32 v4, s40, 2, v3')
    a('v_and_b32 v5, 3, v4')
    a('v_bfe_u32 v6, v4, 3, 1')
    a('v_lshl_or_b32 v5, v6, 2, v5')
    a('v_lshrrev_b32 v6, 1, v2')
    a('v_xor_b32 v6, v6, v5')
    a('v_and_b32 v7, 1, v2')
    a('v_mul_u32_u24 v88, 3072, v4')
    a('v_lshl_add_u32 v88, v6, 5, v88')
    a('v_lshl_add_u32 v88, v7, 4, v88')
    a('v_lshl_add_u32 v4, s40, 6, v1')
    a('v_lshrrev_b32 v5, 2, v4')
    a('v_and_b32 v6, 3, v4')
    a('v_bfe_u32 v7, v5, 2, 2')
    a('v_lshlrev_b32 v7, 1, v7')
    a('v_lshrrev_b32 v7, v7, s47')
    a('v_and_b32 v7, 3, v7')
    a('v_xor_b32 v6, v6, v7')
    a('s_lshl_b32 s43, s56, 7')
    a('v_add_u32 v5, s43, v5')
    a('v_mul_u32_u24 v90, 1280, v5')
    a('v_lshl_add_u32 v90, v6, 4, v90')
    a('s_lshl_b32 s44, s40, 10')
    a('s_lshl_b32 s66, s57, 8')
    a('s_mov_b32 s67, 0')
    a('v_lshrrev_b32 v4, 2, v2')
    a('v_lshlrev_b32 v4, 1, v4')
    a('v_lshrrev_b32 v4, v4, s47')
    a('v_and_b32 v4, 3, v4')
    a('v_xor_b32 v4, v4, v3')
    a('v_lshl_add_u32 v5, s39, 6, v2')
    a('v_lshlrev_b32 v5, 6, v5')
    a('v_lshl_add_u32 v5, v4, 4, v5')
    a('v_add_u32 v91, 16384, v5')
    a('v_lshrrev_b32 v4, 2, v2')
    a('v_lshl_add_u32 v5, v3, 3, v4')
    a('v_and_b32 v7, 1, v3')
    a('v_lshl_or_b32 v6, v7, 2, v4')
    a('v_and_b32 v7, 3, v2')
    a('v_lshlrev_b32 v8, 8, v5')
    a('v_lshl_add_u32 v8, v7, 3, v8')
    a('s_lshl_b32 s42, s41, 1')
    for j in range(2):
        a(f's_add_u32 s43, s42, {j}')
        a('v_xor_b32 v9, s43, v6')
        a(f'v_lshl_add_u32 v{92+j}, v9, 5, v8')
    def step_dmas(slot_s):
        def mk(j):
            def f():
                a(f's_add_u32 s45, s44, {8192*j}')
                a(f's_add_u32 m0, s45, s{slot_s}')
                a('s_nop 0')
                if j < 2:
                    a(f'buffer_load_dwordx4 v88, s[{8+4*j}:{11+4*j}], s66 offen lds')
                else:
                    a(f'buffer_load_dwordx4 v90, s[20:23], s67 offen lds')
                    a('s_add_u32 s66, s66, 98304')
                    a('s_add_u32 s67, s67, 64')
            return f
        return [mk(j) for j in range(3)]
    ACC = 112
    def accr(m, j, t4): return ACC + ((m * 2 + j) * 4 + t4) * 4
    for r in range(ACC, ACC + 64):
        a(f'v_mov_b32 v{r}, 0')
    NS = 4
    for sl in range(NS):
        a(f's_mov_b32 s70, {sl*SLOT}')
        for f in step_dmas(70): f()
    seq = [(m, j) for m in range(2) for j in range(2)]
    WF = 48
    def set_addr(e):
        a(f'v_add_u32 v95, {e}, v91')
        for j in range(2):
            a(f'v_add_u32 v{96+j}, {e}, v{92+j}')
    def rd_T(ts):
        for t4 in range(4):
            a(f'ds_read_b128 v[{16+16*ts+4*t4}:{19+16*ts+4*t4}], v95 offset:{1024*t4}')
    def rd_W(i, ws):
        m, j = seq[i]
        b = WF + 16 * ws + 4 * i
        a(f'ds_read_b64_tr_b16 v[{b}:{b+1}], v{96+j} offset:{m*8192}')
        a(f'ds_read_b64_tr_b16 v[{b+2}:{b+3}], v{96+j} offset:{m*8192+1024}')
    a(f's_waitcnt vmcnt({3*(NS-1)})')
    a('s_barrier')
    set_addr(0)
    rd_T(0)
    for i in range(4): rd_W(i, 0)
    a('s_mov_b32 s70, 0')
    a(f's_mov_b32 s71, {SLOT}')
    a('s_mov_b32 s72, 0')
    def step(ts, dma, vm, rd_next=True):
        a(f's_waitcnt vmcnt({vm}) lgkmcnt(0)')
        a('s_barrier')
        if rd_next:
            set_addr('s71')
            rd_T(ts ^ 1)
            for i in range(4): rd_W(i, ts ^ 1)
        dm = step_dmas(70) if dma else []
        for i in range(4):
            m, j = seq[i]
            b = WF + 16 * ts + 4 * i
            for t4 in range(4):
                r = accr(m, j, t4); tr = 16 + 16 * ts + 4 * t4
                a(f'v_mfma_f32_16x16x32_bf16 v[{r}:{r+3}], v[{b}:{b+3}], v[{tr}:{tr+3}], v[{r}:{r+3}]')
            if dm: dm.pop(0)()
    def advance():
        a('s_mov_b32 s70, s71')
        a(f's_add_u32 s71, s71, {SLOT}')
        a(f's_cmp_eq_u32 s71, {NS*SLOT}')
        a('s_cselect_b32 s71, 0, s71')
    a.label('TA_LOOP')
    step(0, True, 3 * (NS - 2)); advance()
    step(1, True, 3 * (NS - 2)); advance()
    a('s_add_u32 s72, s72, 1')
    a('s_cmp_lt_u32 s72, 8')
    a('s_cbranch_scc1 TA_LOOP')
    step(0, False, 6); advance()
    step(1, False, 3); advance()
    step(0, False, 0); advance()
    step(1, False, 0, rd_next=False)
    a('s_nop 7')
    a('s_nop 1')
    C1 = -2.0 * LOG2E * 0.7978845608028654
    a(f's_mov_b32 s60, {f2u(C1):#x}')
    a(f's_mov_b32 s61, {f2u(C1 * 0.044715):#x}')
    a('v_lshlrev_b32 v15, 4, v1')
    a('s_lshl_b32 s42, s56, 3')
    a('s_lshl_b32 s43, s39, 2')
    a('s_add_u32 s42, s42, s43')
    a('s_mul_i32 s42, s42, 49152')
    a('s_lshl_b32 s43, s57, 2')
    a('s_add_u32 s43, s43, s41')
    a('s_lshl_b32 s43, s43, 10')
    a('s_add_u32 s42, s42, s43')
    a(f's_add_u32 s42, s42, {WS_ACT}')
    for t4 in range(4):
        for j in range(2):
            for r in range(4):
                g = accr(0, j, t4) + r; u = accr(1, j, t4) + r
                a(f'v_cvt_pk_bf16_f32 v16, v{g}, v{u}')
                a(f'v_lshlrev_b32 v{g}, 16, v16')
                a(f'v_and_b32 v{u}, 0xffff0000, v16')
                a(f'v_mul_f32 v17, v{g}, v{g}')
                a(f'v_mov_b32 v18, s60')
                a(f'v_fmac_f32 v18, s61, v17')
                a(f'v_mul_f32 v18, v18, v{g}')
                a(f'v_exp_f32 v18, v18')
                a('s_nop 0')
                a(f'v_add_f32 v18, 1.0, v18')
                a(f'v_rcp_f32 v18, v18')
                a('s_nop 0')
                a(f'v_mul_f32 v18, v18, v{g}')
                a(f'v_cvt_pk_bf16_f32 v18, v18, v18')
                a(f'v_lshlrev_b32 v18, 16, v18')
                a(f'v_mul_f32 v{g}, v18, v{u}')
        pk = 20 + 4 * (t4 & 1)
        for j in range(2):
            g = accr(0, j, t4)
            a(f'v_cvt_pk_bf16_f32 v{pk+2*j}, v{g}, v{g+1}')
            a(f'v_cvt_pk_bf16_f32 v{pk+2*j+1}, v{g+2}, v{g+3}')
        a(f's_add_u32 s43, s42, {t4*49152}')
        a(f'buffer_store_dwordx4 v[{pk}:{pk+3}], v15, s[32:35], s43 offen')
    a.label('TA_END')
    a('s_endpgm')
    return name, kernel_desc(name, 256, 100, 256)

def k_t3b(a):
    name = 't3b_kernel'
    SLOT = 32768
    NS = 4
    kernel_header(a, name)
    a('s_cmp_ge_u32 s2, 160')
    a('s_cbranch_scc1 TB_END')
    a(f's_load_dwordx2 s[4:5], s[0:1], {KA["wd"]}')
    a(f's_load_dwordx2 s[6:7], s[0:1], {KA["out"]}')
    a(f's_load_dwordx2 s[52:53], s[0:1], {KA["ws"]}')
    lane_decomp(a)
    a('s_waitcnt lgkmcnt(0)')
    make_srd(a, 8, 4, 1536 * 1280)
    make_srd(a, 12, 6, 2048 * 1280)
    make_srd(a, 32, 52, WS_SIZE)
    a('s_mul_i32 s54, s2, 13108')
    a('s_lshr_b32 s56, s54, 16')
    a('s_mul_i32 s54, s56, 5')
    a('s_sub_u32 s57, s2, s54')
    a('v_lshl_add_u32 v4, s40, 2, v3')
    a('v_and_b32 v5, 7, v4')
    a('v_lshrrev_b32 v6, 1, v2')
    a('v_xor_b32 v6, v6, v5')
    a('v_and_b32 v7, 1, v2')
    a('v_mul_u32_u24 v88, 1280, v4')
    a('v_lshl_add_u32 v88, v6, 5, v88')
    a('v_lshl_add_u32 v88, v7, 4, v88')
    a('s_lshl_b32 s44, s40, 10')
    a('s_lshl_b32 s66, s57, 8')
    a('v_lshrrev_b32 v4, 2, v2')
    a('v_lshl_add_u32 v4, v3, 2, v4')
    a('v_and_b32 v5, 7, v4')
    a('v_and_b32 v6, 3, v2')
    a('v_lshlrev_b32 v7, 8, v4')
    a('v_lshl_add_u32 v7, v6, 3, v7')
    a('s_lshl_b32 s42, s41, 1')
    for j in range(2):
        a(f's_add_u32 s43, s42, {j}')
        a('v_xor_b32 v6, s43, v5')
        a(f'v_lshl_add_u32 v{92+j}, v6, 5, v7')
    a('v_lshlrev_b32 v15, 4, v1')
    a('s_lshl_b32 s42, s56, 2')
    a('s_lshl_b32 s43, s39, 1')
    a('s_add_u32 s42, s42, s43')
    a('s_mul_i32 s67, s42, 49152')
    a(f's_add_u32 s67, s67, {WS_ACT}')
    def dma(slot_s):
        for j in range(4):
            a(f's_add_u32 s45, s44, {8192*j}')
            a(f's_add_u32 m0, s45, s{slot_s}')
            a(f's_add_u32 s45, s66, {j*32*1280}')
            a(f'buffer_load_dwordx4 v88, s[8:11], s45 offen lds')
        a(f's_add_u32 s66, s66, {128*1280}')
    AF = [16, 48]
    def ld_act(b):
        for tt in range(2):
            a(f's_add_u32 s45, s67, {tt*49152}')
            for blk in range(4):
                r = b + (blk * 2 + tt) * 4
                a(f'buffer_load_dwordx4 v[{r}:{r+3}], v15, s[32:35], s45 offen offset:{blk*1024}')
        a('s_add_u32 s67, s67, 4096')
    ACC = 112
    for r in range(16):
        a(f'v_mov_b32 v{ACC+r}, 0')
    for sl in range(3):
        a(f's_mov_b32 s70, {sl*SLOT}')
        dma(70)
    ld_act(AF[0])
    WF = 128
    for st in range(12):
        if st == 0:
            a('s_waitcnt vmcnt(0)')
        else:
            a(f's_waitcnt vmcnt({4 if st + 2 < 12 else 0})')
        a('s_barrier')
        if st + 1 < 12:
            ld_act(AF[(st + 1) & 1])
        if st + 3 < 12:
            a(f's_mov_b32 s70, {((st + 3) % NS) * SLOT}')
            dma(70)
        slot = (st % NS) * SLOT
        a(f'v_add_u32 v96, {slot}, v92')
        a(f'v_add_u32 v97, {slot}, v93')
        for blk in range(4):
            for j in range(2):
                b = WF + (blk * 2 + j) * 4
                a(f'ds_read_b64_tr_b16 v[{b}:{b+1}], v{96+j} offset:{blk*8192}')
                a(f'ds_read_b64_tr_b16 v[{b+2}:{b+3}], v{96+j} offset:{blk*8192+4096}')
        af = AF[st & 1]
        for blk in range(4):
            for j in range(2):
                a(f's_waitcnt lgkmcnt({2*(7 - (blk*2+j))})')
                b = WF + (blk * 2 + j) * 4
                for tt in range(2):
                    r = ACC + (j * 2 + tt) * 4
                    f = af + (blk * 2 + tt) * 4
                    a(f'v_mfma_f32_16x16x32_bf16 v[{r}:{r+3}], v[{b}:{b+3}], v[{f}:{f+3}], v[{r}:{r+3}]')
    a('s_nop 7')
    a('s_nop 1')
    a('s_lshl_b32 s42, s56, 6')
    a('s_lshl_b32 s43, s39, 5')
    a('s_add_u32 s42, s42, s43')
    a('v_add_u32 v4, s42, v2')
    a('v_mul_u32_u24 v4, 1280, v4')
    a('s_lshl_b32 s42, s57, 8')
    a('s_lshl_b32 s43, s41, 6')
    a('s_add_u32 s42, s42, s43')
    a('v_lshl_add_u32 v4, v3, 3, v4')
    a('v_add_u32 v4, s42, v4')
    a('v_lshlrev_b32 v5, 4, v3')
    a('s_lshl_b32 s43, s42, 1')
    a(f's_add_u32 s43, s43, {WS_MOD + 5*2560}')
    for j in range(2):
        a(f'buffer_load_dwordx4 v[{16+4*j}:{19+4*j}], v5, s[32:35], s43 offen offset:{64*j}')
    a(f's_mov_b32 s42, {WS_X1}')
    a(f's_mov_b32 s43, {WS_X1 + 16*1280}')
    for j in range(2):
        for tt in range(2):
            r = 24 + (j * 2 + tt) * 2
            a(f'buffer_load_dwordx2 v[{r}:{r+1}], v4, s[32:35], s{42+tt} offen offset:{32*j}')
    a('s_waitcnt vmcnt(0)')
    a(f's_mov_b32 s43, {16*1280}')
    for j in range(2):
        for tt in range(2):
            acc = ACC + (j * 2 + tt) * 4
            xr = 24 + (j * 2 + tt) * 2
            for r in range(4):
                bf16_round_f32(a, acc + r)
                a(f'v_mul_f32 v{acc+r}, v{acc+r}, v{16+4*j+r}')
                bf16_round_f32(a, acc + r)
            a(f'v_lshlrev_b32 v40, 16, v{xr}')
            a(f'v_and_b32 v41, 0xffff0000, v{xr}')
            a(f'v_lshlrev_b32 v42, 16, v{xr+1}')
            a(f'v_and_b32 v43, 0xffff0000, v{xr+1}')
            for r in range(4):
                a(f'v_add_f32 v{acc+r}, v{acc+r}, v{40+r}')
            a(f'v_cvt_pk_bf16_f32 v{xr}, v{acc}, v{acc+1}')
            a(f'v_cvt_pk_bf16_f32 v{xr+1}, v{acc+2}, v{acc+3}')
            so = '0' if tt == 0 else 's43'
            a(f'buffer_store_dwordx2 v[{xr}:{xr+1}], v4, s[12:15], {so} offen offset:{32*j}')
    a.label('TB_END')
    a('s_endpgm')
    return name, kernel_desc(name, 256, 100, 256)
```

```python
from asmlib import *
from layout2 import *
from k_t1 import lane_decomp, stamp, stamp_rt, stamp_out, OPT, SLOT
import os
DM0 = int(os.environ.get('DM0', '1'))
def k_t1v(a):
    name = 't1v_kernel'
    kernel_header(a, name)
    a('s_cmp_ge_u32 s2, 512')
    a('s_cbranch_scc1 T1_END')
    a(f's_load_dwordx4 s[4:7], s[0:1], {KA["wq"]}')
    a(f's_load_dwordx4 s[48:51], s[0:1], {KA["wv"]}')
    a(f's_load_dwordx2 s[52:53], s[0:1], {KA["ws"]}')
    lane_decomp(a)
    a('s_waitcnt lgkmcnt(0)')
    NW = 640 * 6144 * 2
    make_srd(a, 8, 4, NW)
    make_srd(a, 12, 6, NW)
    make_srd(a, 16, 48, NW)
    make_srd(a, 28, 50, NW)
    make_srd(a, 20, 52, 2048 * 1280, WS_H1)
    make_srd(a, 32, 52, WS_SIZE)
    a('s_cmp_lt_u32 s40, 4')
    a('s_cselect_b32 s24, s8, s12')
    a('s_cselect_b32 s25, s9, s13')
    a(f's_mov_b32 s26, {NW}')
    a('s_mov_b32 s27, 0x00020000')
    a('s_and_b32 s54, s2, 7')
    a('s_lshr_b32 s55, s2, 3')
    a('s_and_b32 s56, s55, 15')
    a('s_lshr_b32 s55, s55, 4')
    a('s_lshl_b32 s55, s55, 3')
    a('s_add_u32 s57, s54, s55')
    a('s_mov_b32 s47, 0x78')
    def woff(dst, ii_s):
        a(f'v_lshl_add_u32 v4, s{ii_s}, 6, v1')
        a('v_mul_u32_u24 v5, 2731, v4')
        a('v_lshrrev_b32 v5, 16, v5')
        a('v_mul_u32_u24 v6, 24, v5')
        a('v_sub_u32 v6, v4, v6')
        a('v_lshrrev_b32 v7, 1, v6')
        a('v_and_b32 v6, 1, v6')
        a('v_bfe_u32 v8, v5, 1, 1')
        a('v_bfe_u32 v9, v5, 3, 1')
        a('v_lshl_or_b32 v8, v9, 1, v8')
        a('v_xor_b32 v7, v7, v8')
        a(f'v_mul_u32_u24 v{dst}, 12288, v5')
        a(f'v_lshl_add_u32 v{dst}, v7, 5, v{dst}')
        a(f'v_lshl_add_u32 v{dst}, v6, 4, v{dst}')
    woff(88, 40)
    a('s_add_u32 s42, s41, 8')
    woff(89, 42)
    a('v_lshl_add_u32 v4, s40, 6, v1')
    a('v_lshrrev_b32 v5, 2, v4')
    a('v_and_b32 v6, 3, v4')
    a('v_bfe_u32 v7, v5, 2, 2')
    a('v_lshlrev_b32 v7, 1, v7')
    a('v_lshrrev_b32 v7, v7, s47')
    a('v_and_b32 v7, 3, v7')
    a('v_xor_b32 v6, v6, v7')
    a('s_lshl_b32 s43, s56, 7')
    a('v_add_u32 v5, s43, v5')
    a('v_mul_u32_u24 v90, 1280, v5')
    a('v_lshl_add_u32 v90, v6, 4, v90')
    a('s_lshl_b32 s44, s40, 10')
    a('s_lshl_b32 s42, s42, 10')
    a('s_mov_b32 s60, s44')
    a('s_add_u32 s61, s44, 12288')
    a('s_add_u32 s62, s44, 24576')
    a('s_add_u32 s63, s44, 36864')
    a('s_cmp_lt_u32 s40, 4')
    a('s_cselect_b32 s64, 0, 12288')
    a('s_add_u32 s64, s64, s42')
    a('s_add_u32 s65, s42, 24576')
    a('s_mul_i32 s66, s57, 384')
    a('s_mov_b32 s67, 0')
    a('v_lshrrev_b32 v4, 2, v2')
    a('v_lshlrev_b32 v4, 1, v4')
    a('v_lshrrev_b32 v4, v4, s47')
    a('v_and_b32 v4, 3, v4')
    a('v_xor_b32 v4, v4, v3')
    a('v_lshl_add_u32 v5, s39, 6, v2')
    a('v_lshlrev_b32 v5, 6, v5')
    a('v_lshl_add_u32 v5, v4, 4, v5')
    a('v_add_u32 v91, 36864, v5')
    a('v_lshrrev_b32 v4, 2, v2')
    a('v_lshl_add_u32 v5, v3, 3, v4')
    a('v_lshrrev_b32 v6, 1, v4')
    a('v_and_b32 v7, 1, v3')
    a('v_lshl_or_b32 v6, v7, 1, v6')
    a('v_and_b32 v7, 3, v2')
    a('v_mul_u32_u24 v8, 384, v5')
    a('v_lshl_add_u32 v8, v7, 3, v8')
    a('s_mul_i32 s42, s41, 3')
    for j in range(3):
        a(f's_add_u32 s43, s42, {j}')
        a('v_xor_b32 v9, s43, v6')
        a(f'v_lshl_add_u32 v{92+j}, v9, 5, v8')
    if 'lin' in OPT:
        for j in range(3):
            a(f'v_lshlrev_b32 v{60+j}, 3, v1')
    if 'lint' in OPT:
        a(f'v_lshlrev_b32 v59, 4, v1')
    a('v_lshlrev_b32 v15, 4, v1')

    def step_dmas(slot_s):
        srds = [8, 12, 16, 20, 24, 16]
        voff = [88, 88, 88, 90, 89, 89]
        def mk(j):
            def f():
                a(f's_add_u32 m0, s{60+j}, s{slot_s}')
                so = 67 if j == 3 else 66
                a('s_nop 0')
                if 'nodma' not in OPT:
                    a(f'buffer_load_dwordx4 v{voff[j]}, s[{srds[j]}:{srds[j]+3}], s{so} offen lds')
                if j == 5:
                    a('s_add_u32 s66, s66, 393216')
                    a('s_add_u32 s67, s67, 64')
            return f
        return [mk(j) for j in range(6)]
    def issue_step(slot_s):
        for f in step_dmas(slot_s): f()
    def wo_dmas(buf, cc):
        def mk(j):
            def f():
                a(f's_add_u32 m0, s44, {buf + j*8192}')
                a(f's_add_u32 s45, s68, {cc*256 + j*40960}')
                a(f'buffer_load_dwordx4 v10, s[28:31], s45 offen lds')
            return f
        return [mk(j) for j in range(6)]

    ACC = 112
    def accr(m, j, t4):
        return ACC + ((m * 3 + j) * 4 + t4) * 4
    stamp_rt(a, 14)
    stamp(a, 0)
    for r in range(ACC, 256):
        a(f'v_mov_b32 v{r}, 0')
    for sl in range(3):
        a(f's_mov_b32 s70, {sl*SLOT}')
        issue_step(70)
    seq = [(m, j) for m in range(3) for j in range(3)]
    WF = 48
    def set_addr(slot_expr):
        a(f'v_add_u32 v95, {slot_expr}, v91')
        for j in range(3):
            a(f'v_add_u32 v{96+j}, {slot_expr}, v{92+j}')
    def rd_T(ts):
        for t4 in range(4):
            a(f'ds_read_b128 v[{16+16*ts+4*t4}:{19+16*ts+4*t4}], v95 offset:{1024*t4}')
    def rd_W(i):
        m, j = seq[i]
        b = WF + 4 * i
        a(f'ds_read_b64_tr_b16 v[{b}:{b+1}], v{96+j} offset:{m*12288}')
        a(f'ds_read_b64_tr_b16 v[{b+2}:{b+3}], v{96+j} offset:{m*12288+1536}')
    a('s_waitcnt vmcnt(12)')
    a('s_barrier')
    set_addr(0)
    rd_T(0)
    for i in range(9): rd_W(i)
    a('s_mov_b32 s70, 0')
    a(f's_mov_b32 s71, {SLOT}')
    a('s_mov_b32 s72, 0')
    BG = 1
    def step(ts, dmas, vm, rd_next=True):
        dmas = list(dmas)
        for i in range(9):
            m, j = seq[i]
            b = WF + 4 * i
            if i == 0:
                a('s_waitcnt lgkmcnt(14)')
            if i == 1:
                a('s_waitcnt lgkmcnt(12)')
            for t4 in range(4):
                r = accr(m, j, t4)
                tr = 16 + 16 * ts + 4 * t4
                a(f'v_mfma_f32_16x16x32_bf16 v[{r}:{r+3}], v[{b}:{b+3}], v[{tr}:{tr+3}], v[{r}:{r+3}]')
            if i == BG:
                if vm is not None:
                    a(f's_waitcnt vmcnt({vm}) lgkmcnt(0)')
                else:
                    a('s_waitcnt lgkmcnt(0)')
                a('s_barrier')
                if rd_next:
                    set_addr('s71')
                    rd_T(ts ^ 1)
                    for k in range(BG + 1): rd_W(k)
            elif i > BG:
                if rd_next: rd_W(i)
                if dmas: dmas.pop(0)()
        assert not dmas
    def advance():
        a('s_mov_b32 s70, s71')
        a(f's_add_u32 s71, s71, {SLOT}')
        a(f's_cmp_eq_u32 s71, {3*SLOT}')
        a('s_cselect_b32 s71, 0, s71')
    a.label('T1_LOOP')
    step(0, step_dmas(70), 6); advance()
    step(1, step_dmas(70), 6); advance()
    a('s_add_u32 s72, s72, 1')
    a('s_cmp_lt_u32 s72, 8')
    a('s_cbranch_scc1 T1_LOOP')
    stamp(a, 1)
    step(0, step_dmas(70), 6); advance()
    step(1, [], 6); advance()
    step(0, [], 0); advance()
    step(1, [], None, rd_next=False)
    a('s_nop 7')
    a('s_nop 1')
    stamp(a, 2)
    FR = 16
    def fr(m, t4, j):
        return FR + m * 24 + (t4 * 3 + j) * 2
    a('v_lshlrev_b32 v14, 4, v1')
    a('s_lshl_b32 s42, s39, 1')
    a('s_lshl_b32 s43, s56, 2')
    a('s_add_u32 s42, s42, s43')
    a('s_lshl_b32 s42, s42, 5')
    a('s_add_u32 s73, s42, s57')
    a('s_mul_i32 s73, s73, 12288')
    a('s_lshl_b32 s42, s41, 10')
    a('s_add_u32 s74, s73, s42')
    a('s_lshr_b32 s42, s41, 1')
    a('s_lshl_b32 s42, s42, 10')
    a('s_add_u32 s42, s42, 4096')
    a('s_and_b32 s43, s41, 1')
    a('s_lshl_b32 s43, s43, 3')
    a('s_add_u32 s42, s42, s43')
    a('s_add_u32 s75, s73, s42')
    for m, base in ((0, WS_QF), (1, WS_KF), (2, WS_VF)):
        for t4 in range(4):
            for j in range(3):
                f = fr(m, t4, j)
                a0 = accr(m, j, t4)
                a(f'v_cvt_pk_bf16_f32 v{f}, v{a0}, v{a0+1}')
                a(f'v_cvt_pk_bf16_f32 v{f+1}, v{a0+2}, v{a0+3}')
        for t4 in range(4):
            off = base + (t4 >> 1) * 32 * 12288 + (t4 & 1) * 6144
            f = fr(m, t4, 0)
            a(f's_add_u32 s42, s74, {off}')
            a(f's_add_u32 s43, s75, {off}')
            a(f'buffer_store_dwordx4 v[{f}:{f+3}], v15, s[32:35], s42 offen')
            a(f'buffer_store_dwordx2 v[{f+4}:{f+5}], v15, s[32:35], s43 offen')
    stamp_rt(a, 15)
    stamp_out(a, 16, 8)
    a.label('T1_END')
    a('s_endpgm')
    return name, kernel_desc(name, 256, 100, 256)
```

```python
from asmlib import *
from layout2 import *
from k_t1 import lane_decomp, OPT
from k_t2 import xg_reduce

def k_t2a(a):
    name = 't2a_kernel'
    kernel_header(a, name)
    a('s_cmp_ge_u32 s2, 256')
    a('s_cbranch_scc1 T2A_END')
    a(f's_load_dwordx2 s[52:53], s[0:1], {KA["ws"]}')
    lane_decomp(a)
    a('s_waitcnt lgkmcnt(0)')
    make_srd(a, 32, 52, WS_SIZE)
    a('s_lshr_b32 s54, s2, 2')
    a('s_and_b32 s55, s2, 3')
    a('s_lshl_b32 s56, s55, 3')
    a('s_add_u32 s56, s56, s40')
    a('s_lshl_b32 s57, s54, 5')
    a('s_add_u32 s57, s57, s56')
    a('v_lshlrev_b32 v15, 4, v1')
    t2a_body(a, 'T2A')
    a.label('T2A_END')
    a('s_endpgm')
    return name, kernel_desc(name, 256, 100, 256)

def t2a_body(a, pfx, store_sfx=''):
    LW = 18432
    a(f's_mul_i32 s58, s40, {LW}')
    a('s_mul_i32 s42, s57, 12288')
    a(f's_add_u32 s43, s42, {WS_VF}')
    for i in range(12):
        a(f's_add_u32 m0, s58, {1024*i}')
        if i: a('s_add_u32 s43, s43, 1024')
        else: a('s_nop 0')
        a('buffer_load_dwordx4 v15, s[32:35], s43 offen lds')
    a('s_lshr_b32 s44, s57, 1')
    a('s_mul_i32 s44, s44, 6144')
    a(f's_add_u32 s43, s44, {WS_HV}')
    for i in range(6):
        a(f's_add_u32 m0, s58, {12288 + 1024*i}')
        if i: a('s_add_u32 s43, s43, 1024')
        else: a('s_nop 0')
        a('buffer_load_dwordx4 v15, s[32:35], s43 offen lds')
    QR, KR, MR = 16, 64, 112
    a(f's_add_u32 s43, s42, {WS_QF}')
    a(f's_add_u32 s44, s42, {WS_KF}')
    a('s_mul_i32 s45, s57, 6144')
    a(f's_add_u32 s45, s45, {WS_HQK}')
    for i in range(12):
        if i % 4 == 0 and i:
            a('s_add_u32 s43, s43, 4096'); a('s_add_u32 s44, s44, 4096')
        a(f'buffer_load_dwordx4 v[{QR+4*i}:{QR+4*i+3}], v15, s[32:35], s43 offen offset:{1024*(i%4)}')
        a(f'buffer_load_dwordx4 v[{KR+4*i}:{KR+4*i+3}], v15, s[32:35], s44 offen offset:{1024*(i%4)}')
    for i in range(6):
        if i == 4: a('s_add_u32 s45, s45, 4096')
        a(f'buffer_load_dwordx4 v[{MR+4*i}:{MR+4*i+3}], v15, s[32:35], s45 offen offset:{1024*(i%4)}')
    a('v_and_b32 v4, 3, v2')
    a('v_lshrrev_b32 v5, 2, v2')
    a('v_lshl_add_u32 v6, v3, 2, v5')
    a('v_lshl_add_u32 v6, v4, 4, v6')
    a('v_lshlrev_b32 v6, 4, v6')
    a('v_add_u32 v10, s58, v6')
    a('v_and_b32 v7, 1, v3')
    a('v_lshl_add_u32 v7, v7, 2, v5')
    a('s_and_b32 s42, s56, 1')
    a('s_lshl_b32 s42, s42, 3')
    a('v_add_u32 v7, s42, v7')
    a('v_lshl_add_u32 v7, v4, 4, v7')
    a('v_lshlrev_b32 v7, 4, v7')
    a('s_add_u32 s42, s58, 12288')
    a('v_add_u32 v11, s42, v7')
    a('s_waitcnt vmcnt(0)')
    SC = 136
    tiles = [('m', 0), (0, 0), ('m', 1), (0, 1), (1, 1)]
    for b in range(6):
        for ti, (kt, qt) in enumerate(tiles):
            r = SC + 4 * ti
            qa = QR + (qt * 6 + b) * 4
            ka = (MR + 4 * b) if kt == 'm' else (KR + (kt * 6 + b) * 4)
            c = '0' if b == 0 else f'v[{r}:{r+3}]'
            a(f'v_mfma_f32_16x16x32_bf16 v[{r}:{r+3}], v[{ka}:{ka+3}], v[{qa}:{qa+3}], {c}')
    a('s_nop 7')
    a('s_nop 1')
    a(f's_mov_b32 s62, {f2u(192 ** -0.5 * LOG2E):#x}')
    for r in range(20):
        a(f'v_mul_f32 v{SC+r}, s62, v{SC+r}')
    a(f'v_mov_b32 v14, {f2u(-1e30):#x}')
    a('v_cmp_gt_u32 vcc, 2, v3')
    for ti in (0, 2):
        for r in range(4):
            a(f'v_cndmask_b32 v{SC+4*ti+r}, v{SC+4*ti+r}, v14, vcc')
    a('v_lshlrev_b32 v4, 2, v3')
    for r in range(4):
        a(f'v_add_u32 v5, {r}, v4')
        a('v_cmp_gt_u32 vcc, v5, v2')
        for ti in (1, 4):
            a(f'v_cndmask_b32 v{SC+4*ti+r}, v{SC+4*ti+r}, v14, vcc')
    for qt, (lo, n) in enumerate([(SC, 8), (SC + 8, 12)]):
        M = 4
        a(f'v_max_f32 v{M}, v{lo}, v{lo+1}')
        for r in range(2, n, 2):
            a(f'v_max3_f32 v{M}, v{M}, v{lo+r}, v{lo+r+1}')
        xg_reduce(a, 'max', M, 5)
        for r in range(n):
            a(f'v_sub_f32 v{lo+r}, v{lo+r}, v{M}')
        for r in range(n):
            a(f'v_exp_f32 v{lo+r}, v{lo+r}')
        a('s_nop 0')
        a(f'v_add_f32 v{M}, v{lo}, v{lo+1}')
        for r in range(2, n):
            a(f'v_add_f32 v{M}, v{M}, v{lo+r}')
        xg_reduce(a, 'add', M, 5)
        a(f'v_rcp_f32 v{M}, v{M}')
        a('s_nop 0')
        for r in range(n):
            a(f'v_mul_f32 v{lo+r}, v{lo+r}, v{M}')
    P = 16
    a(f'v_cvt_pk_bf16_f32 v{P}, v{SC+4}, v{SC+5}')
    a(f'v_cvt_pk_bf16_f32 v{P+1}, v{SC+6}, v{SC+7}')
    a(f'v_mov_b32 v{P+2}, 0')
    a(f'v_mov_b32 v{P+3}, 0')
    a(f'v_cvt_pk_bf16_f32 v{P+4}, v{SC+12}, v{SC+13}')
    a(f'v_cvt_pk_bf16_f32 v{P+5}, v{SC+14}, v{SC+15}')
    a(f'v_cvt_pk_bf16_f32 v{P+6}, v{SC+16}, v{SC+17}')
    a(f'v_cvt_pk_bf16_f32 v{P+7}, v{SC+18}, v{SC+19}')
    a(f'v_cvt_pk_bf16_f32 v{P+8}, v{SC}, v{SC+1}')
    a(f'v_cvt_pk_bf16_f32 v{P+9}, v{SC+2}, v{SC+3}')
    a(f'v_mov_b32 v{P+10}, 0')
    a(f'v_mov_b32 v{P+11}, 0')
    a(f'v_cvt_pk_bf16_f32 v{P+12}, v{SC+8}, v{SC+9}')
    a(f'v_cvt_pk_bf16_f32 v{P+13}, v{SC+10}, v{SC+11}')
    a(f'v_mov_b32 v{P+14}, 0')
    a(f'v_mov_b32 v{P+15}, 0')
    AF = 40
    for bufi in range(2):
        a(f'v_mov_b32 v{AF+8*bufi+6}, 0')
        a(f'v_mov_b32 v{AF+8*bufi+7}, 0')
    ACC = 64
    OUT = 96
    a('s_lshl_b32 s42, s54, 6')
    a('s_add_u32 s42, s42, s56')
    a('s_mul_i32 s42, s42, 6144')
    a(f's_add_u32 s42, s42, {WS_OF}')
    a('s_add_u32 s43, s42, 196608')
    seq = [(b, hf) for b in range(6) for hf in range(2)]
    def rd(i):
        b, hf = seq[i]
        r = AF + 8 * (i & 1)
        a(f'ds_read_b64_tr_b16 v[{r}:{r+1}], v10 offset:{b*1024 + hf*8}')
        a(f'ds_read_b64_tr_b16 v[{r+2}:{r+3}], v10 offset:{6144 + b*1024 + hf*8}')
        a(f'ds_read_b64_tr_b16 v[{r+4}:{r+5}], v11 offset:{b*1024 + hf*8}')
    rd(0)
    for i in range(12):
        b, hf = seq[i]
        if i + 1 < 12:
            rd(i + 1)
            a('s_waitcnt lgkmcnt(3)')
        else:
            a('s_waitcnt lgkmcnt(0)')
        r = AF + 8 * (i & 1)
        for qt in range(2):
            acc = ACC + 16 * (b & 1) + (hf * 2 + qt) * 4
            a(f'v_mfma_f32_16x16x32_bf16 v[{acc}:{acc+3}], v[{r}:{r+3}], v[{P+4*qt}:{P+4*qt+3}], 0')
        for qt in range(2):
            acc = ACC + 16 * (b & 1) + (hf * 2 + qt) * 4
            a(f'v_mfma_f32_16x16x32_bf16 v[{acc}:{acc+3}], v[{r+4}:{r+7}], v[{P+8+4*qt}:{P+8+4*qt+3}], v[{acc}:{acc+3}]')
        if hf == 0 and b > 0:
            pb = b - 1
            pack_store(a, pb, ACC, OUT, store_sfx)
    a('s_nop 7')
    a('s_nop 1')
    pack_store(a, 5, ACC, OUT, store_sfx)

def pack_store(a, pb, ACC, OUT, sfx):
    for qt in range(2):
        o = OUT + 8 * (pb & 1) + 4 * qt
        for hf in range(2):
            acc = ACC + 16 * (pb & 1) + (hf * 2 + qt) * 4
            a(f'v_cvt_pk_bf16_f32 v{o+2*hf}, v{acc}, v{acc+1}')
            a(f'v_cvt_pk_bf16_f32 v{o+2*hf+1}, v{acc+2}, v{acc+3}')
        so = 42 + qt
        if pb >= 4:
            a(f's_add_u32 s45, s{so}, 4096')
            a(f'buffer_store_dwordx4 v[{o}:{o+3}], v15, s[32:35], s45 offen offset:{1024*(pb-4)}{sfx}')
        else:
            a(f'buffer_store_dwordx4 v[{o}:{o+3}], v15, s[32:35], s{so} offen offset:{1024*pb}{sfx}')

NKS = 8
def k_t2b(a):
    name = 't2b_kernel'
    kernel_header(a, name)
    a('s_cmp_ge_u32 s2, 128')
    a('s_cbranch_scc1 T2B_END')
    a(f's_load_dwordx2 s[50:51], s[0:1], {KA["wo"]}')
    a(f's_load_dwordx2 s[52:53], s[0:1], {KA["ws"]}')
    lane_decomp(a)
    a('s_waitcnt lgkmcnt(0)')
    make_srd(a, 28, 50, 640 * 6144 * 2)
    make_srd(a, 32, 52, WS_SIZE)
    a('s_and_b32 s57, s2, 7')
    a('s_lshr_b32 s56, s2, 3')
    t2b_body(a, 'T2B')
    a.label('T2B_END')
    a('s_endpgm')
    return name, kernel_desc(name, 256, 100, 256)

def t2b_body(a, pfx, store_sfx=''):
    SLOT = 49152
    a('v_lshlrev_b32 v15, 4, v1')
    a('v_lshrrev_b32 v4, 3, v1')
    a('s_lshl_b32 s42, s41, 3')
    a('v_add_u32 v4, s42, v4')
    a('v_bfe_u32 v5, v4, 1, 2')
    a('v_bfe_u32 v6, v1, 1, 2')
    a('v_xor_b32 v6, v6, v5')
    a('v_and_b32 v7, 1, v1')
    a('v_mul_u32_u24 v88, 1280, v4')
    a('v_lshl_add_u32 v88, v6, 5, v88')
    a('v_lshl_add_u32 v88, v7, 4, v88')
    a('s_cmp_ge_u32 s41, 2')
    a(f's_cselect_b32 s59, {2*16*1280}, 0')
    a('s_mul_i32 s60, s39, 20480')
    a('s_lshl_b32 s42, s41, 10')
    a('s_add_u32 s60, s60, s42')
    a('s_mul_i32 s61, s39, 640')
    a('s_mul_i32 s62, s57, 983040')
    a('s_add_u32 s62, s62, s61')
    a('s_lshl_b32 s42, s56, 3')
    a('s_add_u32 s42, s42, s40')
    a('s_lshl_b32 s42, s42, 5')
    a('s_lshl_b32 s43, s57, 2')
    a('s_add_u32 s42, s42, s43')
    a('s_mul_i32 s63, s42, 6144')
    a(f's_add_u32 s63, s63, {WS_OF}')
    a('s_lshl_b32 s64, s40, 10')
    a('s_add_u32 s64, s64, 40960')
    a('s_lshl_b32 s42, s39, 12')
    a('s_add_u32 s42, s42, 40960')
    for sl in range(3):
        a(f's_add_u32 s43, s42, {sl*SLOT}')
        a(f'v_add_u32 v{90+sl}, s43, v15')
    a('v_lshrrev_b32 v4, 2, v2')
    a('v_lshl_add_u32 v4, v3, 2, v4')
    a('v_bfe_u32 v5, v4, 1, 2')
    a('v_xor_b32 v5, s41, v5')
    a('v_and_b32 v6, 3, v2')
    a('v_lshlrev_b32 v7, 7, v4')
    a('v_lshl_add_u32 v7, v5, 5, v7')
    a('v_lshl_add_u32 v7, v6, 3, v7')
    for sl in range(3):
        a(f'v_add_u32 v{93+sl}, {sl*SLOT}, v7')
    def dmas(slot, blk, wrap):
        ta, tb = BLK[blk]
        out = []
        def mkw(i):
            def f():
                a(f's_add_u32 m0, s60, {slot*SLOT + i*4096}')
                off = wrap * 245760 + 16 * ta * 1280 + i * 128
                a(f's_add_u32 s45, s62, {off}')
                if blk >= 4:
                    a('s_add_u32 s45, s45, s59')
                a('buffer_load_dwordx4 v88, s[28:31], s45 offen lds')
            return f
        for i in range(5): out.append(mkw(i))
        def mko():
            a(f's_add_u32 m0, s64, {slot*SLOT}')
            a(f's_add_u32 s45, s63, {wrap*6144 + blk*1024}')
            a('buffer_load_dwordx4 v15, s[32:35], s45 offen lds')
        out.append(mko)
        return out
    ACC = 96
    def accr(j, t4): return ACC + (j * 4 + t4) * 4
    for r in range(ACC, 256):
        a(f'v_mov_b32 v{r}, 0')
    for sl in range(3):
        for f in dmas(sl, sl, 0): f()
    WF = 48
    def rd_T(ts, slot):
        for t4 in range(4):
            a(f'ds_read_b128 v[{16+16*ts+4*t4}:{19+16*ts+4*t4}], v{90+slot} offset:{1024*t4}')
    def rd_W(j, slot):
        b = WF + 4 * j
        a(f'ds_read_b64_tr_b16 v[{b}:{b+1}], v{93+slot} offset:{j*4096}')
        a(f'ds_read_b64_tr_b16 v[{b+2}:{b+3}], v{93+slot} offset:{j*4096+2048}')
    a('s_waitcnt vmcnt(12)')
    a('s_barrier')
    rd_T(0, 0)
    for j in range(10): rd_W(j, 0)
    BG = 1
    def step(k, dm, vm, rd_next=True):
        ts = k & 1
        nslot = (k + 1) % 3
        dm = list(dm)
        for j in range(10):
            b = WF + 4 * j
            if j == 0:
                a('s_waitcnt lgkmcnt(15)')
            if j == 1:
                a('s_waitcnt lgkmcnt(14)')
            for t4 in range(4):
                r = accr(j, t4)
                tr = 16 + 16 * ts + 4 * t4
                a(f'v_mfma_f32_16x16x32_bf16 v[{r}:{r+3}], v[{b}:{b+3}], v[{tr}:{tr+3}], v[{r}:{r+3}]')
            if j == BG:
                if vm is not None:
                    a(f's_waitcnt vmcnt({vm}) lgkmcnt(0)')
                else:
                    a('s_waitcnt lgkmcnt(0)')
                a('s_barrier')
                if rd_next:
                    rd_T(ts ^ 1, nslot)
                    for q in range(BG + 1): rd_W(q, nslot)
            elif j > BG:
                if rd_next: rd_W(j, nslot)
                if dm: dm.pop(0)()
        assert not dm
    a('s_mov_b32 s72, 0')
    a.label(f'{pfx}_LOOP')
    for k in range(6):
        step(k, dmas(k % 3, (k + 3) % 6, 1 if k >= 3 else 0), 6)
    a('s_add_u32 s62, s62, 245760')
    a('s_add_u32 s63, s63, 6144')
    a('s_add_u32 s72, s72, 1')
    a('s_cmp_lt_u32 s72, 3')
    a(f's_cbranch_scc1 {pfx}_LOOP')
    for k in range(3):
        step(k, dmas(k % 3, k + 3, 0), 6)
    step(3, [], 6)
    step(4, [], 0)
    step(5, [], None, rd_next=False)
    a('s_nop 7')
    a('s_nop 1')
    a('v_mul_u32_u24 v4, 2560, v2')
    a('v_lshl_add_u32 v4, v3, 4, v4')
    a('s_mul_i32 s42, s57, 5242880')
    a('s_lshl_b32 s43, s56, 7')
    a('s_lshl_b32 s44, s39, 6')
    a('s_add_u32 s43, s43, s44')
    a('s_mul_i32 s43, s43, 2560')
    a('s_add_u32 s42, s42, s43')
    a('s_lshl_b32 s43, s41, 6')
    a('s_add_u32 s42, s42, s43')
    a(f's_add_u32 s42, s42, {WS_OP}')
    for t4 in range(4):
        a(f's_add_u32 s43, s42, {t4*16*2560}')
        for j in range(10):
            r = accr(j, t4)
            a(f'buffer_store_dwordx4 v[{r}:{r+3}], v4, s[32:35], s43 offen offset:{256*j}{store_sfx}')
```

```python
WS_MOD = 0x0000000
WS_CNT = 0x0010000
WS_H1  = 0x0100000
WS_H2  = 0x0400000
WS_X1  = 0x0700000
WS_ACT = 0x0D00000
WS_MEMF = 0x1400000
WS_G1  = 0x1500000
WS_G2  = 0x1600000
WS_ZP  = 0x1700000
WS_QF  = 0x2100000
WS_KF  = 0x3A00000
WS_VF  = 0x5300000
WS_HQK = 0x6C00000
WS_HV  = 0x7900000
WS_OF  = 0x8100000
WS_OP  = 0xD100000
WS_SIZE = 0x10000000
LOG2E = 1.4426950408889634
import struct
def f2u(f):
    return struct.unpack('<I', struct.pack('<f', f))[0]
BLK = [(0, 1), (3, 4), (6, 7), (9, 10), (2, 5), (8, 11)]
def blk_of(et):
    for b, (p, q) in enumerate(BLK):
        if et == p: return b, 0
        if et == q: return b, 1
WS_OPB = 0xD100000
WS_X1F = 0x0700000
WS_H2F = 0x0400000
WS_SL = 0x8100000
WS_H1F = 0x0A00000
```

```python
import sys
sys.path.insert(0, 'dev')
from asmlib import *
from gen import k_mod, k_ln1, build
from k_chain import k_init
from k_t1v import k_t1v
from k_chain3 import k_chain3
if __name__ == '__main__':
    ks = [(k_init, 256, 256, 0), (k_mod, 60, 256, 12288), (k_ln1, 256, 256, 0), (k_t1v, 512, 512, 147456), (k_chain3, 128, 512, 147456)]
    try:
        from k_t2v import k_t2a, k_t2b
        from k_ffn import k_ln2, k_t3a, k_t3b
        if 'NOPOST' not in __import__('os').environ:
            ks += [(k_t2a, 256, 512, 147456), (k_t2b, 128, 512, 147456), (k_ln2, 256, 256, 0), (k_t3a, 192, 512, 98304), (k_t3b, 160, 512, 131072)]
    except ImportError:
        pass
    build(ks, sys.argv[1] if len(sys.argv) > 1 else 'test.s')
```

```python
from asmlib import *
from layout2 import *
from k_t1 import lane_decomp, OPT
from k_chain import role_assign, pub, lds_spin
import os

L_FLAG = 0
L_PX = 256
L_PM = 2304
L_MEM = 4096
L_VM = 14336
L_KX = 20480
L_VX = 69632
LDS_CHAIN3 = 147456
NSTEP = int(os.environ.get('NSTEP', '64'))
D_MEM = int(os.environ.get('D_MEM', '0'))
D_SC = int(os.environ.get('D_SC', '4'))
D_Z = int(os.environ.get('D_Z', '8'))
D_V = int(os.environ.get('D_V', '8'))
PAIR = int(os.environ.get('PAIR', '1'))
VPW = int(os.environ.get('VPW', '3'))
VXLATE = int(os.environ.get('VXLATE', '1'))
STAG = int(os.environ.get('STAG', '7'))
DL_M = int(os.environ.get('DL_M', '3'))
DL_G = int(os.environ.get('DL_G', '4'))
DL_Z = int(os.environ.get('DL_Z', '5'))
NS_M = int(os.environ.get('NS_M', '3'))
NS_Z = int(os.environ.get('NS_Z', '3'))
S_G1 = 196608
S_G2 = 98304
S_ZP = 163840

SB = 20
def stamp(a, i):
    if 'stamp' not in OPT: return
    l = a.newlabel('ST')
    a('s_cmp_lg_u32 s84, 30')
    a(f's_cbranch_scc1 {l}')
    a('s_memrealtime s[96:97]' if 'gst' in OPT else 's_memtime s[96:97]')
    a('s_waitcnt lgkmcnt(0)')
    a(f's_mov_b32 s{SB+i}, s96')
    a.label(l)

def stampc(a, i):
    if 'stamp' not in OPT: return
    l = a.newlabel('ST')
    a('s_cmp_lg_u32 s84, 30')
    a(f's_cbranch_scc1 {l}')
    a(f's_mov_b32 s{SB+i}, s88')
    a.label(l)

def poll_sent(a, lbl, loads, check_regs, vtmp):
    a.label(lbl)
    loads()
    a('s_waitcnt vmcnt(0)')
    rs = list(check_regs)
    a(f'v_max_u32 v{vtmp}, v{rs[0]}, v{rs[1]}')
    rs = rs[2:]
    while len(rs) >= 2:
        a(f'v_max3_u32 v{vtmp}, v{vtmp}, v{rs[0]}, v{rs[1]}'); rs = rs[2:]
    if rs:
        a(f'v_max_u32 v{vtmp}, v{vtmp}, v{rs[0]}')
    a(f'v_cmp_eq_u32 vcc, -1, v{vtmp}')
    a('s_add_u32 s88, s88, 1')
    a('s_cmp_lt_u32 s88, 0x100000')
    a('s_cselect_b64 s[90:91], vcc, 0')
    a('s_cmp_lg_u64 s[90:91], 0')
    a(f's_cbranch_scc1 {lbl}')

def poll_stag(a, lbl, nsets, issue, regs, nloads, delta, vtmp, done):
    for k in range(nsets):
        if k and delta: a(f's_sleep {delta}')
        issue(k)
    a.label(lbl)
    for k in range(nsets):
        a(f's_waitcnt vmcnt({(nsets-1)*nloads})')
        rs = list(regs(k))
        a(f'v_max_u32 v{vtmp}, v{rs[0]}, v{rs[1]}')
        rs = rs[2:]
        while len(rs) >= 2:
            a(f'v_max3_u32 v{vtmp}, v{vtmp}, v{rs[0]}, v{rs[1]}'); rs = rs[2:]
        if rs:
            a(f'v_max_u32 v{vtmp}, v{vtmp}, v{rs[0]}')
        a(f'v_cmp_eq_u32 vcc, -1, v{vtmp}')
        a('s_add_u32 s88, s88, 1')
        a('s_cmp_lt_u32 s88, 0x100000')
        a('s_cselect_b64 s[90:91], vcc, 0')
        a('s_cmp_eq_u64 s[90:91], 0')
        a(f's_cbranch_scc1 {done(k)}')
        issue(k)
    a(f's_branch {lbl}')

def t1_wait(a, lbl, s_addr, first=False):
    zv = 11 if first else 12
    if first:
        a(f'buffer_load_dword v254, v{zv}, s[32:35], s{s_addr} offen sc1')
    a.label(lbl)
    a('s_waitcnt vmcnt(0)')
    a('v_readfirstlane_b32 s42, v254')
    a('s_cmp_ge_u32 s42, 4')
    a(f's_cbranch_scc1 {lbl}_OK')
    a('s_add_u32 s88, s88, 1')
    a('s_cmp_ge_u32 s88, 0x100000')
    a(f's_cbranch_scc1 {lbl}_OK')
    a('s_sleep 4')
    a(f'buffer_load_dword v254, v{zv}, s[32:35], s{s_addr} offen sc1')
    a(f's_branch {lbl}')
    a.label(f'{lbl}_OK')

def k_chain3(a):
    name = 'chain3_kernel'
    kernel_header(a, name)
    a('s_cmp_ge_u32 s2, 128')
    a('s_cbranch_scc1 C3_END')
    a(f's_load_dwordx4 s[4:7], s[0:1], {KA["wq"]}')
    a(f's_load_dwordx4 s[48:51], s[0:1], {KA["wv"]}')
    a(f's_load_dwordx2 s[52:53], s[0:1], {KA["ws"]}')
    a(f's_load_dwordx2 s[94:95], s[0:1], {KA["mem0"]}')
    lane_decomp(a)
    a('s_waitcnt lgkmcnt(0)')
    NW = 640 * 6144 * 2
    make_srd(a, 8, 4, NW)
    make_srd(a, 12, 6, NW)
    make_srd(a, 16, 48, NW)
    make_srd(a, 28, 50, NW)
    make_srd(a, 32, 52, WS_SIZE)
    make_srd(a, 36, 94, 8 * 1280)
    a('s_mov_b32 s88, 0')
    role_assign(a, 128, 16)
    chain3_body(a)
    a.label('C3_END')
    a('s_endpgm')
    return name, kernel_desc(name, 256, 100, 256)

def chain3_body(a, mega=None):
    NW = 640 * 6144 * 2
    HS = ' sc1' if mega else ''
    def lbl(n): return f'C3_{n}'
    a('s_lshr_b32 s56, s55, 3')
    a('s_and_b32 s57, s55, 7')
    a('s_lshl_b32 s58, s54, 1')
    a('s_add_u32 s58, s58, s56')
    a('s_lshr_b32 s59, s57, 2')
    a('s_lshl_b32 s60, s58, 1')
    a('s_add_u32 s59, s59, s60')
    a('s_and_b32 s61, s57, 3')
    a('s_mul_i32 s42, s59, 384')
    a('s_mul_i32 s43, s61, 96')
    a('s_add_u32 s62, s42, s43')
    a('s_and_b32 s41, s40, 3')
    a('s_cmp_lt_u32 s40, 4')
    a('s_cselect_b32 s24, s8, s12')
    a('s_cselect_b32 s25, s9, s13')
    a(f's_mov_b32 s26, {NW}')
    a('s_mov_b32 s27, 0x00020000')
    a('s_mul_i32 s42, s41, 960')
    def wdma():
        for i in range(15):
            a(f's_add_u32 s43, s42, {64*i}')
            a('v_add_u32 v4, s43, v1')
            a('v_mul_u32_u24 v5, 10923, v4')
            a('v_lshrrev_b32 v5, 16, v5')
            a('v_mul_u32_u24 v6, 6, v5')
            a('v_sub_u32 v6, v4, v6')
            a('v_mul_u32_u24 v5, 12288, v5')
            a('v_lshl_add_u32 v5, v6, 4, v5')
            a('s_mul_i32 s43, s40, 15360')
            a(f's_add_u32 m0, s43, {1024*i}')
            a('s_nop 0')
            a('buffer_load_dwordx4 v5, s[24:27], s62 offen lds')
    wdma()
    a('v_lshlrev_b32 v15, 4, v1')
    a('v_lshlrev_b32 v13, 3, v1')
    a('s_waitcnt vmcnt(0)')
    a('s_barrier')
    WQ, WK = 20, 100
    a('v_lshrrev_b32 v4, 2, v2')
    a('v_lshl_add_u32 v4, v3, 2, v4')
    a('v_mul_u32_u24 v4, 96, v4')
    a('v_and_b32 v5, 3, v2')
    a('v_lshl_add_u32 v4, v5, 3, v4')
    a('s_cmp_ge_u32 s40, 3')
    a(f's_cbranch_scc1 {lbl("NOSW")}')
    a('s_lshl_b32 s42, s40, 5')
    a('v_add_u32 v8, s42, v4')
    a('v_add_u32 v9, 61440, v8')
    for base, ad in ((WQ, 8), (WK, 9)):
        for t in range(20):
            f = base + 4 * t
            a(f'ds_read_b64_tr_b16 v[{f}:{f+1}], v{ad} offset:{t*3072}')
            a(f'ds_read_b64_tr_b16 v[{f+2}:{f+3}], v{ad} offset:{t*3072+1536}')
            if t % 4 == 3:
                a('s_waitcnt lgkmcnt(0)')
    a.label(lbl('NOSW'))
    a('s_waitcnt lgkmcnt(0)')
    a('s_barrier')
    a('s_mul_i32 s42, s41, 960')
    a('s_cmp_ge_u32 s40, 4')
    a(f's_cbranch_scc1 {lbl("R2WO")}')
    a('s_mov_b32 s24, s16')
    a('s_mov_b32 s25, s17')
    wdma()
    a(f's_branch {lbl("R2END")}')
    a.label(lbl('R2WO'))
    a('s_mul_i32 s44, s58, 491520')
    a('s_mul_i32 s45, s57, 160')
    a('s_add_u32 s44, s44, s45')
    for i in range(15):
        a(f's_add_u32 s43, s42, {64*i}')
        a('v_add_u32 v5, s43, v1')
        a('v_mul_u32_u24 v6, 6554, v5')
        a('v_lshrrev_b32 v6, 16, v6')
        a('v_mul_u32_u24 v7, 10, v6')
        a('v_sub_u32 v7, v5, v7')
        a('v_mul_u32_u24 v6, 1280, v6')
        a('v_lshl_add_u32 v6, v7, 4, v6')
        a('s_mul_i32 s43, s40, 15360')
        a(f's_add_u32 m0, s43, {1024*i}')
        a('s_nop 0')
        a('buffer_load_dwordx4 v6, s[28:31], s44 offen lds')
    a.label(lbl('R2END'))
    a('s_waitcnt vmcnt(0)')
    a('s_barrier')
    WO, VW = 16, 64
    a('s_cmp_lt_u32 s40, 3')
    a(f's_cbranch_scc1 {lbl("NOZW")}')
    a('s_sub_u32 s74, s40, 3')
    a('v_lshrrev_b32 v5, 2, v2')
    a('v_lshl_add_u32 v5, v3, 2, v5')
    a('v_mul_u32_u24 v5, 160, v5')
    a('v_and_b32 v6, 3, v2')
    a('v_lshl_add_u32 v5, v6, 3, v5')
    a('s_lshl_b32 s42, s74, 5')
    a('s_add_u32 s42, s42, 61440')
    a('v_add_u32 v5, s42, v5')
    for hh in range(2):
        for b in range(6):
            f = WO + (hh * 6 + b) * 4
            ta, tb = BLK[b]
            a(f'ds_read_b64_tr_b16 v[{f}:{f+1}], v5 offset:{(hh*192 + 16*ta)*160}')
            a(f'ds_read_b64_tr_b16 v[{f+2}:{f+3}], v5 offset:{(hh*192 + 16*tb)*160}')
        a('s_waitcnt lgkmcnt(0)')
    a('s_mov_b32 s79, 99')
    for wv, tl in ((3, 0), (7, 1), (6, 2)):
        a(f's_cmp_eq_u32 s40, {wv}')
        a(f's_cselect_b32 s79, {tl}, s79')
    a('s_cmp_eq_u32 s79, 99')
    a(f's_cbranch_scc1 {lbl("NOZW")}')
    a('v_lshrrev_b32 v4, 2, v2')
    a('v_lshl_add_u32 v4, v3, 2, v4')
    a('v_mul_u32_u24 v4, 96, v4')
    a('v_and_b32 v5, 3, v2')
    a('v_lshl_add_u32 v4, v5, 3, v4')
    a('s_lshl_b32 s42, s79, 5')
    a('v_add_u32 v8, s42, v4')
    for t in range(20):
        f = VW + 4 * t
        a(f'ds_read_b64_tr_b16 v[{f}:{f+1}], v8 offset:{t*3072}')
        a(f'ds_read_b64_tr_b16 v[{f+2}:{f+3}], v8 offset:{t*3072+1536}')
        if t % 4 == 3:
            a('s_waitcnt lgkmcnt(0)')
    a.label(lbl('NOZW'))
    a('s_waitcnt lgkmcnt(0)')
    a('s_barrier')
    a('v_mov_b32 v11, 0')
    a('v_mov_b32 v12, -1')
    a('v_cmp_gt_u32 vcc, 8, v2')
    a('s_mov_b64 s[64:65], vcc')
    a('s_mov_b32 s66, -1')
    a('s_mov_b32 s67, 0')
    a('s_mov_b32 s98, 0')
    a('s_mov_b32 s99, -1')
    a('ds_write_b32 v11, v11 offset:8')
    a('ds_write_b32 v11, v11 offset:12')
    a('ds_write_b32 v11, v11 offset:32')
    for i in range(2):
        l = a.newlabel('M0S')
        a(f'v_add_u32 v4, {512*i}, v0')
        a('v_cmp_gt_u32 vcc, 640, v4')
        a('s_and_saveexec_b64 s[44:45], vcc')
        a(f's_cbranch_execz {l}')
        a('v_lshrrev_b32 v5, 6, v4')
        a('v_bfe_u32 v6, v4, 3, 1')
        a('v_mul_u32_u24 v6, 10, v6')
        a('v_add_u32 v5, v5, v6')
        a('v_bfe_u32 v6, v4, 4, 2')
        a('v_and_b32 v7, 7, v4')
        a('v_mul_u32_u24 v7, 1280, v7')
        a('v_lshl_add_u32 v7, v5, 6, v7')
        a('v_lshl_add_u32 v7, v6, 3, v7')
        a('buffer_load_dwordx2 v[8:9], v7, s[36:39], 0 offen')
        a('buffer_load_dwordx2 v[10:11], v7, s[36:39], 0 offen offset:32')
        a('v_lshlrev_b32 v6, 4, v4')
        a('s_waitcnt vmcnt(0)')
        a(f'ds_write_b128 v6, v[8:11] offset:{L_MEM}')
        a.label(l)
        a('s_mov_b64 exec, s[44:45]')
    a('v_mov_b32 v11, 0')
    if mega and PAIR:
        a('s_lshr_b32 s68, s54, 1')
        a('s_mul_i32 s68, s68, 40960')
    else:
        a('s_mul_i32 s68, s54, 40960')
    a(f's_add_u32 s68, s68, {WS_MEMF}')
    a('s_mul_i32 s42, s58, 24576')
    a(f's_add_u32 s70, s42, {WS_KF}')
    a(f's_add_u32 s71, s42, {WS_VF}')
    a('s_sub_u32 s46, s40, 4')
    a('s_mul_i32 s46, s46, 6144')
    def dma_blk(src_s, lds_s):
        a(f's_add_u32 s43, s{src_s}, s46')
        a(f's_add_u32 s47, s{lds_s}, s46')
        for i in range(6):
            a(f's_add_u32 m0, s47, {1024*i}')
            if i:
                a('s_add_u32 s43, s43, 1024')
            else:
                a('s_nop 0')
            a(f'buffer_load_dwordx4 v15, s[32:35], s43 offen lds')
    if mega:
        a('s_lshl_b32 s77, s54, 2')
        a(f's_add_u32 s77, s77, {mega["F_T1"]}')
        a('v_mov_b32 v255, 1')
    a('s_cmp_lt_u32 s40, 4')
    a(f's_cbranch_scc1 {lbl("NOPD")}')
    if mega:
        t1_wait(a, lbl('T1W0'), 77, first=True)
    a(f's_mov_b32 s45, {L_KX}')
    dma_blk(70, 45)
    a(f's_mov_b32 s45, {L_VX}')
    dma_blk(71, 45)
    a('s_add_u32 s71, s71, 393216')
    a(f's_mov_b32 s45, {L_VX + 24576}')
    dma_blk(71, 45)
    a.label(lbl('NOPD'))
    a('s_mul_i32 s42, s58, 24576')
    a(f's_add_u32 s70, s42, {WS_KF + 393216}')
    a(f's_add_u32 s71, s42, {WS_VF + 2*393216}')
    a('s_mov_b32 s84, 0')
    a('s_mov_b32 s86, 0')
    a('s_mov_b32 s89, 1')
    a('s_waitcnt vmcnt(0) lgkmcnt(0)')
    a('s_barrier')
    a('s_cmp_ge_u32 s40, 3')
    a(f's_cbranch_scc1 {lbl("ZWAVE")}')
    SEL = 16
    MF = 180
    AC = 220
    a('s_setprio 3')
    a(f's_mov_b32 s87, {f2u(192 ** -0.5 * LOG2E):#x}')
    for r in range(4):
        a(f'v_mov_b32 v{SEL+r}, 0')
        a(f'v_mov_b32 v4, 0x3f80')
        a(f'v_cmp_eq_u32 vcc, {2*r}, v2')
        a(f'v_cndmask_b32 v{SEL+r}, v{SEL+r}, v4, vcc')
        a(f'v_mov_b32 v4, 0x3f800000')
        a(f'v_cmp_eq_u32 vcc, {2*r+1}, v2')
        a(f'v_cndmask_b32 v{SEL+r}, v{SEL+r}, v4, vcc')
    a('s_lshr_b32 s42, s61, 1')
    a('s_add_u32 s42, s42, 4')
    a('s_and_b32 s43, s61, 1')
    a('s_cmp_eq_u32 s40, 2')
    a('s_cselect_b32 s42, s42, s61')
    a('s_cselect_b32 s43, s43, s40')
    a('s_lshl_b32 s42, s42, 10')
    a('s_lshl_b32 s43, s43, 3')
    a('s_add_u32 s42, s42, s43')
    a('s_mul_i32 s43, s59, 6144')
    a('s_add_u32 s42, s42, s43')
    a(f's_add_u32 s72, s42, {WS_G1}')
    a(f's_add_u32 s73, s42, {WS_HQK}')
    a('s_lshl_b32 s42, s58, 1')
    a('s_add_u32 s42, s42, s40')
    a('s_mul_i32 s42, s42, 6144')
    a(f's_add_u32 s75, s42, {WS_G1}')
    if mega:
        a(f's_add_u32 s73, s42, {WS_HQK - 196608}')
    if mega and PAIR:
        a('s_and_b32 s42, s54, 1')
        a('s_lshl_b32 s42, s42, 4')
        a('s_add_u32 s42, s42, s55')
        a('s_add_u32 s80, s42, 32')
        a('s_cmp_eq_u32 s40, 2')
        a('s_cselect_b32 s80, s42, s80')
        a('s_cmp_eq_u32 s40, 1')
        a('s_cselect_b32 s80, 99, s80')
    else:
        a('s_lshl_b32 s80, s40, 4')
        a('s_add_u32 s80, s80, s55')
    a('s_lshl_b32 s81, s80, 8')
    a(f's_add_u32 s81, s81, {WS_ZP}')
    a('v_mul_u32_u24 v10, 10240, v3')
    a('v_lshl_add_u32 v10, v2, 4, v10')
    a('s_lshr_b32 s42, s80, 1')
    a('s_cmp_ge_u32 s42, 10')
    a('s_cselect_b32 s43, 10, 0')
    a('s_cselect_b32 s44, 128, 0')
    a('s_sub_u32 s42, s42, s43')
    a('s_lshl_b32 s42, s42, 10')
    a('s_add_u32 s42, s42, s44')
    a('s_and_b32 s43, s80, 1')
    a('s_lshl_b32 s43, s43, 3')
    a('s_add_u32 s42, s42, s43')
    a('s_add_u32 s82, s42, s68')
    a(f'v_add_u32 v6, {L_MEM}, v15')
    a('s_mul_i32 s42, s40, 12288')
    a(f's_add_u32 s42, s42, {L_KX}')
    a('v_add_u32 v7, s42, v15')
    a('v_mov_b32 v8, -1')
    a('v_mov_b32 v9, -1')
    a('s_lshl_b32 s42, s40, 10')
    a(f's_add_u32 s42, s42, {L_PX}')
    a('v_add_u32 v5, s42, v15')
    a('s_cmp_eq_u32 s40, 0')
    a('s_cselect_b32 s42, 0, 256')
    a(f's_add_u32 s42, s42, {L_PM - 256}')
    a('v_add_u32 v4, s42, v13')
    a('s_lshl_b32 s42, s40, 2')
    a(f's_add_u32 s42, s42, {L_FLAG + 8}')
    a('v_mov_b32 v12, s42')
    a('s_mov_b32 s83, 0')
    a.label(lbl('SLOOP'))
    a('s_waitcnt vmcnt(0)')
    stamp(a, 0)
    a('s_barrier')
    stamp(a, 1)
    for t in range(10):
        a(f'ds_read_b128 v[{MF+4*t}:{MF+4*t+3}], v6 offset:{1024*t}')
    for t in range(10):
        a(f's_waitcnt lgkmcnt({9-t})')
        b = MF + 4 * t
        for ai, W in ((0, WQ + 4*t), (1, WQ + 4*(t+10)), (2, WK + 4*t), (3, WK + 4*(t+10))):
            acc = AC + 4 * ai
            c = '0' if t == 0 else f'v[{acc}:{acc+3}]'
            a(f'v_mfma_f32_16x16x32_bf16 v[{acc}:{acc+3}], v[{W}:{W+3}], v[{b}:{b+3}], {c}')
    a('s_mul_i32 s42, s86, 196608')
    a('s_add_u32 s42, s42, s72')
    a('s_nop 7')
    for r in range(4):
        a(f'v_add_f32_dpp v{AC+r}, v{AC+4+r}, v{AC+r} row_ror:8 row_mask:0xf bank_mask:0xf')
    for r in range(4):
        a(f'v_add_f32_dpp v{AC+12+r}, v{AC+8+r}, v{AC+12+r} row_ror:8 row_mask:0xf bank_mask:0xf')
    for r in range(4):
        a(f'v_mul_f32 v{AC+r}, s87, v{AC+r}')
    a('s_mov_b64 vcc, s[64:65]')
    for r in range(4):
        a(f'v_cndmask_b32 v{AC+r}, v{AC+12+r}, v{AC+r}, vcc')
    a(f'v_cvt_pk_bf16_f32 v{AC+4}, v{AC}, v{AC+1}')
    a(f'v_cvt_pk_bf16_f32 v{AC+5}, v{AC+2}, v{AC+3}')
    pub(a, [f'buffer_store_dwordx2 v[{AC+4}:{AC+5}], v15, s[32:35], s42 offen'])
    stamp(a, 2)
    (None if mega else a(f'buffer_store_dwordx2 v[{AC+4}:{AC+5}], v15, s[32:35], s73 offen'))
    a('s_add_u32 s73, s73, 196608')
    a('s_add_u32 s43, s86, 2')
    a('s_and_b32 s43, s43, 3')
    a('s_mul_i32 s43, s43, 196608')
    a('s_add_u32 s43, s43, s72')
    pub(a, [f'buffer_store_dwordx2 v[8:9], v15, s[32:35], s43 offen'])
    if mega:
        a('s_cmp_lg_u32 s40, 2')
        a(f's_cbranch_scc1 {lbl("SC01")}')
        a(f's_cmp_ge_u32 s84, {NSTEP-1}')
        a(f's_cbranch_scc1 {lbl("DONE")}')
        a(f's_branch {lbl("SRED")}')
        a.label(lbl('SC01'))
    else:
        a(f's_cmp_ge_u32 s84, {NSTEP-1}')
        a(f's_cbranch_scc1 {lbl("DONE")}')
        a('s_cmp_eq_u32 s40, 2')
        a(f's_cbranch_scc1 {lbl("SRED")}')
    if STAG & 2:
        RS = [180, 204]
        KS = 228
        SC = 244
        def rd_k(i):
            a(f'ds_read_b128 v[{KS+4*(i%4)}:{KS+4*(i%4)+3}], v7 offset:{1024*i}')
        for i in range(4): rd_k(i)
        a('s_mul_i32 s42, s86, 196608')
        a('s_add_u32 s42, s42, s75')
        a('s_add_u32 s43, s42, 4096')
        if D_SC: a(f's_sleep {D_SC}')
        def ld_g1(k):
            for b in range(6):
                so = 42 if b < 4 else 43
                a(f'buffer_load_dwordx4 v[{RS[k]+4*b}:{RS[k]+4*b+3}], v15, s[32:35], s{so} offen offset:{1024*(b%4)} sc1')
        poll_stag(a, lbl('POLLG'), 2, ld_g1, lambda k: [RS[k] + 4*b + o for b in range(6) for o in (0, 2)], 6, DL_G, 14, lambda k: lbl(f'G1OK{k}'))
        for k in range(2):
            R = RS[k]
            a.label(lbl(f'G1OK{k}'))
            stamp(a, 3)
            def xm(i):
                tile, b = divmod(i, 6)
                acc = SC + 4 + 4 * tile
                c = '0' if b == 0 else f'v[{acc}:{acc+3}]'
                a(f's_waitcnt lgkmcnt({min(3, 11 - i)})')
                a(f'v_mfma_f32_16x16x32_bf16 v[{acc}:{acc+3}], v[{KS+4*(i%4)}:{KS+4*(i%4)+3}], v[{R+4*b}:{R+4*b+3}], {c}')
                if i + 4 < 12: rd_k(i + 4)
            for i in range(4): xm(i)
            for b in range(6):
                c = '0' if b == 0 else f'v[{SC}:{SC+3}]'
                a(f'v_mfma_f32_16x16x32_bf16 v[{SC}:{SC+3}], v[{R+4*b}:{R+4*b+3}], v[{R+4*b}:{R+4*b+3}], {c}')
            if mega:
                a('s_cmp_lg_u32 s57, 0')
                a(f's_cbranch_scc1 {lbl(f"NOHQ{k}")}')
                a('s_add_u32 s43, s73, 4096')
                for b in range(6):
                    so = 73 if b < 4 else 43
                    a(f'buffer_store_dwordx4 v[{R+4*b}:{R+4*b+3}], v15, s[32:35], s{so} offen offset:{1024*(b%4)} sc1')
                a.label(lbl(f'NOHQ{k}'))
                a(f's_cmp_ge_u32 s84, {NSTEP-1}')
                a(f's_cbranch_scc1 {lbl("DONE")}')
            for i in range(4, 12): xm(i)
            if k == 0: a(f's_branch {lbl("G1J")}')
        a.label(lbl('G1J'))
    else:
        R = 180
        KS = 204
        SC = 244
        def rd_k(i, slot):
            a(f'ds_read_b128 v[{KS+4*slot}:{KS+4*slot+3}], v7 offset:{1024*i}')
        for i in range(10): rd_k(i, i)
        a('s_mul_i32 s42, s86, 196608')
        a('s_add_u32 s42, s42, s75')
        a('s_add_u32 s43, s42, 4096')
        if D_SC: a(f's_sleep {D_SC}')
        def ld_g1():
            for b in range(6):
                so = 42 if b < 4 else 43
                a(f'buffer_load_dwordx4 v[{R+4*b}:{R+4*b+3}], v15, s[32:35], s{so} offen offset:{1024*(b%4)} sc1')
        poll_sent(a, lbl('POLLG'), ld_g1, [R + 4*b + o for b in range(6) for o in (0, 2)], 14)
        stamp(a, 3)
        if mega:
            a('s_cmp_lg_u32 s57, 0')
            a(f's_cbranch_scc1 {lbl("NOHQ")}')
            a('s_add_u32 s43, s73, 4096')
            for b in range(6):
                so = 73 if b < 4 else 43
                a(f'buffer_store_dwordx4 v[{R+4*b}:{R+4*b+3}], v15, s[32:35], s{so} offen offset:{1024*(b%4)} sc1')
            a.label(lbl('NOHQ'))
            a(f's_cmp_ge_u32 s84, {NSTEP-1}')
            a(f's_cbranch_scc1 {lbl("DONE")}')
        a('s_waitcnt lgkmcnt(0)')
        for b in range(6):
            c = '0' if b == 0 else f'v[{SC+4}:{SC+7}]'
            a(f'v_mfma_f32_16x16x32_bf16 v[{SC+4}:{SC+7}], v[{KS+4*b}:{KS+4*b+3}], v[{R+4*b}:{R+4*b+3}], {c}')
        rd_k(10, 0); rd_k(11, 1)
        for b in range(6):
            c = '0' if b == 0 else f'v[{SC}:{SC+3}]'
            a(f'v_mfma_f32_16x16x32_bf16 v[{SC}:{SC+3}], v[{R+4*b}:{R+4*b+3}], v[{R+4*b}:{R+4*b+3}], {c}')
        a('s_waitcnt lgkmcnt(0)')
        for b in range(6):
            c = '0' if b == 0 else f'v[{SC+8}:{SC+11}]'
            sl = (6 + b) if b < 4 else (b - 4)
            a(f'v_mfma_f32_16x16x32_bf16 v[{SC+8}:{SC+11}], v[{KS+4*sl}:{KS+4*sl+3}], v[{R+4*b}:{R+4*b+3}], {c}')
    a(f'v_mov_b32 v14, {f2u(-1e30):#x}')
    a('v_cmp_gt_u32 vcc, 2, v3')
    a('s_nop 7')
    stamp(a, 4)
    for r in range(4):
        a(f'v_cndmask_b32 v{SC+r}, v{SC+r}, v14, vcc')
    M = 228 if STAG & 2 else 180
    a(f'v_max3_f32 v{M}, v{SC+4}, v{SC+5}, v{SC+6}')
    a(f'v_max3_f32 v{M+1}, v{SC+7}, v{SC+8}, v{SC+9}')
    a(f'v_max3_f32 v{M+2}, v{SC+10}, v{SC+11}, v{SC}')
    a(f'v_max3_f32 v{M+3}, v{SC+1}, v{SC+2}, v{SC+3}')
    a(f'v_max3_f32 v{M}, v{M}, v{M+1}, v{M+2}')
    a(f'v_max_f32 v{M}, v{M}, v{M+3}')
    def xg(op, v, t):
        a(f'v_mov_b32 v{t}, v{v}')
        a('s_nop 1')
        a(f'v_permlane32_swap_b32 v{v}, v{t}')
        a('s_nop 1')
        a(f'v_{op}_f32 v{v}, v{v}, v{t}')
        a(f'v_mov_b32 v{t}, v{v}')
        a('s_nop 1')
        a(f'v_permlane16_swap_b32 v{v}, v{t}')
        a('s_nop 1')
        a(f'v_{op}_f32 v{v}, v{v}, v{t}')
    xg('max', M, M + 1)
    for r in range(12):
        a(f'v_sub_f32 v{SC+r}, v{SC+r}, v{M}')
    for r in range(12):
        a(f'v_exp_f32 v{SC+r}, v{SC+r}')
    a('s_nop 0')
    L = M + 2
    a(f'v_add_f32 v{L}, v{SC}, v{SC+1}')
    a(f'v_add_f32 v{L+1}, v{SC+2}, v{SC+3}')
    a(f'v_add_f32 v{L+2}, v{SC+4}, v{SC+5}')
    a(f'v_add_f32 v{L+3}, v{SC+6}, v{SC+7}')
    a(f'v_add_f32 v{L+4}, v{SC+8}, v{SC+9}')
    a(f'v_add_f32 v{L+5}, v{SC+10}, v{SC+11}')
    a(f'v_add_f32 v{L}, v{L}, v{L+1}')
    a(f'v_add_f32 v{L+2}, v{L+2}, v{L+3}')
    a(f'v_add_f32 v{L+4}, v{L+4}, v{L+5}')
    a(f'v_add_f32 v{L}, v{L}, v{L+2}')
    a(f'v_add_f32 v{L}, v{L}, v{L+4}')
    xg('add', L, L + 1)
    a(f'v_rcp_f32 v{L}, v{L}')
    a('s_nop 0')
    for r in range(12):
        a(f'v_mul_f32 v{SC+r}, v{SC+r}, v{L}')
    if 'dbgp' in OPT:
        a('s_lshl_b32 s42, s58, 1')
        a('s_add_u32 s42, s42, s40')
        a('s_mul_i32 s42, s42, 3072')
        a(f's_add_u32 s42, s42, {WS_OF}')
        for i in range(3):
            a(f'buffer_store_dwordx4 v[{SC+4*i}:{SC+4*i+3}], v15, s[32:35], s42 offen offset:{1024*i}')
    PO = 236 if STAG & 2 else 192
    a(f'v_cvt_pk_bf16_f32 v{PO}, v{SC+4}, v{SC+5}')
    a(f'v_cvt_pk_bf16_f32 v{PO+1}, v{SC+6}, v{SC+7}')
    a(f'v_cvt_pk_bf16_f32 v{PO+2}, v{SC+8}, v{SC+9}')
    a(f'v_cvt_pk_bf16_f32 v{PO+3}, v{SC+10}, v{SC+11}')
    a(f'v_cvt_pk_bf16_f32 v{PO+4}, v{SC}, v{SC+1}')
    a(f'v_cvt_pk_bf16_f32 v{PO+5}, v{SC+2}, v{SC+3}')
    a('v_mov_b32 v14, s89')
    a(f'ds_write_b128 v5, v[{PO}:{PO+3}]')
    a('s_mov_b64 exec, s[98:99]')
    a(f'ds_write_b64 v4, v[{PO+4}:{PO+5}]')
    a('s_mov_b64 exec, -1')
    a(f'ds_write_b32 v12, v14')
    stamp(a, 5)
    a('s_xor_b32 s83, s83, 1')
    a('s_mul_i32 s42, s83, 24576')
    a('s_mul_i32 s43, s40, 12288')
    a('s_add_u32 s42, s42, s43')
    a(f's_add_u32 s42, s42, {L_KX}')
    a('v_add_u32 v7, s42, v15')
    a.label(lbl('SRED'))
    a('s_cmp_ge_u32 s80, 40')
    a(f's_cbranch_scc1 {lbl("NORED")}')
    def rd_pf():
        a(f'ds_read_b32 v{180}, v11 offset:{L_FLAG + 8}')
        a(f'ds_read_b32 v{181}, v11 offset:{L_FLAG + 12}')
    lds_spin(a, lbl('SPINR'), rd_pf, [180, 181], 14)
    if D_Z: a(f's_sleep {D_Z}')
    a('s_mul_i32 s42, s86, 163840')
    a('s_add_u32 s42, s42, s81')
    ZA = 228
    if STAG & 4:
        RDS = [180 + 16 * k for k in range(NS_Z)]
        for i in range(4):
            a(f's_add_u32 s{44+i}, s42, {i*40960}')
        def ld_z(k):
            for i in range(4):
                a(f'buffer_load_dwordx4 v[{RDS[k]+4*i}:{RDS[k]+4*i+3}], v10, s[32:35], s{44+i} offen sc1')
        stampc(a, 6)
        poll_stag(a, lbl('POLLZ'), NS_Z, ld_z, lambda k: [RDS[k] + 4*i + o for i in range(4) for o in (0, 2)], 4, DL_Z, 14, lambda k: lbl(f'ZOK{k}'))
        for k in range(NS_Z):
            a.label(lbl(f'ZOK{k}'))
            for i in range(4):
                c = '0' if i == 0 else f'v[{ZA}:{ZA+3}]'
                a(f'v_mfma_f32_16x16x32_bf16 v[{ZA}:{ZA+3}], v[{RDS[k]+4*i}:{RDS[k]+4*i+3}], v[{SEL}:{SEL+3}], {c}')
            if k < NS_Z - 1: a(f's_branch {lbl("ZJ")}')
        a.label(lbl('ZJ'))
        stampc(a, 7)
        stamp(a, 8)
    else:
        RD = 184
        def ld_z():
            for i in range(4):
                a(f's_add_u32 s43, s42, {i*40960}')
                a(f'buffer_load_dwordx4 v[{RD+4*i}:{RD+4*i+3}], v10, s[32:35], s43 offen sc1')
        stampc(a, 6)
        poll_sent(a, lbl('POLLZ'), ld_z, [RD + 4*i + o for i in range(4) for o in (0, 2)], 14)
        stampc(a, 7)
        stamp(a, 8)
        for i in range(4):
            c = '0' if i == 0 else f'v[{ZA}:{ZA+3}]'
            a(f'v_mfma_f32_16x16x32_bf16 v[{ZA}:{ZA+3}], v[{RD+4*i}:{RD+4*i+3}], v[{SEL}:{SEL+3}], {c}')
    a('s_add_u32 s43, s86, 1')
    a('s_and_b32 s43, s43, 3')
    a('s_mul_i32 s42, s43, 10240')
    a('s_add_u32 s42, s42, s82')
    a('s_add_u32 s43, s43, 2')
    a('s_and_b32 s43, s43, 3')
    a('s_mul_i32 s43, s43, 10240')
    a('s_add_u32 s43, s43, s82')
    a('s_nop 7')
    a(f'v_cvt_pk_bf16_f32 v{ZA+4}, v{ZA}, v{ZA+1}')
    a(f'v_cvt_pk_bf16_f32 v{ZA+5}, v{ZA+2}, v{ZA+3}')
    a('s_mov_b64 exec, s[64:65]')
    pub(a, [f'buffer_store_dwordx2 v[{ZA+4}:{ZA+5}], v15, s[32:35], s42 offen'])
    pub(a, [f'buffer_store_dwordx2 v[8:9], v15, s[32:35], s43 offen'])
    a('s_mov_b64 exec, -1')
    a.label(lbl('NORED'))
    stamp(a, 9)
    a('s_add_u32 s84, s84, 1')
    a('s_add_u32 s89, s89, 1')
    a('s_and_b32 s86, s84, 3')
    a(f's_branch {lbl("SLOOP")}')
    a.label(lbl('ZWAVE'))
    MF = 144; AC = 184; YF = 192; UC = 200; ST = 204; YA = 228; PF = 240
    SN = 8
    a('v_mov_b32 v12, 0')
    for r in (UC + 2, UC + 3, PF + 10, PF + 11):
        a(f'v_mov_b32 v{r}, 0')
    a('s_mul_i32 s75, s57, 5')
    a('s_add_u32 s75, s75, s74')
    a('s_mul_i32 s78, s58, 40')
    a('s_add_u32 s78, s78, s75')
    a('s_lshl_b32 s78, s78, 8')
    a(f's_add_u32 s78, s78, {WS_ZP}')
    a('s_lshl_b32 s42, s74, 11')
    a('s_add_u32 s69, s68, s42')
    a(f's_add_u32 s42, s42, {L_MEM}')
    a('v_add_u32 v7, s42, v15')
    a(f'v_add_u32 v6, {L_MEM}, v15')
    a('s_lshr_b32 s42, s61, 1')
    a('s_add_u32 s42, s42, 4')
    a('s_and_b32 s43, s61, 1')
    a('s_cmp_eq_u32 s79, 2')
    a('s_cselect_b32 s42, s42, s61')
    a('s_cselect_b32 s43, s43, s79')
    a('s_lshl_b32 s42, s42, 10')
    a('s_lshl_b32 s43, s43, 3')
    a('s_add_u32 s42, s42, s43')
    a('s_lshr_b32 s43, s57, 2')
    a('s_lshl_b32 s43, s43, 7')
    a('s_add_u32 s42, s42, s43')
    a('s_mul_i32 s43, s58, 6144')
    a('s_add_u32 s42, s42, s43')
    a(f's_add_u32 s72, s42, {WS_G2}')
    a(f's_add_u32 s73, s42, {WS_HV}')
    a(f's_add_u32 s76, s43, {WS_G2}')
    if mega:
        a(f's_add_u32 s85, s43, {WS_HV}')
    for r in range(8, 12):
        a(f'v_mov_b32 v{r}, -1')
    a('s_mov_b32 s83, 0')
    def y_compute():
        a('s_mul_i32 s42, s83, 24576')
        a(f's_add_u32 s42, s42, {L_VX}')
        a('v_add_u32 v5, s42, v15')
        seq = [(hh, tt, b) for hh in range(2) for tt in range(2) for b in range(6)]
        NB = 6
        def rd(i):
            hh, tt, b = seq[i]
            r = ST + 4 * (i % NB)
            a(f'ds_read_b128 v[{r}:{r+3}], v5 offset:{hh*12288 + tt*6144 + b*1024}')
        for i in range(5): rd(i)
        for i in range(24):
            hh, tt, b = seq[i]
            a(f's_waitcnt lgkmcnt({min(4, 23 - i)})')
            r = ST + 4 * (i % NB)
            acc = YA + (hh * 2 + tt) * 4
            c = '0' if b == 0 else f'v[{acc}:{acc+3}]'
            w = WO + (hh * 6 + b) * 4
            a(f'v_mfma_f32_16x16x32_bf16 v[{acc}:{acc+3}], v[{r}:{r+3}], v[{w}:{w+3}], {c}')
            if i + 5 < 24: rd(i + 5)
        a('s_nop 7')
        for q in range(4):
            acc = YA + 4 * q
            a(f'v_cvt_pk_bf16_f32 v{YF+2*q}, v{acc}, v{acc+1}')
            a(f'v_cvt_pk_bf16_f32 v{YF+2*q+1}, v{acc+2}, v{acc+3}')
        a('s_xor_b32 s83, s83, 1')
    y_compute()
    a.label(lbl('ZLOOP'))
    stamp(a, 0)
    a('s_barrier')
    stamp(a, 1)
    a('s_cmp_eq_u32 s40, 3')
    a(f's_cbranch_scc1 {lbl("NODMA")}')
    if mega:
        a('s_and_b32 s42, s84, 3')
        a('s_cmp_lg_u32 s42, 2')
        a(f's_cbranch_scc1 {lbl("NOFL")}')
        a('s_add_u32 s42, s84, 2')
        a('s_lshl_b32 s42, s42, 3')
        a('s_add_u32 s93, s42, s77')
        a('buffer_load_dword v254, v12, s[32:35], s93 offen sc1')
        a.label(lbl('NOFL'))
        a('s_cmp_lg_u32 s40, 5')
        a(f's_cbranch_scc1 {lbl("NOHS")}')
        if mega.get('LOG'):
            a('s_memrealtime s[96:97]')
            a('s_lshl_b32 s42, s84, 2')
            a('s_lshl_b32 s43, s2, 12')
            a('s_add_u32 s42, s42, s43')
            a(f's_add_u32 s42, s42, {mega["LOG"]}')
            a('s_waitcnt lgkmcnt(0)')
            a('v_mov_b32 v14, s96')
            a('s_memtime s[96:97]')
            a('s_mov_b64 exec, 1')
            a('buffer_store_dword v14, v12, s[32:35], s42 offen')
            a('s_waitcnt lgkmcnt(0)')
            a('v_mov_b32 v14, s96')
            a('s_nop 1')
            a('buffer_store_dword v14, v12, s[32:35], s42 offen offset:256')
            a('s_mov_b64 exec, -1')
        a('s_and_b32 s42, s84, 3')
        a('s_cmp_lg_u32 s42, 0')
        a(f's_cbranch_scc1 {lbl("NOHS")}')
        a('s_cmp_eq_u32 s84, 0')
        a(f's_cbranch_scc1 {lbl("NOHS")}')
        a('s_lshl_b32 s42, s84, 3')
        a('s_lshl_b32 s43, s54, 2')
        a('s_add_u32 s42, s42, s43')
        a(f's_add_u32 s42, s42, {mega["C_HIST"] - 32}')
        a('s_mov_b64 exec, 1')
        a('buffer_atomic_add v255, v12, s[32:35], s42 offen sc1')
        a('s_mov_b64 exec, -1')
        a.label(lbl('NOHS'))
    a('s_and_b32 s42, s84, 1')
    a('s_mul_i32 s44, s42, 24576')
    a(f's_add_u32 s45, s44, {L_VX}')
    a('s_xor_b32 s42, s42, 1')
    a('s_mul_i32 s44, s42, 24576')
    a(f's_add_u32 s44, s44, {L_KX}')
    if 'nodma' not in OPT:
        dma_blk(70, 44)
    a('s_add_u32 s70, s70, 393216')
    a.label(lbl('NODMA'))
    a('s_cmp_eq_u32 s79, 99')
    a(f's_cbranch_scc1 {lbl("NOV")}')
    for t in range(10):
        a(f'ds_read_b128 v[{MF+4*t}:{MF+4*t+3}], v6 offset:{1024*t}')
    for t in range(10):
        a(f's_waitcnt lgkmcnt({9-t})')
        b = MF + 4 * t
        for ai, W in ((0, VW + 4*t), (1, VW + 4*(t+10))):
            acc = AC + 4 * ai
            c = '0' if t == 0 else f'v[{acc}:{acc+3}]'
            a(f'v_mfma_f32_16x16x32_bf16 v[{acc}:{acc+3}], v[{W}:{W+3}], v[{b}:{b+3}], {c}')
    a('s_mul_i32 s42, s86, 98304')
    a('s_add_u32 s42, s42, s72')
    a('s_nop 7')
    for r in range(4):
        a(f'v_add_f32_dpp v{AC+r}, v{AC+4+r}, v{AC+r} row_ror:8 row_mask:0xf bank_mask:0xf')
    a('s_nop 0')
    a(f'v_cvt_pk_bf16_f32 v{AC+4}, v{AC}, v{AC+1}')
    a(f'v_cvt_pk_bf16_f32 v{AC+5}, v{AC+2}, v{AC+3}')
    a('s_add_u32 s43, s86, 2')
    a('s_and_b32 s43, s43, 3')
    a('s_mul_i32 s43, s43, 98304')
    a('s_add_u32 s43, s43, s72')
    a('s_mov_b64 exec, s[64:65]')
    pub(a, [f'buffer_store_dwordx2 v[{AC+4}:{AC+5}], v15, s[32:35], s42 offen'])
    (None if mega else a(f'buffer_store_dwordx2 v[{AC+4}:{AC+5}], v15, s[32:35], s73 offen'))
    pub(a, [f'buffer_store_dwordx2 v[8:9], v15, s[32:35], s43 offen'])
    a('s_mov_b64 exec, -1')
    a('s_add_u32 s73, s73, 98304')
    a.label(lbl('NOV'))
    stamp(a, 2)
    if mega:
        a(f's_cmp_eq_u32 s40, {VPW}')
        a(f's_cbranch_scc1 {lbl("ZW4")}')
        a(f's_cmp_ge_u32 s84, {NSTEP-1}')
        a(f's_cbranch_scc1 {lbl("DONE")}')
        a(f's_branch {lbl("NOVP")}')
        a.label(lbl('ZW4'))
    else:
        a(f's_cmp_ge_u32 s84, {NSTEP-1}')
        a(f's_cbranch_scc1 {lbl("DONE")}')
        a(f's_cmp_lg_u32 s40, {VPW}')
        a(f's_cbranch_scc1 {lbl("NOVP")}')
    a('s_mul_i32 s42, s86, 98304')
    a('s_add_u32 s42, s42, s76')
    a('s_add_u32 s43, s42, 4096')
    if D_V: a(f's_sleep {D_V}')
    def ld_g2():
        for b in range(6):
            so = 42 if b < 4 else 43
            a(f'buffer_load_dwordx4 v[{MF+4*b}:{MF+4*b+3}], v15, s[32:35], s{so} offen offset:{1024*(b%4)} sc1')
    poll_sent(a, lbl('POLLV'), ld_g2, [MF + 4*b + o for b in range(6) for o in (0, 2)], 14)
    for b in range(6):
        a(f'ds_write_b128 v15, v[{MF+4*b}:{MF+4*b+3}] offset:{L_VM + 1024*b}')
    a('v_mov_b32 v14, s89')
    a(f'ds_write_b32 v12, v14 offset:{L_FLAG + 32}')
    if mega:
        a('s_cmp_lg_u32 s57, 0')
        a(f's_cbranch_scc1 {lbl("NOHV")}')
        a('s_add_u32 s43, s85, 4096')
        for b in range(6):
            so = 85 if b < 4 else 43
            a(f'buffer_store_dwordx4 v[{MF+4*b}:{MF+4*b+3}], v15, s[32:35], s{so} offen offset:{1024*(b%4)} sc1')
        a.label(lbl('NOHV'))
        a('s_add_u32 s85, s85, 98304')
        a(f's_cmp_ge_u32 s84, {NSTEP-1}')
        a(f's_cbranch_scc1 {lbl("DONE")}')
    a.label(lbl('NOVP'))
    def rd_vm():
        a(f'ds_read_b32 v{PF+12}, v12 offset:{L_FLAG + 32}')
        for b in range(6):
            a(f'ds_read_b128 v[{ST+4*b}:{ST+4*b+3}], v15 offset:{L_VM + 1024*b}')
    lds_spin(a, lbl('SPINV'), rd_vm, [PF + 12], 14)
    stamp(a, 3)
    def vx_dma():
        a('s_cmp_eq_u32 s40, 3')
        a(f's_cbranch_scc1 {lbl("NODMA2")}')
        if mega:
            a('s_and_b32 s42, s84, 3')
            a('s_cmp_lg_u32 s42, 2')
            a(f's_cbranch_scc1 {lbl("T1W_OK")}')
            a('s_cmp_ge_u32 s84, 62')
            a(f's_cbranch_scc1 {lbl("T1W_OK")}')
            t1_wait(a, lbl('T1W'), 93)
        a('s_and_b32 s42, s84, 1')
        a('s_mul_i32 s44, s42, 24576')
        a(f's_add_u32 s45, s44, {L_VX}')
        if 'nodma' not in OPT:
            dma_blk(71, 45)
        a('s_add_u32 s71, s71, 393216')
        a.label(lbl('NODMA2'))
    if not VXLATE: vx_dma()
    for b in range(6):
        for hh in range(2):
            acc = YA + 4 * hh
            c = '0' if b == 0 else f'v[{acc}:{acc+3}]'
            w = WO + (hh * 6 + b) * 4
            a(f'v_mfma_f32_16x16x32_bf16 v[{acc}:{acc+3}], v[{ST+4*b}:{ST+4*b+3}], v[{w}:{w+3}], {c}')
    a('s_mov_b64 vcc, s[66:67]')
    a('s_nop 7')
    for r in range(4):
        a(f'v_cndmask_b32 v{YA+r}, v{YA+4+r}, v{YA+r}, vcc')
    a(f'v_cvt_pk_bf16_f32 v{UC}, v{YA}, v{YA+1}')
    a(f'v_cvt_pk_bf16_f32 v{UC+1}, v{YA+2}, v{YA+3}')
    stamp(a, 4)
    FA, FB_ = PF + 12, PF + 13
    def rd_p():
        a(f'ds_read_b32 v{FA}, v12 offset:{L_FLAG + 8}')
        a(f'ds_read_b32 v{FB_}, v12 offset:{L_FLAG + 12}')
        a(f'ds_read_b128 v[{PF}:{PF+3}], v15 offset:{L_PX}')
        a(f'ds_read_b128 v[{PF+4}:{PF+7}], v15 offset:{L_PX + 1024}')
        a(f'ds_read_b64 v[{PF+8}:{PF+9}], v13 offset:{L_PM}')
    lds_spin(a, lbl('SPINP'), rd_p, [FA, FB_], 14)
    stamp(a, 5)
    a(f'v_mfma_f32_16x16x32_bf16 v[{AC}:{AC+3}], v[{PF}:{PF+3}], v[{YF}:{YF+3}], 0')
    a(f'v_mfma_f32_16x16x32_bf16 v[{AC}:{AC+3}], v[{PF+4}:{PF+7}], v[{YF+4}:{YF+7}], v[{AC}:{AC+3}]')
    a(f'v_mfma_f32_16x16x32_bf16 v[{AC}:{AC+3}], v[{PF+8}:{PF+11}], v[{UC}:{UC+3}], v[{AC}:{AC+3}]')
    a('s_mul_i32 s42, s86, 163840')
    a('s_add_u32 s42, s42, s78')
    a('s_add_u32 s43, s86, 2')
    a('s_and_b32 s43, s43, 3')
    a('s_mul_i32 s43, s43, 163840')
    a('s_add_u32 s49, s43, s78')
    a('s_nop 7')
    a(f'v_cvt_pk_bf16_f32 v{AC+4}, v{AC}, v{AC+1}')
    a(f'v_cvt_pk_bf16_f32 v{AC+5}, v{AC+2}, v{AC+3}')
    a(f'v_mov_b32 v{AC+6}, v{AC+4}')
    a(f'v_mov_b32 v{AC+7}, v{AC+5}')
    a('s_nop 1')
    a(f'v_permlane16_swap_b32 v{AC+4}, v{AC+6}')
    a(f'v_permlane16_swap_b32 v{AC+5}, v{AC+7}')
    a('s_mov_b64 exec, 0xffff')
    a(f'buffer_store_dwordx4 v[{AC+4}:{AC+7}], v15, s[32:35], s42 offen sc1')
    a('s_mov_b64 exec, -1')
    stamp(a, 6)
    if VXLATE: vx_dma()
    y_compute()
    a('s_mov_b64 exec, 0xffff')
    a(f'buffer_store_dwordx4 v[{SN}:{SN+3}], v15, s[32:35], s49 offen sc1')
    a('s_mov_b64 exec, -1')
    stamp(a, 7)
    a('s_add_u32 s84, s84, 1')
    a('s_add_u32 s89, s89, 1')
    a('s_and_b32 s86, s84, 3')
    a('s_mul_i32 s42, s86, 10240')
    a('s_add_u32 s42, s42, s69')
    if D_MEM: a(f's_sleep {D_MEM}')
    if STAG & 1:
        MS = [204 + 8 * k for k in range(NS_M)]
        def ld_mem(k):
            a(f'buffer_load_dwordx4 v[{MS[k]}:{MS[k]+3}], v15, s[32:35], s42 offen sc1')
            a(f'buffer_load_dwordx4 v[{MS[k]+4}:{MS[k]+7}], v15, s[32:35], s42 offen offset:1024 sc1')
        poll_stag(a, lbl('POLLM'), NS_M, ld_mem, lambda k: [MS[k], MS[k] + 2, MS[k] + 4, MS[k] + 6], 2, DL_M, 14, lambda k: lbl(f'MOK{k}'))
        for k in range(NS_M):
            a.label(lbl(f'MOK{k}'))
            a(f'ds_write_b128 v7, v[{MS[k]}:{MS[k]+3}]')
            a(f'ds_write_b128 v7, v[{MS[k]+4}:{MS[k]+7}] offset:1024')
            if k < NS_M - 1: a(f's_branch {lbl("MJ")}')
        a.label(lbl('MJ'))
    else:
        def ld_mem():
            a(f'buffer_load_dwordx4 v[{MF}:{MF+3}], v15, s[32:35], s42 offen sc1')
            a(f'buffer_load_dwordx4 v[{MF+4}:{MF+7}], v15, s[32:35], s42 offen offset:1024 sc1')
        poll_sent(a, lbl('POLLM'), ld_mem, [MF, MF + 2, MF + 4, MF + 6], 14)
        a(f'ds_write_b128 v7, v[{MF}:{MF+3}]')
        a(f'ds_write_b128 v7, v[{MF+4}:{MF+7}] offset:1024')
    a('s_waitcnt lgkmcnt(0)')
    stamp(a, 8)
    a(f's_branch {lbl("ZLOOP")}')
    a.label(lbl('DONE'))
    if mega:
        a('s_setprio 0')
        a('s_waitcnt vmcnt(0) lgkmcnt(0)')
        a('s_barrier')
        a('s_cmp_lg_u32 s40, 0')
        a(f's_cbranch_scc1 {lbl("NOHS2")}')
        a('s_lshl_b32 s43, s54, 2')
        a(f's_add_u32 s42, s43, {mega["C_HIST"] + 15*32}')
        a('v_mov_b32 v255, 1')
        a('v_mov_b32 v12, 0')
        a('s_mov_b64 exec, 1')
        a('buffer_atomic_add v255, v12, s[32:35], s42 offen sc1')
        a('s_mov_b64 exec, -1')
        a.label(lbl('NOHS2'))
    if 'gst' in OPT:
        a('s_lshl_b32 s42, s2, 12')
        a('s_lshl_b32 s43, s40, 6')
        a('s_add_u32 s42, s42, s43')
        a(f's_add_u32 s42, s42, {0x1C00000}')
        a('v_mov_b32 v4, 0')
        a('s_mov_b64 exec, 1')
        for i in range(10):
            a(f'v_mov_b32 v5, s{SB+i}')
            a(f'buffer_store_dword v5, v4, s[32:35], s42 offen offset:{4*i}')
            a('s_nop 1')
        a('s_lshl_b32 s43, s54, 4')
        a('s_add_u32 s43, s43, s55')
        a('s_add_u32 s43, s43, 0x1000')
        a('v_mov_b32 v5, s43')
        a('buffer_store_dword v5, v4, s[32:35], s42 offen offset:40')
        a('s_mov_b64 exec, -1')
    elif 'stamp' in OPT:
        l = a.newlabel('STP')
        a('s_cmp_lg_u32 s2, 9')
        a(f's_cbranch_scc1 {l}')
        a('s_mov_b32 s42, 99')
        for wv, sl in ((0, 0), (1, 1), (3, 2), (4, 3)):
            a(f's_cmp_eq_u32 s40, {wv}')
            a(f's_cselect_b32 s42, {sl}, s42')
        a('s_cmp_eq_u32 s42, 99')
        a(f's_cbranch_scc1 {l}')
        a(f's_load_dwordx2 s[96:97], s[0:1], {KA["dbg"]}')
        a('s_waitcnt lgkmcnt(0)')
        a('s_lshl_b32 s42, s42, 6')
        a('v_mov_b32 v4, s42')
        for i in range(10):
            a(f'v_mov_b32 v5, s{SB+i}')
            a(f'global_store_dword v4, v5, s[96:97] offset:{4*i}')
            a('s_nop 1')
        a.label(l)
```

```python
from asmlib import *
from layout2 import *
import os
NSLAB = int(os.environ.get('NSLAB', '8'))
from k_t1 import lane_decomp, OPT

def row_allreduce(a, op, v):
    for r in (8, 4, 2, 1):
        a('s_nop 1')
        a(f'v_{op}_f32_dpp v{v}, v{v}, v{v} row_ror:{r} row_mask:0xf bank_mask:0xf')
def wave_allreduce_add(a, v, s0):
    row_allreduce(a, 'add', v)
    a('s_nop 1')
    for i in range(4):
        a(f'v_readlane_b32 s{s0+i}, v{v}, {16*i}')
    a('s_nop 1')
    a(f'v_mov_b32 v{v}, s{s0}')
    for i in range(1, 4):
        a(f'v_add_f32 v{v}, s{s0+i}, v{v}')
def bf16_round_f32(a, v):
    a(f'v_cvt_pk_bf16_f32 v{v}, v{v}, v{v}')
    a(f'v_lshlrev_b32 v{v}, 16, v{v}')

def k_ln2(a):
    name = 'ln2_kernel'
    kernel_header(a, name)
    a('s_cmp_ge_u32 s2, 256')
    a('s_cbranch_scc1 L2_END')
    a(f's_load_dwordx2 s[4:5], s[0:1], {KA["x"]}')
    a(f's_load_dwordx2 s[8:9], s[0:1], {KA["ws"]}')
    a('s_waitcnt lgkmcnt(0)')
    make_srd(a, 12, 4, 2048 * 1280)
    make_srd(a, 16, 8, WS_SIZE)
    a('v_and_b32 v1, 63, v0')
    a('v_lshrrev_b32 v2, 6, v0')
    a('v_lshlrev_b32 v3, 3, v1')
    for idx, base in ((2, 60), (3, 40), (4, 50)):
        a(f's_mov_b32 s24, {WS_MOD + 2560*idx}')
        for i in range(5):
            a(f'buffer_load_dwordx2 v[{base+2*i}:{base+2*i+1}], v3, s[16:19], s24 offen offset:{512*i}')
    a('s_lshl_b32 s3, s2, 3')
    a('v_lshl_add_u32 v4, v2, 1, s3')
    a('v_mul_u32_u24 v5, 2560, v4')
    a('v_lshl_add_u32 v5, v1, 3, v5')
    a('v_mul_u32_u24 v4, 1280, v4')
    a('v_lshl_add_u32 v4, v1, 2, v4')
    a(f's_mov_b32 s24, {f2u(1.0/640):#x}')
    a(f's_mov_b32 s25, {f2u(1e-5):#x}')
    for r in range(2):
        for i in range(5):
            a(f'buffer_load_dword v{10+i}, v4, s[12:15], 0 offen offset:{1280*r+256*i}')
        for half in range(NSLAB // 4):
            for hg in range(4):
                a(f's_mov_b32 s26, {WS_OP + (half*4 + hg)*5242880 + r*2560}')
                for i in range(5):
                    a(f'buffer_load_dwordx2 v[{70+10*hg+2*i}:{71+10*hg+2*i}], v5, s[16:19], s26 offen offset:{512*i}')
            a('s_waitcnt vmcnt(0)')
            if r == 0 and half == 0:
                for i in range(10):
                    a(f'v_add_f32 v{50+i}, 1.0, v{50+i}')
                for i in range(10):
                    bf16_round_f32(a, 50 + i)
            for i in range(10):
                a(f'v_add_f32 v{70+i}, v{70+i}, v{80+i}')
                a(f'v_add_f32 v{90+i}, v{90+i}, v{100+i}')
            for i in range(10):
                a(f'v_add_f32 v{70+i}, v{70+i}, v{90+i}')
            if NSLAB > 4:
                for i in range(10):
                    if half == 0:
                        a(f'v_mov_b32 v{112+i}, v{70+i}')
                    else:
                        a(f'v_add_f32 v{70+i}, v{70+i}, v{112+i}')
        for i in range(10):
            bf16_round_f32(a, 70 + i)
            a(f'v_mul_f32 v{70+i}, v{70+i}, v{60+i}')
            bf16_round_f32(a, 70 + i)
        for i in range(5):
            a(f'v_lshlrev_b32 v{20+2*i}, 16, v{10+i}')
            a(f'v_and_b32 v{21+2*i}, 0xffff0000, v{10+i}')
        for i in range(10):
            a(f'v_add_f32 v{20+i}, v{20+i}, v{70+i}')
        for i in range(5):
            a(f'v_cvt_pk_bf16_f32 v{32+i}, v{20+2*i}, v{21+2*i}')
        a(f's_mov_b32 s26, {WS_X1 + 1280*r}')
        for i in range(5):
            a(f'buffer_store_dword v{32+i}, v4, s[16:19], s26 offen offset:{256*i}')
        for i in range(5):
            a(f'v_lshlrev_b32 v{20+2*i}, 16, v{32+i}')
            a(f'v_and_b32 v{21+2*i}, 0xffff0000, v{32+i}')
        a('v_add_f32 v30, v20, v21')
        for i in range(2, 10):
            a(f'v_add_f32 v30, v30, v{20+i}')
        wave_allreduce_add(a, 30, 28)
        a('v_mul_f32 v30, s24, v30')
        for i in range(10):
            a(f'v_sub_f32 v{20+i}, v{20+i}, v30')
        a('v_mul_f32 v31, v20, v20')
        for i in range(1, 10):
            a(f'v_fmac_f32 v31, v{20+i}, v{20+i}')
        wave_allreduce_add(a, 31, 28)
        a('v_mul_f32 v31, s24, v31')
        a('v_add_f32 v31, s25, v31')
        a('v_rsq_f32 v31, v31')
        a('s_nop 0')
        for i in range(10):
            a(f'v_mul_f32 v{20+i}, v{20+i}, v31')
            a(f'v_fma_f32 v{20+i}, v{20+i}, v{50+i}, v{40+i}')
        for i in range(5):
            a(f'v_cvt_pk_bf16_f32 v{110+i}, v{20+2*i}, v{21+2*i}')
        a(f's_mov_b32 s26, {WS_H2 + 1280*r}')
        for i in range(5):
            a(f'buffer_store_dword v{110+i}, v4, s[16:19], s26 offen offset:{256*i}')
    a.label('L2_END')
    a('s_endpgm')
    return name, kernel_desc(name, 128, 40, 128)

def k_t3a(a):
    name = 't3a_kernel'
    kernel_header(a, name)
    a('s_cmp_ge_u32 s2, 192')
    a('s_cbranch_scc1 TA_END')
    a(f's_load_dwordx2 s[52:53], s[0:1], {KA["ws"]}')
    lane_decomp(a)
    a('s_waitcnt lgkmcnt(0)')
    make_srd(a, 32, 52, WS_SIZE)
    a('s_mul_i32 s54, s2, 5462')
    a('s_lshr_b32 s56, s54, 16')
    a('s_mul_i32 s54, s56, 12')
    a('s_sub_u32 s57, s2, s54')
    t3a_body(a, 'TA', '')
    a.label('TA_END')
    a('s_endpgm')
    return name, kernel_desc(name, 256, 100, 256)

def t3a_body(a, pfx, sfx):
    SLOT = 24576
    a(f's_load_dwordx4 s[4:7], s[0:1], {KA["wg"]}')
    a('s_waitcnt lgkmcnt(0)')
    NW = 640 * 1536 * 2
    make_srd(a, 8, 4, NW)
    make_srd(a, 12, 6, NW)
    make_srd(a, 20, 52, 2048 * 1280, WS_H2)
    a('s_mov_b32 s47, 0x78')
    a('v_lshl_add_u32 v4, s40, 2, v3')
    a('v_and_b32 v5, 3, v4')
    a('v_bfe_u32 v6, v4, 3, 1')
    a('v_lshl_or_b32 v5, v6, 2, v5')
    a('v_lshrrev_b32 v6, 1, v2')
    a('v_xor_b32 v6, v6, v5')
    a('v_and_b32 v7, 1, v2')
    a('v_mul_u32_u24 v88, 3072, v4')
    a('v_lshl_add_u32 v88, v6, 5, v88')
    a('v_lshl_add_u32 v88, v7, 4, v88')
    a('v_lshl_add_u32 v4, s40, 6, v1')
    a('v_lshrrev_b32 v5, 2, v4')
    a('v_and_b32 v6, 3, v4')
    a('v_bfe_u32 v7, v5, 2, 2')
    a('v_lshlrev_b32 v7, 1, v7')
    a('v_lshrrev_b32 v7, v7, s47')
    a('v_and_b32 v7, 3, v7')
    a('v_xor_b32 v6, v6, v7')
    a('s_lshl_b32 s43, s56, 7')
    a('v_add_u32 v5, s43, v5')
    a('v_mul_u32_u24 v90, 1280, v5')
    a('v_lshl_add_u32 v90, v6, 4, v90')
    a('s_lshl_b32 s44, s40, 10')
    a('s_lshl_b32 s66, s57, 8')
    a('s_mov_b32 s67, 0')
    a('v_lshrrev_b32 v4, 2, v2')
    a('v_lshlrev_b32 v4, 1, v4')
    a('v_lshrrev_b32 v4, v4, s47')
    a('v_and_b32 v4, 3, v4')
    a('v_xor_b32 v4, v4, v3')
    a('v_lshl_add_u32 v5, s39, 6, v2')
    a('v_lshlrev_b32 v5, 6, v5')
    a('v_lshl_add_u32 v5, v4, 4, v5')
    a('v_add_u32 v91, 16384, v5')
    a('v_lshrrev_b32 v4, 2, v2')
    a('v_lshl_add_u32 v5, v3, 3, v4')
    a('v_and_b32 v7, 1, v3')
    a('v_lshl_or_b32 v6, v7, 2, v4')
    a('v_and_b32 v7, 3, v2')
    a('v_lshlrev_b32 v8, 8, v5')
    a('v_lshl_add_u32 v8, v7, 3, v8')
    a('s_lshl_b32 s42, s41, 1')
    for j in range(2):
        a(f's_add_u32 s43, s42, {j}')
        a('v_xor_b32 v9, s43, v6')
        a(f'v_lshl_add_u32 v{92+j}, v9, 5, v8')
    def step_dmas(slot_s):
        def mk(j):
            def f():
                a(f's_add_u32 s45, s44, {8192*j}')
                a(f's_add_u32 m0, s45, s{slot_s}')
                a('s_nop 0')
                if j < 2:
                    a(f'buffer_load_dwordx4 v88, s[{8+4*j}:{11+4*j}], s66 offen lds')
                else:
                    a(f'buffer_load_dwordx4 v90, s[20:23], s67 offen lds')
                    a('s_add_u32 s66, s66, 98304')
                    a('s_add_u32 s67, s67, 64')
            return f
        return [mk(j) for j in range(3)]
    ACC = 112
    def accr(m, j, t4): return ACC + ((m * 2 + j) * 4 + t4) * 4
    for r in range(ACC, ACC + 64):
        a(f'v_mov_b32 v{r}, 0')
    NS = 4
    for sl in range(NS):
        a(f's_mov_b32 s70, {sl*SLOT}')
        for f in step_dmas(70): f()
    seq = [(m, j) for m in range(2) for j in range(2)]
    WF = 48
    def set_addr(e):
        a(f'v_add_u32 v95, {e}, v91')
        for j in range(2):
            a(f'v_add_u32 v{96+j}, {e}, v{92+j}')
    def rd_T(ts):
        for t4 in range(4):
            a(f'ds_read_b128 v[{16+16*ts+4*t4}:{19+16*ts+4*t4}], v95 offset:{1024*t4}')
    def rd_W(i, ws):
        m, j = seq[i]
        b = WF + 16 * ws + 4 * i
        a(f'ds_read_b64_tr_b16 v[{b}:{b+1}], v{96+j} offset:{m*8192}')
        a(f'ds_read_b64_tr_b16 v[{b+2}:{b+3}], v{96+j} offset:{m*8192+1024}')
    a(f's_waitcnt vmcnt({3*(NS-1)})')
    a('s_barrier')
    set_addr(0)
    rd_T(0)
    for i in range(4): rd_W(i, 0)
    a('s_mov_b32 s70, 0')
    a(f's_mov_b32 s71, {SLOT}')
    a('s_mov_b32 s72, 0')
    def step(ts, dma, vm, rd_next=True):
        a(f's_waitcnt vmcnt({vm}) lgkmcnt(0)')
        a('s_barrier')
        if rd_next:
            set_addr('s71')
            rd_T(ts ^ 1)
            for i in range(4): rd_W(i, ts ^ 1)
        dm = step_dmas(70) if dma else []
        for i in range(4):
            m, j = seq[i]
            b = WF + 16 * ts + 4 * i
            for t4 in range(4):
                r = accr(m, j, t4); tr = 16 + 16 * ts + 4 * t4
                a(f'v_mfma_f32_16x16x32_bf16 v[{r}:{r+3}], v[{b}:{b+3}], v[{tr}:{tr+3}], v[{r}:{r+3}]')
            if dm: dm.pop(0)()
    def advance():
        a('s_mov_b32 s70, s71')
        a(f's_add_u32 s71, s71, {SLOT}')
        a(f's_cmp_eq_u32 s71, {NS*SLOT}')
        a('s_cselect_b32 s71, 0, s71')
    a.label(f'{pfx}_LOOP')
    step(0, True, 3 * (NS - 2)); advance()
    step(1, True, 3 * (NS - 2)); advance()
    a('s_add_u32 s72, s72, 1')
    a('s_cmp_lt_u32 s72, 8')
    a(f's_cbranch_scc1 {pfx}_LOOP')
    step(0, False, 6); advance()
    step(1, False, 3); advance()
    step(0, False, 0); advance()
    step(1, False, 0, rd_next=False)
    a('s_nop 7')
    a('s_nop 1')
    C1 = -2.0 * LOG2E * 0.7978845608028654
    a(f's_mov_b32 s60, {f2u(C1):#x}')
    a(f's_mov_b32 s61, {f2u(C1 * 0.044715):#x}')
    a('v_lshlrev_b32 v15, 4, v1')
    a('s_lshl_b32 s42, s56, 3')
    a('s_lshl_b32 s43, s39, 2')
    a('s_add_u32 s42, s42, s43')
    a('s_mul_i32 s42, s42, 49152')
    a('s_lshl_b32 s43, s57, 2')
    a('s_add_u32 s43, s43, s41')
    a('s_lshl_b32 s43, s43, 10')
    a('s_add_u32 s42, s42, s43')
    a(f's_add_u32 s42, s42, {WS_ACT}')
    for t4 in range(4):
        for j in range(2):
            for r in range(4):
                g = accr(0, j, t4) + r; u = accr(1, j, t4) + r
                a(f'v_cvt_pk_bf16_f32 v16, v{g}, v{u}')
                a(f'v_lshlrev_b32 v{g}, 16, v16')
                a(f'v_and_b32 v{u}, 0xffff0000, v16')
                a(f'v_mul_f32 v17, v{g}, v{g}')
                a(f'v_mov_b32 v18, s60')
                a(f'v_fmac_f32 v18, s61, v17')
                a(f'v_mul_f32 v18, v18, v{g}')
                a(f'v_exp_f32 v18, v18')
                a('s_nop 0')
                a(f'v_add_f32 v18, 1.0, v18')
                a(f'v_rcp_f32 v18, v18')
                a('s_nop 0')
                a(f'v_mul_f32 v18, v18, v{g}')
                a(f'v_cvt_pk_bf16_f32 v18, v18, v18')
                a(f'v_lshlrev_b32 v18, 16, v18')
                a(f'v_mul_f32 v{g}, v18, v{u}')
        pk = 20 + 4 * (t4 & 1)
        for j in range(2):
            g = accr(0, j, t4)
            a(f'v_cvt_pk_bf16_f32 v{pk+2*j}, v{g}, v{g+1}')
            a(f'v_cvt_pk_bf16_f32 v{pk+2*j+1}, v{g+2}, v{g+3}')
        a(f's_add_u32 s43, s42, {t4*49152}')
        a(f'buffer_store_dwordx4 v[{pk}:{pk+3}], v15, s[32:35], s43 offen{sfx}')

def k_t3b(a):
    name = 't3b_kernel'
    kernel_header(a, name)
    a('s_cmp_ge_u32 s2, 160')
    a('s_cbranch_scc1 TB_END')
    a(f's_load_dwordx2 s[52:53], s[0:1], {KA["ws"]}')
    lane_decomp(a)
    a('s_waitcnt lgkmcnt(0)')
    make_srd(a, 32, 52, WS_SIZE)
    a('s_mul_i32 s54, s2, 13108')
    a('s_lshr_b32 s56, s54, 16')
    a('s_mul_i32 s54, s56, 5')
    a('s_sub_u32 s57, s2, s54')
    t3b_body(a, 'TB')
    a.label('TB_END')
    a('s_endpgm')
    return name, kernel_desc(name, 256, 100, 256)

def t3b_body(a, pfx):
    SLOT = 32768
    NS = 4
    a(f's_load_dwordx2 s[4:5], s[0:1], {KA["wd"]}')
    a(f's_load_dwordx2 s[6:7], s[0:1], {KA["out"]}')
    a('s_waitcnt lgkmcnt(0)')
    make_srd(a, 8, 4, 1536 * 1280)
    make_srd(a, 12, 6, 2048 * 1280)
    a('v_lshl_add_u32 v4, s40, 2, v3')
    a('v_and_b32 v5, 7, v4')
    a('v_lshrrev_b32 v6, 1, v2')
    a('v_xor_b32 v6, v6, v5')
    a('v_and_b32 v7, 1, v2')
    a('v_mul_u32_u24 v88, 1280, v4')
    a('v_lshl_add_u32 v88, v6, 5, v88')
    a('v_lshl_add_u32 v88, v7, 4, v88')
    a('s_lshl_b32 s44, s40, 10')
    a('s_lshl_b32 s66, s57, 8')
    a('v_lshrrev_b32 v4, 2, v2')
    a('v_lshl_add_u32 v4, v3, 2, v4')
    a('v_and_b32 v5, 7, v4')
    a('v_and_b32 v6, 3, v2')
    a('v_lshlrev_b32 v7, 8, v4')
    a('v_lshl_add_u32 v7, v6, 3, v7')
    a('s_lshl_b32 s42, s41, 1')
    for j in range(2):
        a(f's_add_u32 s43, s42, {j}')
        a('v_xor_b32 v6, s43, v5')
        a(f'v_lshl_add_u32 v{92+j}, v6, 5, v7')
    a('v_lshlrev_b32 v15, 4, v1')
    a('s_lshl_b32 s42, s56, 2')
    a('s_lshl_b32 s43, s39, 1')
    a('s_add_u32 s42, s42, s43')
    a('s_mul_i32 s67, s42, 49152')
    a(f's_add_u32 s67, s67, {WS_ACT}')
    def dma(slot_s):
        for j in range(4):
            a(f's_add_u32 s45, s44, {8192*j}')
            a(f's_add_u32 m0, s45, s{slot_s}')
            a(f's_add_u32 s45, s66, {j*32*1280}')
            a(f'buffer_load_dwordx4 v88, s[8:11], s45 offen lds')
        a(f's_add_u32 s66, s66, {128*1280}')
    AF = [16, 48]
    def ld_act(b):
        for tt in range(2):
            a(f's_add_u32 s45, s67, {tt*49152}')
            for blk in range(4):
                r = b + (blk * 2 + tt) * 4
                a(f'buffer_load_dwordx4 v[{r}:{r+3}], v15, s[32:35], s45 offen offset:{blk*1024}')
        a('s_add_u32 s67, s67, 4096')
    ACC = 112
    for r in range(16):
        a(f'v_mov_b32 v{ACC+r}, 0')
    for sl in range(3):
        a(f's_mov_b32 s70, {sl*SLOT}')
        dma(70)
    ld_act(AF[0])
    WF = 128
    for st in range(12):
        if st == 0:
            a('s_waitcnt vmcnt(0)')
        else:
            a(f's_waitcnt vmcnt({4 if st + 2 < 12 else 0})')
        a('s_barrier')
        if st + 1 < 12:
            ld_act(AF[(st + 1) & 1])
        if st + 3 < 12:
            a(f's_mov_b32 s70, {((st + 3) % NS) * SLOT}')
            dma(70)
        slot = (st % NS) * SLOT
        a(f'v_add_u32 v96, {slot}, v92')
        a(f'v_add_u32 v97, {slot}, v93')
        for blk in range(4):
            for j in range(2):
                b = WF + (blk * 2 + j) * 4
                a(f'ds_read_b64_tr_b16 v[{b}:{b+1}], v{96+j} offset:{blk*8192}')
                a(f'ds_read_b64_tr_b16 v[{b+2}:{b+3}], v{96+j} offset:{blk*8192+4096}')
        af = AF[st & 1]
        for blk in range(4):
            for j in range(2):
                a(f's_waitcnt lgkmcnt({2*(7 - (blk*2+j))})')
                b = WF + (blk * 2 + j) * 4
                for tt in range(2):
                    r = ACC + (j * 2 + tt) * 4
                    f = af + (blk * 2 + tt) * 4
                    a(f'v_mfma_f32_16x16x32_bf16 v[{r}:{r+3}], v[{b}:{b+3}], v[{f}:{f+3}], v[{r}:{r+3}]')
    a('s_nop 7')
    a('s_nop 1')
    a('s_lshl_b32 s42, s56, 6')
    a('s_lshl_b32 s43, s39, 5')
    a('s_add_u32 s42, s42, s43')
    a('v_add_u32 v4, s42, v2')
    a('v_mul_u32_u24 v4, 1280, v4')
    a('s_lshl_b32 s42, s57, 8')
    a('s_lshl_b32 s43, s41, 6')
    a('s_add_u32 s42, s42, s43')
    a('v_lshl_add_u32 v4, v3, 3, v4')
    a('v_add_u32 v4, s42, v4')
    a('v_lshlrev_b32 v5, 4, v3')
    a('s_lshl_b32 s43, s42, 1')
    a(f's_add_u32 s43, s43, {WS_MOD + 5*2560}')
    for j in range(2):
        a(f'buffer_load_dwordx4 v[{16+4*j}:{19+4*j}], v5, s[32:35], s43 offen offset:{64*j}')
    a(f's_mov_b32 s42, {WS_X1}')
    a(f's_mov_b32 s43, {WS_X1 + 16*1280}')
    for j in range(2):
        for tt in range(2):
            r = 24 + (j * 2 + tt) * 2
            a(f'buffer_load_dwordx2 v[{r}:{r+1}], v4, s[32:35], s{42+tt} offen offset:{32*j}')
    a('s_waitcnt vmcnt(0)')
    a(f's_mov_b32 s43, {16*1280}')
    for j in range(2):
        for tt in range(2):
            acc = ACC + (j * 2 + tt) * 4
            xr = 24 + (j * 2 + tt) * 2
            for r in range(4):
                bf16_round_f32(a, acc + r)
                a(f'v_mul_f32 v{acc+r}, v{acc+r}, v{16+4*j+r}')
                bf16_round_f32(a, acc + r)
            a(f'v_lshlrev_b32 v40, 16, v{xr}')
            a(f'v_and_b32 v41, 0xffff0000, v{xr}')
            a(f'v_lshlrev_b32 v42, 16, v{xr+1}')
            a(f'v_and_b32 v43, 0xffff0000, v{xr+1}')
            for r in range(4):
                a(f'v_add_f32 v{acc+r}, v{acc+r}, v{40+r}')
            a(f'v_cvt_pk_bf16_f32 v{xr}, v{acc}, v{acc+1}')
            a(f'v_cvt_pk_bf16_f32 v{xr+1}, v{acc+2}, v{acc+3}')
            so = '0' if tt == 0 else 's43'
            a(f'buffer_store_dwordx2 v[{xr}:{xr+1}], v4, s[12:15], {so} offen offset:{32*j}')
```

```python
from asmlib import *
from layout2 import *

class G:
    def __init__(s, NT, NC, NMAT, NSTAGE):
        s.NT, s.NC, s.NMAT, s.NSTAGE = NT, NC, NMAT, NSTAGE
        s.pitch = NC * 64
        s.slot = 4 * 32 * s.pitch
        s.NS = 131072 // s.slot
        s.nd = 4 if NC == 4 else 2
        s.kb = 4 // NMAT
        s.na = s.kb * NT
        s.AB = 16
        s.WF = s.AB + 3 * s.na * 4
        s.ACC = s.WF + 32
        s.nacc = NMAT * NC * NT * 4
        s.VA = s.ACC + s.nacc
        s.ops = []
    def acc(s, m, c, t): return s.ACC + ((m * s.NC + c) * s.NT + t) * 4

def g_pre(a, g, ld, srds, wsoff):
    VD = g.VA + 2 * g.NC
    a('v_lshlrev_b32 v15, 4, v1')
    if g.NC == 4:
        a('v_lshl_add_u32 v4, s41, 2, v3')
        a('v_and_b32 v5, 7, v4')
        a('v_lshrrev_b32 v6, 1, v2')
        a('v_xor_b32 v6, v6, v5')
        a('v_and_b32 v7, 1, v2')
        a(f'v_mul_u32_u24 v{VD}, {ld}, v4')
        a(f'v_lshl_add_u32 v{VD}, v6, 5, v{VD}')
        a(f'v_lshl_add_u32 v{VD}, v7, 4, v{VD}')
        a('s_lshl_b32 s60, s40, 10')
        a(f's_mul_i32 s61, s39, {16*ld}')
        a('s_mul_i32 s62, s61, 3')
        a('s_mov_b32 s63, 0')
    else:
        a('v_lshrrev_b32 v4, 3, v1')
        a('s_and_b32 s42, s40, 1')
        a('s_lshl_b32 s42, s42, 3')
        a('v_add_u32 v4, s42, v4')
        a('v_bfe_u32 v5, v4, 1, 2')
        a('v_bfe_u32 v6, v1, 1, 2')
        a('v_xor_b32 v6, v6, v5')
        a('v_and_b32 v7, 1, v1')
        a(f'v_mul_u32_u24 v{VD}, {ld}, v4')
        a(f'v_lshl_add_u32 v{VD}, v6, 5, v{VD}')
        a(f'v_lshl_add_u32 v{VD}, v7, 4, v{VD}')
        a('s_lshl_b32 s60, s39, 12')
        a('s_lshl_b32 s42, s41, 10')
        a('s_add_u32 s60, s60, s42')
        a('s_bfe_u32 s42, s40, 0x10001')
        a(f's_mul_i32 s61, s42, {16*ld}')
        a('s_mul_i32 s62, s61, 3')
        a(f's_mul_i32 s63, s39, {32*ld}')
    a('v_lshrrev_b32 v4, 2, v2')
    a('v_lshl_add_u32 v4, v3, 2, v4')
    if g.NC == 4:
        a('v_and_b32 v5, 7, v4')
    else:
        a('v_bfe_u32 v5, v4, 1, 2')
    a('v_and_b32 v6, 3, v2')
    a(f'v_mul_u32_u24 v7, {g.pitch}, v4')
    a('v_lshl_add_u32 v7, v6, 3, v7')
    a(f's_mul_i32 s42, s39, {g.NC}')
    for c in range(g.NC):
        a(f's_add_u32 s43, s42, {c}')
        a('v_xor_b32 v6, s43, v5')
        a(f'v_lshl_add_u32 v{g.VA+c}, v6, 5, v7')
        a(f'v_add_u32 v{g.VA+g.NC+c}, 0x10000, v{g.VA+c}')
    g.ld, g.srds, g.wsoff = ld, srds, wsoff
    g.ops = []
    for st in range(min(g.NS, g.NSTAGE)):
        g_wdma(a, g, st)

def g_wdma(a, g, st):
    VD = g.VA + 2 * g.NC
    for j in range(g.nd):
        dst = (st % g.NS) * g.slot + j * 8192
        a(f's_add_u32 m0, s60, {dst}')
        m = g.wsoff(st, j)
        sb = g.srds[m]
        a(f'buffer_load_dwordx4 v{VD}, s[{sb}:{sb+3}], s45 offen lds')
        g.ops.append(('W', st))

def g_main(a, g, aload):
    def areg(st, kb, t): return g.AB + ((st % 3) * g.na + kb * g.NT + t) * 4
    def ld_a(st):
        for kb in range(g.kb):
            for t in range(g.NT):
                aload(st, kb, t, areg(st, kb, t))
                g.ops.append(('A', st))
    ld_a(0)
    if g.NSTAGE > 1: ld_a(1)
    for r in range(g.nacc):
        a(f'v_mov_b32 v{g.ACC+r}, 0')
    for st in range(g.NSTAGE):
        last = max(i for i, o in enumerate(g.ops) if o in (('W', st), ('A', st)))
        a(f's_waitcnt vmcnt({min(63, len(g.ops) - 1 - last)})')
        a('s_barrier')
        if st + 2 < g.NSTAGE: ld_a(st + 2)
        sl = st % g.NS
        base = sl * g.slot
        hi = base >= 65536
        off0 = base - (65536 if hi else 0)
        seq = [(b, c) for b in range(4) for c in range(g.NC)]
        def rd(i):
            b, c = seq[i]
            r = g.WF + 4 * (i % 8)
            ad = g.VA + (g.NC if hi else 0) + c
            o = off0 + b * 32 * g.pitch
            a(f'ds_read_b64_tr_b16 v[{r}:{r+1}], v{ad} offset:{o}')
            a(f'ds_read_b64_tr_b16 v[{r+2}:{r+3}], v{ad} offset:{o + 16*g.pitch}')
        PF = 6
        n = len(seq)
        for i in range(min(PF, n)): rd(i)
        if st >= 1 and st + g.NS - 1 < g.NSTAGE:
            g_wdma(a, g, st + g.NS - 1)
        for i in range(n):
            b, c = seq[i]
            rem = min(PF - 1, n - 1 - i)
            a(f's_waitcnt lgkmcnt({2*rem})')
            r = g.WF + 4 * (i % 8)
            m = b // g.kb if g.NMAT == 2 else 0
            kb = b % g.kb
            for t in range(g.NT):
                ac = g.acc(m, c, t); ar_ = areg(st, kb, t)
                a(f'v_mfma_f32_16x16x32_bf16 v[{ac}:{ac+3}], v[{r}:{r+3}], v[{ar_}:{ar_+3}], v[{ac}:{ac+3}]')
            if i + PF < n: rd(i + PF)
    a('s_nop 7')
    a('s_nop 1')
```

```python
from asmlib import *
from layout2 import *
from k_t1 import lane_decomp, OPT, SLOT
from k_chain import pub
import k_chain3
import os

C_REG = WS_CNT
C_QH = WS_CNT + 256
C_MODA = WS_CNT + 2048
C_MODB = WS_CNT + 2176
C_LN1 = WS_CNT + 4096
C_T2B = WS_CNT + 4352
C_LN2 = WS_CNT + 4608
C_FA = WS_CNT + 4864
F_T1 = WS_CNT + 8192
C_HIST = WS_CNT + 12288
C_T2A = WS_CNT + 16384
CNT_BYTES = 32768
L_SLOT = 147456
LDS_MEGA = 147456 + 256
SFX = ' sc1'
MAP = int(os.environ.get('MAP', '1'))
WS_LOG = 0x1C00000
LOG = 'log' in OPT
def rt(a, dst):
    a('s_memrealtime s[76:77]')
    a('s_waitcnt lgkmcnt(0)')
    a(f's_mov_b32 s{dst}, s76')
def log_entry(a):
    rt(a, 84)
    a('s_mov_b64 exec, 1')
    a('v_mov_b32 v4, s83')
    a('v_mov_b32 v5, s81')
    a('v_mov_b32 v6, s82')
    a('v_mov_b32 v7, s84')
    a('v_mov_b32 v8, 0')
    a('buffer_store_dwordx4 v[4:7], v8, s[32:35], s80 offen')
    a('s_mov_b64 exec, -1')
    a('s_add_u32 s80, s80, 16')
W_SLEEP = int(os.environ.get('W_SLEEP', '127'))
W_SHORT = int(os.environ.get('W_SHORT', '4'))

def row_allreduce(a, op, v):
    for r in (8, 4, 2, 1):
        a('s_nop 1')
        a(f'v_{op}_f32_dpp v{v}, v{v}, v{v} row_ror:{r} row_mask:0xf bank_mask:0xf')
def wave_allreduce_add(a, v, s0):
    row_allreduce(a, 'add', v)
    a('s_nop 1')
    for i in range(4):
        a(f'v_readlane_b32 s{s0+i}, v{v}, {16*i}')
    a('s_nop 1')
    a(f'v_mov_b32 v{v}, s{s0}')
    for i in range(1, 4):
        a(f'v_add_f32 v{v}, s{s0+i}, v{v}')
def bf16_round_f32(a, v):
    a(f'v_cvt_pk_bf16_f32 v{v}, v{v}, v{v}')
    a(f'v_lshlrev_b32 v{v}, 16, v{v}')

def body_mod(a, pfx):
    a(f's_load_dwordx2 s[4:5], s[0:1], {KA["c"]}')
    a(f's_load_dwordx2 s[6:7], s[0:1], {KA["wmod"]}')
    a('s_waitcnt lgkmcnt(0)')
    make_srd(a, 12, 4, 1280)
    make_srd(a, 16, 6, 640 * 3840 * 2)
    a('s_mul_i32 s42, s40, 80')
    a('v_add_u32 v5, s42, v3')
    a('v_lshlrev_b32 v6, 2, v5')
    a('v_mul_u32_u24 v7, 7680, v5')
    a('s_lshl_b32 s3, s56, 7')
    a('v_lshlrev_b32 v8, 3, v2')
    a('v_add3_u32 v7, v7, v8, s3')
    a('s_mov_b32 s25, 0')
    for u in range(20):
        a(f'buffer_load_dwordx2 v[{16+2*u}:{17+2*u}], v7, s[16:19], s25 offen')
        if u < 19: a('s_add_u32 s25, s25, 30720')
    a('v_lshlrev_b32 v4, 1, v0')
    a('buffer_load_ushort v10, v4, s[12:15], 0 offen')
    a('buffer_load_ushort v11, v4, s[12:15], 0 offen offset:1024')
    a('s_waitcnt vmcnt(0)')
    a(f's_mov_b32 s24, {f2u(-LOG2E):#x}')
    for v in (10, 11):
        a(f'v_lshlrev_b32 v{v}, 16, v{v}')
        a(f'v_mul_f32 v9, s24, v{v}')
        a('v_exp_f32 v9, v9')
        a('s_nop 0')
        a('v_add_f32 v9, 1.0, v9')
        a('v_rcp_f32 v9, v9')
        a('s_nop 0')
        a(f'v_mul_f32 v{v}, v{v}, v9')
        bf16_round_f32(a, v)
    a('v_lshlrev_b32 v4, 2, v0')
    a('ds_write_b32 v4, v10')
    a('ds_write_b32 v4, v11 offset:2048')
    a('s_waitcnt lgkmcnt(0)')
    a('s_barrier')
    for i in range(4):
        a(f'v_mov_b32 v{10+i}, 0')
    for u in range(20):
        a(f'ds_read_b32 v{60+u}, v6 offset:{16*u}')
        if u % 8 == 7: a('s_waitcnt lgkmcnt(0)')
    a('s_waitcnt lgkmcnt(0)')
    for u in range(20):
        lo, hi = 16 + 2 * u, 17 + 2 * u
        a(f'v_lshlrev_b32 v80, 16, v{lo}')
        a(f'v_and_b32 v81, 0xffff0000, v{lo}')
        a(f'v_lshlrev_b32 v82, 16, v{hi}')
        a(f'v_and_b32 v83, 0xffff0000, v{hi}')
        for i in range(4):
            a(f'v_fmac_f32 v{10+i}, v{60+u}, v{80+i}')
    a('v_lshl_add_u32 v5, s40, 2, v3')
    a('v_lshlrev_b32 v5, 8, v5')
    a('v_lshl_add_u32 v5, v2, 4, v5')
    a('ds_write_b128 v5, v[10:13] offset:8192')
    a('s_waitcnt lgkmcnt(0)')
    a('s_barrier')
    a('s_cmp_lg_u32 s40, 0')
    a(f's_cbranch_scc1 {pfx}_END')
    a('v_lshlrev_b32 v5, 2, v1')
    for h in range(4):
        for i in range(8):
            a(f'ds_read_b32 v{16+8*h+i}, v5 offset:{8192+256*(8*h+i)}')
        a('s_waitcnt lgkmcnt(0)')
    for i in range(1, 32):
        a(f'v_add_f32 v16, v16, v{16+i}')
    bf16_round_f32(a, 16)
    a('s_lshl_b32 s3, s56, 8')
    a(f's_add_u32 s3, s3, {WS_MOD}')
    a(f'buffer_store_dword v16, v5, s[32:35], s3 offen{SFX}')
    a.label(f'{pfx}_END')

def body_ln1(a, pfx):
    a(f's_load_dwordx2 s[4:5], s[0:1], {KA["x"]}')
    a('s_waitcnt lgkmcnt(0)')
    make_srd(a, 12, 4, 2048 * 1280)
    a('v_lshlrev_b32 v5, 3, v1')
    a(f's_mov_b32 s24, {WS_MOD + 2560}')
    a(f's_mov_b32 s23, {WS_MOD}')
    for i in range(5):
        a(f'buffer_load_dwordx2 v[{40+2*i}:{41+2*i}], v5, s[32:35], s23 offen offset:{512*i}')
        a(f'buffer_load_dwordx2 v[{50+2*i}:{51+2*i}], v5, s[32:35], s24 offen offset:{512*i}')
    a('s_lshl_b32 s3, s56, 4')
    a('s_lshl_b32 s42, s40, 1')
    a('s_add_u32 s3, s3, s42')
    a('s_mul_i32 s3, s3, 1280')
    a('v_lshl_add_u32 v4, v1, 2, s3')
    for r in range(2):
        for i in range(5):
            a(f'buffer_load_dword v{10+5*r+i}, v4, s[12:15], 0 offen offset:{1280*r+256*i}')
    a('s_waitcnt vmcnt(10)')
    for i in range(10):
        a(f'v_add_f32 v{50+i}, 1.0, v{50+i}')
    for i in range(10):
        bf16_round_f32(a, 50 + i)
    a('s_waitcnt vmcnt(0)')
    a(f's_mov_b32 s24, {f2u(1.0/640):#x}')
    a(f's_mov_b32 s25, {f2u(1e-5):#x}')
    a(f's_mov_b32 s26, {WS_H1}')
    for r in range(2):
        for i in range(5):
            a(f'v_lshlrev_b32 v{20+2*i}, 16, v{10+5*r+i}')
            a(f'v_and_b32 v{21+2*i}, 0xffff0000, v{10+5*r+i}')
        a('v_add_f32 v30, v20, v21')
        for i in range(2, 10):
            a(f'v_add_f32 v30, v30, v{20+i}')
        wave_allreduce_add(a, 30, 28)
        a('v_mul_f32 v30, s24, v30')
        for i in range(10):
            a(f'v_sub_f32 v{20+i}, v{20+i}, v30')
        a('v_mul_f32 v31, v20, v20')
        for i in range(1, 10):
            a(f'v_fmac_f32 v31, v{20+i}, v{20+i}')
        wave_allreduce_add(a, 31, 28)
        a('v_mul_f32 v31, s24, v31')
        a('v_add_f32 v31, s25, v31')
        a('v_rsq_f32 v31, v31')
        a('s_nop 0')
        for i in range(10):
            a(f'v_mul_f32 v{20+i}, v{20+i}, v31')
            a(f'v_fma_f32 v{20+i}, v{20+i}, v{50+i}, v{40+i}')
        for i in range(5):
            a(f'v_cvt_pk_bf16_f32 v{32+i}, v{20+2*i}, v{21+2*i}')
        for i in range(5):
            a(f'buffer_store_dword v{32+i}, v4, s[32:35], s26 offen offset:{1280*r+256*i}{SFX}')

def body_ln2(a, pfx, NSLAB=8):
    a(f's_load_dwordx2 s[4:5], s[0:1], {KA["x"]}')
    a('s_waitcnt lgkmcnt(0)')
    make_srd(a, 12, 4, 2048 * 1280)
    a('v_lshlrev_b32 v6, 3, v1')
    for idx, base in ((2, 60), (3, 40), (4, 50)):
        a(f's_mov_b32 s24, {WS_MOD + 2560*idx}')
        for i in range(5):
            a(f'buffer_load_dwordx2 v[{base+2*i}:{base+2*i+1}], v6, s[32:35], s24 offen offset:{512*i}')
    a('s_lshl_b32 s3, s56, 4')
    a('s_lshl_b32 s42, s40, 1')
    a('s_add_u32 s3, s3, s42')
    a('s_mul_i32 s42, s3, 2560')
    a('v_lshl_add_u32 v5, v1, 3, s42')
    a('s_mul_i32 s42, s3, 1280')
    a('v_lshl_add_u32 v4, v1, 2, s42')
    a(f's_mov_b32 s24, {f2u(1.0/640):#x}')
    a(f's_mov_b32 s25, {f2u(1e-5):#x}')
    for r in range(2):
        for i in range(5):
            a(f'buffer_load_dword v{10+i}, v4, s[12:15], 0 offen offset:{1280*r+256*i}')
        for half in range(NSLAB // 4):
            for hg in range(4):
                a(f's_mov_b32 s26, {WS_OP + (half*4 + hg)*5242880 + r*2560}')
                for i in range(5):
                    a(f'buffer_load_dwordx2 v[{70+10*hg+2*i}:{71+10*hg+2*i}], v5, s[32:35], s26 offen offset:{512*i}')
            a('s_waitcnt vmcnt(0)')
            if r == 0 and half == 0:
                for i in range(10):
                    a(f'v_add_f32 v{50+i}, 1.0, v{50+i}')
                for i in range(10):
                    bf16_round_f32(a, 50 + i)
            for i in range(10):
                a(f'v_add_f32 v{70+i}, v{70+i}, v{80+i}')
                a(f'v_add_f32 v{90+i}, v{90+i}, v{100+i}')
            for i in range(10):
                a(f'v_add_f32 v{70+i}, v{70+i}, v{90+i}')
            if NSLAB > 4:
                for i in range(10):
                    if half == 0:
                        a(f'v_mov_b32 v{112+i}, v{70+i}')
                    else:
                        a(f'v_add_f32 v{70+i}, v{70+i}, v{112+i}')
        for i in range(10):
            bf16_round_f32(a, 70 + i)
            a(f'v_mul_f32 v{70+i}, v{70+i}, v{60+i}')
            bf16_round_f32(a, 70 + i)
        for i in range(5):
            a(f'v_lshlrev_b32 v{20+2*i}, 16, v{10+i}')
            a(f'v_and_b32 v{21+2*i}, 0xffff0000, v{10+i}')
        for i in range(10):
            a(f'v_add_f32 v{20+i}, v{20+i}, v{70+i}')
        for i in range(5):
            a(f'v_cvt_pk_bf16_f32 v{32+i}, v{20+2*i}, v{21+2*i}')
        a(f's_mov_b32 s26, {WS_X1 + 1280*r}')
        for i in range(5):
            a(f'buffer_store_dword v{32+i}, v4, s[32:35], s26 offen offset:{256*i}{SFX}')
        for i in range(5):
            a(f'v_lshlrev_b32 v{20+2*i}, 16, v{32+i}')
            a(f'v_and_b32 v{21+2*i}, 0xffff0000, v{32+i}')
        a('v_add_f32 v30, v20, v21')
        for i in range(2, 10):
            a(f'v_add_f32 v30, v30, v{20+i}')
        wave_allreduce_add(a, 30, 28)
        a('v_mul_f32 v30, s24, v30')
        for i in range(10):
            a(f'v_sub_f32 v{20+i}, v{20+i}, v30')
        a('v_mul_f32 v31, v20, v20')
        for i in range(1, 10):
            a(f'v_fmac_f32 v31, v{20+i}, v{20+i}')
        wave_allreduce_add(a, 31, 28)
        a('v_mul_f32 v31, s24, v31')
        a('v_add_f32 v31, s25, v31')
        a('v_rsq_f32 v31, v31')
        a('s_nop 0')
        for i in range(10):
            a(f'v_mul_f32 v{20+i}, v{20+i}, v31')
            a(f'v_fma_f32 v{20+i}, v{20+i}, v{50+i}, v{40+i}')
        for i in range(5):
            a(f'v_cvt_pk_bf16_f32 v{110+i}, v{20+2*i}, v{21+2*i}')
        a(f's_mov_b32 s26, {WS_H2 + 1280*r}')
        for i in range(5):
            a(f'buffer_store_dword v{110+i}, v4, s[32:35], s26 offen offset:{256*i}{SFX}')

def k_init3(a):
    name = 'init_kernel'
    kernel_header(a, name)
    a('s_cmp_ge_u32 s2, 256')
    a('s_cbranch_scc1 IN_END')
    a(f's_load_dwordx2 s[52:53], s[0:1], {KA["ws"]}')
    a('s_waitcnt lgkmcnt(0)')
    make_srd(a, 32, 52, WS_SIZE)
    a('v_lshlrev_b32 v1, 4, v0')
    for r in range(4):
        a(f'v_mov_b32 v{4+r}, -1')
    a('s_lshl_b32 s3, s2, 14')
    a(f's_add_u32 s3, s3, {WS_MEMF}')
    for i in range(4):
        a(f's_add_u32 s12, s3, {4096*i}')
        a('buffer_store_dwordx4 v[4:7], v1, s[32:35], s12 offen')
    a(f's_cmp_ge_u32 s2, {CNT_BYTES // 4096}')
    a('s_cbranch_scc1 IN_END')
    for r in range(4):
        a(f'v_mov_b32 v{8+r}, 0')
    a('s_lshl_b32 s12, s2, 12')
    a(f's_add_u32 s12, s12, {WS_CNT}')
    a('buffer_store_dwordx4 v[8:11], v1, s[32:35], s12 offen')
    a.label('IN_END')
    a('s_endpgm')
    return name, kernel_desc(name, 64, 64, 64)

def register(a):
    a('s_getreg_b32 s54, hwreg(HW_REG_XCC_ID)')
    a('s_and_b32 s54, s54, 7')
    l0 = a.newlabel('RA'); l1 = a.newlabel('RA'); l2 = a.newlabel('RA')
    a('s_cmp_lg_u32 s40, 0')
    a(f's_cbranch_scc1 {l0}')
    a('s_mov_b64 exec, 1')
    a('v_mov_b32 v4, 1')
    a('s_lshl_b32 s42, s54, 2')
    a(f's_add_u32 s42, s42, {C_REG}')
    a('v_mov_b32 v5, 0')
    a('buffer_atomic_add v4, v5, s[32:35], s42 offen sc0 sc1')
    a('v_mov_b32 v6, 1')
    a(f's_mov_b32 s42, {C_REG + 32}')
    a('buffer_atomic_add v6, v5, s[32:35], s42 offen sc0 sc1')
    a('s_waitcnt vmcnt(0)')
    a.label(l1)
    a('buffer_load_dword v7, v5, s[32:35], s42 offen sc1')
    a('s_waitcnt vmcnt(0)')
    a('v_readfirstlane_b32 s43, v7')
    a('s_add_u32 s88, s88, 1')
    a('s_cmp_ge_u32 s88, 0x100000')
    a(f's_cbranch_scc1 {l2}')
    a('s_cmp_lt_u32 s43, 256')
    a(f's_cbranch_scc1 {l1}')
    a.label(l2)
    a(f's_mov_b32 s42, {C_REG}')
    a('buffer_load_dwordx4 v[8:11], v5, s[32:35], s42 offen sc1')
    a('buffer_load_dwordx4 v[12:15], v5, s[32:35], s42 offen offset:16 sc1')
    a('s_waitcnt vmcnt(0)')
    a('v_min_u32 v7, v8, v9')
    for r in range(10, 16):
        a(f'v_min_u32 v7, v7, v{r}')
    a(f'v_mov_b32 v5, {L_SLOT}')
    a('ds_write_b32 v5, v4 offset:16')
    a('ds_write_b32 v5, v6 offset:20')
    a('ds_write_b32 v5, v7 offset:24')
    a('s_waitcnt lgkmcnt(0)')
    a('s_mov_b64 exec, -1')
    a.label(l0)
    a('s_barrier')
    a(f'v_mov_b32 v5, {L_SLOT}')
    a('ds_read_b32 v4, v5 offset:16')
    a('ds_read_b32 v6, v5 offset:20')
    a('ds_read_b32 v7, v5 offset:24')
    a('s_waitcnt lgkmcnt(0)')
    a('v_readfirstlane_b32 s55, v4')
    a('v_readfirstlane_b32 s42, v6')
    a('v_readfirstlane_b32 s43, v7')
    a('s_cmp_ge_u32 s43, 32')
    a('s_cselect_b32 s92, 1, 0')
    if 'slow' in OPT:
        a('s_mov_b32 s92, 0')
    a('s_cmp_eq_u32 s92, 1')
    a('s_cbranch_scc1 RG_FAST')
    a('s_and_b32 s54, s42, 7')
    a('s_lshr_b32 s55, s42, 3')
    a('s_cmp_lt_u32 s55, 16')
    a('s_cselect_b32 s93, 1, 0')
    a('s_branch RG_END')
    a.label('RG_FAST')
    if MAP == 1:
        a('s_cmp_lt_u32 s54, 4')
        a('s_cselect_b32 s93, 1, 0')
        a('s_and_b32 s54, s54, 3')
        a('s_lshl_b32 s54, s54, 1')
        a('s_lshr_b32 s42, s55, 4')
        a('s_and_b32 s43, s55, 1')
        a('s_cmp_eq_u32 s93, 1')
        a('s_cselect_b32 s42, s42, s43')
        a('s_add_u32 s54, s54, s42')
        a('s_and_b32 s55, s55, 15')
    else:
        a('s_cmp_lt_u32 s55, 16')
        a('s_cselect_b32 s93, 1, 0')
    a.label('RG_END')

T_NULL, T_MOD, T_LN1, T_T1, T_T2A, T_T2B, T_LN2, T_FA, T_FB = range(9)
Q_LN1 = 8
Q_T1 = 24
Q_POST = 88
SLOTS = [(T_FB, 4, 0), (T_FB, 4, 1), (T_FB, 4, 2), (T_FA, 3, 0), (T_FA, 3, 1), (T_FA, 3, 2), (T_LN2, 2, 0),
         (T_T2B, 1, 0), (T_T2B, 1, 1), (T_T2B, 1, 2), (T_T2B, 1, 3), (T_T2B, 1, 4), (T_T2A, 0, 0), (T_T2A, 0, 1)]
RL = len(SLOTS)
NROUND = 20
Q_END = int(os.environ.get('Q_END', Q_POST + RL * NROUND))
N_T2B, N_FA = 40, 24

def decode(a):
    L = lambda n: f'DC_{n}'
    a('s_mov_b32 s95, 0')
    a('s_mov_b32 s97, 0')
    a('s_mov_b32 s91, 0')
    a(f's_mov_b32 s94, {C_REG}')
    a('s_lshl_b32 s96, s100, 2')
    a(f's_add_u32 s96, s96, {C_HIST + 15*32}')
    a(f's_cmp_lt_u32 s3, {Q_LN1}')
    a(f's_cbranch_scc1 {L("MOD")}')
    a(f's_cmp_lt_u32 s3, {Q_T1}')
    a(f's_cbranch_scc1 {L("LN1")}')
    a(f's_cmp_lt_u32 s3, {Q_POST}')
    a(f's_cbranch_scc1 {L("T1")}')
    a(f's_sub_u32 s42, s3, {Q_POST}')
    M = (1 << 16) // RL + 1
    for j in range(RL * NROUND + 64): assert (j * M) >> 16 == j // RL
    a(f's_mul_i32 s43, s42, {M}')
    a('s_lshr_b32 s43, s43, 16')
    a(f's_mul_i32 s44, s43, {RL}')
    a('s_sub_u32 s42, s42, s44')
    tl = {T_FB: 'FB', T_FA: 'FA', T_LN2: 'LN2', T_T2B: 'T2B', T_T2A: 'T2A'}
    for k, (t, sk, sub) in enumerate(SLOTS):
        a(f's_sub_u32 s44, s43, {sk}')
        a(f's_mov_b32 s46, {sub}')
        a(f's_cmp_eq_u32 s42, {k}')
        a(f's_cbranch_scc1 {L(tl[t])}')
    a.label(L('T2A'))
    a(f's_mov_b32 s99, {T_T2A}')
    a('s_lshl_b32 s45, s44, 2')
    a('s_lshl_b32 s42, s46, 1')
    a('s_add_u32 s45, s45, s42')
    a('s_add_u32 s54, s45, s39')
    a('s_lshl_b32 s45, s100, 2')
    a('s_add_u32 s56, s45, s41')
    a('s_lshl_b32 s57, s54, 5')
    a('s_add_u32 s57, s57, s56')
    a('s_lshl_b32 s45, s44, 3')
    a('s_add_u32 s45, s45, s100')
    a('s_lshl_b32 s45, s45, 2')
    a(f's_add_u32 s94, s45, {C_HIST}')
    a('s_mov_b32 s95, 16')
    a(f's_add_u32 s90, s45, {F_T1}')
    a('s_mov_b32 s91, 4')
    a('s_cmp_eq_u32 s44, 15')
    a('s_cselect_b32 s97, 1, 0')
    a(f's_add_u32 s101, s45, {C_T2A}')
    a(f's_branch {L("CHKRB")}')
    a.label(L('T2B'))
    a(f's_mov_b32 s99, {T_T2B}')
    a('s_mov_b32 s56, s44')
    a('s_mov_b32 s57, s46')
    a('s_lshl_b32 s45, s44, 3')
    a('s_add_u32 s45, s45, s100')
    a('s_lshl_b32 s45, s45, 2')
    a(f's_add_u32 s94, s45, {C_T2A}')
    a('s_mov_b32 s95, 2')
    a('s_lshl_b32 s45, s44, 2')
    a(f's_add_u32 s101, s45, {C_T2B}')
    a(f's_branch {L("CHKRB")}')
    a.label(L('LN2'))
    a(f's_mov_b32 s99, {T_LN2}')
    a('s_lshl_b32 s56, s44, 3')
    a('s_add_u32 s56, s56, s100')
    a('s_lshl_b32 s45, s44, 2')
    a(f's_add_u32 s94, s45, {C_T2B}')
    a(f's_mov_b32 s95, {N_T2B}')
    a(f's_add_u32 s101, s45, {C_LN2}')
    a(f's_branch {L("CHKRB")}')
    a.label(L('FA'))
    a(f's_mov_b32 s99, {T_FA}')
    a('s_mov_b32 s56, s44')
    a('s_mul_i32 s57, s100, 3')
    a('s_add_u32 s57, s57, s46')
    a('s_lshl_b32 s45, s44, 2')
    a(f's_add_u32 s94, s45, {C_LN2}')
    a('s_mov_b32 s95, 8')
    a(f's_add_u32 s101, s45, {C_FA}')
    a(f's_branch {L("CHKRB")}')
    a.label(L('FB'))
    a(f's_mov_b32 s99, {T_FB}')
    a('s_lshl_b32 s45, s44, 2')
    a(f's_add_u32 s94, s45, {C_FA}')
    a(f's_mov_b32 s95, {N_FA}')
    a('s_mov_b32 s101, 0')
    a('s_lshl_b32 s45, s46, 3')
    a('s_add_u32 s47, s45, s100')
    a('s_cmp_lt_u32 s46, 2')
    a(f's_cbranch_scc1 {L("FB2")}')
    a('s_lshl_b32 s45, s43, 2')
    a('s_add_u32 s45, s45, s100')
    a('s_and_b32 s45, s45, 7')
    a('s_add_u32 s47, s45, 16')
    a('s_cmp_ge_u32 s45, 4')
    a(f's_cselect_b32 s99, {T_NULL}, s99')
    a.label(L('FB2'))
    a('s_cmp_ge_u32 s47, 10')
    a('s_cselect_b32 s45, 1, 0')
    a('s_cselect_b32 s46, 10, 0')
    a('s_sub_u32 s57, s47, s46')
    a('s_lshl_b32 s56, s44, 1')
    a('s_add_u32 s56, s56, s45')
    a.label(L('CHKRB'))
    a('s_cmp_ge_u32 s44, 16')
    a(f's_cselect_b32 s99, {T_NULL}, s99')
    a(f's_branch {L("END")}')
    a.label(L('MOD'))
    a(f's_mov_b32 s99, {T_MOD}')
    a('s_lshl_b32 s56, s3, 3')
    a('s_add_u32 s56, s56, s100')
    a(f's_mov_b32 s101, {C_MODA}')
    a('s_cmp_ge_u32 s56, 60')
    a(f's_cselect_b32 s99, {T_NULL}, s99')
    a(f's_branch {L("END")}')
    a.label(L('LN1'))
    a(f's_mov_b32 s99, {T_LN1}')
    a(f's_sub_u32 s44, s3, {Q_LN1}')
    a('s_lshl_b32 s56, s44, 3')
    a('s_add_u32 s56, s56, s100')
    a(f's_mov_b32 s94, {C_MODA}')
    a('s_mov_b32 s95, 60')
    a('s_mov_b32 s97, 1')
    a('s_lshl_b32 s45, s44, 2')
    a(f's_add_u32 s101, s45, {C_LN1}')
    a(f's_branch {L("END")}')
    a.label(L('T1'))
    a(f's_mov_b32 s99, {T_T1}')
    a(f's_sub_u32 s44, s3, {Q_T1}')
    a('s_lshr_b32 s56, s44, 2')
    a('s_and_b32 s44, s44, 3')
    a('s_lshl_b32 s57, s100, 2')
    a('s_add_u32 s57, s57, s44')
    a('s_lshl_b32 s45, s56, 2')
    a(f's_add_u32 s94, s45, {C_LN1}')
    a('s_mov_b32 s95, 8')
    a('s_mov_b32 s97, 1')
    a('s_lshl_b32 s45, s56, 3')
    a('s_add_u32 s45, s45, s100')
    a('s_lshl_b32 s45, s45, 2')
    a(f's_add_u32 s101, s45, {F_T1}')
    a.label(L('END'))

def poll(a, lbl, s_addr, s_thr, adaptive):
    a('v_mov_b32 v5, 0')
    a.label(f'{lbl}_2')
    a(f'buffer_load_dword v6, v5, s[32:35], s{s_addr} offen sc1')
    if adaptive:
        a('buffer_load_dword v7, v5, s[32:35], s96 offen sc1')
        a('s_waitcnt vmcnt(0)')
    else:
        a('s_waitcnt vmcnt(0)')
    a('v_readfirstlane_b32 s42, v6')
    if adaptive:
        a('v_readfirstlane_b32 s43, v7')
    a(f's_cmp_ge_u32 s42, s{s_thr}')
    a(f's_cbranch_scc1 {lbl}_3')
    a('s_add_u32 s98, s98, 1')
    a('s_cmp_ge_u32 s98, 0x40000')
    a(f's_cbranch_scc1 {lbl}_3')
    if adaptive:
        a('s_cmp_ge_u32 s43, 16')
        a('s_cselect_b32 s97, 1, s97')
    a(f's_sleep {W_SHORT}')
    if adaptive:
        a('s_cmp_eq_u32 s97, 1')
        a(f's_cbranch_scc1 {lbl}_2')
    for _ in range(W_SLEEP // 127): a('s_sleep 127')
    if W_SLEEP % 127: a(f's_sleep {W_SLEEP % 127}')
    a(f's_branch {lbl}_2')

def k_mega(a):
    from k_t1v import t1v_body
    from k_t2v import t2a_body
    from k_post import T2B, FA, FB, LN2
    t2b, fa, fb, ln2 = T2B(), FA(), FB(), LN2()
    name = 'mega_kernel'
    kernel_header(a, name)
    a('s_cmp_ge_u32 s2, 256')
    a('s_cbranch_scc1 MG_END')
    a(f's_load_dwordx4 s[4:7], s[0:1], {KA["wq"]}')
    a(f's_load_dwordx4 s[48:51], s[0:1], {KA["wv"]}')
    a(f's_load_dwordx2 s[52:53], s[0:1], {KA["ws"]}')
    a(f's_load_dwordx2 s[94:95], s[0:1], {KA["mem0"]}')
    lane_decomp(a)
    for o in (t2b, fa, fb):
        for r in range(o.g.VA, o.g.VA + 2 * o.g.NC + 1):
            a(f'v_mov_b32 v{r}, 0')
    a('s_waitcnt lgkmcnt(0)')
    NW = 640 * 6144 * 2
    make_srd(a, 32, 52, WS_SIZE)
    a('s_mov_b32 s88, 0')
    register(a)
    a('s_mov_b32 s100, s54')
    a('s_cmp_eq_u32 s93, 0')
    a('s_cbranch_scc1 WENTRY')
    make_srd(a, 8, 4, NW)
    make_srd(a, 12, 6, NW)
    make_srd(a, 16, 48, NW)
    make_srd(a, 28, 50, NW)
    make_srd(a, 36, 94, 8 * 1280)
    k_chain3.chain3_body(a, mega=dict(F_T1=F_T1, C_HIST=C_HIST, LOG=(WS_LOG if LOG else None)))
    lane_decomp(a)
    a.label('WENTRY')
    a('s_mov_b32 s98, 0')
    if LOG:
        a('s_lshl_b32 s80, s2, 12')
        a(f's_add_u32 s80, s80, {WS_LOG + 1024}')
    a.label('WLOOP')
    a('s_cmp_lg_u32 s40, 0')
    a('s_cbranch_scc1 WL_1')
    a('s_mov_b64 exec, 1')
    a('v_mov_b32 v4, 1')
    a('v_mov_b32 v5, 0')
    a('s_lshl_b32 s42, s100, 7')
    a(f's_add_u32 s42, s42, {C_QH}')
    a('buffer_atomic_add v4, v5, s[32:35], s42 offen sc0 sc1')
    a(f'v_mov_b32 v5, {L_SLOT}')
    a('s_waitcnt vmcnt(0)')
    a('ds_write_b32 v5, v4')
    a('s_waitcnt lgkmcnt(0)')
    a('s_mov_b64 exec, -1')
    a.label('WL_1')
    a('s_barrier')
    a(f'v_mov_b32 v5, {L_SLOT}')
    a('ds_read_b32 v4, v5')
    a('s_waitcnt lgkmcnt(0)')
    a('v_readfirstlane_b32 s3, v4')
    a(f's_cmp_ge_u32 s3, {Q_END}')
    a('s_cbranch_scc1 MG_END')
    if LOG:
        rt(a, 81)
        a('s_lshl_b32 s83, s100, 16')
        a('s_or_b32 s83, s83, s3')
    decode(a)
    a(f's_cmp_eq_u32 s99, {T_NULL}')
    a('s_cbranch_scc1 WNULL')
    a('s_cmp_eq_u32 s91, 0')
    a('s_cbranch_scc1 WPRE')
    a('s_cmp_lg_u32 s40, 0')
    a('s_cbranch_scc1 WP_3')
    poll(a, 'WP', 90, 91, False)
    a.label('WP_3')
    a('s_barrier')
    a.label('WPRE')
    for t, l in ((T_T2A, 'P_T2A'), (T_T2B, 'P_T2B'), (T_LN2, 'P_LN2'), (T_FA, 'P_FA'), (T_FB, 'P_FB')):
        a(f's_cmp_eq_u32 s99, {t}')
        a(f's_cbranch_scc1 {l}')
    a.label('WWAIT')
    a('s_cmp_lg_u32 s40, 0')
    a('s_cbranch_scc1 WL_3')
    a('s_cmp_eq_u32 s95, 0')
    a('s_cbranch_scc1 WL_3')
    poll(a, 'WL', 94, 95, True)
    a.label('WL_3')
    a('s_barrier')
    if LOG: rt(a, 82)
    for t, l in ((T_T1, 'B_T1'), (T_T2A, 'B_T2A'), (T_T2B, 'B_T2B'), (T_LN2, 'B_LN2'), (T_FA, 'B_FA'), (T_FB, 'B_FB'), (T_MOD, 'B_MOD')):
        a(f's_cmp_eq_u32 s99, {t}')
        a(f's_cbranch_scc1 {l}')
    body_ln1(a, 'LN1')
    a('s_branch WDONE')
    a.label('WNULL')
    a('s_barrier')
    a('s_branch WLOOP')
    a.label('P_T2A')
    a('v_lshlrev_b32 v15, 4, v1')
    t2a_body(a, 'T2A', SFX, 'pre')
    a('s_branch WWAIT')
    for nm, o in (('T2B', t2b), ('LN2', ln2), ('FA', fa), ('FB', fb)):
        a.label(f'P_{nm}')
        o.pre(a)
        a('s_branch WWAIT')
    a.label('B_MOD')
    body_mod(a, 'MOD')
    a('s_branch WDONE')
    a.label('B_T1')
    t1v_body(a, 'T1', SFX)
    a('s_branch WDONE')
    a.label('B_T2A')
    a('v_lshlrev_b32 v15, 4, v1')
    t2a_body(a, 'T2A', SFX, 'main')
    a('s_branch WDONE')
    for nm, o in (('T2B', t2b), ('LN2', ln2), ('FA', fa), ('FB', fb)):
        a.label(f'B_{nm}')
        o.main(a)
        a('s_branch WDONE')
    a.label('WDONE')
    a('s_waitcnt vmcnt(0) lgkmcnt(0)')
    a('s_barrier')
    a('s_cmp_lg_u32 s40, 0')
    a('s_cbranch_scc1 WLOOP')
    if LOG: log_entry(a)
    a('s_cmp_eq_u32 s101, 0')
    a('s_cbranch_scc1 WLOOP')
    a('s_mov_b64 exec, 1')
    a('v_mov_b32 v4, 1')
    a('v_mov_b32 v5, 0')
    a('buffer_atomic_add v4, v5, s[32:35], s101 offen sc1')
    a('s_mov_b64 exec, -1')
    a('s_branch WLOOP')
    a.label('MG_END')
    a('s_endpgm')
    return name, kernel_desc(name, 256, 102, 256)
```

```python
from asmlib import *
from layout2 import *
from k_g import *
from k_t2 import xg_reduce
SFX = ' sc1'

def bf16_round_f32(a, v):
    a(f'v_cvt_pk_bf16_f32 v{v}, v{v}, v{v}')
    a(f'v_lshlrev_b32 v{v}, 16, v{v}')

class T2B:
    def __init__(s): s.g = G(2, 4, 1, 6)
    def srd(s, a):
        a(f's_load_dwordx2 s[50:51], s[0:1], {KA["wo"]}')
        a('s_waitcnt lgkmcnt(0)')
        make_srd(a, 28, 50, 640 * 6144 * 2)
    def pre(s, a):
        g = s.g
        s.srd(a)
        a(f's_mul_i32 s58, s100, {4*192*1280}')
        a('s_lshl_b32 s42, s57, 8')
        a('s_add_u32 s58, s58, s42')
        def wsoff(st, j):
            gb = 4 * st + j
            head, blk = divmod(gb, 6)
            ta, tb = BLK[blk]
            a(f's_add_u32 s45, s58, {(head*192 + 16*ta)*1280}')
            a(f's_add_u32 s45, s45, s{61 if tb - ta == 1 else 62}')
            return 0
        g_pre(a, g, 1280, [28], wsoff)
    def main(s, a):
        g = s.g
        s.srd(a)
        a('v_lshlrev_b32 v15, 4, v1')
        a('s_lshl_b32 s42, s56, 3')
        a('s_lshl_b32 s43, s41, 1')
        a('s_add_u32 s42, s42, s43')
        a('s_mov_b32 s66, s42')
        a('s_lshl_b32 s42, s42, 5')
        a('s_lshl_b32 s43, s100, 2')
        a('s_add_u32 s42, s42, s43')
        a('s_mul_i32 s64, s42, 6144')
        a(f's_add_u32 s64, s64, {WS_OF}')
        def aload(st, kb, t, r):
            if kb == 0:
                a(f's_add_u32 s{46+t}, s64, {st*4096 + t*196608}')
            a(f'buffer_load_dwordx4 v[{r}:{r+3}], v15, s[32:35], s{46+t} offen offset:{kb*1024}')
        g_main(a, g, aload)
        a(f's_lshl_b32 s42, s100, 7')
        a('s_add_u32 s42, s42, s66')
        a('s_mul_i32 s42, s42, 20')
        a('s_lshl_b32 s43, s57, 2')
        a('s_add_u32 s42, s42, s43')
        a('s_lshl_b32 s43, s39, 1')
        a('s_add_u32 s42, s42, s43')
        a('s_lshl_b32 s42, s42, 10')
        a(f's_add_u32 s42, s42, {WS_OPB}')
        for t in range(2):
            a(f's_add_u32 s43, s42, {t*20480}')
            for p in range(2):
                r = g.AB + (t * 2 + p) * 4
                a0 = g.acc(0, 2*p, t); a1 = g.acc(0, 2*p+1, t)
                a(f'v_cvt_pk_bf16_f32 v{r}, v{a0}, v{a0+1}')
                a(f'v_cvt_pk_bf16_f32 v{r+1}, v{a0+2}, v{a0+3}')
                a(f'v_cvt_pk_bf16_f32 v{r+2}, v{a1}, v{a1+1}')
                a(f'v_cvt_pk_bf16_f32 v{r+3}, v{a1+2}, v{a1+3}')
                a(f'buffer_store_dwordx4 v[{r}:{r+3}], v15, s[32:35], s43 offen offset:{p*1024}{SFX}')

class FA:
    def __init__(s): s.g = G(2, 2, 2, 10)
    def srd(s, a):
        a(f's_load_dwordx4 s[4:7], s[0:1], {KA["wg"]}')
        a('s_waitcnt lgkmcnt(0)')
        NW = 640 * 1536 * 2
        make_srd(a, 8, 4, NW)
        make_srd(a, 12, 6, NW)
    def pre(s, a):
        g = s.g
        s.srd(a)
        s.first = True
        def wsoff(st, j):
            if s.first:
                a('s_lshl_b32 s58, s57, 7')
                a('s_add_u32 s58, s58, s61')
                a('s_add_u32 s58, s58, s63')
                s.first = False
            a(f's_add_u32 s45, s58, {2*st*32*3072}')
            return j
        g_pre(a, g, 3072, [8, 12], wsoff)
    def main(s, a):
        g = s.g
        s.srd(a)
        a('v_lshlrev_b32 v15, 4, v1')
        a('s_lshl_b32 s42, s56, 3')
        a('s_lshl_b32 s43, s41, 1')
        a('s_add_u32 s66, s42, s43')
        a('s_mul_i32 s64, s66, 20480')
        a(f's_add_u32 s64, s64, {WS_H2F}')
        def aload(st, kb, t, r):
            if kb == 0:
                a(f's_add_u32 s{46+t}, s64, {st*2048 + t*20480}')
            a(f'buffer_load_dwordx4 v[{r}:{r+3}], v15, s[32:35], s{46+t} offen offset:{kb*1024}')
        g_main(a, g, aload)
        C1 = -2.0 * LOG2E * 0.7978845608028654
        a(f's_mov_b32 s60, {f2u(C1):#x}')
        a(f's_mov_b32 s61, {f2u(C1 * 0.044715):#x}')
        a('s_mul_i32 s42, s66, 49152')
        a('s_lshl_b32 s43, s57, 1')
        a('s_add_u32 s43, s43, s39')
        a('s_lshl_b32 s43, s43, 10')
        a('s_add_u32 s42, s42, s43')
        a(f's_add_u32 s42, s42, {WS_ACT}')
        T = g.AB
        for t in range(2):
            for c in range(2):
                for r in range(4):
                    gg = g.acc(0, c, t) + r; u = g.acc(1, c, t) + r
                    t0 = T + 8; t1 = T + 9; t2 = T + 10
                    a(f'v_cvt_pk_bf16_f32 v{t0}, v{gg}, v{u}')
                    a(f'v_lshlrev_b32 v{gg}, 16, v{t0}')
                    a(f'v_and_b32 v{u}, 0xffff0000, v{t0}')
                    a(f'v_mul_f32 v{t1}, v{gg}, v{gg}')
                    a(f'v_mov_b32 v{t2}, s60')
                    a(f'v_fmac_f32 v{t2}, s61, v{t1}')
                    a(f'v_mul_f32 v{t2}, v{t2}, v{gg}')
                    a(f'v_exp_f32 v{t2}, v{t2}')
                    a('s_nop 0')
                    a(f'v_add_f32 v{t2}, 1.0, v{t2}')
                    a(f'v_rcp_f32 v{t2}, v{t2}')
                    a('s_nop 0')
                    a(f'v_mul_f32 v{t2}, v{t2}, v{gg}')
                    a(f'v_cvt_pk_bf16_f32 v{t2}, v{t2}, v{t2}')
                    a(f'v_lshlrev_b32 v{t2}, 16, v{t2}')
                    a(f'v_mul_f32 v{gg}, v{t2}, v{u}')
            pk = T + 4 * t
            for c in range(2):
                gg = g.acc(0, c, t)
                a(f'v_cvt_pk_bf16_f32 v{pk+2*c}, v{gg}, v{gg+1}')
                a(f'v_cvt_pk_bf16_f32 v{pk+2*c+1}, v{gg+2}, v{gg+3}')
            a(f's_add_u32 s43, s42, {t*49152}')
            a(f'buffer_store_dwordx4 v[{pk}:{pk+3}], v15, s[32:35], s43 offen{SFX}')

class FB:
    def __init__(s): s.g = G(1, 2, 1, 12)
    def srd(s, a):
        a(f's_load_dwordx2 s[4:5], s[0:1], {KA["wd"]}')
        a(f's_load_dwordx2 s[6:7], s[0:1], {KA["out"]}')
        a('s_waitcnt lgkmcnt(0)')
        make_srd(a, 8, 4, 1536 * 1280)
        make_srd(a, 12, 6, 2048 * 1280)
    def pre(s, a):
        g = s.g
        s.srd(a)
        s.first = True
        def wsoff(st, j):
            if s.first:
                a('s_lshl_b32 s58, s57, 7')
                a('s_add_u32 s58, s58, s61')
                a('s_add_u32 s58, s58, s63')
                s.first = False
            a(f's_add_u32 s45, s58, {(4*st + 2*j)*32*1280}')
            return 0
        g_pre(a, g, 1280, [8], wsoff)
        E = 200
        s.E = E
        a('s_lshl_b32 s42, s57, 6')
        a('s_lshl_b32 s43, s39, 5')
        a('s_add_u32 s67, s42, s43')
        a('s_lshl_b32 s42, s67, 2')
        a(f's_add_u32 s42, s42, {WS_MOD + 5*2560}')
        a('v_lshlrev_b32 v5, 4, v3')
        for c in range(2):
            a(f'buffer_load_dwordx4 v[{E+4*c}:{E+4*c+3}], v5, s[32:35], s42 offen offset:{64*c}')
            g.ops.append(('E', 0))
    def main(s, a):
        g = s.g; E = s.E
        s.srd(a)
        a('v_lshlrev_b32 v15, 4, v1')
        a('s_lshl_b32 s42, s56, 2')
        a('s_add_u32 s66, s42, s41')
        a('s_mul_i32 s64, s66, 49152')
        a(f's_add_u32 s64, s64, {WS_ACT}')
        a('s_mul_i32 s42, s66, 20')
        a('s_lshl_b32 s43, s57, 1')
        a('s_add_u32 s42, s42, s43')
        a('s_add_u32 s42, s42, s39')
        a('s_lshl_b32 s42, s42, 10')
        a(f's_add_u32 s42, s42, {WS_X1F}')
        a(f'buffer_load_dwordx4 v[{E+8}:{E+11}], v15, s[32:35], s42 offen')
        g.ops.append(('E', 1))
        def aload(st, kb, t, r):
            if kb == 0:
                a(f's_add_u32 s46, s64, {st*4096}')
            a(f'buffer_load_dwordx4 v[{r}:{r+3}], v15, s[32:35], s46 offen offset:{kb*1024}')
        g_main(a, g, aload)
        a('s_lshl_b32 s42, s66, 4')
        a('v_add_u32 v4, s42, v2')
        a('v_mul_u32_u24 v4, 1280, v4')
        a('v_lshl_add_u32 v4, v3, 3, v4')
        a('s_lshl_b32 s42, s67, 1')
        a('v_add_u32 v4, s42, v4')
        for c in range(2):
            acc = g.acc(0, c, 0)
            xr = E + 8 + 2 * c
            for r in range(4):
                bf16_round_f32(a, acc + r)
                a(f'v_mul_f32 v{acc+r}, v{acc+r}, v{E+4*c+r}')
                bf16_round_f32(a, acc + r)
            a(f'v_lshlrev_b32 v16, 16, v{xr}')
            a(f'v_and_b32 v17, 0xffff0000, v{xr}')
            a(f'v_lshlrev_b32 v18, 16, v{xr+1}')
            a(f'v_and_b32 v19, 0xffff0000, v{xr+1}')
            for r in range(4):
                a(f'v_add_f32 v{acc+r}, v{acc+r}, v{16+r}')
            a(f'v_cvt_pk_bf16_f32 v{xr}, v{acc}, v{acc+1}')
            a(f'v_cvt_pk_bf16_f32 v{xr+1}, v{acc+2}, v{acc+3}')
            a(f'buffer_store_dwordx2 v[{xr}:{xr+1}], v4, s[12:15], 0 offen offset:{32*c}')

class LN2:
    def pre(s, a):
        a(f's_load_dwordx2 s[4:5], s[0:1], {KA["x"]}')
        a('s_waitcnt lgkmcnt(0)')
        make_srd(a, 12, 4, 2048 * 1280)
        a('v_lshlrev_b32 v15, 4, v1')
        a('s_lshl_b32 s42, s56, 4')
        a('v_add_u32 v4, s42, v2')
        a('v_mul_u32_u24 v4, 1280, v4')
        a('v_lshl_add_u32 v4, v3, 3, v4')
        a('s_lshl_b32 s58, s40, 6')
        a('v_lshlrev_b32 v5, 4, v3')
        a('s_lshl_b32 s59, s40, 7')
        for i in range(3):
            if i == 2:
                a('s_cmp_ge_u32 s40, 4')
                a(f's_cbranch_scc1 LN2P_SKIP')
            a(f's_add_u32 s42, s58, {512*i}')
            a(f'buffer_load_dwordx2 v[{16+4*i}:{17+4*i}], v4, s[12:15], s42 offen')
            a(f'buffer_load_dwordx2 v[{18+4*i}:{19+4*i}], v4, s[12:15], s42 offen offset:32')
            for idx, base in ((2, 28), (3, 52), (4, 76)):
                a(f's_add_u32 s42, s59, {WS_MOD + 2560*idx + 1024*i}')
                a(f'buffer_load_dwordx4 v[{base+8*i}:{base+8*i+3}], v5, s[32:35], s42 offen')
                a(f'buffer_load_dwordx4 v[{base+8*i+4}:{base+8*i+7}], v5, s[32:35], s42 offen offset:64')
        a.label('LN2P_SKIP')
    def main(s, a):
        a('v_lshlrev_b32 v15, 4, v1')
        SL = 100
        V = 200
        a('s_mul_i32 s42, s56, 20')
        a('s_add_u32 s42, s42, s40')
        a('s_lshl_b32 s42, s42, 10')
        a(f's_add_u32 s60, s42, {WS_OPB}')
        for i in range(3):
            if i == 2:
                a('s_cmp_ge_u32 s40, 4')
                a(f's_cbranch_scc1 LN2M_SK1')
            for x in range(8):
                r = SL + (i * 8 + x) * 4
                a(f's_add_u32 s42, s60, {x*128*20480 + i*8192}')
                a(f'buffer_load_dwordx4 v[{r}:{r+3}], v15, s[32:35], s42 offen')
        a.label('LN2M_SK1')
        for k in range(8):
            a(f'v_mov_b32 v{V+16+k}, 0')
        a('s_waitcnt vmcnt(0)')
        a('s_mul_i32 s42, s56, 20')
        a('s_add_u32 s42, s42, s40')
        a('s_lshl_b32 s42, s42, 10')
        a(f's_add_u32 s61, s42, {WS_X1F}')
        a(f's_add_u32 s62, s42, {WS_H2F}')
        T = 224
        for i in range(3):
            if i == 2:
                a('s_cmp_ge_u32 s40, 4')
                a(f's_cbranch_scc1 LN2M_SK2')
            for q in range(4):
                lo = V + 8*i + 2*q; hi = lo + 1
                r0 = SL + (i * 8) * 4 + q
                a(f'v_lshlrev_b32 v{lo}, 16, v{r0}')
                a(f'v_and_b32 v{hi}, 0xffff0000, v{r0}')
                for x in range(1, 8):
                    r = SL + (i * 8 + x) * 4 + q
                    a(f'v_lshlrev_b32 v{T}, 16, v{r}')
                    a(f'v_and_b32 v{T+1}, 0xffff0000, v{r}')
                    a(f'v_add_f32 v{lo}, v{lo}, v{T}')
                    a(f'v_add_f32 v{hi}, v{hi}, v{T+1}')
            for k in range(8):
                v = V + 8*i + k
                bf16_round_f32(a, v)
                a(f'v_mul_f32 v{v}, v{v}, v{28+8*i+k}')
                bf16_round_f32(a, v)
            for q in range(4):
                xr = 16 + 4*i + q
                a(f'v_lshlrev_b32 v{T}, 16, v{xr}')
                a(f'v_and_b32 v{T+1}, 0xffff0000, v{xr}')
                a(f'v_add_f32 v{V+8*i+2*q}, v{V+8*i+2*q}, v{T}')
                a(f'v_add_f32 v{V+8*i+2*q+1}, v{V+8*i+2*q+1}, v{T+1}')
            for q in range(4):
                a(f'v_cvt_pk_bf16_f32 v{T+4+q}, v{V+8*i+2*q}, v{V+8*i+2*q+1}')
            a(f's_add_u32 s42, s61, {i*8192}')
            a(f'buffer_store_dwordx4 v[{T+4}:{T+7}], v15, s[32:35], s42 offen{SFX}')
            for q in range(4):
                a(f'v_lshlrev_b32 v{V+8*i+2*q}, 16, v{T+4+q}')
                a(f'v_and_b32 v{V+8*i+2*q+1}, 0xffff0000, v{T+4+q}')
        a.label('LN2M_SK2')
        S = 232
        a(f'v_add_f32 v{S}, v{V}, v{V+1}')
        for k in range(2, 24):
            a(f'v_add_f32 v{S}, v{S}, v{V+k}')
        xg_reduce(a, 'add', S, S + 1)
        a('v_lshlrev_b32 v6, 2, v2')
        a('s_lshl_b32 s42, s40, 6')
        a('v_add_u32 v7, s42, v6')
        a(f'ds_write_b32 v7, v{S}')
        a('s_waitcnt lgkmcnt(0)')
        a('s_barrier')
        for k in range(8):
            a(f'ds_read_b32 v{S+2+k}, v6 offset:{64*k}')
        a('s_waitcnt lgkmcnt(0)')
        a(f'v_add_f32 v{S}, v{S+2}, v{S+3}')
        for k in range(2, 8):
            a(f'v_add_f32 v{S}, v{S}, v{S+2+k}')
        a(f's_mov_b32 s24, {f2u(1.0/640):#x}')
        a(f's_mov_b32 s25, {f2u(1e-5):#x}')
        a(f'v_mul_f32 v{S}, s24, v{S}')
        for k in range(16):
            a(f'v_sub_f32 v{V+k}, v{V+k}, v{S}')
        a('s_cmp_lt_u32 s40, 4')
        a('s_cselect_b64 vcc, -1, 0')
        for k in range(16, 24):
            a(f'v_sub_f32 v{T}, v{V+k}, v{S}')
            a(f'v_cndmask_b32 v{V+k}, 0, v{T}, vcc')
        a(f'v_mul_f32 v{S+1}, v{V}, v{V}')
        for k in range(1, 24):
            a(f'v_fmac_f32 v{S+1}, v{V+k}, v{V+k}')
        xg_reduce(a, 'add', S + 1, S + 2)
        a(f'ds_write_b32 v7, v{S+1} offset:512')
        a('s_waitcnt lgkmcnt(0)')
        a('s_barrier')
        for k in range(8):
            a(f'ds_read_b32 v{S+2+k}, v6 offset:{512+64*k}')
        a('s_waitcnt lgkmcnt(0)')
        a(f'v_add_f32 v{S+1}, v{S+2}, v{S+3}')
        for k in range(2, 8):
            a(f'v_add_f32 v{S+1}, v{S+1}, v{S+2+k}')
        a(f'v_mul_f32 v{S+1}, s24, v{S+1}')
        a(f'v_add_f32 v{S+1}, s25, v{S+1}')
        a(f'v_rsq_f32 v{S+1}, v{S+1}')
        a('s_nop 0')
        for i in range(3):
            if i == 2:
                a('s_cmp_ge_u32 s40, 4')
                a(f's_cbranch_scc1 LN2M_SK3')
            for k in range(8):
                v = V + 8*i + k
                cb = 76 + 8*i + k
                a(f'v_add_f32 v{cb}, 1.0, v{cb}')
                bf16_round_f32(a, cb)
                a(f'v_mul_f32 v{v}, v{v}, v{S+1}')
                a(f'v_fma_f32 v{v}, v{v}, v{cb}, v{52+8*i+k}')
            for q in range(4):
                a(f'v_cvt_pk_bf16_f32 v{T+4*(i&1)+q}, v{V+8*i+2*q}, v{V+8*i+2*q+1}')
            a(f's_add_u32 s42, s62, {i*8192}')
            a(f'buffer_store_dwordx4 v[{T+4*(i&1)}:{T+4*(i&1)+3}], v15, s[32:35], s42 offen{SFX}')
        a.label('LN2M_SK3')
```

```python
from asmlib import *
from layout2 import *
from k_t1 import lane_decomp, stamp, stamp_rt, stamp_out, OPT, SLOT
import os
DM0 = int(os.environ.get('DM0', '1'))
def k_t1v(a):
    name = 't1v_kernel'
    kernel_header(a, name)
    a('s_cmp_ge_u32 s2, 512')
    a('s_cbranch_scc1 T1_END')
    a(f's_load_dwordx2 s[52:53], s[0:1], {KA["ws"]}')
    lane_decomp(a)
    a('s_waitcnt lgkmcnt(0)')
    make_srd(a, 32, 52, WS_SIZE)
    a('s_and_b32 s54, s2, 7')
    a('s_lshr_b32 s55, s2, 3')
    a('s_and_b32 s56, s55, 15')
    a('s_lshr_b32 s55, s55, 4')
    a('s_lshl_b32 s55, s55, 3')
    a('s_add_u32 s57, s54, s55')
    t1v_body(a, 'T1', '')
    a.label('T1_END')
    a('s_endpgm')
    return name, kernel_desc(name, 256, 100, 256)

def t1v_body(a, pfx, sfx):
    a(f's_load_dwordx4 s[4:7], s[0:1], {KA["wq"]}')
    a(f's_load_dwordx2 s[48:49], s[0:1], {KA["wv"]}')
    a('s_waitcnt lgkmcnt(0)')
    NW = 640 * 6144 * 2
    make_srd(a, 8, 4, NW)
    make_srd(a, 12, 6, NW)
    make_srd(a, 16, 48, NW)
    make_srd(a, 20, 52, 2048 * 1280, WS_H1)
    a('s_cmp_lt_u32 s40, 4')
    a('s_cselect_b32 s24, s8, s12')
    a('s_cselect_b32 s25, s9, s13')
    a(f's_mov_b32 s26, {NW}')
    a('s_mov_b32 s27, 0x00020000')
    a('s_mov_b32 s47, 0x78')
    def woff(dst, ii_s):
        a(f'v_lshl_add_u32 v4, s{ii_s}, 6, v1')
        a('v_mul_u32_u24 v5, 2731, v4')
        a('v_lshrrev_b32 v5, 16, v5')
        a('v_mul_u32_u24 v6, 24, v5')
        a('v_sub_u32 v6, v4, v6')
        a('v_lshrrev_b32 v7, 1, v6')
        a('v_and_b32 v6, 1, v6')
        a('v_bfe_u32 v8, v5, 1, 1')
        a('v_bfe_u32 v9, v5, 3, 1')
        a('v_lshl_or_b32 v8, v9, 1, v8')
        a('v_xor_b32 v7, v7, v8')
        a(f'v_mul_u32_u24 v{dst}, 12288, v5')
        a(f'v_lshl_add_u32 v{dst}, v7, 5, v{dst}')
        a(f'v_lshl_add_u32 v{dst}, v6, 4, v{dst}')
    woff(88, 40)
    a('s_add_u32 s42, s41, 8')
    woff(89, 42)
    a('v_lshl_add_u32 v4, s40, 6, v1')
    a('v_lshrrev_b32 v5, 2, v4')
    a('v_and_b32 v6, 3, v4')
    a('v_bfe_u32 v7, v5, 2, 2')
    a('v_lshlrev_b32 v7, 1, v7')
    a('v_lshrrev_b32 v7, v7, s47')
    a('v_and_b32 v7, 3, v7')
    a('v_xor_b32 v6, v6, v7')
    a('s_lshl_b32 s43, s56, 7')
    a('v_add_u32 v5, s43, v5')
    a('v_mul_u32_u24 v90, 1280, v5')
    a('v_lshl_add_u32 v90, v6, 4, v90')
    a('s_lshl_b32 s44, s40, 10')
    a('s_lshl_b32 s42, s42, 10')
    a('s_mov_b32 s60, s44')
    a('s_add_u32 s61, s44, 12288')
    a('s_add_u32 s62, s44, 24576')
    a('s_add_u32 s63, s44, 36864')
    a('s_cmp_lt_u32 s40, 4')
    a('s_cselect_b32 s64, 0, 12288')
    a('s_add_u32 s64, s64, s42')
    a('s_add_u32 s65, s42, 24576')
    a('s_mul_i32 s66, s57, 384')
    a('s_mov_b32 s67, 0')
    a('v_lshrrev_b32 v4, 2, v2')
    a('v_lshlrev_b32 v4, 1, v4')
    a('v_lshrrev_b32 v4, v4, s47')
    a('v_and_b32 v4, 3, v4')
    a('v_xor_b32 v4, v4, v3')
    a('v_lshl_add_u32 v5, s39, 6, v2')
    a('v_lshlrev_b32 v5, 6, v5')
    a('v_lshl_add_u32 v5, v4, 4, v5')
    a('v_add_u32 v91, 36864, v5')
    a('v_lshrrev_b32 v4, 2, v2')
    a('v_lshl_add_u32 v5, v3, 3, v4')
    a('v_lshrrev_b32 v6, 1, v4')
    a('v_and_b32 v7, 1, v3')
    a('v_lshl_or_b32 v6, v7, 1, v6')
    a('v_and_b32 v7, 3, v2')
    a('v_mul_u32_u24 v8, 384, v5')
    a('v_lshl_add_u32 v8, v7, 3, v8')
    a('s_mul_i32 s42, s41, 3')
    for j in range(3):
        a(f's_add_u32 s43, s42, {j}')
        a('v_xor_b32 v9, s43, v6')
        a(f'v_lshl_add_u32 v{92+j}, v9, 5, v8')
    if 'lin' in OPT:
        for j in range(3):
            a(f'v_lshlrev_b32 v{60+j}, 3, v1')
    if 'lint' in OPT:
        a(f'v_lshlrev_b32 v59, 4, v1')
    a('v_lshlrev_b32 v15, 4, v1')

    def step_dmas(slot_s):
        srds = [8, 12, 16, 20, 24, 16]
        voff = [88, 88, 88, 90, 89, 89]
        def mk(j):
            def f():
                a(f's_add_u32 m0, s{60+j}, s{slot_s}')
                so = 67 if j == 3 else 66
                a('s_nop 0')
                if 'nodma' not in OPT:
                    a(f'buffer_load_dwordx4 v{voff[j]}, s[{srds[j]}:{srds[j]+3}], s{so} offen lds')
                if j == 5:
                    a('s_add_u32 s66, s66, 393216')
                    a('s_add_u32 s67, s67, 64')
            return f
        return [mk(j) for j in range(6)]
    def issue_step(slot_s):
        for f in step_dmas(slot_s): f()
    def wo_dmas(buf, cc):
        def mk(j):
            def f():
                a(f's_add_u32 m0, s44, {buf + j*8192}')
                a(f's_add_u32 s45, s68, {cc*256 + j*40960}')
                a(f'buffer_load_dwordx4 v10, s[28:31], s45 offen lds')
            return f
        return [mk(j) for j in range(6)]

    ACC = 112
    def accr(m, j, t4):
        return ACC + ((m * 3 + j) * 4 + t4) * 4
    for r in range(ACC, 256):
        a(f'v_mov_b32 v{r}, 0')
    for sl in range(3):
        a(f's_mov_b32 s70, {sl*SLOT}')
        issue_step(70)
    seq = [(m, j) for m in range(3) for j in range(3)]
    WF = 48
    def set_addr(slot_expr):
        a(f'v_add_u32 v95, {slot_expr}, v91')
        for j in range(3):
            a(f'v_add_u32 v{96+j}, {slot_expr}, v{92+j}')
    def rd_T(ts):
        for t4 in range(4):
            a(f'ds_read_b128 v[{16+16*ts+4*t4}:{19+16*ts+4*t4}], v95 offset:{1024*t4}')
    def rd_W(i):
        m, j = seq[i]
        b = WF + 4 * i
        a(f'ds_read_b64_tr_b16 v[{b}:{b+1}], v{96+j} offset:{m*12288}')
        a(f'ds_read_b64_tr_b16 v[{b+2}:{b+3}], v{96+j} offset:{m*12288+1536}')
    a('s_waitcnt vmcnt(12)')
    a('s_barrier')
    set_addr(0)
    rd_T(0)
    for i in range(9): rd_W(i)
    a('s_mov_b32 s70, 0')
    a(f's_mov_b32 s71, {SLOT}')
    a('s_mov_b32 s72, 0')
    BG = 1
    def step(ts, dmas, vm, rd_next=True):
        dmas = list(dmas)
        for i in range(9):
            m, j = seq[i]
            b = WF + 4 * i
            if i == 0:
                a('s_waitcnt lgkmcnt(14)')
            if i == 1:
                a('s_waitcnt lgkmcnt(12)')
            for t4 in range(4):
                r = accr(m, j, t4)
                tr = 16 + 16 * ts + 4 * t4
                a(f'v_mfma_f32_16x16x32_bf16 v[{r}:{r+3}], v[{b}:{b+3}], v[{tr}:{tr+3}], v[{r}:{r+3}]')
            if i == BG:
                if vm is not None:
                    a(f's_waitcnt vmcnt({vm}) lgkmcnt(0)')
                else:
                    a('s_waitcnt lgkmcnt(0)')
                a('s_barrier')
                if rd_next:
                    set_addr('s71')
                    rd_T(ts ^ 1)
                    for k in range(BG + 1): rd_W(k)
            elif i > BG:
                if rd_next: rd_W(i)
                if dmas: dmas.pop(0)()
        assert not dmas
    def advance():
        a('s_mov_b32 s70, s71')
        a(f's_add_u32 s71, s71, {SLOT}')
        a(f's_cmp_eq_u32 s71, {3*SLOT}')
        a('s_cselect_b32 s71, 0, s71')
    a.label(f'{pfx}_LOOP')
    step(0, step_dmas(70), 6); advance()
    step(1, step_dmas(70), 6); advance()
    a('s_add_u32 s72, s72, 1')
    a('s_cmp_lt_u32 s72, 8')
    a(f's_cbranch_scc1 {pfx}_LOOP')
    step(0, step_dmas(70), 6); advance()
    step(1, [], 6); advance()
    step(0, [], 0); advance()
    step(1, [], None, rd_next=False)
    a('s_nop 7')
    a('s_nop 1')
    FR = 16
    def fr(m, t4, j):
        return FR + m * 24 + (t4 * 3 + j) * 2
    a('v_lshlrev_b32 v14, 4, v1')
    a('s_lshl_b32 s42, s39, 1')
    a('s_lshl_b32 s43, s56, 2')
    a('s_add_u32 s42, s42, s43')
    a('s_lshl_b32 s42, s42, 5')
    a('s_add_u32 s73, s42, s57')
    a('s_mul_i32 s73, s73, 12288')
    a('s_lshl_b32 s42, s41, 10')
    a('s_add_u32 s74, s73, s42')
    a('s_lshr_b32 s42, s41, 1')
    a('s_lshl_b32 s42, s42, 10')
    a('s_add_u32 s42, s42, 4096')
    a('s_and_b32 s43, s41, 1')
    a('s_lshl_b32 s43, s43, 3')
    a('s_add_u32 s42, s42, s43')
    a('s_add_u32 s75, s73, s42')
    for m, base in ((0, WS_QF), (1, WS_KF), (2, WS_VF)):
        for t4 in range(4):
            for j in range(3):
                f = fr(m, t4, j)
                a0 = accr(m, j, t4)
                a(f'v_cvt_pk_bf16_f32 v{f}, v{a0}, v{a0+1}')
                a(f'v_cvt_pk_bf16_f32 v{f+1}, v{a0+2}, v{a0+3}')
        for t4 in range(4):
            off = base + (t4 >> 1) * 32 * 12288 + (t4 & 1) * 6144
            f = fr(m, t4, 0)
            a(f's_add_u32 s42, s74, {off}')
            a(f's_add_u32 s43, s75, {off}')
            a(f'buffer_store_dwordx4 v[{f}:{f+3}], v15, s[32:35], s42 offen{sfx}')
            a(f'buffer_store_dwordx2 v[{f+4}:{f+5}], v15, s[32:35], s43 offen{sfx}')
```

```python
from asmlib import *
from layout2 import *
from k_t1 import lane_decomp, OPT
from k_t2 import xg_reduce

def k_t2a(a):
    name = 't2a_kernel'
    kernel_header(a, name)
    a('s_cmp_ge_u32 s2, 256')
    a('s_cbranch_scc1 T2A_END')
    a(f's_load_dwordx2 s[52:53], s[0:1], {KA["ws"]}')
    lane_decomp(a)
    a('s_waitcnt lgkmcnt(0)')
    make_srd(a, 32, 52, WS_SIZE)
    a('s_lshr_b32 s54, s2, 2')
    a('s_and_b32 s55, s2, 3')
    a('s_lshl_b32 s56, s55, 3')
    a('s_add_u32 s56, s56, s40')
    a('s_lshl_b32 s57, s54, 5')
    a('s_add_u32 s57, s57, s56')
    a('v_lshlrev_b32 v15, 4, v1')
    t2a_body(a, 'T2A')
    a.label('T2A_END')
    a('s_endpgm')
    return name, kernel_desc(name, 256, 100, 256)

def t2a_body(a, pfx, store_sfx='', phase='all'):
    LW = 18432
    QR, KR, MR = 16, 64, 112
    if phase in ('all', 'pre'):
        a(f's_mul_i32 s58, s40, {LW}')
        a('s_mul_i32 s42, s57, 12288')
        a(f's_add_u32 s43, s42, {WS_VF}')
        for i in range(12):
            a(f's_add_u32 m0, s58, {1024*i}')
            if i: a('s_add_u32 s43, s43, 1024')
            else: a('s_nop 0')
            a('buffer_load_dwordx4 v15, s[32:35], s43 offen lds')
        a(f's_add_u32 s43, s42, {WS_QF}')
        a(f's_add_u32 s44, s42, {WS_KF}')
        for i in range(12):
            if i % 4 == 0 and i:
                a('s_add_u32 s43, s43, 4096'); a('s_add_u32 s44, s44, 4096')
            a(f'buffer_load_dwordx4 v[{QR+4*i}:{QR+4*i+3}], v15, s[32:35], s43 offen offset:{1024*(i%4)}')
            a(f'buffer_load_dwordx4 v[{KR+4*i}:{KR+4*i+3}], v15, s[32:35], s44 offen offset:{1024*(i%4)}')
    if phase == 'pre': return
    a('s_lshr_b32 s44, s57, 1')
    a('s_mul_i32 s44, s44, 6144')
    a(f's_add_u32 s43, s44, {WS_HV}')
    for i in range(6):
        a(f's_add_u32 m0, s58, {12288 + 1024*i}')
        if i: a('s_add_u32 s43, s43, 1024')
        else: a('s_nop 0')
        a('buffer_load_dwordx4 v15, s[32:35], s43 offen lds')
    a('s_mul_i32 s45, s57, 6144')
    a(f's_add_u32 s45, s45, {WS_HQK}')
    for i in range(6):
        if i == 4: a('s_add_u32 s45, s45, 4096')
        a(f'buffer_load_dwordx4 v[{MR+4*i}:{MR+4*i+3}], v15, s[32:35], s45 offen offset:{1024*(i%4)}')
    a('v_and_b32 v4, 3, v2')
    a('v_lshrrev_b32 v5, 2, v2')
    a('v_lshl_add_u32 v6, v3, 2, v5')
    a('v_lshl_add_u32 v6, v4, 4, v6')
    a('v_lshlrev_b32 v6, 4, v6')
    a('v_add_u32 v10, s58, v6')
    a('v_and_b32 v7, 1, v3')
    a('v_lshl_add_u32 v7, v7, 2, v5')
    a('s_and_b32 s42, s56, 1')
    a('s_lshl_b32 s42, s42, 3')
    a('v_add_u32 v7, s42, v7')
    a('v_lshl_add_u32 v7, v4, 4, v7')
    a('v_lshlrev_b32 v7, 4, v7')
    a('s_add_u32 s42, s58, 12288')
    a('v_add_u32 v11, s42, v7')
    a('s_waitcnt vmcnt(0)')
    SC = 136
    tiles = [('m', 0), (0, 0), ('m', 1), (0, 1), (1, 1)]
    for b in range(6):
        for ti, (kt, qt) in enumerate(tiles):
            r = SC + 4 * ti
            qa = QR + (qt * 6 + b) * 4
            ka = (MR + 4 * b) if kt == 'm' else (KR + (kt * 6 + b) * 4)
            c = '0' if b == 0 else f'v[{r}:{r+3}]'
            a(f'v_mfma_f32_16x16x32_bf16 v[{r}:{r+3}], v[{ka}:{ka+3}], v[{qa}:{qa+3}], {c}')
    a('s_nop 7')
    a('s_nop 1')
    a(f's_mov_b32 s62, {f2u(192 ** -0.5 * LOG2E):#x}')
    for r in range(20):
        a(f'v_mul_f32 v{SC+r}, s62, v{SC+r}')
    a(f'v_mov_b32 v14, {f2u(-1e30):#x}')
    a('v_cmp_gt_u32 vcc, 2, v3')
    for ti in (0, 2):
        for r in range(4):
            a(f'v_cndmask_b32 v{SC+4*ti+r}, v{SC+4*ti+r}, v14, vcc')
    a('v_lshlrev_b32 v4, 2, v3')
    for r in range(4):
        a(f'v_add_u32 v5, {r}, v4')
        a('v_cmp_gt_u32 vcc, v5, v2')
        for ti in (1, 4):
            a(f'v_cndmask_b32 v{SC+4*ti+r}, v{SC+4*ti+r}, v14, vcc')
    for qt, (lo, n) in enumerate([(SC, 8), (SC + 8, 12)]):
        M = 4
        a(f'v_max_f32 v{M}, v{lo}, v{lo+1}')
        for r in range(2, n, 2):
            a(f'v_max3_f32 v{M}, v{M}, v{lo+r}, v{lo+r+1}')
        xg_reduce(a, 'max', M, 5)
        for r in range(n):
            a(f'v_sub_f32 v{lo+r}, v{lo+r}, v{M}')
        for r in range(n):
            a(f'v_exp_f32 v{lo+r}, v{lo+r}')
        a('s_nop 0')
        a(f'v_add_f32 v{M}, v{lo}, v{lo+1}')
        for r in range(2, n):
            a(f'v_add_f32 v{M}, v{M}, v{lo+r}')
        xg_reduce(a, 'add', M, 5)
        a(f'v_rcp_f32 v{M}, v{M}')
        a('s_nop 0')
        for r in range(n):
            a(f'v_mul_f32 v{lo+r}, v{lo+r}, v{M}')
    P = 16
    a(f'v_cvt_pk_bf16_f32 v{P}, v{SC+4}, v{SC+5}')
    a(f'v_cvt_pk_bf16_f32 v{P+1}, v{SC+6}, v{SC+7}')
    a(f'v_mov_b32 v{P+2}, 0')
    a(f'v_mov_b32 v{P+3}, 0')
    a(f'v_cvt_pk_bf16_f32 v{P+4}, v{SC+12}, v{SC+13}')
    a(f'v_cvt_pk_bf16_f32 v{P+5}, v{SC+14}, v{SC+15}')
    a(f'v_cvt_pk_bf16_f32 v{P+6}, v{SC+16}, v{SC+17}')
    a(f'v_cvt_pk_bf16_f32 v{P+7}, v{SC+18}, v{SC+19}')
    a(f'v_cvt_pk_bf16_f32 v{P+8}, v{SC}, v{SC+1}')
    a(f'v_cvt_pk_bf16_f32 v{P+9}, v{SC+2}, v{SC+3}')
    a(f'v_mov_b32 v{P+10}, 0')
    a(f'v_mov_b32 v{P+11}, 0')
    a(f'v_cvt_pk_bf16_f32 v{P+12}, v{SC+8}, v{SC+9}')
    a(f'v_cvt_pk_bf16_f32 v{P+13}, v{SC+10}, v{SC+11}')
    a(f'v_mov_b32 v{P+14}, 0')
    a(f'v_mov_b32 v{P+15}, 0')
    AF = 40
    for bufi in range(2):
        a(f'v_mov_b32 v{AF+8*bufi+6}, 0')
        a(f'v_mov_b32 v{AF+8*bufi+7}, 0')
    ACC = 64
    OUT = 96
    a('s_lshl_b32 s42, s54, 6')
    a('s_add_u32 s42, s42, s56')
    a('s_mul_i32 s42, s42, 6144')
    a(f's_add_u32 s42, s42, {WS_OF}')
    a('s_add_u32 s43, s42, 196608')
    seq = [(b, hf) for b in range(6) for hf in range(2)]
    def rd(i):
        b, hf = seq[i]
        r = AF + 8 * (i & 1)
        a(f'ds_read_b64_tr_b16 v[{r}:{r+1}], v10 offset:{b*1024 + hf*8}')
        a(f'ds_read_b64_tr_b16 v[{r+2}:{r+3}], v10 offset:{6144 + b*1024 + hf*8}')
        a(f'ds_read_b64_tr_b16 v[{r+4}:{r+5}], v11 offset:{b*1024 + hf*8}')
    rd(0)
    for i in range(12):
        b, hf = seq[i]
        if i + 1 < 12:
            rd(i + 1)
            a('s_waitcnt lgkmcnt(3)')
        else:
            a('s_waitcnt lgkmcnt(0)')
        r = AF + 8 * (i & 1)
        for qt in range(2):
            acc = ACC + 16 * (b & 1) + (hf * 2 + qt) * 4
            a(f'v_mfma_f32_16x16x32_bf16 v[{acc}:{acc+3}], v[{r}:{r+3}], v[{P+4*qt}:{P+4*qt+3}], 0')
        for qt in range(2):
            acc = ACC + 16 * (b & 1) + (hf * 2 + qt) * 4
            a(f'v_mfma_f32_16x16x32_bf16 v[{acc}:{acc+3}], v[{r+4}:{r+7}], v[{P+8+4*qt}:{P+8+4*qt+3}], v[{acc}:{acc+3}]')
        if hf == 0 and b > 0:
            pb = b - 1
            pack_store(a, pb, ACC, OUT, store_sfx)
    a('s_nop 7')
    a('s_nop 1')
    pack_store(a, 5, ACC, OUT, store_sfx)

def pack_store(a, pb, ACC, OUT, sfx):
    for qt in range(2):
        o = OUT + 8 * (pb & 1) + 4 * qt
        for hf in range(2):
            acc = ACC + 16 * (pb & 1) + (hf * 2 + qt) * 4
            a(f'v_cvt_pk_bf16_f32 v{o+2*hf}, v{acc}, v{acc+1}')
            a(f'v_cvt_pk_bf16_f32 v{o+2*hf+1}, v{acc+2}, v{acc+3}')
        so = 42 + qt
        if pb >= 4:
            a(f's_add_u32 s45, s{so}, 4096')
            a(f'buffer_store_dwordx4 v[{o}:{o+3}], v15, s[32:35], s45 offen offset:{1024*(pb-4)}{sfx}')
        else:
            a(f'buffer_store_dwordx4 v[{o}:{o+3}], v15, s[32:35], s{so} offen offset:{1024*pb}{sfx}')

NKS = 8
def k_t2b(a):
    name = 't2b_kernel'
    kernel_header(a, name)
    a('s_cmp_ge_u32 s2, 128')
    a('s_cbranch_scc1 T2B_END')
    a(f's_load_dwordx2 s[50:51], s[0:1], {KA["wo"]}')
    a(f's_load_dwordx2 s[52:53], s[0:1], {KA["ws"]}')
    lane_decomp(a)
    a('s_waitcnt lgkmcnt(0)')
    make_srd(a, 28, 50, 640 * 6144 * 2)
    make_srd(a, 32, 52, WS_SIZE)
    a('s_and_b32 s57, s2, 7')
    a('s_lshr_b32 s56, s2, 3')
    t2b_body(a, 'T2B')
    a.label('T2B_END')
    a('s_endpgm')
    return name, kernel_desc(name, 256, 100, 256)

def t2b_body(a, pfx, store_sfx=''):
    SLOT = 49152
    a('v_lshlrev_b32 v15, 4, v1')
    a('v_lshrrev_b32 v4, 3, v1')
    a('s_lshl_b32 s42, s41, 3')
    a('v_add_u32 v4, s42, v4')
    a('v_bfe_u32 v5, v4, 1, 2')
    a('v_bfe_u32 v6, v1, 1, 2')
    a('v_xor_b32 v6, v6, v5')
    a('v_and_b32 v7, 1, v1')
    a('v_mul_u32_u24 v88, 1280, v4')
    a('v_lshl_add_u32 v88, v6, 5, v88')
    a('v_lshl_add_u32 v88, v7, 4, v88')
    a('s_cmp_ge_u32 s41, 2')
    a(f's_cselect_b32 s59, {2*16*1280}, 0')
    a('s_mul_i32 s60, s39, 20480')
    a('s_lshl_b32 s42, s41, 10')
    a('s_add_u32 s60, s60, s42')
    a('s_mul_i32 s61, s39, 640')
    a('s_mul_i32 s62, s57, 983040')
    a('s_add_u32 s62, s62, s61')
    a('s_lshl_b32 s42, s56, 3')
    a('s_add_u32 s42, s42, s40')
    a('s_lshl_b32 s42, s42, 5')
    a('s_lshl_b32 s43, s57, 2')
    a('s_add_u32 s42, s42, s43')
    a('s_mul_i32 s63, s42, 6144')
    a(f's_add_u32 s63, s63, {WS_OF}')
    a('s_lshl_b32 s64, s40, 10')
    a('s_add_u32 s64, s64, 40960')
    a('s_lshl_b32 s42, s39, 12')
    a('s_add_u32 s42, s42, 40960')
    for sl in range(3):
        a(f's_add_u32 s43, s42, {sl*SLOT}')
        a(f'v_add_u32 v{90+sl}, s43, v15')
    a('v_lshrrev_b32 v4, 2, v2')
    a('v_lshl_add_u32 v4, v3, 2, v4')
    a('v_bfe_u32 v5, v4, 1, 2')
    a('v_xor_b32 v5, s41, v5')
    a('v_and_b32 v6, 3, v2')
    a('v_lshlrev_b32 v7, 7, v4')
    a('v_lshl_add_u32 v7, v5, 5, v7')
    a('v_lshl_add_u32 v7, v6, 3, v7')
    for sl in range(3):
        a(f'v_add_u32 v{93+sl}, {sl*SLOT}, v7')
    def dmas(slot, blk, wrap):
        ta, tb = BLK[blk]
        out = []
        def mkw(i):
            def f():
                a(f's_add_u32 m0, s60, {slot*SLOT + i*4096}')
                off = wrap * 245760 + 16 * ta * 1280 + i * 128
                a(f's_add_u32 s45, s62, {off}')
                if blk >= 4:
                    a('s_add_u32 s45, s45, s59')
                a('buffer_load_dwordx4 v88, s[28:31], s45 offen lds')
            return f
        for i in range(5): out.append(mkw(i))
        def mko():
            a(f's_add_u32 m0, s64, {slot*SLOT}')
            a(f's_add_u32 s45, s63, {wrap*6144 + blk*1024}')
            a('buffer_load_dwordx4 v15, s[32:35], s45 offen lds')
        out.append(mko)
        return out
    ACC = 96
    def accr(j, t4): return ACC + (j * 4 + t4) * 4
    for r in range(ACC, 256):
        a(f'v_mov_b32 v{r}, 0')
    for sl in range(3):
        for f in dmas(sl, sl, 0): f()
    WF = 48
    def rd_T(ts, slot):
        for t4 in range(4):
            a(f'ds_read_b128 v[{16+16*ts+4*t4}:{19+16*ts+4*t4}], v{90+slot} offset:{1024*t4}')
    def rd_W(j, slot):
        b = WF + 4 * j
        a(f'ds_read_b64_tr_b16 v[{b}:{b+1}], v{93+slot} offset:{j*4096}')
        a(f'ds_read_b64_tr_b16 v[{b+2}:{b+3}], v{93+slot} offset:{j*4096+2048}')
    a('s_waitcnt vmcnt(12)')
    a('s_barrier')
    rd_T(0, 0)
    for j in range(10): rd_W(j, 0)
    BG = 1
    def step(k, dm, vm, rd_next=True):
        ts = k & 1
        nslot = (k + 1) % 3
        dm = list(dm)
        for j in range(10):
            b = WF + 4 * j
            if j == 0:
                a('s_waitcnt lgkmcnt(15)')
            if j == 1:
                a('s_waitcnt lgkmcnt(14)')
            for t4 in range(4):
                r = accr(j, t4)
                tr = 16 + 16 * ts + 4 * t4
                a(f'v_mfma_f32_16x16x32_bf16 v[{r}:{r+3}], v[{b}:{b+3}], v[{tr}:{tr+3}], v[{r}:{r+3}]')
            if j == BG:
                if vm is not None:
                    a(f's_waitcnt vmcnt({vm}) lgkmcnt(0)')
                else:
                    a('s_waitcnt lgkmcnt(0)')
                a('s_barrier')
                if rd_next:
                    rd_T(ts ^ 1, nslot)
                    for q in range(BG + 1): rd_W(q, nslot)
            elif j > BG:
                if rd_next: rd_W(j, nslot)
                if dm: dm.pop(0)()
        assert not dm
    a('s_mov_b32 s72, 0')
    a.label(f'{pfx}_LOOP')
    for k in range(6):
        step(k, dmas(k % 3, (k + 3) % 6, 1 if k >= 3 else 0), 6)
    a('s_add_u32 s62, s62, 245760')
    a('s_add_u32 s63, s63, 6144')
    a('s_add_u32 s72, s72, 1')
    a('s_cmp_lt_u32 s72, 3')
    a(f's_cbranch_scc1 {pfx}_LOOP')
    for k in range(3):
        step(k, dmas(k % 3, k + 3, 0), 6)
    step(3, [], 6)
    step(4, [], 0)
    step(5, [], None, rd_next=False)
    a('s_nop 7')
    a('s_nop 1')
    a('v_mul_u32_u24 v4, 2560, v2')
    a('v_lshl_add_u32 v4, v3, 4, v4')
    a('s_mul_i32 s42, s57, 5242880')
    a('s_lshl_b32 s43, s56, 7')
    a('s_lshl_b32 s44, s39, 6')
    a('s_add_u32 s43, s43, s44')
    a('s_mul_i32 s43, s43, 2560')
    a('s_add_u32 s42, s42, s43')
    a('s_lshl_b32 s43, s41, 6')
    a('s_add_u32 s42, s42, s43')
    a(f's_add_u32 s42, s42, {WS_OP}')
    for t4 in range(4):
        a(f's_add_u32 s43, s42, {t4*16*2560}')
        for j in range(10):
            r = accr(j, t4)
            a(f'buffer_store_dwordx4 v[{r}:{r+3}], v4, s[32:35], s43 offen offset:{256*j}{store_sfx}')
```

```python
import sys
sys.path.insert(0, 'dev')
from asmlib import *
from gen import build
from k_mega import k_init3, k_mega, LDS_MEGA
if __name__ == '__main__':
    ks = [(k_init3, 256, 256, 0), (k_mega, 256, 512, LDS_MEGA)]
    build(ks, sys.argv[1] if len(sys.argv) > 1 else 'test.s')
```

```python
from asmlib import *
from layout2 import *
from k_t1 import lane_decomp, OPT
from k_chain import pub
TMO = 0x40000
def lds_spin(a, lbl, reads, flag_regs, vtmp):
    a.label(lbl)
    reads()
    a('s_waitcnt lgkmcnt(0)')
    a(f'v_cmp_ne_u32 vcc, s89, v{flag_regs[0]}')
    for f in flag_regs[1:]:
        a(f'v_cmp_ne_u32 s[90:91], s89, v{f}')
        a('s_or_b64 vcc, vcc, s[90:91]')
    a('s_add_u32 s88, s88, 1')
    a(f's_cmp_lt_u32 s88, {TMO:#x}')
    a('s_cselect_b64 s[90:91], vcc, 0')
    a('s_cmp_lg_u64 s[90:91], 0')
    a(f's_cbranch_scc1 {lbl}')
import os

L_FLAG = 0
L_PX = 256
L_PM = 2304
L_MEM = 4096
L_VM = 14336
L_KX = 20480
L_VX = 69632
L_QX = 118784
L_PXX = 143360
L_PMX = 147456
L_END4 = 155648
NSTEP = int(os.environ.get('NSTEP', '64'))
D_MEM = int(os.environ.get('D_MEM', '20'))
D_SC = int(os.environ.get('D_SC', '4'))
D_Z = int(os.environ.get('D_Z', '20'))
D_Z0 = int(os.environ.get('D_Z0', '0'))
D_V = int(os.environ.get('D_V', '12'))
VPW = 3
ZXS = int(os.environ.get('ZXS', '1'))
XPRIO = int(os.environ.get('XPRIO', '0'))
ZPRIO = int(os.environ.get('ZPRIO', '2'))
S_G1 = 196608
S_G2 = 98304
S_ZP = 163840
SLAB = 128 * 20480

SB = 20
def stamp(a, i):
    if 'stamp' not in OPT: return
    l = a.newlabel('ST')
    a('s_cmp_lg_u32 s84, 30')
    a(f's_cbranch_scc1 {l}')
    a('s_memrealtime s[96:97]' if 'gst' in OPT else 's_memtime s[96:97]')
    a('s_waitcnt lgkmcnt(0)')
    a(f's_mov_b32 s{SB+i}, s96')
    a.label(l)

def stampc(a, i):
    if 'stamp' not in OPT: return
    l = a.newlabel('ST')
    a('s_cmp_lg_u32 s84, 30')
    a(f's_cbranch_scc1 {l}')
    a(f's_mov_b32 s{SB+i}, s88')
    a.label(l)

def poll_sent(a, lbl, loads, check_regs, vtmp):
    a.label(lbl)
    loads()
    a('s_waitcnt vmcnt(0)')
    rs = list(check_regs)
    a(f'v_max_u32 v{vtmp}, v{rs[0]}, v{rs[1]}')
    rs = rs[2:]
    while len(rs) >= 2:
        a(f'v_max3_u32 v{vtmp}, v{vtmp}, v{rs[0]}, v{rs[1]}'); rs = rs[2:]
    if rs:
        a(f'v_max_u32 v{vtmp}, v{vtmp}, v{rs[0]}')
    a(f'v_cmp_eq_u32 vcc, -1, v{vtmp}')
    a('s_add_u32 s88, s88, 1')
    a(f's_cmp_lt_u32 s88, {TMO:#x}')
    a('s_cselect_b64 s[90:91], vcc, 0')
    a('s_cmp_lg_u64 s[90:91], 0')
    a(f's_cbranch_scc1 {lbl}')

def t1_wait(a, lbl, s_addr, thr, first=False):
    zv = 11 if first else 12
    if first:
        a(f'buffer_load_dword v254, v{zv}, s[32:35], s{s_addr} offen sc1')
    a.label(lbl)
    a('s_waitcnt vmcnt(0)')
    a('v_readfirstlane_b32 s42, v254')
    a(f's_cmp_ge_u32 s42, {thr}')
    a(f's_cbranch_scc1 {lbl}_OK')
    a('s_add_u32 s88, s88, 1')
    a(f's_cmp_ge_u32 s88, {TMO:#x}')
    a(f's_cbranch_scc1 {lbl}_OK')
    a('s_sleep 4')
    a(f'buffer_load_dword v254, v{zv}, s[32:35], s{s_addr} offen sc1')
    a(f's_branch {lbl}')
    a.label(f'{lbl}_OK')

def clog(a, mega, idx, wave=0):
    if not mega.get('LOG'): return
    l = a.newlabel('CL')
    a(f's_cmp_lg_u32 s40, {wave}')
    a(f's_cbranch_scc1 {l}')
    a('s_memrealtime s[96:97]')
    a('s_lshl_b32 s43, s2, 12')
    a(f's_add_u32 s42, s43, {mega["LOG"] + idx*4}')
    a('s_waitcnt lgkmcnt(0)')
    a('v_mov_b32 v250, s96')
    a('v_mov_b32 v251, 0')
    a('s_mov_b64 exec, 1')
    a('buffer_store_dword v250, v251, s[32:35], s42 offen')
    a('s_mov_b64 exec, -1')
    a.label(l)

def chain4_body(a, mega):
    NW = 640 * 6144 * 2
    def lbl(n): return f'C4_{n}'
    clog(a, mega, 128)
    a('s_lshr_b32 s56, s55, 3')
    a('s_and_b32 s57, s55, 7')
    a('s_lshl_b32 s58, s54, 1')
    a('s_add_u32 s58, s58, s56')
    a('s_lshr_b32 s59, s57, 2')
    a('s_lshl_b32 s60, s58, 1')
    a('s_add_u32 s59, s59, s60')
    a('s_and_b32 s61, s57, 3')
    a('s_mul_i32 s42, s59, 384')
    a('s_mul_i32 s43, s61, 96')
    a('s_add_u32 s62, s42, s43')
    a('s_and_b32 s41, s40, 3')
    a('s_cmp_lt_u32 s40, 4')
    a('s_cselect_b32 s24, s8, s12')
    a('s_cselect_b32 s25, s9, s13')
    a(f's_mov_b32 s26, {NW}')
    a('s_mov_b32 s27, 0x00020000')
    a('s_mul_i32 s42, s41, 960')
    def wdma():
        for i in range(15):
            a(f's_add_u32 s43, s42, {64*i}')
            a('v_add_u32 v4, s43, v1')
            a('v_mul_u32_u24 v5, 10923, v4')
            a('v_lshrrev_b32 v5, 16, v5')
            a('v_mul_u32_u24 v6, 6, v5')
            a('v_sub_u32 v6, v4, v6')
            a('v_mul_u32_u24 v5, 12288, v5')
            a('v_lshl_add_u32 v5, v6, 4, v5')
            a('s_mul_i32 s43, s40, 15360')
            a(f's_add_u32 m0, s43, {1024*i}')
            a('s_nop 0')
            a('buffer_load_dwordx4 v5, s[24:27], s62 offen lds')
    wdma()
    a('v_lshlrev_b32 v15, 4, v1')
    a('v_lshlrev_b32 v13, 3, v1')
    a('s_waitcnt vmcnt(0)')
    a('s_barrier')
    clog(a, mega, 130)
    WQ, WK = 20, 100
    a('v_lshrrev_b32 v4, 2, v2')
    a('v_lshl_add_u32 v4, v3, 2, v4')
    a('v_mul_u32_u24 v4, 96, v4')
    a('v_and_b32 v5, 3, v2')
    a('v_lshl_add_u32 v4, v5, 3, v4')
    a('s_cmp_ge_u32 s40, 3')
    a(f's_cbranch_scc1 {lbl("NOSW")}')
    a('s_lshl_b32 s42, s40, 5')
    a('v_add_u32 v8, s42, v4')
    a('v_add_u32 v9, 61440, v8')
    for base, ad in ((WQ, 8), (WK, 9)):
        for t in range(20):
            f = base + 4 * t
            a(f'ds_read_b64_tr_b16 v[{f}:{f+1}], v{ad} offset:{t*3072}')
            a(f'ds_read_b64_tr_b16 v[{f+2}:{f+3}], v{ad} offset:{t*3072+1536}')
            if t % 4 == 3:
                a('s_waitcnt lgkmcnt(0)')
    a.label(lbl('NOSW'))
    a('s_waitcnt lgkmcnt(0)')
    a('s_barrier')
    a('s_mul_i32 s42, s41, 960')
    a('s_cmp_ge_u32 s40, 4')
    a(f's_cbranch_scc1 {lbl("R2WO")}')
    a('s_mov_b32 s24, s16')
    a('s_mov_b32 s25, s17')
    wdma()
    a(f's_branch {lbl("R2END")}')
    a.label(lbl('R2WO'))
    a('s_mul_i32 s44, s58, 491520')
    a('s_mul_i32 s45, s57, 160')
    a('s_add_u32 s44, s44, s45')
    for i in range(15):
        a(f's_add_u32 s43, s42, {64*i}')
        a('v_add_u32 v5, s43, v1')
        a('v_mul_u32_u24 v6, 6554, v5')
        a('v_lshrrev_b32 v6, 16, v6')
        a('v_mul_u32_u24 v7, 10, v6')
        a('v_sub_u32 v7, v5, v7')
        a('v_mul_u32_u24 v6, 1280, v6')
        a('v_lshl_add_u32 v6, v7, 4, v6')
        a('s_mul_i32 s43, s40, 15360')
        a(f's_add_u32 m0, s43, {1024*i}')
        a('s_nop 0')
        a('buffer_load_dwordx4 v6, s[28:31], s44 offen lds')
    a.label(lbl('R2END'))
    a('s_waitcnt vmcnt(0)')
    a('s_barrier')
    WO, VW = 16, 64
    a('s_cmp_lt_u32 s40, 3')
    a(f's_cbranch_scc1 {lbl("NOZW")}')
    a('s_sub_u32 s74, s40, 3')
    a('v_lshrrev_b32 v5, 2, v2')
    a('v_lshl_add_u32 v5, v3, 2, v5')
    a('v_mul_u32_u24 v5, 160, v5')
    a('v_and_b32 v6, 3, v2')
    a('v_lshl_add_u32 v5, v6, 3, v5')
    a('s_lshl_b32 s42, s74, 5')
    a('s_add_u32 s42, s42, 61440')
    a('v_add_u32 v5, s42, v5')
    for hh in range(2):
        for b in range(6):
            f = WO + (hh * 6 + b) * 4
            ta, tb = BLK[b]
            a(f'ds_read_b64_tr_b16 v[{f}:{f+1}], v5 offset:{(hh*192 + 16*ta)*160}')
            a(f'ds_read_b64_tr_b16 v[{f+2}:{f+3}], v5 offset:{(hh*192 + 16*tb)*160}')
        a('s_waitcnt lgkmcnt(0)')
    a('s_mov_b32 s79, 99')
    for wv, tl in ((3, 0), (7, 1), (6, 2)):
        a(f's_cmp_eq_u32 s40, {wv}')
        a(f's_cselect_b32 s79, {tl}, s79')
    a('s_cmp_eq_u32 s79, 99')
    a(f's_cbranch_scc1 {lbl("NOZW")}')
    a('v_lshrrev_b32 v4, 2, v2')
    a('v_lshl_add_u32 v4, v3, 2, v4')
    a('v_mul_u32_u24 v4, 96, v4')
    a('v_and_b32 v5, 3, v2')
    a('v_lshl_add_u32 v4, v5, 3, v4')
    a('s_lshl_b32 s42, s79, 5')
    a('v_add_u32 v8, s42, v4')
    for t in range(20):
        f = VW + 4 * t
        a(f'ds_read_b64_tr_b16 v[{f}:{f+1}], v8 offset:{t*3072}')
        a(f'ds_read_b64_tr_b16 v[{f+2}:{f+3}], v8 offset:{t*3072+1536}')
        if t % 4 == 3:
            a('s_waitcnt lgkmcnt(0)')
    a.label(lbl('NOZW'))
    a('s_waitcnt lgkmcnt(0)')
    a('s_barrier')
    clog(a, mega, 129)
    a('v_mov_b32 v11, 0')
    a('v_cmp_gt_u32 vcc, 8, v2')
    a('s_mov_b64 s[64:65], vcc')
    a('s_mov_b32 s66, -1')
    a('s_mov_b32 s67, 0')
    a('s_mov_b32 s98, 0')
    a('s_mov_b32 s99, -1')
    a('ds_write_b32 v11, v11 offset:8')
    a('ds_write_b32 v11, v11 offset:12')
    a('ds_write_b32 v11, v11 offset:32')
    a('ds_write_b32 v11, v11 offset:40')
    a('ds_write_b32 v11, v11 offset:44')
    for r in range(4): a(f'v_mov_b32 v{4+r}, 0')
    a('v_lshlrev_b32 v8, 4, v0')
    a(f'v_add_u32 v8, {L_PXX}, v8')
    a('s_cmp_ge_u32 s40, 6')
    a(f's_cbranch_scc1 {lbl("NOZX")}')
    a('ds_write_b128 v8, v[4:7]')
    a('ds_write_b128 v8, v[4:7] offset:6144')
    a.label(lbl('NOZX'))
    for i in range(2):
        l = a.newlabel('M0S')
        a(f'v_add_u32 v4, {512*i}, v0')
        a('v_cmp_gt_u32 vcc, 640, v4')
        a('s_and_saveexec_b64 s[44:45], vcc')
        a(f's_cbranch_execz {l}')
        a('v_lshrrev_b32 v5, 6, v4')
        a('v_bfe_u32 v6, v4, 3, 1')
        a('v_mul_u32_u24 v6, 10, v6')
        a('v_add_u32 v5, v5, v6')
        a('v_bfe_u32 v6, v4, 4, 2')
        a('v_and_b32 v7, 7, v4')
        a('v_mul_u32_u24 v7, 1280, v7')
        a('v_lshl_add_u32 v7, v5, 6, v7')
        a('v_lshl_add_u32 v7, v6, 3, v7')
        a('buffer_load_dwordx2 v[8:9], v7, s[36:39], 0 offen')
        a('buffer_load_dwordx2 v[10:11], v7, s[36:39], 0 offen offset:32')
        a('v_lshlrev_b32 v6, 4, v4')
        a('s_waitcnt vmcnt(0)')
        a(f'ds_write_b128 v6, v[8:11] offset:{L_MEM}')
        a.label(l)
        a('s_mov_b64 exec, s[44:45]')
    a('v_mov_b32 v11, 0')
    a('s_lshr_b32 s68, s54, 1')
    a('s_mul_i32 s68, s68, 40960')
    a(f's_add_u32 s68, s68, {WS_MEMF}')
    a('s_mul_i32 s42, s58, 24576')
    a(f's_add_u32 s70, s42, {WS_KF}')
    a(f's_add_u32 s71, s42, {WS_VF}')
    a(f's_add_u32 s16, s42, {WS_QF}')
    a('s_sub_u32 s46, s40, 4')
    a('s_mul_i32 s46, s46, 6144')
    def dma_blk(src_s, lds_s):
        a(f's_add_u32 s43, s{src_s}, s46')
        a(f's_add_u32 s47, s{lds_s}, s46')
        for i in range(6):
            a(f's_add_u32 m0, s47, {1024*i}')
            if i:
                a('s_add_u32 s43, s43, 1024')
            else:
                a('s_nop 0')
            a(f'buffer_load_dwordx4 v15, s[32:35], s43 offen lds')
    a('s_lshl_b32 s77, s54, 2')
    a(f's_add_u32 s77, s77, {mega["F_T1"]}')
    a('s_lshl_b32 s50, s54, 4')
    a('s_add_u32 s50, s50, s55')
    a('s_lshl_b32 s50, s50, 7')
    a(f's_add_u32 s50, s50, {mega["F_ZX"]}')
    a('v_mov_b32 v255, 1')
    a('s_cmp_lt_u32 s40, 4')
    a(f's_cbranch_scc1 {lbl("NOPD")}')
    t1_wait(a, lbl('T1W0'), 77, mega['T1THR'], first=True)
    a(f's_mov_b32 s45, {L_KX}')
    dma_blk(70, 45)
    a(f's_mov_b32 s45, {L_VX}')
    dma_blk(71, 45)
    a(f's_mov_b32 s45, {L_QX}')
    dma_blk(16, 45)
    a('s_add_u32 s71, s71, 393216')
    a(f's_mov_b32 s45, {L_VX + 24576}')
    dma_blk(71, 45)
    a.label(lbl('NOPD'))
    a('s_mul_i32 s42, s58, 24576')
    a(f's_add_u32 s70, s42, {WS_KF + 393216}')
    a(f's_add_u32 s71, s42, {WS_VF + 2*393216}')
    a(f's_add_u32 s16, s42, {WS_QF + 393216}')
    a('s_mov_b32 s84, 0')
    a('s_mov_b32 s86, 0')
    a('s_mov_b32 s89, 1')
    a('s_waitcnt vmcnt(0) lgkmcnt(0)')
    a('s_barrier')
    a('s_cmp_ge_u32 s40, 3')
    a(f's_cbranch_scc1 {lbl("ZWAVE")}')
    SEL = 16
    MF = 180
    AC = 220
    a('s_setprio 3')
    a(f's_mov_b32 s87, {f2u(192 ** -0.5 * LOG2E):#x}')
    for r in range(4):
        a(f'v_mov_b32 v{SEL+r}, 0')
        a(f'v_mov_b32 v4, 0x3f80')
        a(f'v_cmp_eq_u32 vcc, {2*r}, v2')
        a(f'v_cndmask_b32 v{SEL+r}, v{SEL+r}, v4, vcc')
        a(f'v_mov_b32 v4, 0x3f800000')
        a(f'v_cmp_eq_u32 vcc, {2*r+1}, v2')
        a(f'v_cndmask_b32 v{SEL+r}, v{SEL+r}, v4, vcc')
    for r in range(4):
        a(f'v_lshl_add_u32 v4, v3, 2, {r}')
        a(f'v_cmp_le_u32 s[{8+2*r}:{9+2*r}], v4, v2')
    a('s_lshr_b32 s42, s61, 1')
    a('s_add_u32 s42, s42, 4')
    a('s_and_b32 s43, s61, 1')
    a('s_cmp_eq_u32 s40, 2')
    a('s_cselect_b32 s42, s42, s61')
    a('s_cselect_b32 s43, s43, s40')
    a('s_lshl_b32 s42, s42, 10')
    a('s_lshl_b32 s43, s43, 3')
    a('s_add_u32 s42, s42, s43')
    a('s_mul_i32 s43, s59, 6144')
    a('s_add_u32 s42, s42, s43')
    a(f's_add_u32 s72, s42, {WS_G1}')
    a('s_lshl_b32 s42, s58, 1')
    a('s_add_u32 s42, s42, s40')
    a('s_mul_i32 s42, s42, 6144')
    a(f's_add_u32 s75, s42, {WS_G1}')
    a('s_and_b32 s42, s54, 1')
    a('s_lshl_b32 s42, s42, 4')
    a('s_add_u32 s80, s42, s55')
    a('s_lshl_b32 s81, s80, 8')
    a(f's_add_u32 s81, s81, {WS_ZP}')
    a('v_mul_u32_u24 v10, 10240, v3')
    a('v_lshl_add_u32 v10, v2, 4, v10')
    def memf_base(dst, ct_s):
        a(f's_lshr_b32 s42, s{ct_s}, 1')
        a('s_cmp_ge_u32 s42, 10')
        a('s_cselect_b32 s43, 10, 0')
        a('s_cselect_b32 s44, 128, 0')
        a('s_sub_u32 s42, s42, s43')
        a('s_lshl_b32 s42, s42, 10')
        a('s_add_u32 s42, s42, s44')
        a(f's_and_b32 s43, s{ct_s}, 1')
        a('s_lshl_b32 s43, s43, 3')
        a('s_add_u32 s42, s42, s43')
        a(f's_add_u32 s{dst}, s42, s68')
    memf_base(82, 80)
    a('s_add_u32 s45, s80, 32')
    memf_base(73, 45)
    a(f'v_add_u32 v6, {L_MEM}, v15')
    a('s_mul_i32 s42, s40, 12288')
    a(f's_add_u32 s42, s42, {L_KX}')
    a('v_add_u32 v7, s42, v15')
    a('v_mov_b32 v8, -1')
    a('v_mov_b32 v9, -1')
    a('s_lshl_b32 s42, s40, 10')
    a(f's_add_u32 s42, s42, {L_PX}')
    a('v_add_u32 v5, s42, v15')
    a('s_cmp_eq_u32 s40, 0')
    a('s_cselect_b32 s42, 0, 256')
    a(f's_add_u32 s42, s42, {L_PM - 256}')
    a('v_add_u32 v4, s42, v13')
    a('s_lshl_b32 s42, s40, 2')
    a(f's_add_u32 s42, s42, {L_FLAG + 8}')
    a('v_mov_b32 v12, s42')
    a('s_mul_i32 s17, s40, 12288')
    a(f's_add_u32 s17, s17, {L_QX}')
    a('s_lshl_b32 s18, s40, 11')
    a(f's_add_u32 s18, s18, {L_PXX}')
    a('s_cmp_eq_u32 s40, 0')
    a('s_cselect_b32 s19, 0, 512')
    a(f's_add_u32 s19, s19, {L_PMX - 512}')
    a('s_mov_b32 s83, 0')
    a.label(lbl('SLOOP'))
    a('s_cmp_eq_u32 s40, 1')
    a(f's_cbranch_scc1 {lbl("SNW")}')
    a('s_waitcnt vmcnt(0)')
    a.label(lbl('SNW'))
    stamp(a, 0)
    a('s_barrier')
    stamp(a, 1)
    for t in range(10):
        a(f'ds_read_b128 v[{MF+4*t}:{MF+4*t+3}], v6 offset:{1024*t}')
    for t in range(10):
        a(f's_waitcnt lgkmcnt({9-t})')
        b = MF + 4 * t
        for ai, W in ((0, WQ + 4*t), (1, WQ + 4*(t+10)), (2, WK + 4*t), (3, WK + 4*(t+10))):
            acc = AC + 4 * ai
            c = '0' if t == 0 else f'v[{acc}:{acc+3}]'
            a(f'v_mfma_f32_16x16x32_bf16 v[{acc}:{acc+3}], v[{W}:{W+3}], v[{b}:{b+3}], {c}')
    a('s_mul_i32 s42, s86, 196608')
    a('s_add_u32 s42, s42, s72')
    a('s_nop 7')
    for r in range(4):
        a(f'v_add_f32_dpp v{AC+r}, v{AC+4+r}, v{AC+r} row_ror:8 row_mask:0xf bank_mask:0xf')
    for r in range(4):
        a(f'v_add_f32_dpp v{AC+12+r}, v{AC+8+r}, v{AC+12+r} row_ror:8 row_mask:0xf bank_mask:0xf')
    for r in range(4):
        a(f'v_mul_f32 v{AC+r}, s87, v{AC+r}')
    a('s_mov_b64 vcc, s[64:65]')
    for r in range(4):
        a(f'v_cndmask_b32 v{AC+r}, v{AC+12+r}, v{AC+r}, vcc')
    a(f'v_cvt_pk_bf16_f32 v{AC+4}, v{AC}, v{AC+1}')
    a(f'v_cvt_pk_bf16_f32 v{AC+5}, v{AC+2}, v{AC+3}')
    pub(a, [f'buffer_store_dwordx2 v[{AC+4}:{AC+5}], v15, s[32:35], s42 offen'])
    stamp(a, 2)
    a('s_add_u32 s43, s86, 2')
    a('s_and_b32 s43, s43, 3')
    a('s_mul_i32 s43, s43, 196608')
    a('s_add_u32 s43, s43, s72')
    pub(a, [f'buffer_store_dwordx2 v[8:9], v15, s[32:35], s43 offen'])
    a('s_cmp_lg_u32 s40, 2')
    a(f's_cbranch_scc1 {lbl("SC01")}')
    a(f's_cmp_ge_u32 s84, {NSTEP-1}')
    a(f's_cbranch_scc1 {lbl("DONE")}')
    def rd_pf():
        a(f'ds_read_b32 v{180}, v11 offset:{L_FLAG + 8}')
        a(f'ds_read_b32 v{181}, v11 offset:{L_FLAG + 12}')
    lds_spin(a, lbl('SPINR'), rd_pf, [180, 181], 14)
    if D_Z: a(f's_sleep {D_Z}')
    a(f's_branch {lbl("SRED")}')
    a.label(lbl('SC01'))
    R = 180
    KS = 204
    SC = 244
    def rd_k(i, slot):
        a(f'ds_read_b128 v[{KS+4*slot}:{KS+4*slot+3}], v7 offset:{1024*i}')
    for i in range(10): rd_k(i, i)
    a('s_mul_i32 s42, s86, 196608')
    a('s_add_u32 s42, s42, s75')
    a('s_add_u32 s43, s42, 4096')
    if D_SC: a(f's_sleep {D_SC}')
    def ld_g1():
        for b in range(6):
            so = 42 if b < 4 else 43
            a(f'buffer_load_dwordx4 v[{R+4*b}:{R+4*b+3}], v15, s[32:35], s{so} offen offset:{1024*(b%4)} sc1')
    poll_sent(a, lbl('POLLG'), ld_g1, [R + 4*b + o for b in range(6) for o in (0, 2)], 14)
    stamp(a, 3)
    a('s_waitcnt lgkmcnt(0)')
    for b in range(6):
        c = '0' if b == 0 else f'v[{SC+4}:{SC+7}]'
        a(f'v_mfma_f32_16x16x32_bf16 v[{SC+4}:{SC+7}], v[{KS+4*b}:{KS+4*b+3}], v[{R+4*b}:{R+4*b+3}], {c}')
    rd_k(10, 0); rd_k(11, 1)
    for b in range(6):
        c = '0' if b == 0 else f'v[{SC}:{SC+3}]'
        a(f'v_mfma_f32_16x16x32_bf16 v[{SC}:{SC+3}], v[{R+4*b}:{R+4*b+3}], v[{R+4*b}:{R+4*b+3}], {c}')
    a('s_waitcnt lgkmcnt(0)')
    for b in range(6):
        c = '0' if b == 0 else f'v[{SC+8}:{SC+11}]'
        sl = (6 + b) if b < 4 else (b - 4)
        a(f'v_mfma_f32_16x16x32_bf16 v[{SC+8}:{SC+11}], v[{KS+4*sl}:{KS+4*sl+3}], v[{R+4*b}:{R+4*b+3}], {c}')
    a(f'v_mov_b32 v14, {f2u(-1e30):#x}')
    a('v_cmp_gt_u32 vcc, 2, v3')
    a('s_nop 7')
    stamp(a, 4)
    for r in range(4):
        a(f'v_cndmask_b32 v{SC+r}, v{SC+r}, v14, vcc')
    M = 204
    a(f'v_max3_f32 v{M}, v{SC+4}, v{SC+5}, v{SC+6}')
    a(f'v_max3_f32 v{M+1}, v{SC+7}, v{SC+8}, v{SC+9}')
    a(f'v_max3_f32 v{M+2}, v{SC+10}, v{SC+11}, v{SC}')
    a(f'v_max3_f32 v{M+3}, v{SC+1}, v{SC+2}, v{SC+3}')
    a(f'v_max3_f32 v{M}, v{M}, v{M+1}, v{M+2}')
    a(f'v_max_f32 v{M}, v{M}, v{M+3}')
    def xg(op, v, t):
        a(f'v_mov_b32 v{t}, v{v}')
        a('s_nop 1')
        a(f'v_permlane32_swap_b32 v{v}, v{t}')
        a('s_nop 1')
        a(f'v_{op}_f32 v{v}, v{v}, v{t}')
        a(f'v_mov_b32 v{t}, v{v}')
        a('s_nop 1')
        a(f'v_permlane16_swap_b32 v{v}, v{t}')
        a('s_nop 1')
        a(f'v_{op}_f32 v{v}, v{v}, v{t}')
    def xg2(op, v, t, v2, t2):
        for sw in ('32', '16'):
            a(f'v_mov_b32 v{t}, v{v}')
            a(f'v_mov_b32 v{t2}, v{v2}')
            a('s_nop 0')
            a(f'v_permlane{sw}_swap_b32 v{v}, v{t}')
            a(f'v_permlane{sw}_swap_b32 v{v2}, v{t2}')
            a('s_nop 0')
            a(f'v_{op}_f32 v{v}, v{v}, v{t}')
            a(f'v_{op}_f32 v{v2}, v{v2}, v{t2}')
    xg('max', M, M + 1)
    for r in range(12):
        a(f'v_sub_f32 v{SC+r}, v{SC+r}, v{M}')
    for r in range(12):
        a(f'v_exp_f32 v{SC+r}, v{SC+r}')
    a('s_nop 0')
    L = M + 2
    a(f'v_add_f32 v{L}, v{SC}, v{SC+1}')
    a(f'v_add_f32 v{L+1}, v{SC+2}, v{SC+3}')
    a(f'v_add_f32 v{L+2}, v{SC+4}, v{SC+5}')
    a(f'v_add_f32 v{L+3}, v{SC+6}, v{SC+7}')
    a(f'v_add_f32 v{L+4}, v{SC+8}, v{SC+9}')
    a(f'v_add_f32 v{L+5}, v{SC+10}, v{SC+11}')
    a(f'v_add_f32 v{L}, v{L}, v{L+1}')
    a(f'v_add_f32 v{L+2}, v{L+2}, v{L+3}')
    a(f'v_add_f32 v{L+4}, v{L+4}, v{L+5}')
    a(f'v_add_f32 v{L}, v{L}, v{L+2}')
    a(f'v_add_f32 v{L}, v{L}, v{L+4}')
    xg('add', L, L + 1)
    a(f'v_rcp_f32 v{L}, v{L}')
    a('s_nop 0')
    for r in range(12):
        a(f'v_mul_f32 v{SC+r}, v{SC+r}, v{L}')
    PO = 216
    a(f'v_cvt_pk_bf16_f32 v{PO}, v{SC+4}, v{SC+5}')
    a(f'v_cvt_pk_bf16_f32 v{PO+1}, v{SC+6}, v{SC+7}')
    a(f'v_cvt_pk_bf16_f32 v{PO+2}, v{SC+8}, v{SC+9}')
    a(f'v_cvt_pk_bf16_f32 v{PO+3}, v{SC+10}, v{SC+11}')
    a(f'v_cvt_pk_bf16_f32 v{PO+4}, v{SC}, v{SC+1}')
    a(f'v_cvt_pk_bf16_f32 v{PO+5}, v{SC+2}, v{SC+3}')
    a('v_mov_b32 v14, s89')
    a(f'ds_write_b128 v5, v[{PO}:{PO+3}]')
    a('s_mov_b64 exec, s[98:99]')
    a(f'ds_write_b64 v4, v[{PO+4}:{PO+5}]')
    a('s_mov_b64 exec, -1')
    a(f'ds_write_b32 v12, v14')
    stamp(a, 5)
    if 'nox' not in OPT:
        a(f's_setprio {XPRIO}')
        def rd_p1():
            a(f'ds_read_b32 v{M}, v11 offset:{L_FLAG + 12}')
        lds_spin(a, lbl('SPINQ'), rd_p1, [M], 14)
        ST0, ST1, XA = 204, 220, 236
        m0, a0, m1, a1, b1 = XA, XA + 4, XA + 8, XA + 12, XA + 16
        a('v_add_u32 v14, s17, v15')
        def rdx(b, S):
            a(f'ds_read_b128 v[{S}:{S+3}], v14 offset:{1024*b}')
            a(f'ds_read_b128 v[{S+4}:{S+7}], v14 offset:{6144 + 1024*b}')
            a(f'ds_read_b128 v[{S+8}:{S+11}], v7 offset:{1024*b}')
            a(f'ds_read_b128 v[{S+12}:{S+15}], v7 offset:{6144 + 1024*b}')
        rdx(0, ST0); rdx(1, ST1)
        for b in range(6):
            S = ST0 if b % 2 == 0 else ST1
            a(f's_waitcnt lgkmcnt({4 if b < 5 else 0})')
            for acc, A, B in ((m0, R + 4*b, S), (a0, S + 8, S), (m1, R + 4*b, S + 4), (a1, S + 8, S + 4), (b1, S + 12, S + 4)):
                c = '0' if b == 0 else f'v[{acc}:{acc+3}]'
                a(f'v_mfma_f32_16x16x32_bf16 v[{acc}:{acc+3}], v[{A}:{A+3}], v[{B}:{B+3}], {c}')
            if b + 2 < 6: rdx(b + 2, S)
        T = 204
        a(f'v_mov_b32 v{T}, {f2u(-1e30):#x}')
        a('s_nop 7')
        for r in range(4):
            a(f'v_cndmask_b32 v{m0+r}, v{T}, v{m0+r}, s[98:99]')
            a(f'v_cndmask_b32 v{m1+r}, v{T}, v{m1+r}, s[98:99]')
            a(f'v_cndmask_b32 v{a0+r}, v{T}, v{a0+r}, s[{8+2*r}:{9+2*r}]')
            a(f'v_cndmask_b32 v{b1+r}, v{T}, v{b1+r}, s[{8+2*r}:{9+2*r}]')
        M0, M1 = T + 1, T + 2
        a(f'v_max3_f32 v{M0}, v{m0}, v{m0+1}, v{m0+2}')
        a(f'v_max3_f32 v{M1}, v{m1}, v{m1+1}, v{m1+2}')
        a(f'v_max3_f32 v{M0}, v{M0}, v{m0+3}, v{a0}')
        a(f'v_max3_f32 v{M1}, v{M1}, v{m1+3}, v{a1}')
        a(f'v_max3_f32 v{M0}, v{M0}, v{a0+1}, v{a0+2}')
        a(f'v_max3_f32 v{M1}, v{M1}, v{a1+1}, v{a1+2}')
        a(f'v_max_f32 v{M0}, v{M0}, v{a0+3}')
        a(f'v_max3_f32 v{M1}, v{M1}, v{a1+3}, v{b1}')
        a(f'v_max3_f32 v{M1}, v{M1}, v{b1+1}, v{b1+2}')
        a(f'v_max_f32 v{M1}, v{M1}, v{b1+3}')
        xg2('max', M0, T + 3, M1, T + 4)
        a(f'v_mul_f32 v{M0}, s87, v{M0}')
        a(f'v_mul_f32 v{M1}, s87, v{M1}')
        g0 = [m0 + r for r in range(4)] + [a0 + r for r in range(4)]
        g1 = [m1 + r for r in range(4)] + [a1 + r for r in range(4)] + [b1 + r for r in range(4)]
        for regs, mm in ((g0, M0), (g1, M1)):
            for v in regs:
                a(f'v_fma_f32 v{v}, v{v}, s87, -v{mm}')
        for v in g0 + g1:
            a(f'v_exp_f32 v{v}, v{v}')
        a('s_nop 0')
        L0, L1 = T + 1, T + 2
        a(f'v_add_f32 v{L0}, v{g0[0]}, v{g0[1]}')
        a(f'v_add_f32 v{L1}, v{g1[0]}, v{g1[1]}')
        a(f'v_add_f32 v{T+3}, v{g0[2]}, v{g0[3]}')
        a(f'v_add_f32 v{T+4}, v{g1[2]}, v{g1[3]}')
        a(f'v_add_f32 v{T+5}, v{g0[4]}, v{g0[5]}')
        a(f'v_add_f32 v{T+6}, v{g1[4]}, v{g1[5]}')
        a(f'v_add_f32 v{T+7}, v{g0[6]}, v{g0[7]}')
        a(f'v_add_f32 v{T+8}, v{g1[6]}, v{g1[7]}')
        a(f'v_add_f32 v{T+9}, v{g1[8]}, v{g1[9]}')
        a(f'v_add_f32 v{T+10}, v{g1[10]}, v{g1[11]}')
        a(f'v_add_f32 v{L0}, v{L0}, v{T+3}')
        a(f'v_add_f32 v{L1}, v{L1}, v{T+4}')
        a(f'v_add_f32 v{T+5}, v{T+5}, v{T+7}')
        a(f'v_add_f32 v{T+6}, v{T+6}, v{T+8}')
        a(f'v_add_f32 v{T+9}, v{T+9}, v{T+10}')
        a(f'v_add_f32 v{L0}, v{L0}, v{T+5}')
        a(f'v_add_f32 v{L1}, v{L1}, v{T+6}')
        a('s_nop 0')
        a(f'v_add_f32 v{L1}, v{L1}, v{T+9}')
        xg2('add', L0, T + 3, L1, T + 4)
        a(f'v_rcp_f32 v{L0}, v{L0}')
        a(f'v_rcp_f32 v{L1}, v{L1}')
        a('s_nop 0')
        for regs, ll in ((g0, L0), (g1, L1)):
            for v in regs:
                a(f'v_mul_f32 v{v}, v{v}, v{ll}')
        O = 216
        a(f'v_cvt_pk_bf16_f32 v{O}, v{a0}, v{a0+1}')
        a(f'v_cvt_pk_bf16_f32 v{O+1}, v{a0+2}, v{a0+3}')
        a(f'v_cvt_pk_bf16_f32 v{O+2}, v{a1}, v{a1+1}')
        a(f'v_cvt_pk_bf16_f32 v{O+3}, v{a1+2}, v{a1+3}')
        a(f'v_cvt_pk_bf16_f32 v{O+4}, v{b1}, v{b1+1}')
        a(f'v_cvt_pk_bf16_f32 v{O+5}, v{b1+2}, v{b1+3}')
        a(f'v_cvt_pk_bf16_f32 v{O+6}, v{m0}, v{m0+1}')
        a(f'v_cvt_pk_bf16_f32 v{O+7}, v{m0+2}, v{m0+3}')
        a(f'v_cvt_pk_bf16_f32 v{O+8}, v{m1}, v{m1+1}')
        a(f'v_cvt_pk_bf16_f32 v{O+9}, v{m1+2}, v{m1+3}')
        a('s_and_b32 s42, s84, 1')
        a('s_mul_i32 s42, s42, 6144')
        a('s_add_u32 s43, s42, s18')
        a('s_add_u32 s42, s42, s19')
        a('v_add_u32 v14, s43, v15')
        a(f'v_add_u32 v{T}, s42, v15')
        a(f'ds_write_b64 v14, v[{O}:{O+1}]')
        a(f'ds_write_b128 v14, v[{O+2}:{O+5}] offset:1024')
        a('s_mov_b64 exec, s[98:99]')
        a(f'ds_write_b64 v{T}, v[{O+6}:{O+7}]')
        a(f'ds_write_b64 v{T}, v[{O+8}:{O+9}] offset:1024')
        a('s_mov_b64 exec, -1')
        a('v_mov_b32 v14, s89')
        a(f'ds_write_b32 v12, v14 offset:32')
        a('s_setprio 3')
    stamp(a, 6)
    a('s_xor_b32 s83, s83, 1')
    a('s_mul_i32 s42, s83, 24576')
    a('s_mul_i32 s43, s40, 12288')
    a('s_add_u32 s42, s42, s43')
    a(f's_add_u32 s42, s42, {L_KX}')
    a('v_add_u32 v7, s42, v15')
    a(f's_cmp_ge_u32 s84, {NSTEP-1}')
    a(f's_cbranch_scc1 {lbl("DONE")}')
    a('s_cmp_eq_u32 s40, 0')
    a(f's_cbranch_scc1 {lbl("SW0")}')
    if 'nox' not in OPT:
        def rd_xa():
            a(f'ds_read_b32 v{204}, v11 offset:{L_FLAG + 40}')
        lds_spin(a, lbl('SPINXA'), rd_xa, [204], 14)
        a('s_mov_b32 s43, s16')
        for i in range(24):
            a(f's_mov_b32 m0, {L_QX + 1024*i}')
            if i: a('s_add_u32 s43, s43, 1024')
            else: a('s_nop 0')
            a(f'buffer_load_dwordx4 v15, s[32:35], s43 offen lds')
        a('s_add_u32 s16, s16, 393216')
    a(f's_branch {lbl("NORED")}')
    a.label(lbl('SW0'))
    a(f's_branch {lbl("NORED")}')
    a.label(lbl('SRED'))
    a('s_mul_i32 s42, s86, 163840')
    a('s_add_u32 s42, s42, s81')
    a('s_add_u32 s43, s86, 1')
    a('s_and_b32 s43, s43, 3')
    a('s_mul_i32 s44, s43, 10240')
    a('s_add_u32 s43, s43, 2')
    a('s_and_b32 s43, s43, 3')
    a('s_mul_i32 s45, s43, 10240')
    a('s_cmp_lt_u32 s80, 8')
    a(f's_cbranch_scc1 {lbl("RED2")}')
    ZA = 228
    RD = 184
    for n, L_ in ((1, 'RED1'), (2, 'RED2')):
        a.label(lbl(L_))
        def ld_z():
            for k in range(n):
                for i in range(4):
                    a(f's_add_u32 s43, s42, {i*40960 + k*8192}')
                    a(f'buffer_load_dwordx4 v[{RD+16*k+4*i}:{RD+16*k+4*i+3}], v10, s[32:35], s43 offen sc1')
        if n == 1: stampc(a, 7)
        poll_sent(a, lbl(f'POLLZ{n}'), ld_z, [RD + 4*i + o for i in range(4*n) for o in (0, 2)], 14)
        stamp(a, 8)
        for i in range(4):
            for k in range(n):
                acc = ZA + 8 * k
                c = '0' if i == 0 else f'v[{acc}:{acc+3}]'
                a(f'v_mfma_f32_16x16x32_bf16 v[{acc}:{acc+3}], v[{RD+16*k+4*i}:{RD+16*k+4*i+3}], v[{SEL}:{SEL+3}], {c}')
        a('s_add_u32 s42, s44, s82')
        a('s_add_u32 s43, s45, s82')
        a('s_add_u32 s46, s44, s73')
        a('s_add_u32 s47, s45, s73')
        a('s_nop 7')
        for k in range(n):
            acc = ZA + 8 * k
            a(f'v_cvt_pk_bf16_f32 v{acc+4}, v{acc}, v{acc+1}')
            a(f'v_cvt_pk_bf16_f32 v{acc+5}, v{acc+2}, v{acc+3}')
        a('s_mov_b64 exec, s[64:65]')
        ins = [f'buffer_store_dwordx2 v[{ZA+4}:{ZA+5}], v15, s[32:35], s42 offen']
        if n == 2: ins.append(f'buffer_store_dwordx2 v[{ZA+12}:{ZA+13}], v15, s[32:35], s46 offen')
        ins.append(f'buffer_store_dwordx2 v[8:9], v15, s[32:35], s43 offen')
        if n == 2: ins.append(f'buffer_store_dwordx2 v[8:9], v15, s[32:35], s47 offen')
        pub(a, ins)
        a('s_mov_b64 exec, -1')
        if n == 1: a(f's_branch {lbl("NORED")}')
    a.label(lbl('NORED'))
    stamp(a, 9)
    a('s_add_u32 s84, s84, 1')
    a('s_add_u32 s89, s89, 1')
    a('s_and_b32 s86, s84, 3')
    a(f's_branch {lbl("SLOOP")}')
    a.label(lbl('ZWAVE'))
    MF = 144; AC = 184; YF = 192; UC = 200; ST = 204; YA = 228; PF = 240
    YF2 = MF + 32
    SN = 8
    if ZPRIO: a(f's_setprio {ZPRIO}')
    a('v_mov_b32 v12, 0')
    for r in (UC + 2, UC + 3, PF + 10, PF + 11):
        a(f'v_mov_b32 v{r}, 0')
    a('s_mul_i32 s75, s57, 5')
    a('s_add_u32 s75, s75, s74')
    a('s_mul_i32 s78, s58, 40')
    a('s_add_u32 s78, s78, s75')
    a('s_lshl_b32 s78, s78, 8')
    a(f's_add_u32 s78, s78, {WS_ZP}')
    a(f's_mul_i32 s17, s58, {SLAB}')
    a('s_lshl_b32 s42, s75, 9')
    a('s_add_u32 s17, s17, s42')
    a(f's_add_u32 s17, s17, {WS_SL}')
    a('s_lshl_b32 s42, s74, 11')
    a('s_add_u32 s69, s68, s42')
    a(f's_add_u32 s42, s42, {L_MEM}')
    a('v_add_u32 v7, s42, v15')
    a(f'v_add_u32 v6, {L_MEM}, v15')
    a('s_lshr_b32 s42, s61, 1')
    a('s_add_u32 s42, s42, 4')
    a('s_and_b32 s43, s61, 1')
    a('s_cmp_eq_u32 s79, 2')
    a('s_cselect_b32 s42, s42, s61')
    a('s_cselect_b32 s43, s43, s79')
    a('s_lshl_b32 s42, s42, 10')
    a('s_lshl_b32 s43, s43, 3')
    a('s_add_u32 s42, s42, s43')
    a('s_lshr_b32 s43, s57, 2')
    a('s_lshl_b32 s43, s43, 7')
    a('s_add_u32 s42, s42, s43')
    a('s_mul_i32 s43, s58, 6144')
    a('s_add_u32 s42, s42, s43')
    a(f's_add_u32 s72, s42, {WS_G2}')
    a(f's_add_u32 s76, s43, {WS_G2}')
    for r in range(8, 12):
        a(f'v_mov_b32 v{r}, -1')
    a('s_mov_b32 s83, 0')
    def y_compute(dst):
        a('s_mul_i32 s42, s83, 24576')
        a(f's_add_u32 s42, s42, {L_VX}')
        a('v_add_u32 v5, s42, v15')
        seq = [(hh, tt, b) for hh in range(2) for tt in range(2) for b in range(6)]
        NB = 6
        def rd(i):
            hh, tt, b = seq[i]
            r = ST + 4 * (i % NB)
            a(f'ds_read_b128 v[{r}:{r+3}], v5 offset:{hh*12288 + tt*6144 + b*1024}')
        for i in range(5): rd(i)
        for i in range(24):
            hh, tt, b = seq[i]
            a(f's_waitcnt lgkmcnt({min(4, 23 - i)})')
            r = ST + 4 * (i % NB)
            acc = YA + (hh * 2 + tt) * 4
            c = '0' if b == 0 else f'v[{acc}:{acc+3}]'
            w = WO + (hh * 6 + b) * 4
            a(f'v_mfma_f32_16x16x32_bf16 v[{acc}:{acc+3}], v[{r}:{r+3}], v[{w}:{w+3}], {c}')
            if i + 5 < 24: rd(i + 5)
        a('s_nop 7')
        for q in range(4):
            acc = YA + 4 * q
            a(f'v_cvt_pk_bf16_f32 v{dst+2*q}, v{acc}, v{acc+1}')
            a(f'v_cvt_pk_bf16_f32 v{dst+2*q+1}, v{acc+2}, v{acc+3}')
        a('s_xor_b32 s83, s83, 1')
    def zx_store():
        a('s_add_u32 s42, s17, 20480')
        a(f'buffer_store_dwordx2 v[{YA+8}:{YA+9}], v13, s[32:35], s17 offen sc1')
        a(f'buffer_store_dwordx2 v[{YA+10}:{YA+11}], v13, s[32:35], s42 offen sc1')
        a('s_add_u32 s17, s17, 40960')
    def zx(par_s, store=True):
        YO = YF2
        a(f's_and_b32 s42, s{par_s}, 1')
        a('s_mul_i32 s42, s42, 6144')
        a(f's_add_u32 s42, s42, {L_PXX}')
        a('v_add_u32 v5, s42, v15')
        for q in range(6):
            a(f'ds_read_b128 v[{ST+4*q}:{ST+4*q+3}], v5 offset:{1024*q}')
        for k in range(3):
            a(f's_waitcnt lgkmcnt({4 - 2*k})')
            A = (YO, YO + 4, UC)[k]
            for tt in range(2):
                acc = YA + 4 * tt
                c = '0' if k == 0 else f'v[{acc}:{acc+3}]'
                a(f'v_mfma_f32_16x16x32_bf16 v[{acc}:{acc+3}], v[{A}:{A+3}], v[{ST+8*k+4*tt}:{ST+8*k+4*tt+3}], {c}')
        a('s_nop 7')
        a('s_nop 1')
        for tt in range(2):
            acc = YA + 4 * tt
            a(f'v_cvt_pk_bf16_f32 v{YA+8+2*tt}, v{acc}, v{acc+1}')
            a(f'v_cvt_pk_bf16_f32 v{YA+9+2*tt}, v{acc+2}, v{acc+3}')
        if store: zx_store()
    y_compute(YF)
    a.label(lbl('ZLOOP'))
    stamp(a, 0)
    a('s_barrier')
    stamp(a, 1)
    a('s_cmp_eq_u32 s40, 3')
    a(f's_cbranch_scc1 {lbl("NODMA")}')
    a('s_and_b32 s42, s84, 3')
    a('s_cmp_lg_u32 s42, 2')
    a(f's_cbranch_scc1 {lbl("NOFL")}')
    a('s_add_u32 s42, s84, 2')
    a('s_lshl_b32 s42, s42, 3')
    a('s_add_u32 s93, s42, s77')
    a('buffer_load_dword v254, v12, s[32:35], s93 offen sc1')
    a.label(lbl('NOFL'))
    a('s_cmp_lg_u32 s40, 5')
    a(f's_cbranch_scc1 {lbl("NOHS")}')
    if mega.get('LOG'):
        a('s_memrealtime s[96:97]')
        a('s_lshl_b32 s42, s84, 2')
        a('s_lshl_b32 s43, s2, 12')
        a('s_add_u32 s42, s42, s43')
        a(f's_add_u32 s42, s42, {mega["LOG"]}')
        a('s_waitcnt lgkmcnt(0)')
        a('v_mov_b32 v14, s96')
        a('s_memtime s[96:97]')
        a('s_mov_b64 exec, 1')
        a('buffer_store_dword v14, v12, s[32:35], s42 offen')
        a('s_waitcnt lgkmcnt(0)')
        a('v_mov_b32 v14, s96')
        a('s_nop 1')
        a('buffer_store_dword v14, v12, s[32:35], s42 offen offset:256')
        a('s_mov_b64 exec, -1')
    a('s_and_b32 s42, s84, 3')
    a('s_cmp_lg_u32 s42, 1')
    a(f's_cbranch_scc1 {lbl("NOHS")}')
    a('s_cmp_eq_u32 s84, 1')
    a(f's_cbranch_scc1 {lbl("NOHS")}')
    a('s_lshr_b32 s42, s84, 2')
    a('v_mov_b32 v14, s42')
    a('s_mov_b64 exec, 1')
    a('buffer_store_dword v14, v12, s[32:35], s50 offen sc1')
    a('s_mov_b64 exec, -1')
    a.label(lbl('NOHS'))
    a('s_and_b32 s42, s84, 1')
    a('s_xor_b32 s42, s42, 1')
    a('s_mul_i32 s44, s42, 24576')
    a(f's_add_u32 s44, s44, {L_KX}')
    dma_blk(70, 44)
    a('s_add_u32 s70, s70, 393216')
    a.label(lbl('NODMA'))
    a('s_cmp_eq_u32 s79, 99')
    a(f's_cbranch_scc1 {lbl("NOV")}')
    for t in range(8):
        a(f'ds_read_b128 v[{MF+4*t}:{MF+4*t+3}], v6 offset:{1024*t}')
    for t in range(10):
        a(f's_waitcnt lgkmcnt({7 if t < 2 else 9 - t})')
        b = MF + 4 * (t % 8)
        for ai, W in ((0, VW + 4*t), (1, VW + 4*(t+10))):
            acc = AC + 4 * ai
            c = '0' if t == 0 else f'v[{acc}:{acc+3}]'
            a(f'v_mfma_f32_16x16x32_bf16 v[{acc}:{acc+3}], v[{W}:{W+3}], v[{b}:{b+3}], {c}')
        if t < 2:
            a(f'ds_read_b128 v[{MF+4*t}:{MF+4*t+3}], v6 offset:{1024*(t+8)}')
    a('s_mul_i32 s42, s86, 98304')
    a('s_add_u32 s42, s42, s72')
    a('s_nop 7')
    for r in range(4):
        a(f'v_add_f32_dpp v{AC+r}, v{AC+4+r}, v{AC+r} row_ror:8 row_mask:0xf bank_mask:0xf')
    a('s_nop 0')
    a(f'v_cvt_pk_bf16_f32 v{AC+4}, v{AC}, v{AC+1}')
    a(f'v_cvt_pk_bf16_f32 v{AC+5}, v{AC+2}, v{AC+3}')
    a('s_add_u32 s43, s86, 2')
    a('s_and_b32 s43, s43, 3')
    a('s_mul_i32 s43, s43, 98304')
    a('s_add_u32 s43, s43, s72')
    a('s_mov_b64 exec, s[64:65]')
    pub(a, [f'buffer_store_dwordx2 v[{AC+4}:{AC+5}], v15, s[32:35], s42 offen'])
    pub(a, [f'buffer_store_dwordx2 v[8:9], v15, s[32:35], s43 offen'])
    a('s_mov_b64 exec, -1')
    a.label(lbl('NOV'))
    stamp(a, 2)
    if 'nox' not in OPT:
        a('s_cmp_eq_u32 s84, 0')
        a(f's_cbranch_scc1 {lbl("NOZXX")}')
        a('s_add_u32 s48, s84, 1')
        zx(48, store=(ZXS == 0))
        a.label(lbl('NOZXX'))
    stamp(a, 9)
    a(f's_cmp_lg_u32 s40, {VPW}')
    a(f's_cbranch_scc1 {lbl("NOVP")}')
    a('s_mul_i32 s42, s86, 98304')
    a('s_add_u32 s42, s42, s76')
    a('s_add_u32 s43, s42, 4096')
    if D_V: a(f's_sleep {D_V}')
    def ld_g2():
        for b in range(6):
            so = 42 if b < 4 else 43
            a(f'buffer_load_dwordx4 v[{MF+4*b}:{MF+4*b+3}], v15, s[32:35], s{so} offen offset:{1024*(b%4)} sc1')
    poll_sent(a, lbl('POLLV'), ld_g2, [MF + 4*b + o for b in range(6) for o in (0, 2)], 14)
    for b in range(6):
        a(f'ds_write_b128 v15, v[{MF+4*b}:{MF+4*b+3}] offset:{L_VM + 1024*b}')
    a('v_mov_b32 v14, s89')
    a(f'ds_write_b32 v12, v14 offset:{L_FLAG + 32}')
    a.label(lbl('NOVP'))
    def rd_vm():
        a(f'ds_read_b32 v{PF+12}, v12 offset:{L_FLAG + 32}')
        for b in range(6):
            a(f'ds_read_b128 v[{ST+4*b}:{ST+4*b+3}], v15 offset:{L_VM + 1024*b}')
    lds_spin(a, lbl('SPINV'), rd_vm, [PF + 12], 14)
    stamp(a, 3)
    def vx_dma():
        a('s_cmp_eq_u32 s40, 3')
        a(f's_cbranch_scc1 {lbl("NODMA2")}')
        a('s_and_b32 s42, s84, 3')
        a('s_cmp_lg_u32 s42, 2')
        a(f's_cbranch_scc1 {lbl("T1W_OK")}')
        a('s_cmp_ge_u32 s84, 62')
        a(f's_cbranch_scc1 {lbl("T1W_OK")}')
        t1_wait(a, lbl('T1W'), 93, mega['T1THR'])
        a('s_and_b32 s42, s84, 1')
        a('s_mul_i32 s44, s42, 24576')
        a(f's_add_u32 s45, s44, {L_VX}')
        dma_blk(71, 45)
        a('s_add_u32 s71, s71, 393216')
        a.label(lbl('NODMA2'))
    for b in range(6):
        for hh in range(2):
            acc = YA + 4 * hh
            c = '0' if b == 0 else f'v[{acc}:{acc+3}]'
            w = WO + (hh * 6 + b) * 4
            a(f'v_mfma_f32_16x16x32_bf16 v[{acc}:{acc+3}], v[{ST+4*b}:{ST+4*b+3}], v[{w}:{w+3}], {c}')
    a('s_mov_b64 vcc, s[66:67]')
    a('s_nop 7')
    for r in range(4):
        a(f'v_cndmask_b32 v{YA+r}, v{YA+4+r}, v{YA+r}, vcc')
    a(f'v_cvt_pk_bf16_f32 v{UC}, v{YA}, v{YA+1}')
    a(f'v_cvt_pk_bf16_f32 v{UC+1}, v{YA+2}, v{YA+3}')
    if ZXS == 1 and 'nox' not in OPT:
        a('s_cmp_eq_u32 s84, 0')
        a(f's_cbranch_scc1 {lbl("NOZXS")}')
        zx_store()
        a.label(lbl('NOZXS'))
    stamp(a, 4)
    FA, FB_ = PF + 12, PF + 13
    def rd_p():
        a(f'ds_read_b32 v{FA}, v12 offset:{L_FLAG + 8}')
        a(f'ds_read_b32 v{FB_}, v12 offset:{L_FLAG + 12}')
        a(f'ds_read_b128 v[{PF}:{PF+3}], v15 offset:{L_PX}')
        a(f'ds_read_b128 v[{PF+4}:{PF+7}], v15 offset:{L_PX + 1024}')
        a(f'ds_read_b64 v[{PF+8}:{PF+9}], v13 offset:{L_PM}')
    lds_spin(a, lbl('SPINP'), rd_p, [FA, FB_], 14)
    stamp(a, 5)
    a(f'v_mfma_f32_16x16x32_bf16 v[{AC}:{AC+3}], v[{PF}:{PF+3}], v[{YF}:{YF+3}], 0')
    a(f'v_mfma_f32_16x16x32_bf16 v[{AC}:{AC+3}], v[{PF+4}:{PF+7}], v[{YF+4}:{YF+7}], v[{AC}:{AC+3}]')
    a(f'v_mfma_f32_16x16x32_bf16 v[{AC}:{AC+3}], v[{PF+8}:{PF+11}], v[{UC}:{UC+3}], v[{AC}:{AC+3}]')
    a('s_mul_i32 s42, s86, 163840')
    a('s_add_u32 s42, s42, s78')
    a('s_add_u32 s43, s86, 2')
    a('s_and_b32 s43, s43, 3')
    a('s_mul_i32 s43, s43, 163840')
    a('s_add_u32 s49, s43, s78')
    a('s_nop 7')
    a(f'v_cvt_pk_bf16_f32 v{AC+4}, v{AC}, v{AC+1}')
    a(f'v_cvt_pk_bf16_f32 v{AC+5}, v{AC+2}, v{AC+3}')
    a(f'v_mov_b32 v{AC+6}, v{AC+4}')
    a(f'v_mov_b32 v{AC+7}, v{AC+5}')
    a('s_nop 1')
    a(f'v_permlane16_swap_b32 v{AC+4}, v{AC+6}')
    a(f'v_permlane16_swap_b32 v{AC+5}, v{AC+7}')
    a('s_mov_b64 exec, 0xffff')
    a(f'buffer_store_dwordx4 v[{AC+4}:{AC+7}], v15, s[32:35], s42 offen sc1')
    a('s_mov_b64 exec, -1')
    stamp(a, 6)
    if ZXS == 2 and 'nox' not in OPT:
        a('s_cmp_eq_u32 s84, 0')
        a(f's_cbranch_scc1 {lbl("NOZXS")}')
        zx_store()
        a.label(lbl('NOZXS'))
    vx_dma()
    for r in range(8):
        a(f'v_mov_b32 v{YF2+r}, v{YF+r}')
    y_compute(YF)
    a('s_mov_b64 exec, 0xffff')
    a(f'buffer_store_dwordx4 v[{SN}:{SN+3}], v15, s[32:35], s49 offen sc1')
    a('s_mov_b64 exec, -1')
    stamp(a, 7)
    a(f's_cmp_ge_u32 s84, {NSTEP-1}')
    a(f's_cbranch_scc1 {lbl("DONE")}')
    a('s_add_u32 s84, s84, 1')
    a('s_add_u32 s89, s89, 1')
    a('s_and_b32 s86, s84, 3')
    a('s_mul_i32 s42, s86, 10240')
    a('s_add_u32 s42, s42, s69')
    if D_MEM: a(f's_sleep {D_MEM}')
    def ld_mem():
        a(f'buffer_load_dwordx4 v[{MF}:{MF+3}], v15, s[32:35], s42 offen sc1')
        a(f'buffer_load_dwordx4 v[{MF+4}:{MF+7}], v15, s[32:35], s42 offen offset:1024 sc1')
    poll_sent(a, lbl('POLLM'), ld_mem, [MF, MF + 2, MF + 4, MF + 6], 14)
    a(f'ds_write_b128 v7, v[{MF}:{MF+3}]')
    a(f'ds_write_b128 v7, v[{MF+4}:{MF+7}] offset:1024')
    a('s_waitcnt lgkmcnt(0)')
    stamp(a, 8)
    a(f's_branch {lbl("ZLOOP")}')
    a.label(lbl('DONE'))
    a('s_setprio 0')
    if 'tmo' in OPT:
        l = a.newlabel('TM')
        a(f's_cmp_lt_u32 s88, {TMO:#x}')
        a(f's_cbranch_scc1 {l}')
        a(f's_load_dwordx2 s[96:97], s[0:1], {KA["dbg"]}')
        a('s_waitcnt lgkmcnt(0)')
        a('v_mov_b32 v4, 0')
        a('v_mov_b32 v5, 1')
        a('s_mov_b64 exec, 1')
        a('global_atomic_add v4, v5, s[96:97]')
        a('s_lshl_b32 s42, s2, 8')
        a('s_or_b32 s42, s42, s40')
        a('s_or_b32 s42, s42, 0x10000')
        a('v_mov_b32 v5, s42')
        a('global_store_dword v4, v5, s[96:97] offset:4')
        a('s_mov_b64 exec, -1')
        a.label(l)
    a('s_waitcnt lgkmcnt(0)')
    a('s_barrier')
    if 'nox' not in OPT:
        a('s_cmp_lt_u32 s40, 3')
        a(f's_cbranch_scc1 {lbl("NOZXL")}')
        zx(84)
        a.label(lbl('NOZXL'))
    a('s_waitcnt vmcnt(0) lgkmcnt(0)')
    a('s_barrier')
    a('s_cmp_lg_u32 s40, 0')
    a(f's_cbranch_scc1 {lbl("NOHS2")}')
    a('v_mov_b32 v255, 16')
    a('v_mov_b32 v12, 0')
    a('s_mov_b64 exec, 1')
    a('buffer_store_dword v255, v12, s[32:35], s50 offen sc1')
    a('s_mov_b64 exec, -1')
    a.label(lbl('NOHS2'))
    if 'gst' in OPT:
        a('s_lshl_b32 s42, s2, 12')
        a('s_lshl_b32 s43, s40, 6')
        a('s_add_u32 s42, s42, s43')
        a(f's_add_u32 s42, s42, {0x1C00000}')
        a('v_mov_b32 v4, 0')
        a('s_mov_b64 exec, 1')
        for i in range(10):
            a(f'v_mov_b32 v5, s{SB+i}')
            a(f'buffer_store_dword v5, v4, s[32:35], s42 offen offset:{4*i}')
            a('s_nop 1')
        a('s_lshl_b32 s43, s54, 4')
        a('s_add_u32 s43, s43, s55')
        a('s_add_u32 s43, s43, 0x1000')
        a('v_mov_b32 v5, s43')
        a('buffer_store_dword v5, v4, s[32:35], s42 offen offset:40')
        a('s_mov_b64 exec, -1')
```

```python
from asmlib import *
from layout2 import *
from k_t1 import lane_decomp, OPT, SLOT
from k_chain import pub
import k_chain4
import os

C_REG = WS_CNT
C_QH = WS_CNT + 256
C_MODA = WS_CNT + 2048
C_MODB = WS_CNT + 2176
C_LN1 = WS_CNT + 4096
C_T2B = WS_CNT + 4352
C_LN2 = WS_CNT + 4608
C_FA = WS_CNT + 4864
F_T1 = WS_CNT + 8192
C_HIST = WS_CNT + 12288
C_T2A = WS_CNT + 16384
CNT_BYTES = 32768
L_SLOT = 155648
LDS_MEGA = 155648 + 256
F_ZX = WS_CNT + 12288
T1THR = 4
SFX = ' sc1'
MAP = int(os.environ.get('MAP', '1'))
WS_LOG = 0x1C00000
LOG = 'log' in OPT
def rt(a, dst):
    a('s_memrealtime s[76:77]')
    a('s_waitcnt lgkmcnt(0)')
    a(f's_mov_b32 s{dst}, s76')
def log_entry(a):
    rt(a, 84)
    a('s_mov_b64 exec, 1')
    a('v_mov_b32 v4, s83')
    a('v_mov_b32 v5, s81')
    a('v_mov_b32 v6, s82')
    a('v_mov_b32 v7, s84')
    a('v_mov_b32 v8, 0')
    a('buffer_store_dwordx4 v[4:7], v8, s[32:35], s80 offen')
    a('s_mov_b64 exec, -1')
    a('s_add_u32 s80, s80, 16')
W_SLEEP = int(os.environ.get('W_SLEEP', '127'))
W_SHORT = int(os.environ.get('W_SHORT', '4'))

def row_allreduce(a, op, v):
    for r in (8, 4, 2, 1):
        a('s_nop 1')
        a(f'v_{op}_f32_dpp v{v}, v{v}, v{v} row_ror:{r} row_mask:0xf bank_mask:0xf')
def wave_allreduce_add(a, v, s0):
    row_allreduce(a, 'add', v)
    a('s_nop 1')
    for i in range(4):
        a(f'v_readlane_b32 s{s0+i}, v{v}, {16*i}')
    a('s_nop 1')
    a(f'v_mov_b32 v{v}, s{s0}')
    for i in range(1, 4):
        a(f'v_add_f32 v{v}, s{s0+i}, v{v}')
def bf16_round_f32(a, v):
    a(f'v_cvt_pk_bf16_f32 v{v}, v{v}, v{v}')
    a(f'v_lshlrev_b32 v{v}, 16, v{v}')

def body_mod(a, pfx):
    a(f's_load_dwordx2 s[4:5], s[0:1], {KA["c"]}')
    a(f's_load_dwordx2 s[6:7], s[0:1], {KA["wmod"]}')
    a('s_waitcnt lgkmcnt(0)')
    make_srd(a, 12, 4, 1280)
    make_srd(a, 16, 6, 640 * 3840 * 2)
    a('s_mul_i32 s42, s40, 80')
    a('v_add_u32 v5, s42, v3')
    a('v_lshlrev_b32 v6, 2, v5')
    a('v_mul_u32_u24 v7, 7680, v5')
    a('s_lshl_b32 s3, s56, 7')
    a('v_lshlrev_b32 v8, 3, v2')
    a('v_add3_u32 v7, v7, v8, s3')
    a('s_mov_b32 s25, 0')
    for u in range(20):
        a(f'buffer_load_dwordx2 v[{16+2*u}:{17+2*u}], v7, s[16:19], s25 offen')
        if u < 19: a('s_add_u32 s25, s25, 30720')
    a('v_lshlrev_b32 v4, 1, v0')
    a('buffer_load_ushort v10, v4, s[12:15], 0 offen')
    a('buffer_load_ushort v11, v4, s[12:15], 0 offen offset:1024')
    a('s_waitcnt vmcnt(0)')
    a(f's_mov_b32 s24, {f2u(-LOG2E):#x}')
    for v in (10, 11):
        a(f'v_lshlrev_b32 v{v}, 16, v{v}')
        a(f'v_mul_f32 v9, s24, v{v}')
        a('v_exp_f32 v9, v9')
        a('s_nop 0')
        a('v_add_f32 v9, 1.0, v9')
        a('v_rcp_f32 v9, v9')
        a('s_nop 0')
        a(f'v_mul_f32 v{v}, v{v}, v9')
        bf16_round_f32(a, v)
    a('v_lshlrev_b32 v4, 2, v0')
    a('ds_write_b32 v4, v10')
    a('ds_write_b32 v4, v11 offset:2048')
    a('s_waitcnt lgkmcnt(0)')
    a('s_barrier')
    for i in range(4):
        a(f'v_mov_b32 v{10+i}, 0')
    for u in range(20):
        a(f'ds_read_b32 v{60+u}, v6 offset:{16*u}')
        if u % 8 == 7: a('s_waitcnt lgkmcnt(0)')
    a('s_waitcnt lgkmcnt(0)')
    for u in range(20):
        lo, hi = 16 + 2 * u, 17 + 2 * u
        a(f'v_lshlrev_b32 v80, 16, v{lo}')
        a(f'v_and_b32 v81, 0xffff0000, v{lo}')
        a(f'v_lshlrev_b32 v82, 16, v{hi}')
        a(f'v_and_b32 v83, 0xffff0000, v{hi}')
        for i in range(4):
            a(f'v_fmac_f32 v{10+i}, v{60+u}, v{80+i}')
    a('v_lshl_add_u32 v5, s40, 2, v3')
    a('v_lshlrev_b32 v5, 8, v5')
    a('v_lshl_add_u32 v5, v2, 4, v5')
    a('ds_write_b128 v5, v[10:13] offset:8192')
    a('s_waitcnt lgkmcnt(0)')
    a('s_barrier')
    a('s_cmp_lg_u32 s40, 0')
    a(f's_cbranch_scc1 {pfx}_END')
    a('v_lshlrev_b32 v5, 2, v1')
    for h in range(4):
        for i in range(8):
            a(f'ds_read_b32 v{16+8*h+i}, v5 offset:{8192+256*(8*h+i)}')
        a('s_waitcnt lgkmcnt(0)')
    for i in range(1, 32):
        a(f'v_add_f32 v16, v16, v{16+i}')
    bf16_round_f32(a, 16)
    a('s_lshl_b32 s3, s56, 8')
    a(f's_add_u32 s3, s3, {WS_MOD}')
    a(f'buffer_store_dword v16, v5, s[32:35], s3 offen{SFX}')
    a.label(f'{pfx}_END')

def body_ln1(a, pfx):
    a(f's_load_dwordx2 s[4:5], s[0:1], {KA["x"]}')
    a('s_waitcnt lgkmcnt(0)')
    make_srd(a, 12, 4, 2048 * 1280)
    a('v_lshlrev_b32 v5, 3, v1')
    a(f's_mov_b32 s24, {WS_MOD + 2560}')
    a(f's_mov_b32 s23, {WS_MOD}')
    for i in range(5):
        a(f'buffer_load_dwordx2 v[{40+2*i}:{41+2*i}], v5, s[32:35], s23 offen offset:{512*i}')
        a(f'buffer_load_dwordx2 v[{50+2*i}:{51+2*i}], v5, s[32:35], s24 offen offset:{512*i}')
    a('s_lshl_b32 s3, s56, 4')
    a('s_lshl_b32 s42, s40, 1')
    a('s_add_u32 s3, s3, s42')
    a('s_mul_i32 s3, s3, 1280')
    a('v_lshl_add_u32 v4, v1, 2, s3')
    for r in range(2):
        for i in range(5):
            a(f'buffer_load_dword v{10+5*r+i}, v4, s[12:15], 0 offen offset:{1280*r+256*i}')
    a('s_waitcnt vmcnt(10)')
    for i in range(10):
        a(f'v_add_f32 v{50+i}, 1.0, v{50+i}')
    for i in range(10):
        bf16_round_f32(a, 50 + i)
    a('s_waitcnt vmcnt(0)')
    a(f's_mov_b32 s24, {f2u(1.0/640):#x}')
    a(f's_mov_b32 s25, {f2u(1e-5):#x}')
    a(f's_mov_b32 s26, {WS_H1}')
    for r in range(2):
        for i in range(5):
            a(f'v_lshlrev_b32 v{20+2*i}, 16, v{10+5*r+i}')
            a(f'v_and_b32 v{21+2*i}, 0xffff0000, v{10+5*r+i}')
        a('v_add_f32 v30, v20, v21')
        for i in range(2, 10):
            a(f'v_add_f32 v30, v30, v{20+i}')
        wave_allreduce_add(a, 30, 28)
        a('v_mul_f32 v30, s24, v30')
        for i in range(10):
            a(f'v_sub_f32 v{20+i}, v{20+i}, v30')
        a('v_mul_f32 v31, v20, v20')
        for i in range(1, 10):
            a(f'v_fmac_f32 v31, v{20+i}, v{20+i}')
        wave_allreduce_add(a, 31, 28)
        a('v_mul_f32 v31, s24, v31')
        a('v_add_f32 v31, s25, v31')
        a('v_rsq_f32 v31, v31')
        a('s_nop 0')
        for i in range(10):
            a(f'v_mul_f32 v{20+i}, v{20+i}, v31')
            a(f'v_fma_f32 v{20+i}, v{20+i}, v{50+i}, v{40+i}')
        for i in range(5):
            a(f'v_cvt_pk_bf16_f32 v{32+i}, v{20+2*i}, v{21+2*i}')
        for i in range(5):
            a(f'buffer_store_dword v{32+i}, v4, s[32:35], s26 offen offset:{1280*r+256*i}{SFX}')

def body_ln2(a, pfx, NSLAB=8):
    a(f's_load_dwordx2 s[4:5], s[0:1], {KA["x"]}')
    a('s_waitcnt lgkmcnt(0)')
    make_srd(a, 12, 4, 2048 * 1280)
    a('v_lshlrev_b32 v6, 3, v1')
    for idx, base in ((2, 60), (3, 40), (4, 50)):
        a(f's_mov_b32 s24, {WS_MOD + 2560*idx}')
        for i in range(5):
            a(f'buffer_load_dwordx2 v[{base+2*i}:{base+2*i+1}], v6, s[32:35], s24 offen offset:{512*i}')
    a('s_lshl_b32 s3, s56, 4')
    a('s_lshl_b32 s42, s40, 1')
    a('s_add_u32 s3, s3, s42')
    a('s_mul_i32 s42, s3, 2560')
    a('v_lshl_add_u32 v5, v1, 3, s42')
    a('s_mul_i32 s42, s3, 1280')
    a('v_lshl_add_u32 v4, v1, 2, s42')
    a(f's_mov_b32 s24, {f2u(1.0/640):#x}')
    a(f's_mov_b32 s25, {f2u(1e-5):#x}')
    for r in range(2):
        for i in range(5):
            a(f'buffer_load_dword v{10+i}, v4, s[12:15], 0 offen offset:{1280*r+256*i}')
        for half in range(NSLAB // 4):
            for hg in range(4):
                a(f's_mov_b32 s26, {WS_OP + (half*4 + hg)*5242880 + r*2560}')
                for i in range(5):
                    a(f'buffer_load_dwordx2 v[{70+10*hg+2*i}:{71+10*hg+2*i}], v5, s[32:35], s26 offen offset:{512*i}')
            a('s_waitcnt vmcnt(0)')
            if r == 0 and half == 0:
                for i in range(10):
                    a(f'v_add_f32 v{50+i}, 1.0, v{50+i}')
                for i in range(10):
                    bf16_round_f32(a, 50 + i)
            for i in range(10):
                a(f'v_add_f32 v{70+i}, v{70+i}, v{80+i}')
                a(f'v_add_f32 v{90+i}, v{90+i}, v{100+i}')
            for i in range(10):
                a(f'v_add_f32 v{70+i}, v{70+i}, v{90+i}')
            if NSLAB > 4:
                for i in range(10):
                    if half == 0:
                        a(f'v_mov_b32 v{112+i}, v{70+i}')
                    else:
                        a(f'v_add_f32 v{70+i}, v{70+i}, v{112+i}')
        for i in range(10):
            bf16_round_f32(a, 70 + i)
            a(f'v_mul_f32 v{70+i}, v{70+i}, v{60+i}')
            bf16_round_f32(a, 70 + i)
        for i in range(5):
            a(f'v_lshlrev_b32 v{20+2*i}, 16, v{10+i}')
            a(f'v_and_b32 v{21+2*i}, 0xffff0000, v{10+i}')
        for i in range(10):
            a(f'v_add_f32 v{20+i}, v{20+i}, v{70+i}')
        for i in range(5):
            a(f'v_cvt_pk_bf16_f32 v{32+i}, v{20+2*i}, v{21+2*i}')
        a(f's_mov_b32 s26, {WS_X1 + 1280*r}')
        for i in range(5):
            a(f'buffer_store_dword v{32+i}, v4, s[32:35], s26 offen offset:{256*i}{SFX}')
        for i in range(5):
            a(f'v_lshlrev_b32 v{20+2*i}, 16, v{32+i}')
            a(f'v_and_b32 v{21+2*i}, 0xffff0000, v{32+i}')
        a('v_add_f32 v30, v20, v21')
        for i in range(2, 10):
            a(f'v_add_f32 v30, v30, v{20+i}')
        wave_allreduce_add(a, 30, 28)
        a('v_mul_f32 v30, s24, v30')
        for i in range(10):
            a(f'v_sub_f32 v{20+i}, v{20+i}, v30')
        a('v_mul_f32 v31, v20, v20')
        for i in range(1, 10):
            a(f'v_fmac_f32 v31, v{20+i}, v{20+i}')
        wave_allreduce_add(a, 31, 28)
        a('v_mul_f32 v31, s24, v31')
        a('v_add_f32 v31, s25, v31')
        a('v_rsq_f32 v31, v31')
        a('s_nop 0')
        for i in range(10):
            a(f'v_mul_f32 v{20+i}, v{20+i}, v31')
            a(f'v_fma_f32 v{20+i}, v{20+i}, v{50+i}, v{40+i}')
        for i in range(5):
            a(f'v_cvt_pk_bf16_f32 v{110+i}, v{20+2*i}, v{21+2*i}')
        a(f's_mov_b32 s26, {WS_H2 + 1280*r}')
        for i in range(5):
            a(f'buffer_store_dword v{110+i}, v4, s[32:35], s26 offen offset:{256*i}{SFX}')

def k_init3(a):
    name = 'init_kernel'
    kernel_header(a, name)
    a('s_cmp_ge_u32 s2, 256')
    a('s_cbranch_scc1 IN_END')
    a(f's_load_dwordx2 s[52:53], s[0:1], {KA["ws"]}')
    a('s_waitcnt lgkmcnt(0)')
    make_srd(a, 32, 52, WS_SIZE)
    a('v_lshlrev_b32 v1, 4, v0')
    for r in range(4):
        a(f'v_mov_b32 v{4+r}, -1')
    a('s_lshl_b32 s3, s2, 14')
    a(f's_add_u32 s3, s3, {WS_MEMF}')
    for i in range(4):
        a(f's_add_u32 s12, s3, {4096*i}')
        a('buffer_store_dwordx4 v[4:7], v1, s[32:35], s12 offen')
    a(f's_cmp_ge_u32 s2, {CNT_BYTES // 4096}')
    a('s_cbranch_scc1 IN_END')
    for r in range(4):
        a(f'v_mov_b32 v{8+r}, 0')
    a('s_lshl_b32 s12, s2, 12')
    a(f's_add_u32 s12, s12, {WS_CNT}')
    a('buffer_store_dwordx4 v[8:11], v1, s[32:35], s12 offen')
    a.label('IN_END')
    a('s_endpgm')
    return name, kernel_desc(name, 64, 64, 64)

def register(a):
    a('s_getreg_b32 s54, hwreg(HW_REG_XCC_ID)')
    a('s_and_b32 s54, s54, 7')
    l0 = a.newlabel('RA'); l1 = a.newlabel('RA'); l2 = a.newlabel('RA')
    a('s_cmp_lg_u32 s40, 0')
    a(f's_cbranch_scc1 {l0}')
    a('s_mov_b64 exec, 1')
    a('v_mov_b32 v4, 1')
    a('s_lshl_b32 s42, s54, 2')
    a(f's_add_u32 s42, s42, {C_REG}')
    a('v_mov_b32 v5, 0')
    a('buffer_atomic_add v4, v5, s[32:35], s42 offen sc0 sc1')
    a('v_mov_b32 v6, 1')
    a(f's_mov_b32 s42, {C_REG + 32}')
    a('buffer_atomic_add v6, v5, s[32:35], s42 offen sc0 sc1')
    a('s_waitcnt vmcnt(0)')
    a.label(l1)
    a('buffer_load_dword v7, v5, s[32:35], s42 offen sc1')
    a('s_waitcnt vmcnt(0)')
    a('v_readfirstlane_b32 s43, v7')
    a('s_add_u32 s88, s88, 1')
    a('s_cmp_ge_u32 s88, 0x40000')
    a(f's_cbranch_scc1 {l2}')
    a('s_cmp_lt_u32 s43, 256')
    a(f's_cbranch_scc1 {l1}')
    a.label(l2)
    a(f's_mov_b32 s42, {C_REG}')
    a('buffer_load_dwordx4 v[8:11], v5, s[32:35], s42 offen sc1')
    a('buffer_load_dwordx4 v[12:15], v5, s[32:35], s42 offen offset:16 sc1')
    a('s_waitcnt vmcnt(0)')
    a('v_min_u32 v7, v8, v9')
    for r in range(10, 16):
        a(f'v_min_u32 v7, v7, v{r}')
    a(f'v_mov_b32 v5, {L_SLOT}')
    a('ds_write_b32 v5, v4 offset:16')
    a('ds_write_b32 v5, v6 offset:20')
    a('ds_write_b32 v5, v7 offset:24')
    a('s_waitcnt lgkmcnt(0)')
    a('s_mov_b64 exec, -1')
    a.label(l0)
    a('s_barrier')
    a(f'v_mov_b32 v5, {L_SLOT}')
    a('ds_read_b32 v4, v5 offset:16')
    a('ds_read_b32 v6, v5 offset:20')
    a('ds_read_b32 v7, v5 offset:24')
    a('s_waitcnt lgkmcnt(0)')
    a('v_readfirstlane_b32 s55, v4')
    a('v_readfirstlane_b32 s42, v6')
    a('v_readfirstlane_b32 s43, v7')
    a('s_cmp_ge_u32 s43, 32')
    a('s_cselect_b32 s92, 1, 0')
    if 'slow' in OPT:
        a('s_mov_b32 s92, 0')
    a('s_cmp_eq_u32 s92, 1')
    a('s_cbranch_scc1 RG_FAST')
    a('s_and_b32 s54, s42, 7')
    a('s_lshr_b32 s55, s42, 3')
    a('s_cmp_lt_u32 s55, 16')
    a('s_cselect_b32 s93, 1, 0')
    a('s_branch RG_END')
    a.label('RG_FAST')
    if MAP == 1:
        a('s_cmp_lt_u32 s54, 4')
        a('s_cselect_b32 s93, 1, 0')
        a('s_and_b32 s54, s54, 3')
        a('s_lshl_b32 s54, s54, 1')
        a('s_lshr_b32 s42, s55, 4')
        a('s_and_b32 s43, s55, 1')
        a('s_cmp_eq_u32 s93, 1')
        a('s_cselect_b32 s42, s42, s43')
        a('s_add_u32 s54, s54, s42')
        a('s_and_b32 s55, s55, 15')
    else:
        a('s_cmp_lt_u32 s55, 16')
        a('s_cselect_b32 s93, 1, 0')
    a.label('RG_END')

T_NULL, T_MOD, T_LN1, T_T1, T_T2A, T_T2B, T_LN2, T_FA, T_FB = range(9)
Q_LN1 = 8
Q_T1 = 24
Q_POST = 88
SLOTS = [(T_FB, 2, 0), (T_FB, 2, 1), (T_FB, 2, 2), (T_FA, 1, 0), (T_FA, 1, 1), (T_FA, 1, 2), (T_LN2, 0, 0)]
RL = len(SLOTS)
NROUND = 18
Q_END = int(os.environ.get('Q_END', Q_POST + RL * NROUND))
N_T2B, N_FA = 40, 24

def decode(a):
    L = lambda n: f'DC_{n}'
    a('s_mov_b32 s95, 0')
    a('s_mov_b32 s97, 0')
    a('s_mov_b32 s91, 0')
    a(f's_mov_b32 s94, {C_REG}')
    a('s_lshl_b32 s96, s100, 2')
    a(f's_mov_b32 s96, {F_ZX}')
    a(f's_cmp_lt_u32 s3, {Q_LN1}')
    a(f's_cbranch_scc1 {L("MOD")}')
    a(f's_cmp_lt_u32 s3, {Q_T1}')
    a(f's_cbranch_scc1 {L("LN1")}')
    a(f's_cmp_lt_u32 s3, {Q_POST}')
    a(f's_cbranch_scc1 {L("T1")}')
    a(f's_sub_u32 s42, s3, {Q_POST}')
    M = (1 << 16) // RL + 1
    for j in range(RL * NROUND + 64): assert (j * M) >> 16 == j // RL
    a(f's_mul_i32 s43, s42, {M}')
    a('s_lshr_b32 s43, s43, 16')
    a(f's_mul_i32 s44, s43, {RL}')
    a('s_sub_u32 s42, s42, s44')
    tl = {T_FB: 'FB', T_FA: 'FA', T_LN2: 'LN2'}
    for k, (t, sk, sub) in enumerate(SLOTS):
        a(f's_sub_u32 s44, s43, {sk}')
        a(f's_mov_b32 s46, {sub}')
        a(f's_cmp_eq_u32 s42, {k}')
        a(f's_cbranch_scc1 {L(tl[t])}')
    a.label(L('LN2'))
    a(f's_mov_b32 s99, {T_LN2}')
    a('s_lshl_b32 s56, s44, 3')
    a('s_add_u32 s56, s56, s100')
    a('s_lshl_b32 s45, s44, 2')
    a(f's_mov_b32 s94, {F_ZX}')
    a('s_add_u32 s95, s44, 1')
    a(f's_add_u32 s101, s45, {C_LN2}')
    a(f's_branch {L("CHKRB")}')
    a.label(L('FA'))
    a(f's_mov_b32 s99, {T_FA}')
    a('s_mov_b32 s56, s44')
    a('s_mul_i32 s57, s100, 3')
    a('s_add_u32 s57, s57, s46')
    a('s_lshl_b32 s45, s44, 2')
    a(f's_add_u32 s94, s45, {C_LN2}')
    a('s_mov_b32 s95, 8')
    a(f's_add_u32 s101, s45, {C_FA}')
    a(f's_branch {L("CHKRB")}')
    a.label(L('FB'))
    a(f's_mov_b32 s99, {T_FB}')
    a('s_lshl_b32 s45, s44, 2')
    a(f's_add_u32 s94, s45, {C_FA}')
    a(f's_mov_b32 s95, {N_FA}')
    a('s_mov_b32 s101, 0')
    a('s_lshl_b32 s45, s46, 3')
    a('s_add_u32 s47, s45, s100')
    a('s_cmp_lt_u32 s46, 2')
    a(f's_cbranch_scc1 {L("FB2")}')
    a('s_lshl_b32 s45, s43, 2')
    a('s_add_u32 s45, s45, s100')
    a('s_and_b32 s45, s45, 7')
    a('s_add_u32 s47, s45, 16')
    a('s_cmp_ge_u32 s45, 4')
    a(f's_cselect_b32 s99, {T_NULL}, s99')
    a.label(L('FB2'))
    a('s_cmp_ge_u32 s47, 10')
    a('s_cselect_b32 s45, 1, 0')
    a('s_cselect_b32 s46, 10, 0')
    a('s_sub_u32 s57, s47, s46')
    a('s_lshl_b32 s56, s44, 1')
    a('s_add_u32 s56, s56, s45')
    a.label(L('CHKRB'))
    a('s_cmp_ge_u32 s44, 16')
    a(f's_cselect_b32 s99, {T_NULL}, s99')
    a(f's_branch {L("END")}')
    a.label(L('MOD'))
    a(f's_mov_b32 s99, {T_MOD}')
    a('s_lshl_b32 s56, s3, 3')
    a('s_add_u32 s56, s56, s100')
    a(f's_mov_b32 s101, {C_MODA}')
    a('s_cmp_ge_u32 s56, 60')
    a(f's_cselect_b32 s99, {T_NULL}, s99')
    a(f's_branch {L("END")}')
    a.label(L('LN1'))
    a(f's_mov_b32 s99, {T_LN1}')
    a(f's_sub_u32 s44, s3, {Q_LN1}')
    a('s_lshl_b32 s56, s44, 3')
    a('s_add_u32 s56, s56, s100')
    a(f's_mov_b32 s94, {C_MODA}')
    a('s_mov_b32 s95, 60')
    a('s_mov_b32 s97, 1')
    a('s_lshl_b32 s45, s44, 2')
    a(f's_add_u32 s101, s45, {C_LN1}')
    a(f's_branch {L("END")}')
    a.label(L('T1'))
    a(f's_mov_b32 s99, {T_T1}')
    a(f's_sub_u32 s44, s3, {Q_T1}')
    a('s_lshr_b32 s56, s44, 2')
    a('s_and_b32 s44, s44, 3')
    a('s_lshl_b32 s57, s100, 2')
    a('s_add_u32 s57, s57, s44')
    a('s_lshl_b32 s45, s56, 2')
    a(f's_add_u32 s94, s45, {C_LN1}')
    a('s_mov_b32 s95, 8')
    a('s_mov_b32 s97, 1')
    a('s_lshl_b32 s45, s56, 3')
    a('s_add_u32 s45, s45, s100')
    a('s_lshl_b32 s45, s45, 2')
    a(f's_add_u32 s101, s45, {F_T1}')
    a.label(L('END'))

def poll(a, lbl, s_addr, s_thr, adaptive):
    a('v_mov_b32 v5, 0')
    a('v_mov_b32 v8, 0')
    a('s_mov_b32 s79, 0')
    a(f's_cmp_lg_u32 s99, {T_LN2}')
    a(f's_cbranch_scc1 {lbl}_2')
    a('v_lshlrev_b32 v8, 7, v1')
    a('s_mov_b32 s79, 8192')
    a.label(f'{lbl}_2')
    a(f's_add_u32 s78, s{s_addr}, s79')
    a(f'buffer_load_dword v6, v8, s[32:35], s{s_addr} offen sc1')
    a(f'buffer_load_dword v7, v8, s[32:35], s78 offen sc1')
    if adaptive:
        a('buffer_load_dword v9, v5, s[32:35], s96 offen sc1')
    a('s_waitcnt vmcnt(0)')
    a('v_min_u32 v6, v6, v7')
    a(f'v_cmp_gt_u32 vcc, s{s_thr}, v6')
    if adaptive:
        a('v_readfirstlane_b32 s43, v9')
    a('s_cmp_eq_u64 vcc, 0')
    a(f's_cbranch_scc1 {lbl}_3')
    a('s_add_u32 s98, s98, 1')
    a('s_cmp_ge_u32 s98, 0x8000')
    a(f's_cbranch_scc1 {lbl}_3')
    if adaptive:
        a('s_cmp_ge_u32 s43, 16')
        a('s_cselect_b32 s97, 1, s97')
    a(f's_sleep {W_SHORT}')
    if adaptive:
        a('s_cmp_eq_u32 s97, 1')
        a(f's_cbranch_scc1 {lbl}_2')
    for _ in range(W_SLEEP // 127): a('s_sleep 127')
    if W_SLEEP % 127: a(f's_sleep {W_SLEEP % 127}')
    a(f's_branch {lbl}_2')

def k_mega(a):
    from k_t1v import t1v_body
    from k_post import FA, FB, LN2B
    fa, fb, ln2 = FA(), FB(), LN2B()
    name = 'mega_kernel'
    kernel_header(a, name)
    a('s_cmp_ge_u32 s2, 256')
    a('s_cbranch_scc1 MG_END')
    a(f's_load_dwordx4 s[4:7], s[0:1], {KA["wq"]}')
    a(f's_load_dwordx4 s[48:51], s[0:1], {KA["wv"]}')
    a(f's_load_dwordx2 s[52:53], s[0:1], {KA["ws"]}')
    a(f's_load_dwordx2 s[94:95], s[0:1], {KA["mem0"]}')
    lane_decomp(a)
    for o in (fa, fb):
        for r in range(o.g.VA, o.g.VA + 2 * o.g.NC + 1):
            a(f'v_mov_b32 v{r}, 0')
    a('s_waitcnt lgkmcnt(0)')
    NW = 640 * 6144 * 2
    make_srd(a, 32, 52, WS_SIZE)
    a('s_mov_b32 s88, 0')
    register(a)
    a('s_mov_b32 s100, s54')
    a('s_cmp_eq_u32 s93, 0')
    a('s_cbranch_scc1 WENTRY')
    make_srd(a, 8, 4, NW)
    make_srd(a, 12, 6, NW)
    make_srd(a, 16, 48, NW)
    make_srd(a, 28, 50, NW)
    make_srd(a, 36, 94, 8 * 1280)
    k_chain4.chain4_body(a, mega=dict(F_T1=F_T1, F_ZX=F_ZX, T1THR=T1THR, LOG=(WS_LOG if LOG else None)))
    lane_decomp(a)
    a.label('WENTRY')
    a('s_mov_b32 s98, 0')
    if LOG:
        a('s_lshl_b32 s80, s2, 12')
        a(f's_add_u32 s80, s80, {WS_LOG + 1024}')
    a.label('WLOOP')
    a('s_cmp_lg_u32 s40, 0')
    a('s_cbranch_scc1 WL_1')
    a('s_mov_b64 exec, 1')
    a('v_mov_b32 v4, 1')
    a('v_mov_b32 v5, 0')
    a('s_lshl_b32 s42, s100, 7')
    a(f's_add_u32 s42, s42, {C_QH}')
    a('buffer_atomic_add v4, v5, s[32:35], s42 offen sc0 sc1')
    a(f'v_mov_b32 v5, {L_SLOT}')
    a('s_waitcnt vmcnt(0)')
    a('ds_write_b32 v5, v4')
    a('s_waitcnt lgkmcnt(0)')
    a('s_mov_b64 exec, -1')
    a.label('WL_1')
    a('s_barrier')
    a(f'v_mov_b32 v5, {L_SLOT}')
    a('ds_read_b32 v4, v5')
    a('s_waitcnt lgkmcnt(0)')
    a('v_readfirstlane_b32 s3, v4')
    a(f's_cmp_ge_u32 s3, {Q_END}')
    a('s_cbranch_scc1 MG_END0')
    if LOG:
        rt(a, 81)
        a('s_lshl_b32 s83, s100, 16')
        a('s_or_b32 s83, s83, s3')
    decode(a)
    a(f's_cmp_eq_u32 s99, {T_NULL}')
    a('s_cbranch_scc1 WNULL')
    a('s_cmp_eq_u32 s91, 0')
    a('s_cbranch_scc1 WPRE')
    a('s_cmp_lg_u32 s40, 0')
    a('s_cbranch_scc1 WP_3')
    poll(a, 'WP', 90, 91, False)
    a.label('WP_3')
    a('s_barrier')
    a.label('WPRE')
    for t, l in ((T_LN2, 'P_LN2'), (T_FA, 'P_FA'), (T_FB, 'P_FB')):
        a(f's_cmp_eq_u32 s99, {t}')
        a(f's_cbranch_scc1 {l}')
    a.label('WWAIT')
    a('s_cmp_lg_u32 s40, 0')
    a('s_cbranch_scc1 WL_3')
    a('s_cmp_eq_u32 s95, 0')
    a('s_cbranch_scc1 WL_3')
    poll(a, 'WL', 94, 95, True)
    a.label('WL_3')
    a('s_barrier')
    if LOG: rt(a, 82)
    for t, l in ((T_T1, 'B_T1'), (T_LN2, 'B_LN2'), (T_FA, 'B_FA'), (T_FB, 'B_FB'), (T_MOD, 'B_MOD')):
        a(f's_cmp_eq_u32 s99, {t}')
        a(f's_cbranch_scc1 {l}')
    body_ln1(a, 'LN1')
    a('s_branch WDONE')
    a.label('WNULL')
    a('s_barrier')
    a('s_branch WLOOP')
    for nm, o in (('LN2', ln2), ('FA', fa), ('FB', fb)):
        a.label(f'P_{nm}')
        o.pre(a)
        a('s_branch WWAIT')
    a.label('B_MOD')
    body_mod(a, 'MOD')
    a('s_branch WDONE')
    a.label('B_T1')
    t1v_body(a, 'T1', SFX)
    a('s_branch WDONE')
    for nm, o in (('LN2', ln2), ('FA', fa), ('FB', fb)):
        a.label(f'B_{nm}')
        o.main(a)
        a('s_branch WDONE')
    a.label('WDONE')
    a('s_waitcnt vmcnt(0) lgkmcnt(0)')
    a('s_barrier')
    a('s_cmp_lg_u32 s40, 0')
    a('s_cbranch_scc1 WLOOP')
    if LOG: log_entry(a)
    a('s_cmp_eq_u32 s101, 0')
    a('s_cbranch_scc1 WLOOP')
    a('s_mov_b64 exec, 1')
    a('v_mov_b32 v4, 1')
    a('v_mov_b32 v5, 0')
    a('buffer_atomic_add v4, v5, s[32:35], s101 offen sc1')
    a('s_mov_b64 exec, -1')
    a('s_branch WLOOP')
    a.label('MG_END0')
    if 'tmo' in OPT:
        a('s_cmp_lt_u32 s98, 0x8000')
        a('s_cbranch_scc1 MG_END')
        a(f's_load_dwordx2 s[96:97], s[0:1], {KA["dbg"]}')
        a('s_waitcnt lgkmcnt(0)')
        a('v_mov_b32 v4, 0')
        a('v_mov_b32 v5, 1')
        a('s_mov_b64 exec, 1')
        a('global_atomic_add v4, v5, s[96:97] offset:8')
        a('s_mov_b64 exec, -1')
    a.label('MG_END')
    a('s_endpgm')
    return name, kernel_desc(name, 256, 102, 256)
```

```python
from asmlib import *
from layout2 import *
from k_g import *
from k_t2 import xg_reduce
SFX = ' sc1'

def bf16_round_f32(a, v):
    a(f'v_cvt_pk_bf16_f32 v{v}, v{v}, v{v}')
    a(f'v_lshlrev_b32 v{v}, 16, v{v}')

class T2B:
    def __init__(s): s.g = G(2, 4, 1, 6)
    def srd(s, a):
        a(f's_load_dwordx2 s[50:51], s[0:1], {KA["wo"]}')
        a('s_waitcnt lgkmcnt(0)')
        make_srd(a, 28, 50, 640 * 6144 * 2)
    def pre(s, a):
        g = s.g
        s.srd(a)
        a(f's_mul_i32 s58, s100, {4*192*1280}')
        a('s_lshl_b32 s42, s57, 8')
        a('s_add_u32 s58, s58, s42')
        def wsoff(st, j):
            gb = 4 * st + j
            head, blk = divmod(gb, 6)
            ta, tb = BLK[blk]
            a(f's_add_u32 s45, s58, {(head*192 + 16*ta)*1280}')
            a(f's_add_u32 s45, s45, s{61 if tb - ta == 1 else 62}')
            return 0
        g_pre(a, g, 1280, [28], wsoff)
    def main(s, a):
        g = s.g
        s.srd(a)
        a('v_lshlrev_b32 v15, 4, v1')
        a('s_lshl_b32 s42, s56, 3')
        a('s_lshl_b32 s43, s41, 1')
        a('s_add_u32 s42, s42, s43')
        a('s_mov_b32 s66, s42')
        a('s_lshl_b32 s42, s42, 5')
        a('s_lshl_b32 s43, s100, 2')
        a('s_add_u32 s42, s42, s43')
        a('s_mul_i32 s64, s42, 6144')
        a(f's_add_u32 s64, s64, {WS_OF}')
        def aload(st, kb, t, r):
            if kb == 0:
                a(f's_add_u32 s{46+t}, s64, {st*4096 + t*196608}')
            a(f'buffer_load_dwordx4 v[{r}:{r+3}], v15, s[32:35], s{46+t} offen offset:{kb*1024}')
        g_main(a, g, aload)
        a(f's_lshl_b32 s42, s100, 7')
        a('s_add_u32 s42, s42, s66')
        a('s_mul_i32 s42, s42, 20')
        a('s_lshl_b32 s43, s57, 2')
        a('s_add_u32 s42, s42, s43')
        a('s_lshl_b32 s43, s39, 1')
        a('s_add_u32 s42, s42, s43')
        a('s_lshl_b32 s42, s42, 10')
        a(f's_add_u32 s42, s42, {WS_OPB}')
        for t in range(2):
            a(f's_add_u32 s43, s42, {t*20480}')
            for p in range(2):
                r = g.AB + (t * 2 + p) * 4
                a0 = g.acc(0, 2*p, t); a1 = g.acc(0, 2*p+1, t)
                a(f'v_cvt_pk_bf16_f32 v{r}, v{a0}, v{a0+1}')
                a(f'v_cvt_pk_bf16_f32 v{r+1}, v{a0+2}, v{a0+3}')
                a(f'v_cvt_pk_bf16_f32 v{r+2}, v{a1}, v{a1+1}')
                a(f'v_cvt_pk_bf16_f32 v{r+3}, v{a1+2}, v{a1+3}')
                a(f'buffer_store_dwordx4 v[{r}:{r+3}], v15, s[32:35], s43 offen offset:{p*1024}{SFX}')

class FA:
    def __init__(s): s.g = G(2, 2, 2, 10)
    def srd(s, a):
        a(f's_load_dwordx4 s[4:7], s[0:1], {KA["wg"]}')
        a('s_waitcnt lgkmcnt(0)')
        NW = 640 * 1536 * 2
        make_srd(a, 8, 4, NW)
        make_srd(a, 12, 6, NW)
    def pre(s, a):
        g = s.g
        s.srd(a)
        s.first = True
        def wsoff(st, j):
            if s.first:
                a('s_lshl_b32 s58, s57, 7')
                a('s_add_u32 s58, s58, s61')
                a('s_add_u32 s58, s58, s63')
                s.first = False
            a(f's_add_u32 s45, s58, {2*st*32*3072}')
            return j
        g_pre(a, g, 3072, [8, 12], wsoff)
    def main(s, a):
        g = s.g
        s.srd(a)
        a('v_lshlrev_b32 v15, 4, v1')
        a('s_lshl_b32 s42, s56, 3')
        a('s_lshl_b32 s43, s41, 1')
        a('s_add_u32 s66, s42, s43')
        a('s_mul_i32 s64, s66, 20480')
        a(f's_add_u32 s64, s64, {WS_H2F}')
        def aload(st, kb, t, r):
            if kb == 0:
                a(f's_add_u32 s{46+t}, s64, {st*2048 + t*20480}')
            a(f'buffer_load_dwordx4 v[{r}:{r+3}], v15, s[32:35], s{46+t} offen offset:{kb*1024}')
        g_main(a, g, aload)
        C1 = -2.0 * LOG2E * 0.7978845608028654
        a(f's_mov_b32 s60, {f2u(C1):#x}')
        a(f's_mov_b32 s61, {f2u(C1 * 0.044715):#x}')
        a('s_mul_i32 s42, s66, 49152')
        a('s_lshl_b32 s43, s57, 1')
        a('s_add_u32 s43, s43, s39')
        a('s_lshl_b32 s43, s43, 10')
        a('s_add_u32 s42, s42, s43')
        a(f's_add_u32 s42, s42, {WS_ACT}')
        T = g.AB
        for t in range(2):
            for c in range(2):
                for r in range(4):
                    gg = g.acc(0, c, t) + r; u = g.acc(1, c, t) + r
                    t0 = T + 8; t1 = T + 9; t2 = T + 10
                    a(f'v_cvt_pk_bf16_f32 v{t0}, v{gg}, v{u}')
                    a(f'v_lshlrev_b32 v{gg}, 16, v{t0}')
                    a(f'v_and_b32 v{u}, 0xffff0000, v{t0}')
                    a(f'v_mul_f32 v{t1}, v{gg}, v{gg}')
                    a(f'v_mov_b32 v{t2}, s60')
                    a(f'v_fmac_f32 v{t2}, s61, v{t1}')
                    a(f'v_mul_f32 v{t2}, v{t2}, v{gg}')
                    a(f'v_exp_f32 v{t2}, v{t2}')
                    a('s_nop 0')
                    a(f'v_add_f32 v{t2}, 1.0, v{t2}')
                    a(f'v_rcp_f32 v{t2}, v{t2}')
                    a('s_nop 0')
                    a(f'v_mul_f32 v{t2}, v{t2}, v{gg}')
                    a(f'v_cvt_pk_bf16_f32 v{t2}, v{t2}, v{t2}')
                    a(f'v_lshlrev_b32 v{t2}, 16, v{t2}')
                    a(f'v_mul_f32 v{gg}, v{t2}, v{u}')
            pk = T + 4 * t
            for c in range(2):
                gg = g.acc(0, c, t)
                a(f'v_cvt_pk_bf16_f32 v{pk+2*c}, v{gg}, v{gg+1}')
                a(f'v_cvt_pk_bf16_f32 v{pk+2*c+1}, v{gg+2}, v{gg+3}')
            a(f's_add_u32 s43, s42, {t*49152}')
            a(f'buffer_store_dwordx4 v[{pk}:{pk+3}], v15, s[32:35], s43 offen{SFX}')

class FB:
    def __init__(s): s.g = G(1, 2, 1, 12)
    def srd(s, a):
        a(f's_load_dwordx2 s[4:5], s[0:1], {KA["wd"]}')
        a(f's_load_dwordx2 s[6:7], s[0:1], {KA["out"]}')
        a('s_waitcnt lgkmcnt(0)')
        make_srd(a, 8, 4, 1536 * 1280)
        make_srd(a, 12, 6, 2048 * 1280)
    def pre(s, a):
        g = s.g
        s.srd(a)
        s.first = True
        def wsoff(st, j):
            if s.first:
                a('s_lshl_b32 s58, s57, 7')
                a('s_add_u32 s58, s58, s61')
                a('s_add_u32 s58, s58, s63')
                s.first = False
            a(f's_add_u32 s45, s58, {(4*st + 2*j)*32*1280}')
            return 0
        g_pre(a, g, 1280, [8], wsoff)
        E = 200
        s.E = E
        a('s_lshl_b32 s42, s57, 6')
        a('s_lshl_b32 s43, s39, 5')
        a('s_add_u32 s67, s42, s43')
        a('s_lshl_b32 s42, s67, 2')
        a(f's_add_u32 s42, s42, {WS_MOD + 5*2560}')
        a('v_lshlrev_b32 v5, 4, v3')
        for c in range(2):
            a(f'buffer_load_dwordx4 v[{E+4*c}:{E+4*c+3}], v5, s[32:35], s42 offen offset:{64*c}')
            g.ops.append(('E', 0))
    def main(s, a):
        g = s.g; E = s.E
        s.srd(a)
        a('v_lshlrev_b32 v15, 4, v1')
        a('s_lshl_b32 s42, s56, 2')
        a('s_add_u32 s66, s42, s41')
        a('s_mul_i32 s64, s66, 49152')
        a(f's_add_u32 s64, s64, {WS_ACT}')
        a('s_mul_i32 s42, s66, 20')
        a('s_lshl_b32 s43, s57, 1')
        a('s_add_u32 s42, s42, s43')
        a('s_add_u32 s42, s42, s39')
        a('s_lshl_b32 s42, s42, 10')
        a(f's_add_u32 s42, s42, {WS_X1F}')
        a(f'buffer_load_dwordx4 v[{E+8}:{E+11}], v15, s[32:35], s42 offen')
        g.ops.append(('E', 1))
        def aload(st, kb, t, r):
            if kb == 0:
                a(f's_add_u32 s46, s64, {st*4096}')
            a(f'buffer_load_dwordx4 v[{r}:{r+3}], v15, s[32:35], s46 offen offset:{kb*1024}')
        g_main(a, g, aload)
        a('s_lshl_b32 s42, s66, 4')
        a('v_add_u32 v4, s42, v2')
        a('v_mul_u32_u24 v4, 1280, v4')
        a('v_lshl_add_u32 v4, v3, 3, v4')
        a('s_lshl_b32 s42, s67, 1')
        a('v_add_u32 v4, s42, v4')
        for c in range(2):
            acc = g.acc(0, c, 0)
            xr = E + 8 + 2 * c
            for r in range(4):
                bf16_round_f32(a, acc + r)
                a(f'v_mul_f32 v{acc+r}, v{acc+r}, v{E+4*c+r}')
                bf16_round_f32(a, acc + r)
            a(f'v_lshlrev_b32 v16, 16, v{xr}')
            a(f'v_and_b32 v17, 0xffff0000, v{xr}')
            a(f'v_lshlrev_b32 v18, 16, v{xr+1}')
            a(f'v_and_b32 v19, 0xffff0000, v{xr+1}')
            for r in range(4):
                a(f'v_add_f32 v{acc+r}, v{acc+r}, v{16+r}')
            a(f'v_cvt_pk_bf16_f32 v{xr}, v{acc}, v{acc+1}')
            a(f'v_cvt_pk_bf16_f32 v{xr+1}, v{acc+2}, v{acc+3}')
            a(f'buffer_store_dwordx2 v[{xr}:{xr+1}], v4, s[12:15], 0 offen offset:{32*c}')

class LN2:
    def pre(s, a):
        a(f's_load_dwordx2 s[4:5], s[0:1], {KA["x"]}')
        a('s_waitcnt lgkmcnt(0)')
        make_srd(a, 12, 4, 2048 * 1280)
        a('v_lshlrev_b32 v15, 4, v1')
        a('s_lshl_b32 s42, s56, 4')
        a('v_add_u32 v4, s42, v2')
        a('v_mul_u32_u24 v4, 1280, v4')
        a('v_lshl_add_u32 v4, v3, 3, v4')
        a('s_lshl_b32 s58, s40, 6')
        a('v_lshlrev_b32 v5, 4, v3')
        a('s_lshl_b32 s59, s40, 7')
        for i in range(3):
            if i == 2:
                a('s_cmp_ge_u32 s40, 4')
                a(f's_cbranch_scc1 LN2P_SKIP')
            a(f's_add_u32 s42, s58, {512*i}')
            a(f'buffer_load_dwordx2 v[{16+4*i}:{17+4*i}], v4, s[12:15], s42 offen')
            a(f'buffer_load_dwordx2 v[{18+4*i}:{19+4*i}], v4, s[12:15], s42 offen offset:32')
            for idx, base in ((2, 28), (3, 52), (4, 76)):
                a(f's_add_u32 s42, s59, {WS_MOD + 2560*idx + 1024*i}')
                a(f'buffer_load_dwordx4 v[{base+8*i}:{base+8*i+3}], v5, s[32:35], s42 offen')
                a(f'buffer_load_dwordx4 v[{base+8*i+4}:{base+8*i+7}], v5, s[32:35], s42 offen offset:64')
        a.label('LN2P_SKIP')
    def main(s, a):
        a('v_lshlrev_b32 v15, 4, v1')
        SL = 100
        V = 200
        a('s_mul_i32 s42, s56, 20')
        a('s_add_u32 s42, s42, s40')
        a('s_lshl_b32 s42, s42, 10')
        a(f's_add_u32 s60, s42, {WS_OPB}')
        for i in range(3):
            if i == 2:
                a('s_cmp_ge_u32 s40, 4')
                a(f's_cbranch_scc1 LN2M_SK1')
            for x in range(8):
                r = SL + (i * 8 + x) * 4
                a(f's_add_u32 s42, s60, {x*128*20480 + i*8192}')
                a(f'buffer_load_dwordx4 v[{r}:{r+3}], v15, s[32:35], s42 offen')
        a.label('LN2M_SK1')
        for k in range(8):
            a(f'v_mov_b32 v{V+16+k}, 0')
        a('s_waitcnt vmcnt(0)')
        a('s_mul_i32 s42, s56, 20')
        a('s_add_u32 s42, s42, s40')
        a('s_lshl_b32 s42, s42, 10')
        a(f's_add_u32 s61, s42, {WS_X1F}')
        a(f's_add_u32 s62, s42, {WS_H2F}')
        T = 224
        for i in range(3):
            if i == 2:
                a('s_cmp_ge_u32 s40, 4')
                a(f's_cbranch_scc1 LN2M_SK2')
            for q in range(4):
                lo = V + 8*i + 2*q; hi = lo + 1
                r0 = SL + (i * 8) * 4 + q
                a(f'v_lshlrev_b32 v{lo}, 16, v{r0}')
                a(f'v_and_b32 v{hi}, 0xffff0000, v{r0}')
                for x in range(1, 8):
                    r = SL + (i * 8 + x) * 4 + q
                    a(f'v_lshlrev_b32 v{T}, 16, v{r}')
                    a(f'v_and_b32 v{T+1}, 0xffff0000, v{r}')
                    a(f'v_add_f32 v{lo}, v{lo}, v{T}')
                    a(f'v_add_f32 v{hi}, v{hi}, v{T+1}')
            for k in range(8):
                v = V + 8*i + k
                bf16_round_f32(a, v)
                a(f'v_mul_f32 v{v}, v{v}, v{28+8*i+k}')
                bf16_round_f32(a, v)
            for q in range(4):
                xr = 16 + 4*i + q
                a(f'v_lshlrev_b32 v{T}, 16, v{xr}')
                a(f'v_and_b32 v{T+1}, 0xffff0000, v{xr}')
                a(f'v_add_f32 v{V+8*i+2*q}, v{V+8*i+2*q}, v{T}')
                a(f'v_add_f32 v{V+8*i+2*q+1}, v{V+8*i+2*q+1}, v{T+1}')
            for q in range(4):
                a(f'v_cvt_pk_bf16_f32 v{T+4+q}, v{V+8*i+2*q}, v{V+8*i+2*q+1}')
            a(f's_add_u32 s42, s61, {i*8192}')
            a(f'buffer_store_dwordx4 v[{T+4}:{T+7}], v15, s[32:35], s42 offen{SFX}')
            for q in range(4):
                a(f'v_lshlrev_b32 v{V+8*i+2*q}, 16, v{T+4+q}')
                a(f'v_and_b32 v{V+8*i+2*q+1}, 0xffff0000, v{T+4+q}')
        a.label('LN2M_SK2')
        S = 232
        a(f'v_add_f32 v{S}, v{V}, v{V+1}')
        for k in range(2, 24):
            a(f'v_add_f32 v{S}, v{S}, v{V+k}')
        xg_reduce(a, 'add', S, S + 1)
        a('v_lshlrev_b32 v6, 2, v2')
        a('s_lshl_b32 s42, s40, 6')
        a('v_add_u32 v7, s42, v6')
        a(f'ds_write_b32 v7, v{S}')
        a('s_waitcnt lgkmcnt(0)')
        a('s_barrier')
        for k in range(8):
            a(f'ds_read_b32 v{S+2+k}, v6 offset:{64*k}')
        a('s_waitcnt lgkmcnt(0)')
        a(f'v_add_f32 v{S}, v{S+2}, v{S+3}')
        for k in range(2, 8):
            a(f'v_add_f32 v{S}, v{S}, v{S+2+k}')
        a(f's_mov_b32 s24, {f2u(1.0/640):#x}')
        a(f's_mov_b32 s25, {f2u(1e-5):#x}')
        a(f'v_mul_f32 v{S}, s24, v{S}')
        for k in range(16):
            a(f'v_sub_f32 v{V+k}, v{V+k}, v{S}')
        a('s_cmp_lt_u32 s40, 4')
        a('s_cselect_b64 vcc, -1, 0')
        for k in range(16, 24):
            a(f'v_sub_f32 v{T}, v{V+k}, v{S}')
            a(f'v_cndmask_b32 v{V+k}, 0, v{T}, vcc')
        a(f'v_mul_f32 v{S+1}, v{V}, v{V}')
        for k in range(1, 24):
            a(f'v_fmac_f32 v{S+1}, v{V+k}, v{V+k}')
        xg_reduce(a, 'add', S + 1, S + 2)
        a(f'ds_write_b32 v7, v{S+1} offset:512')
        a('s_waitcnt lgkmcnt(0)')
        a('s_barrier')
        for k in range(8):
            a(f'ds_read_b32 v{S+2+k}, v6 offset:{512+64*k}')
        a('s_waitcnt lgkmcnt(0)')
        a(f'v_add_f32 v{S+1}, v{S+2}, v{S+3}')
        for k in range(2, 8):
            a(f'v_add_f32 v{S+1}, v{S+1}, v{S+2+k}')
        a(f'v_mul_f32 v{S+1}, s24, v{S+1}')
        a(f'v_add_f32 v{S+1}, s25, v{S+1}')
        a(f'v_rsq_f32 v{S+1}, v{S+1}')
        a('s_nop 0')
        for i in range(3):
            if i == 2:
                a('s_cmp_ge_u32 s40, 4')
                a(f's_cbranch_scc1 LN2M_SK3')
            for k in range(8):
                v = V + 8*i + k
                cb = 76 + 8*i + k
                a(f'v_add_f32 v{cb}, 1.0, v{cb}')
                bf16_round_f32(a, cb)
                a(f'v_mul_f32 v{v}, v{v}, v{S+1}')
                a(f'v_fma_f32 v{v}, v{v}, v{cb}, v{52+8*i+k}')
            for q in range(4):
                a(f'v_cvt_pk_bf16_f32 v{T+4*(i&1)+q}, v{V+8*i+2*q}, v{V+8*i+2*q+1}')
            a(f's_add_u32 s42, s62, {i*8192}')
            a(f'buffer_store_dwordx4 v[{T+4*(i&1)}:{T+4*(i&1)+3}], v15, s[32:35], s42 offen{SFX}')
        a.label('LN2M_SK3')

class LN2B(LN2):
    def main(s, a):
        SLAB = 128 * 20480
        a('v_lshlrev_b32 v15, 4, v1')
        a('v_lshlrev_b32 v13, 3, v1')
        SA, SB_ = 100, 164
        V = 228
        SEL = 252
        a('s_mul_i32 s42, s56, 40')
        a('s_lshl_b32 s43, s40, 1')
        a('s_add_u32 s42, s42, s43')
        a('s_lshl_b32 s42, s42, 9')
        a(f's_add_u32 s60, s42, {WS_SL}')
        def loads(i, R):
            for j in range(16):
                a(f's_add_u32 s42, s60, {j*SLAB + i*8192}')
                for c in range(2):
                    r = R + (c * 8 + j // 2) * 4 + (j & 1) * 2
                    a(f'buffer_load_dwordx2 v[{r}:{r+1}], v13, s[32:35], s42 offen offset:{c*512}')
        def red(i, R):
            for jp in range(8):
                for c in range(2):
                    acc = V + 8 * i + 4 * c
                    r = R + (c * 8 + jp) * 4
                    cc = '0' if jp == 0 else f'v[{acc}:{acc+3}]'
                    a(f'v_mfma_f32_16x16x32_bf16 v[{acc}:{acc+3}], v[{SEL}:{SEL+3}], v[{r}:{r+3}], {cc}')
        loads(0, SA); loads(1, SB_)
        a('v_lshlrev_b32 v5, 2, v3')
        a('v_sub_u32 v5, v2, v5')
        for q in range(2):
            a(f'v_mov_b32 v{SEL+q}, 0')
            a('v_mov_b32 v6, 0x3f80')
            a(f'v_cmp_eq_u32 vcc, {2*q}, v5')
            a(f'v_cndmask_b32 v{SEL+q}, v{SEL+q}, v6, vcc')
            a('v_mov_b32 v6, 0x3f800000')
            a(f'v_cmp_eq_u32 vcc, {2*q+1}, v5')
            a(f'v_cndmask_b32 v{SEL+q}, v{SEL+q}, v6, vcc')
        a(f'v_mov_b32 v{SEL+2}, v{SEL}')
        a(f'v_mov_b32 v{SEL+3}, v{SEL+1}')
        for k in range(8):
            a(f'v_mov_b32 v{V+16+k}, 0')
        a('s_waitcnt vmcnt(32)')
        red(0, SA)
        a('s_cmp_ge_u32 s40, 4')
        a('s_cbranch_scc1 LN2M_SK1')
        loads(2, SA)
        a('s_waitcnt vmcnt(32)')
        red(1, SB_)
        a('s_waitcnt vmcnt(0)')
        red(2, SA)
        a('s_branch LN2M_J1')
        a.label('LN2M_SK1')
        a('s_waitcnt vmcnt(0)')
        red(1, SB_)
        a.label('LN2M_J1')
        a('s_mul_i32 s42, s56, 20')
        a('s_add_u32 s42, s42, s40')
        a('s_lshl_b32 s42, s42, 10')
        a(f's_add_u32 s61, s42, {WS_X1F}')
        a(f's_add_u32 s62, s42, {WS_H2F}')
        a('s_nop 7')
        T = 164
        for i in range(3):
            if i == 2:
                a('s_cmp_ge_u32 s40, 4')
                a(f's_cbranch_scc1 LN2M_SK2')
            for k in range(8):
                v = V + 8*i + k
                bf16_round_f32(a, v)
                a(f'v_mul_f32 v{v}, v{v}, v{28+8*i+k}')
                bf16_round_f32(a, v)
            for q in range(4):
                xr = 16 + 4*i + q
                a(f'v_lshlrev_b32 v{T}, 16, v{xr}')
                a(f'v_and_b32 v{T+1}, 0xffff0000, v{xr}')
                a(f'v_add_f32 v{V+8*i+2*q}, v{V+8*i+2*q}, v{T}')
                a(f'v_add_f32 v{V+8*i+2*q+1}, v{V+8*i+2*q+1}, v{T+1}')
            for q in range(4):
                a(f'v_cvt_pk_bf16_f32 v{T+4+q}, v{V+8*i+2*q}, v{V+8*i+2*q+1}')
            a(f's_add_u32 s42, s61, {i*8192}')
            a(f'buffer_store_dwordx4 v[{T+4}:{T+7}], v15, s[32:35], s42 offen{SFX}')
            for q in range(4):
                a(f'v_lshlrev_b32 v{V+8*i+2*q}, 16, v{T+4+q}')
                a(f'v_and_b32 v{V+8*i+2*q+1}, 0xffff0000, v{T+4+q}')
        a.label('LN2M_SK2')
        S = 172
        a(f'v_add_f32 v{S}, v{V}, v{V+1}')
        for k in range(2, 24):
            a(f'v_add_f32 v{S}, v{S}, v{V+k}')
        xg_reduce(a, 'add', S, S + 1)
        a('v_lshlrev_b32 v6, 2, v2')
        a('s_lshl_b32 s42, s40, 6')
        a('v_add_u32 v7, s42, v6')
        a(f'ds_write_b32 v7, v{S}')
        a('s_waitcnt lgkmcnt(0)')
        a('s_barrier')
        for k in range(8):
            a(f'ds_read_b32 v{S+2+k}, v6 offset:{64*k}')
        a('s_waitcnt lgkmcnt(0)')
        a(f'v_add_f32 v{S}, v{S+2}, v{S+3}')
        for k in range(2, 8):
            a(f'v_add_f32 v{S}, v{S}, v{S+2+k}')
        a(f's_mov_b32 s24, {f2u(1.0/640):#x}')
        a(f's_mov_b32 s25, {f2u(1e-5):#x}')
        a(f'v_mul_f32 v{S}, s24, v{S}')
        for k in range(16):
            a(f'v_sub_f32 v{V+k}, v{V+k}, v{S}')
        a('s_cmp_lt_u32 s40, 4')
        a('s_cselect_b64 vcc, -1, 0')
        for k in range(16, 24):
            a(f'v_sub_f32 v{T}, v{V+k}, v{S}')
            a(f'v_cndmask_b32 v{V+k}, 0, v{T}, vcc')
        a(f'v_mul_f32 v{S+1}, v{V}, v{V}')
        for k in range(1, 24):
            a(f'v_fmac_f32 v{S+1}, v{V+k}, v{V+k}')
        xg_reduce(a, 'add', S + 1, S + 2)
        a(f'ds_write_b32 v7, v{S+1} offset:512')
        a('s_waitcnt lgkmcnt(0)')
        a('s_barrier')
        for k in range(8):
            a(f'ds_read_b32 v{S+2+k}, v6 offset:{512+64*k}')
        a('s_waitcnt lgkmcnt(0)')
        a(f'v_add_f32 v{S+1}, v{S+2}, v{S+3}')
        for k in range(2, 8):
            a(f'v_add_f32 v{S+1}, v{S+1}, v{S+2+k}')
        a(f'v_mul_f32 v{S+1}, s24, v{S+1}')
        a(f'v_add_f32 v{S+1}, s25, v{S+1}')
        a(f'v_rsq_f32 v{S+1}, v{S+1}')
        a('s_nop 0')
        for i in range(3):
            if i == 2:
                a('s_cmp_ge_u32 s40, 4')
                a(f's_cbranch_scc1 LN2M_SK3')
            for k in range(8):
                v = V + 8*i + k
                cb = 76 + 8*i + k
                a(f'v_add_f32 v{cb}, 1.0, v{cb}')
                bf16_round_f32(a, cb)
                a(f'v_mul_f32 v{v}, v{v}, v{S+1}')
                a(f'v_fma_f32 v{v}, v{v}, v{cb}, v{52+8*i+k}')
            for q in range(4):
                a(f'v_cvt_pk_bf16_f32 v{T+4*(i&1)+q}, v{V+8*i+2*q}, v{V+8*i+2*q+1}')
            a(f's_add_u32 s42, s62, {i*8192}')
            a(f'buffer_store_dwordx4 v[{T+4*(i&1)}:{T+4*(i&1)+3}], v15, s[32:35], s42 offen{SFX}')
        a.label('LN2M_SK3')
```

```python
import sys
sys.path.insert(0, 'dev')
from asmlib import *
from gen import build
from k_mega4 import k_init3, k_mega, LDS_MEGA
if __name__ == '__main__':
    ks = [(k_init3, 256, 256, 0), (k_mega, 256, 512, LDS_MEGA)]
    build(ks, sys.argv[1] if len(sys.argv) > 1 else 'test.s')
```

```python
from asmlib import *
from layout2 import *
from k_t1 import lane_decomp, OPT
from k_chain import pub
TMO = 0x40000
def lds_spin(a, lbl, reads, flag_regs, vtmp):
    a.label(lbl)
    reads()
    a('s_waitcnt lgkmcnt(0)')
    a(f'v_cmp_ne_u32 vcc, s89, v{flag_regs[0]}')
    for f in flag_regs[1:]:
        a(f'v_cmp_ne_u32 s[90:91], s89, v{f}')
        a('s_or_b64 vcc, vcc, s[90:91]')
    a('s_add_u32 s88, s88, 1')
    a(f's_cmp_lt_u32 s88, {TMO:#x}')
    a('s_cselect_b64 s[90:91], vcc, 0')
    a('s_cmp_lg_u64 s[90:91], 0')
    a(f's_cbranch_scc1 {lbl}')
import os

L_FLAG = 0
L_PX = 256
L_PM = 2304
L_MEM = 4096
L_VM = 14336
L_KX = 20480
L_VX = 69632
L_QX = 118784
L_PXX = 143360
L_PMX = 147456
L_END4 = 155648
NSTEP = int(os.environ.get('NSTEP', '64'))
D_MEM = int(os.environ.get('D_MEM', '20'))
D_SC = int(os.environ.get('D_SC', '4'))
D_Z = int(os.environ.get('D_Z', '20'))
D_Z0 = int(os.environ.get('D_Z0', '0'))
D_V = int(os.environ.get('D_V', '12'))
VPW = 3
ZXS = int(os.environ.get('ZXS', '1'))
XPRIO = int(os.environ.get('XPRIO', '0'))
ZPRIO = int(os.environ.get('ZPRIO', '2'))
S_G1 = 196608
S_G2 = 98304
S_ZP = 163840
SLAB = 128 * 20480

SB = 20
def stamp(a, i):
    if 'stamp' not in OPT: return
    l = a.newlabel('ST')
    a('s_cmp_lg_u32 s84, 30')
    a(f's_cbranch_scc1 {l}')
    a('s_memrealtime s[96:97]' if 'gst' in OPT else 's_memtime s[96:97]')
    a('s_waitcnt lgkmcnt(0)')
    a(f's_mov_b32 s{SB+i}, s96')
    a.label(l)

def stampc(a, i):
    if 'stamp' not in OPT: return
    l = a.newlabel('ST')
    a('s_cmp_lg_u32 s84, 30')
    a(f's_cbranch_scc1 {l}')
    a(f's_mov_b32 s{SB+i}, s88')
    a.label(l)

def poll_sent(a, lbl, loads, check_regs, vtmp):
    a.label(lbl)
    loads()
    a('s_waitcnt vmcnt(0)')
    rs = list(check_regs)
    a(f'v_max_u32 v{vtmp}, v{rs[0]}, v{rs[1]}')
    rs = rs[2:]
    while len(rs) >= 2:
        a(f'v_max3_u32 v{vtmp}, v{vtmp}, v{rs[0]}, v{rs[1]}'); rs = rs[2:]
    if rs:
        a(f'v_max_u32 v{vtmp}, v{vtmp}, v{rs[0]}')
    a(f'v_cmp_eq_u32 vcc, -1, v{vtmp}')
    a('s_add_u32 s88, s88, 1')
    a(f's_cmp_lt_u32 s88, {TMO:#x}')
    a('s_cselect_b64 s[90:91], vcc, 0')
    a('s_cmp_lg_u64 s[90:91], 0')
    a(f's_cbranch_scc1 {lbl}')

def t1_wait(a, lbl, s_addr, thr, first=False):
    zv = 11 if first else 12
    if first:
        a(f'buffer_load_dword v254, v{zv}, s[32:35], s{s_addr} offen sc1')
    a.label(lbl)
    a('s_waitcnt vmcnt(0)')
    a('v_readfirstlane_b32 s42, v254')
    a(f's_cmp_ge_u32 s42, {thr}')
    a(f's_cbranch_scc1 {lbl}_OK')
    a('s_add_u32 s88, s88, 1')
    a(f's_cmp_ge_u32 s88, {TMO:#x}')
    a(f's_cbranch_scc1 {lbl}_OK')
    a('s_sleep 1' if first else 's_sleep 4')
    a(f'buffer_load_dword v254, v{zv}, s[32:35], s{s_addr} offen sc1')
    a(f's_branch {lbl}')
    a.label(f'{lbl}_OK')

def clog(a, mega, idx, wave=0):
    if not mega.get('LOG'): return
    l = a.newlabel('CL')
    a(f's_cmp_lg_u32 s40, {wave}')
    a(f's_cbranch_scc1 {l}')
    a('s_memrealtime s[96:97]')
    a('s_lshl_b32 s43, s2, 12')
    a(f's_add_u32 s42, s43, {mega["LOG"] + idx*4}')
    a('s_waitcnt lgkmcnt(0)')
    a('v_mov_b32 v250, s96')
    a('v_mov_b32 v251, 0')
    a('s_mov_b64 exec, 1')
    a('buffer_store_dword v250, v251, s[32:35], s42 offen')
    a('s_mov_b64 exec, -1')
    a.label(l)

def self_t1(a, mega, lbl, WQ, WK, VW):
    NS = mega['NSELF']
    if not NS: return
    N = 4 * NS
    BUF = [L_KX + 40960 * i for i in range(3)]
    a('s_cmp_lg_u32 s40, 0')
    a(f's_cbranch_scc1 {lbl("ST_W")}')
    a('v_and_b32 v4, 7, v1')
    a('v_lshlrev_b32 v4, 7, v4')
    a(f's_mov_b32 s42, {mega["C_LN1"]}')
    a.label(lbl('ST_P'))
    for r in range(NS):
        a(f'buffer_load_dword v{5+r}, v4, s[32:35], s42 offen offset:{1024*r} sc1')
    a('s_waitcnt vmcnt(0)')
    for r in range(1, NS):
        a(f'v_min_u32 v5, v5, v{5+r}')
    a('v_cmp_eq_u32 vcc, 0, v5')
    a('s_add_u32 s88, s88, 1')
    a(f's_cmp_lt_u32 s88, {TMO:#x}')
    a('s_cselect_b64 s[90:91], vcc, 0')
    a('s_cmp_lg_u64 s[90:91], 0')
    a(f's_cbranch_scc0 {lbl("ST_W")}')
    a('s_sleep 2')
    a(f's_branch {lbl("ST_P")}')
    a.label(lbl('ST_W'))
    a('s_barrier')
    clog(a, mega, 132)
    a('s_cmp_ge_u32 s40, 6')
    a('s_cselect_b32 s46, 2, 0')
    a('s_sub_u32 s46, s40, s46')
    a('s_mul_i32 s46, s46, 7168')
    NI = 7
    def issue(b, on=True):
        if not on: return
        for i in range(NI):
            a(f's_add_u32 s43, s46, {1024*i}')
            a('s_min_u32 s43, s43, 39936')
            a(f's_add_u32 m0, s43, {BUF[b % 3]}')
            a(f's_add_u32 s43, s43, {WS_H1F + b*40960}')
            a('buffer_load_dwordx4 v15, s[32:35], s43 offen lds')
    nl = a.newlabel('STN')
    a('s_cmp_eq_u32 s40, 4')
    a(f's_cbranch_scc1 {nl}')
    a('s_cmp_eq_u32 s40, 5')
    a(f's_cbranch_scc1 {nl}')
    issue(0); issue(1)
    a.label(nl)
    a('s_cmp_lt_u32 s40, 3')
    a('s_cselect_b32 s45, s40, s79')
    a('s_lshr_b32 s42, s61, 1')
    a('s_add_u32 s42, s42, 4')
    a('s_and_b32 s43, s61, 1')
    a('s_cmp_eq_u32 s45, 2')
    a('s_cselect_b32 s42, s42, s61')
    a('s_cselect_b32 s43, s43, s45')
    a('s_lshl_b32 s42, s42, 10')
    a('s_lshl_b32 s43, s43, 3')
    a('s_add_u32 s42, s42, s43')
    a('s_mul_i32 s43, s59, 12288')
    a('s_add_u32 s44, s42, s43')
    a('s_cmp_lt_u32 s40, 3')
    a(f's_cbranch_scc1 {lbl("ST_S")}')
    a('s_cmp_eq_u32 s79, 99')
    a(f's_cbranch_scc1 {lbl("ST_N")}')
    for kind, nst, MF, AC, Ws, outs in (('V', 2, 144, 184, [VW], [WS_VF]), ('S', 4, 180, 220, [WQ, WK], [WS_QF, WS_KF]), ('N', 0, 0, 0, [], [])):
        a.label(lbl(f'ST_{kind}'))
        for b in range(N):
            if b == 0: vm = NI
            elif b + 1 < N: vm = NI + nst
            else: vm = nst
            if kind != 'N': a(f's_waitcnt vmcnt({vm})')
            a('s_barrier')
            if kind == 'N': continue
            if b + 2 < N: issue(b + 2)
            a(f'v_add_u32 v4, {BUF[b % 3]}, v15')
            def rd(t):
                sl = MF + 8 * (t % 5)
                a(f'ds_read_b128 v[{sl}:{sl+3}], v4 offset:{1024*t}')
                a(f'ds_read_b128 v[{sl+4}:{sl+7}], v4 offset:{20480 + 1024*t}')
            for t in range(5): rd(t)
            for t in range(20):
                a(f's_waitcnt lgkmcnt({2 * min(4, 19 - t)})')
                sl = MF + 8 * (t % 5)
                for tt in range(2):
                    for m, W in enumerate(Ws):
                        acc = AC + (m * 2 + tt) * 4
                        c = '0' if t == 0 else f'v[{acc}:{acc+3}]'
                        a(f'v_mfma_f32_16x16x32_bf16 v[{acc}:{acc+3}], v[{W+4*t}:{W+4*t+3}], v[{sl+4*tt}:{sl+4*tt+3}], {c}')
                if t + 5 < 20: rd(t + 5)
            a('s_nop 7')
            a('s_nop 1')
            ins = []
            for m, W in enumerate(Ws):
                for tt in range(2):
                    acc = AC + (m * 2 + tt) * 4
                    a(f'v_cvt_pk_bf16_f32 v{acc}, v{acc}, v{acc+1}')
                    a(f'v_cvt_pk_bf16_f32 v{acc+1}, v{acc+2}, v{acc+3}')
            for m, W in enumerate(Ws):
                for tt in range(2):
                    a(f's_add_u32 s{8+m*2+tt}, s44, {outs[m] + b*393216 + tt*6144}')
                    acc = AC + (m * 2 + tt) * 4
                    ins.append(f'buffer_store_dwordx2 v[{acc}:{acc+1}], v15, s[32:35], s{8+m*2+tt} offen')
            pub(a, ins)
        if kind != 'N': a(f's_branch {lbl("ST_E")}')
    a.label(lbl('ST_E'))
    a('s_waitcnt vmcnt(0)')
    a('s_barrier')
    a('s_cmp_lg_u32 s40, 0')
    a(f's_cbranch_scc1 {lbl("ST_X")}')
    a('s_lshl_b32 s42, s54, 7')
    a(f's_add_u32 s42, s42, {mega["F_T1"]}')
    a(f'v_mov_b32 v4, {mega["T1THR"] // 16}')
    a('v_mov_b32 v5, 0')
    a('s_mov_b64 exec, 1')
    pub(a, [f'buffer_atomic_add v4, v5, s[32:35], s42 offen offset:{1024*r}' for r in range(NS)])
    a('s_mov_b64 exec, -1')
    a.label(lbl('ST_X'))
    clog(a, mega, 133)

def chain4_body(a, mega):
    NW = 640 * 6144 * 2
    def lbl(n): return f'C4_{n}'
    clog(a, mega, 128)
    if mega.get('LOG'):
        a('s_lshl_b32 s43, s2, 12')
        a(f's_add_u32 s42, s43, {mega["LOG"] + 134*4}')
        a('s_lshl_b32 s43, s54, 8')
        a('s_or_b32 s43, s43, s55')
        a('v_mov_b32 v250, s43')
        a('v_mov_b32 v251, 0')
        a('buffer_store_dword v250, v251, s[32:35], s42 offen')
    a('s_lshr_b32 s56, s55, 3')
    a('s_and_b32 s57, s55, 7')
    a('s_lshl_b32 s58, s54, 1')
    a('s_add_u32 s58, s58, s56')
    a('s_lshr_b32 s59, s57, 2')
    a('s_lshl_b32 s60, s58, 1')
    a('s_add_u32 s59, s59, s60')
    a('s_and_b32 s61, s57, 3')
    a('s_mul_i32 s42, s59, 384')
    a('s_mul_i32 s43, s61, 96')
    a('s_add_u32 s62, s42, s43')
    a('s_and_b32 s41, s40, 3')
    a('s_cmp_lt_u32 s40, 4')
    a('s_cselect_b32 s24, s8, s12')
    a('s_cselect_b32 s25, s9, s13')
    a(f's_mov_b32 s26, {NW}')
    a('s_mov_b32 s27, 0x00020000')
    a('s_mul_i32 s42, s41, 960')
    STG = 180
    def wdma(stage=False):
        for i in range(15):
            a(f's_add_u32 s43, s42, {64*i}')
            a('v_add_u32 v4, s43, v1')
            a('v_mul_u32_u24 v5, 10923, v4')
            a('v_lshrrev_b32 v5, 16, v5')
            a('v_mul_u32_u24 v6, 6, v5')
            a('v_sub_u32 v6, v4, v6')
            a('v_mul_u32_u24 v5, 12288, v5')
            a('v_lshl_add_u32 v5, v6, 4, v5')
            if stage:
                a(f'buffer_load_dwordx4 v[{STG+4*i}:{STG+4*i+3}], v5, s[24:27], s62 offen')
                continue
            a('s_mul_i32 s43, s40, 15360')
            a(f's_add_u32 m0, s43, {1024*i}')
            a('s_nop 0')
            a('buffer_load_dwordx4 v5, s[24:27], s62 offen lds')
    M0R = 240
    def mem0_early():
        for i in range(2):
            a(f'v_add_u32 v4, {512*i}, v0')
            a('v_min_u32 v4, 639, v4')
            a('v_lshrrev_b32 v5, 6, v4')
            a('v_bfe_u32 v6, v4, 3, 1')
            a('v_mul_u32_u24 v6, 10, v6')
            a('v_add_u32 v5, v5, v6')
            a('v_bfe_u32 v6, v4, 4, 2')
            a('v_and_b32 v7, 7, v4')
            a('v_mul_u32_u24 v7, 1280, v7')
            a('v_lshl_add_u32 v7, v5, 6, v7')
            a('v_lshl_add_u32 v7, v6, 3, v7')
            a(f'buffer_load_dwordx2 v[{M0R+4*i}:{M0R+4*i+1}], v7, s[36:39], 0 offen')
            a(f'buffer_load_dwordx2 v[{M0R+4*i+2}:{M0R+4*i+3}], v7, s[36:39], 0 offen offset:32')
    wdma()
    a('v_lshlrev_b32 v15, 4, v1')
    a('v_lshlrev_b32 v13, 3, v1')
    STO = 100
    a('s_cmp_ge_u32 s40, 4')
    a(f's_cbranch_scc1 {lbl("R2WO")}')
    a('s_mov_b32 s24, s16')
    a('s_mov_b32 s25, s17')
    wdma(True)
    mem0_early()
    a('s_waitcnt vmcnt(19)')
    a(f's_branch {lbl("R2END")}')
    a.label(lbl('R2WO'))
    mem0_early()
    a('s_waitcnt vmcnt(4)')
    a.label(lbl('R2END'))
    a('s_barrier')
    clog(a, mega, 130)
    WQ, WK = 20, 100
    a('v_lshrrev_b32 v4, 2, v2')
    a('v_lshl_add_u32 v4, v3, 2, v4')
    a('v_mul_u32_u24 v4, 96, v4')
    a('v_and_b32 v5, 3, v2')
    a('v_lshl_add_u32 v4, v5, 3, v4')
    a('s_cmp_ge_u32 s40, 3')
    a(f's_cbranch_scc1 {lbl("NOSW")}')
    a('s_lshl_b32 s42, s40, 5')
    a('v_add_u32 v8, s42, v4')
    a('v_add_u32 v9, 61440, v8')
    for base, ad in ((WQ, 8), (WK, 9)):
        for t in range(20):
            f = base + 4 * t
            a(f'ds_read_b64_tr_b16 v[{f}:{f+1}], v{ad} offset:{t*3072}')
            a(f'ds_read_b64_tr_b16 v[{f+2}:{f+3}], v{ad} offset:{t*3072+1536}')
            if t % 4 == 3:
                a('s_waitcnt lgkmcnt(0)')
    a.label(lbl('NOSW'))
    a('s_waitcnt lgkmcnt(0)')
    a('s_barrier')
    a('s_cmp_ge_u32 s40, 4')
    a(f's_cbranch_scc1 {lbl("NOVS")}')
    a('s_mul_i32 s43, s40, 15360')
    a('v_add_u32 v5, s43, v15')
    for i in range(15):
        a(f's_waitcnt vmcnt({18-i})')
        a(f'ds_write_b128 v5, v[{STG+4*i}:{STG+4*i+3}] offset:{1024*i}')
    a.label(lbl('NOVS'))
    a('s_waitcnt lgkmcnt(0)')
    a('s_barrier')
    WO, VW = 16, 64
    a('s_sub_u32 s74, s40, 3')
    a('s_mov_b32 s79, 99')
    for wv, tl in ((3, 0), (7, 1), (6, 2)):
        a(f's_cmp_eq_u32 s40, {wv}')
        a(f's_cselect_b32 s79, {tl}, s79')
    a('s_cmp_eq_u32 s79, 99')
    a(f's_cbranch_scc1 {lbl("NOVW")}')
    a('v_lshrrev_b32 v4, 2, v2')
    a('v_lshl_add_u32 v4, v3, 2, v4')
    a('v_mul_u32_u24 v4, 96, v4')
    a('v_and_b32 v5, 3, v2')
    a('v_lshl_add_u32 v4, v5, 3, v4')
    a('s_lshl_b32 s42, s79, 5')
    a('v_add_u32 v8, s42, v4')
    for t in range(20):
        f = VW + 4 * t
        a(f'ds_read_b64_tr_b16 v[{f}:{f+1}], v8 offset:{t*3072}')
        a(f'ds_read_b64_tr_b16 v[{f+2}:{f+3}], v8 offset:{t*3072+1536}')
        if t % 4 == 3:
            a('s_waitcnt lgkmcnt(0)')
    a.label(lbl('NOVW'))
    a('s_waitcnt lgkmcnt(0)')
    a('s_barrier')
    a('s_cmp_lt_u32 s40, 4')
    a(f's_cbranch_scc1 {lbl("R2W67")}')
    a('s_cmp_ge_u32 s40, 6')
    a(f's_cbranch_scc1 {lbl("R2W67")}')
    a('s_mul_i32 s44, s58, 491520')
    a('s_mul_i32 s45, s57, 160')
    a('s_add_u32 s44, s44, s45')
    a('s_sub_u32 s42, s40, 4')
    a('s_mul_i32 s42, s42, 1920')
    for i in range(30):
        a(f's_add_u32 s43, s42, {64*i}')
        a('v_add_u32 v5, s43, v1')
        a('v_mul_u32_u24 v6, 6554, v5')
        a('v_lshrrev_b32 v6, 16, v6')
        a('v_mul_u32_u24 v7, 10, v6')
        a('v_sub_u32 v7, v5, v7')
        a('v_mul_u32_u24 v6, 1280, v6')
        a('v_lshl_add_u32 v6, v7, 4, v6')
        a(f'buffer_load_dwordx4 v[{STO+4*i}:{STO+4*i+3}], v6, s[28:31], s44 offen')
    a.label(lbl('R2W67'))
    clog(a, mega, 129)
    self_t1(a, mega, lbl, WQ, WK, VW)
    WOB = 20480
    a('s_cmp_eq_u32 s40, 4')
    a(f's_cbranch_scc1 {lbl("WOW")}')
    a('s_cmp_lg_u32 s40, 5')
    a(f's_cbranch_scc1 {lbl("WOW2")}')
    a.label(lbl('WOW'))
    a('s_sub_u32 s42, s40, 4')
    a('s_mul_i32 s42, s42, 30720')
    a(f's_add_u32 s42, s42, {WOB}')
    a('v_add_u32 v5, s42, v15')
    a('s_waitcnt vmcnt(0)')
    for i in range(30):
        a(f'ds_write_b128 v5, v[{STO+4*i}:{STO+4*i+3}] offset:{1024*i}')
    a.label(lbl('WOW2'))
    a('s_waitcnt lgkmcnt(0)')
    a('s_barrier')
    a('s_cmp_lt_u32 s40, 3')
    a(f's_cbranch_scc1 {lbl("NOZW")}')
    a('v_lshrrev_b32 v5, 2, v2')
    a('v_lshl_add_u32 v5, v3, 2, v5')
    a('v_mul_u32_u24 v5, 160, v5')
    a('v_and_b32 v6, 3, v2')
    a('v_lshl_add_u32 v5, v6, 3, v5')
    a('s_lshl_b32 s42, s74, 5')
    a(f's_add_u32 s42, s42, {WOB}')
    a('v_add_u32 v5, s42, v5')
    for hh in range(2):
        for b in range(6):
            f = WO + (hh * 6 + b) * 4
            ta, tb = BLK[b]
            a(f'ds_read_b64_tr_b16 v[{f}:{f+1}], v5 offset:{(hh*192 + 16*ta)*160}')
            a(f'ds_read_b64_tr_b16 v[{f+2}:{f+3}], v5 offset:{(hh*192 + 16*tb)*160}')
        a('s_waitcnt lgkmcnt(0)')
    a.label(lbl('NOZW'))
    a('s_waitcnt lgkmcnt(0)')
    a('s_barrier')
    a('v_mov_b32 v11, 0')
    a('v_cmp_gt_u32 vcc, 8, v2')
    a('s_mov_b64 s[64:65], vcc')
    a('s_mov_b32 s66, -1')
    a('s_mov_b32 s67, 0')
    a('s_mov_b32 s98, 0')
    a('s_mov_b32 s99, -1')
    a('ds_write_b32 v11, v11 offset:8')
    a('ds_write_b32 v11, v11 offset:12')
    a('ds_write_b32 v11, v11 offset:32')
    a('ds_write_b32 v11, v11 offset:40')
    a('ds_write_b32 v11, v11 offset:44')
    for r in range(4): a(f'v_mov_b32 v{4+r}, 0')
    a('v_lshlrev_b32 v8, 4, v0')
    a(f'v_add_u32 v8, {L_PXX}, v8')
    a('s_cmp_ge_u32 s40, 6')
    a(f's_cbranch_scc1 {lbl("NOZX")}')
    a('ds_write_b128 v8, v[4:7]')
    a('ds_write_b128 v8, v[4:7] offset:6144')
    a.label(lbl('NOZX'))
    a('v_lshlrev_b32 v6, 4, v0')
    a('s_waitcnt vmcnt(0)')
    a(f'ds_write_b128 v6, v[{M0R}:{M0R+3}] offset:{L_MEM}')
    a('s_cmp_ge_u32 s40, 2')
    a(f's_cbranch_scc1 {lbl("M0S")}')
    a(f'ds_write_b128 v6, v[{M0R+4}:{M0R+7}] offset:{L_MEM + 8192}')
    a.label(lbl('M0S'))
    a('v_mov_b32 v11, 0')
    a('s_lshr_b32 s68, s54, 1')
    a('s_mul_i32 s68, s68, 40960')
    a(f's_add_u32 s68, s68, {WS_MEMF}')
    a('s_mul_i32 s42, s58, 24576')
    a(f's_add_u32 s70, s42, {WS_KF}')
    a(f's_add_u32 s71, s42, {WS_VF}')
    a(f's_add_u32 s16, s42, {WS_QF}')
    a('s_sub_u32 s46, s40, 4')
    a('s_mul_i32 s46, s46, 6144')
    def dma_blk(src_s, lds_s):
        a(f's_add_u32 s43, s{src_s}, s46')
        a(f's_add_u32 s47, s{lds_s}, s46')
        for i in range(6):
            a(f's_add_u32 m0, s47, {1024*i}')
            if i:
                a('s_add_u32 s43, s43, 1024')
            else:
                a('s_nop 0')
            a(f'buffer_load_dwordx4 v15, s[32:35], s43 offen lds')
    a('s_lshl_b32 s77, s54, 7')
    a(f's_add_u32 s77, s77, {mega["F_T1"]}')
    a('s_lshl_b32 s50, s54, 4')
    a('s_add_u32 s50, s50, s55')
    a('s_lshl_b32 s50, s50, 7')
    a(f's_add_u32 s50, s50, {mega["F_ZX"]}')
    a('v_mov_b32 v255, 1')
    a('s_cmp_lt_u32 s40, 4')
    a(f's_cbranch_scc1 {lbl("NOPD")}')
    t1_wait(a, lbl('T1W0'), 77, mega['T1THR'], first=True)
    a(f's_mov_b32 s45, {L_KX}')
    dma_blk(70, 45)
    a(f's_mov_b32 s45, {L_VX}')
    dma_blk(71, 45)
    a(f's_mov_b32 s45, {L_QX}')
    dma_blk(16, 45)
    a('s_add_u32 s71, s71, 393216')
    a(f's_mov_b32 s45, {L_VX + 24576}')
    dma_blk(71, 45)
    a.label(lbl('NOPD'))
    a('s_mul_i32 s42, s58, 24576')
    a(f's_add_u32 s70, s42, {WS_KF + 393216}')
    a(f's_add_u32 s71, s42, {WS_VF + 2*393216}')
    a(f's_add_u32 s16, s42, {WS_QF + 393216}')
    a('s_mov_b32 s84, 0')
    a('s_mov_b32 s86, 0')
    a('s_mov_b32 s89, 1')
    a('s_waitcnt vmcnt(0) lgkmcnt(0)')
    a('s_barrier')
    a('s_cmp_ge_u32 s40, 3')
    a(f's_cbranch_scc1 {lbl("ZWAVE")}')
    SEL = 16
    MF = 180
    AC = 220
    a('s_setprio 3')
    a(f's_mov_b32 s87, {f2u(192 ** -0.5 * LOG2E):#x}')
    for r in range(4):
        a(f'v_mov_b32 v{SEL+r}, 0')
        a(f'v_mov_b32 v4, 0x3f80')
        a(f'v_cmp_eq_u32 vcc, {2*r}, v2')
        a(f'v_cndmask_b32 v{SEL+r}, v{SEL+r}, v4, vcc')
        a(f'v_mov_b32 v4, 0x3f800000')
        a(f'v_cmp_eq_u32 vcc, {2*r+1}, v2')
        a(f'v_cndmask_b32 v{SEL+r}, v{SEL+r}, v4, vcc')
    for r in range(4):
        a(f'v_lshl_add_u32 v4, v3, 2, {r}')
        a(f'v_cmp_le_u32 s[{8+2*r}:{9+2*r}], v4, v2')
    a('s_lshr_b32 s42, s61, 1')
    a('s_add_u32 s42, s42, 4')
    a('s_and_b32 s43, s61, 1')
    a('s_cmp_eq_u32 s40, 2')
    a('s_cselect_b32 s42, s42, s61')
    a('s_cselect_b32 s43, s43, s40')
    a('s_lshl_b32 s42, s42, 10')
    a('s_lshl_b32 s43, s43, 3')
    a('s_add_u32 s42, s42, s43')
    a('s_mul_i32 s43, s59, 6144')
    a('s_add_u32 s42, s42, s43')
    a(f's_add_u32 s72, s42, {WS_G1}')
    a('s_lshl_b32 s42, s58, 1')
    a('s_add_u32 s42, s42, s40')
    a('s_mul_i32 s42, s42, 6144')
    a(f's_add_u32 s75, s42, {WS_G1}')
    a('s_and_b32 s42, s54, 1')
    a('s_lshl_b32 s42, s42, 4')
    a('s_add_u32 s80, s42, s55')
    a('s_lshl_b32 s81, s80, 8')
    a(f's_add_u32 s81, s81, {WS_ZP}')
    a('v_mul_u32_u24 v10, 10240, v3')
    a('v_lshl_add_u32 v10, v2, 4, v10')
    def memf_base(dst, ct_s):
        a(f's_lshr_b32 s42, s{ct_s}, 1')
        a('s_cmp_ge_u32 s42, 10')
        a('s_cselect_b32 s43, 10, 0')
        a('s_cselect_b32 s44, 128, 0')
        a('s_sub_u32 s42, s42, s43')
        a('s_lshl_b32 s42, s42, 10')
        a('s_add_u32 s42, s42, s44')
        a(f's_and_b32 s43, s{ct_s}, 1')
        a('s_lshl_b32 s43, s43, 3')
        a('s_add_u32 s42, s42, s43')
        a(f's_add_u32 s{dst}, s42, s68')
    memf_base(82, 80)
    a('s_add_u32 s45, s80, 32')
    memf_base(73, 45)
    a(f'v_add_u32 v6, {L_MEM}, v15')
    a('s_mul_i32 s42, s40, 12288')
    a(f's_add_u32 s42, s42, {L_KX}')
    a('v_add_u32 v7, s42, v15')
    a('v_mov_b32 v8, -1')
    a('v_mov_b32 v9, -1')
    a('s_lshl_b32 s42, s40, 10')
    a(f's_add_u32 s42, s42, {L_PX}')
    a('v_add_u32 v5, s42, v15')
    a('s_cmp_eq_u32 s40, 0')
    a('s_cselect_b32 s42, 0, 256')
    a(f's_add_u32 s42, s42, {L_PM - 256}')
    a('v_add_u32 v4, s42, v13')
    a('s_lshl_b32 s42, s40, 2')
    a(f's_add_u32 s42, s42, {L_FLAG + 8}')
    a('v_mov_b32 v12, s42')
    a('s_mul_i32 s17, s40, 12288')
    a(f's_add_u32 s17, s17, {L_QX}')
    a('s_lshl_b32 s18, s40, 11')
    a(f's_add_u32 s18, s18, {L_PXX}')
    a('s_cmp_eq_u32 s40, 0')
    a('s_cselect_b32 s19, 0, 512')
    a(f's_add_u32 s19, s19, {L_PMX - 512}')
    a('s_mov_b32 s83, 0')
    a.label(lbl('SLOOP'))
    a('s_cmp_eq_u32 s40, 1')
    a(f's_cbranch_scc1 {lbl("SNW")}')
    a('s_waitcnt vmcnt(0)')
    a.label(lbl('SNW'))
    stamp(a, 0)
    a('s_barrier')
    stamp(a, 1)
    for t in range(10):
        a(f'ds_read_b128 v[{MF+4*t}:{MF+4*t+3}], v6 offset:{1024*t}')
    for t in range(10):
        a(f's_waitcnt lgkmcnt({9-t})')
        b = MF + 4 * t
        for ai, W in ((0, WQ + 4*t), (1, WQ + 4*(t+10)), (2, WK + 4*t), (3, WK + 4*(t+10))):
            acc = AC + 4 * ai
            c = '0' if t == 0 else f'v[{acc}:{acc+3}]'
            a(f'v_mfma_f32_16x16x32_bf16 v[{acc}:{acc+3}], v[{W}:{W+3}], v[{b}:{b+3}], {c}')
    a('s_mul_i32 s42, s86, 196608')
    a('s_add_u32 s42, s42, s72')
    a('s_nop 7')
    for r in range(4):
        a(f'v_add_f32_dpp v{AC+r}, v{AC+4+r}, v{AC+r} row_ror:8 row_mask:0xf bank_mask:0xf')
    for r in range(4):
        a(f'v_add_f32_dpp v{AC+12+r}, v{AC+8+r}, v{AC+12+r} row_ror:8 row_mask:0xf bank_mask:0xf')
    for r in range(4):
        a(f'v_mul_f32 v{AC+r}, s87, v{AC+r}')
    a('s_mov_b64 vcc, s[64:65]')
    for r in range(4):
        a(f'v_cndmask_b32 v{AC+r}, v{AC+12+r}, v{AC+r}, vcc')
    a(f'v_cvt_pk_bf16_f32 v{AC+4}, v{AC}, v{AC+1}')
    a(f'v_cvt_pk_bf16_f32 v{AC+5}, v{AC+2}, v{AC+3}')
    pub(a, [f'buffer_store_dwordx2 v[{AC+4}:{AC+5}], v15, s[32:35], s42 offen'])
    stamp(a, 2)
    a('s_add_u32 s43, s86, 2')
    a('s_and_b32 s43, s43, 3')
    a('s_mul_i32 s43, s43, 196608')
    a('s_add_u32 s43, s43, s72')
    pub(a, [f'buffer_store_dwordx2 v[8:9], v15, s[32:35], s43 offen'])
    a('s_cmp_lg_u32 s40, 2')
    a(f's_cbranch_scc1 {lbl("SC01")}')
    a(f's_cmp_ge_u32 s84, {NSTEP-1}')
    a(f's_cbranch_scc1 {lbl("DONE")}')
    def rd_pf():
        a(f'ds_read_b32 v{180}, v11 offset:{L_FLAG + 8}')
        a(f'ds_read_b32 v{181}, v11 offset:{L_FLAG + 12}')
    lds_spin(a, lbl('SPINR'), rd_pf, [180, 181], 14)
    if D_Z: a(f's_sleep {D_Z}')
    a(f's_branch {lbl("SRED")}')
    a.label(lbl('SC01'))
    R = 180
    KS = 204
    SC = 244
    def rd_k(i, slot):
        a(f'ds_read_b128 v[{KS+4*slot}:{KS+4*slot+3}], v7 offset:{1024*i}')
    for i in range(10): rd_k(i, i)
    a('s_mul_i32 s42, s86, 196608')
    a('s_add_u32 s42, s42, s75')
    a('s_add_u32 s43, s42, 4096')
    if D_SC: a(f's_sleep {D_SC}')
    def ld_g1():
        for b in range(6):
            so = 42 if b < 4 else 43
            a(f'buffer_load_dwordx4 v[{R+4*b}:{R+4*b+3}], v15, s[32:35], s{so} offen offset:{1024*(b%4)} sc1')
    poll_sent(a, lbl('POLLG'), ld_g1, [R + 4*b + o for b in range(6) for o in (0, 2)], 14)
    stamp(a, 3)
    a('s_waitcnt lgkmcnt(0)')
    for b in range(6):
        c = '0' if b == 0 else f'v[{SC+4}:{SC+7}]'
        a(f'v_mfma_f32_16x16x32_bf16 v[{SC+4}:{SC+7}], v[{KS+4*b}:{KS+4*b+3}], v[{R+4*b}:{R+4*b+3}], {c}')
    rd_k(10, 0); rd_k(11, 1)
    for b in range(6):
        c = '0' if b == 0 else f'v[{SC}:{SC+3}]'
        a(f'v_mfma_f32_16x16x32_bf16 v[{SC}:{SC+3}], v[{R+4*b}:{R+4*b+3}], v[{R+4*b}:{R+4*b+3}], {c}')
    a('s_waitcnt lgkmcnt(0)')
    for b in range(6):
        c = '0' if b == 0 else f'v[{SC+8}:{SC+11}]'
        sl = (6 + b) if b < 4 else (b - 4)
        a(f'v_mfma_f32_16x16x32_bf16 v[{SC+8}:{SC+11}], v[{KS+4*sl}:{KS+4*sl+3}], v[{R+4*b}:{R+4*b+3}], {c}')
    a(f'v_mov_b32 v14, {f2u(-1e30):#x}')
    a('v_cmp_gt_u32 vcc, 2, v3')
    a('s_nop 7')
    stamp(a, 4)
    for r in range(4):
        a(f'v_cndmask_b32 v{SC+r}, v{SC+r}, v14, vcc')
    M = 204
    a(f'v_max3_f32 v{M}, v{SC+4}, v{SC+5}, v{SC+6}')
    a(f'v_max3_f32 v{M+1}, v{SC+7}, v{SC+8}, v{SC+9}')
    a(f'v_max3_f32 v{M+2}, v{SC+10}, v{SC+11}, v{SC}')
    a(f'v_max3_f32 v{M+3}, v{SC+1}, v{SC+2}, v{SC+3}')
    a(f'v_max3_f32 v{M}, v{M}, v{M+1}, v{M+2}')
    a(f'v_max_f32 v{M}, v{M}, v{M+3}')
    def xg(op, v, t):
        a(f'v_mov_b32 v{t}, v{v}')
        a('s_nop 1')
        a(f'v_permlane32_swap_b32 v{v}, v{t}')
        a('s_nop 1')
        a(f'v_{op}_f32 v{v}, v{v}, v{t}')
        a(f'v_mov_b32 v{t}, v{v}')
        a('s_nop 1')
        a(f'v_permlane16_swap_b32 v{v}, v{t}')
        a('s_nop 1')
        a(f'v_{op}_f32 v{v}, v{v}, v{t}')
    def xg2(op, v, t, v2, t2):
        for sw in ('32', '16'):
            a(f'v_mov_b32 v{t}, v{v}')
            a(f'v_mov_b32 v{t2}, v{v2}')
            a('s_nop 0')
            a(f'v_permlane{sw}_swap_b32 v{v}, v{t}')
            a(f'v_permlane{sw}_swap_b32 v{v2}, v{t2}')
            a('s_nop 0')
            a(f'v_{op}_f32 v{v}, v{v}, v{t}')
            a(f'v_{op}_f32 v{v2}, v{v2}, v{t2}')
    xg('max', M, M + 1)
    for r in range(12):
        a(f'v_sub_f32 v{SC+r}, v{SC+r}, v{M}')
    for r in range(12):
        a(f'v_exp_f32 v{SC+r}, v{SC+r}')
    a('s_nop 0')
    L = M + 2
    a(f'v_add_f32 v{L}, v{SC}, v{SC+1}')
    a(f'v_add_f32 v{L+1}, v{SC+2}, v{SC+3}')
    a(f'v_add_f32 v{L+2}, v{SC+4}, v{SC+5}')
    a(f'v_add_f32 v{L+3}, v{SC+6}, v{SC+7}')
    a(f'v_add_f32 v{L+4}, v{SC+8}, v{SC+9}')
    a(f'v_add_f32 v{L+5}, v{SC+10}, v{SC+11}')
    a(f'v_add_f32 v{L}, v{L}, v{L+1}')
    a(f'v_add_f32 v{L+2}, v{L+2}, v{L+3}')
    a(f'v_add_f32 v{L+4}, v{L+4}, v{L+5}')
    a(f'v_add_f32 v{L}, v{L}, v{L+2}')
    a(f'v_add_f32 v{L}, v{L}, v{L+4}')
    xg('add', L, L + 1)
    a(f'v_rcp_f32 v{L}, v{L}')
    a('s_nop 0')
    for r in range(12):
        a(f'v_mul_f32 v{SC+r}, v{SC+r}, v{L}')
    PO = 216
    a(f'v_cvt_pk_bf16_f32 v{PO}, v{SC+4}, v{SC+5}')
    a(f'v_cvt_pk_bf16_f32 v{PO+1}, v{SC+6}, v{SC+7}')
    a(f'v_cvt_pk_bf16_f32 v{PO+2}, v{SC+8}, v{SC+9}')
    a(f'v_cvt_pk_bf16_f32 v{PO+3}, v{SC+10}, v{SC+11}')
    a(f'v_cvt_pk_bf16_f32 v{PO+4}, v{SC}, v{SC+1}')
    a(f'v_cvt_pk_bf16_f32 v{PO+5}, v{SC+2}, v{SC+3}')
    a('v_mov_b32 v14, s89')
    a(f'ds_write_b128 v5, v[{PO}:{PO+3}]')
    a('s_mov_b64 exec, s[98:99]')
    a(f'ds_write_b64 v4, v[{PO+4}:{PO+5}]')
    a('s_mov_b64 exec, -1')
    a(f'ds_write_b32 v12, v14')
    stamp(a, 5)
    if 'nox' not in OPT:
        a(f's_setprio {XPRIO}')
        def rd_p1():
            a(f'ds_read_b32 v{M}, v11 offset:{L_FLAG + 12}')
        lds_spin(a, lbl('SPINQ'), rd_p1, [M], 14)
        ST0, ST1, XA = 204, 220, 236
        m0, a0, m1, a1, b1 = XA, XA + 4, XA + 8, XA + 12, XA + 16
        a('v_add_u32 v14, s17, v15')
        def rdx(b, S):
            a(f'ds_read_b128 v[{S}:{S+3}], v14 offset:{1024*b}')
            a(f'ds_read_b128 v[{S+4}:{S+7}], v14 offset:{6144 + 1024*b}')
            a(f'ds_read_b128 v[{S+8}:{S+11}], v7 offset:{1024*b}')
            a(f'ds_read_b128 v[{S+12}:{S+15}], v7 offset:{6144 + 1024*b}')
        rdx(0, ST0); rdx(1, ST1)
        for b in range(6):
            S = ST0 if b % 2 == 0 else ST1
            a(f's_waitcnt lgkmcnt({4 if b < 5 else 0})')
            for acc, A, B in ((m0, R + 4*b, S), (a0, S + 8, S), (m1, R + 4*b, S + 4), (a1, S + 8, S + 4), (b1, S + 12, S + 4)):
                c = '0' if b == 0 else f'v[{acc}:{acc+3}]'
                a(f'v_mfma_f32_16x16x32_bf16 v[{acc}:{acc+3}], v[{A}:{A+3}], v[{B}:{B+3}], {c}')
            if b + 2 < 6: rdx(b + 2, S)
        T = 204
        a(f'v_mov_b32 v{T}, {f2u(-1e30):#x}')
        a('s_nop 7')
        for r in range(4):
            a(f'v_cndmask_b32 v{m0+r}, v{T}, v{m0+r}, s[98:99]')
            a(f'v_cndmask_b32 v{m1+r}, v{T}, v{m1+r}, s[98:99]')
            a(f'v_cndmask_b32 v{a0+r}, v{T}, v{a0+r}, s[{8+2*r}:{9+2*r}]')
            a(f'v_cndmask_b32 v{b1+r}, v{T}, v{b1+r}, s[{8+2*r}:{9+2*r}]')
        M0, M1 = T + 1, T + 2
        a(f'v_max3_f32 v{M0}, v{m0}, v{m0+1}, v{m0+2}')
        a(f'v_max3_f32 v{M1}, v{m1}, v{m1+1}, v{m1+2}')
        a(f'v_max3_f32 v{M0}, v{M0}, v{m0+3}, v{a0}')
        a(f'v_max3_f32 v{M1}, v{M1}, v{m1+3}, v{a1}')
        a(f'v_max3_f32 v{M0}, v{M0}, v{a0+1}, v{a0+2}')
        a(f'v_max3_f32 v{M1}, v{M1}, v{a1+1}, v{a1+2}')
        a(f'v_max_f32 v{M0}, v{M0}, v{a0+3}')
        a(f'v_max3_f32 v{M1}, v{M1}, v{a1+3}, v{b1}')
        a(f'v_max3_f32 v{M1}, v{M1}, v{b1+1}, v{b1+2}')
        a(f'v_max_f32 v{M1}, v{M1}, v{b1+3}')
        xg2('max', M0, T + 3, M1, T + 4)
        a(f'v_mul_f32 v{M0}, s87, v{M0}')
        a(f'v_mul_f32 v{M1}, s87, v{M1}')
        g0 = [m0 + r for r in range(4)] + [a0 + r for r in range(4)]
        g1 = [m1 + r for r in range(4)] + [a1 + r for r in range(4)] + [b1 + r for r in range(4)]
        for regs, mm in ((g0, M0), (g1, M1)):
            for v in regs:
                a(f'v_fma_f32 v{v}, v{v}, s87, -v{mm}')
        for v in g0 + g1:
            a(f'v_exp_f32 v{v}, v{v}')
        a('s_nop 0')
        L0, L1 = T + 1, T + 2
        a(f'v_add_f32 v{L0}, v{g0[0]}, v{g0[1]}')
        a(f'v_add_f32 v{L1}, v{g1[0]}, v{g1[1]}')
        a(f'v_add_f32 v{T+3}, v{g0[2]}, v{g0[3]}')
        a(f'v_add_f32 v{T+4}, v{g1[2]}, v{g1[3]}')
        a(f'v_add_f32 v{T+5}, v{g0[4]}, v{g0[5]}')
        a(f'v_add_f32 v{T+6}, v{g1[4]}, v{g1[5]}')
        a(f'v_add_f32 v{T+7}, v{g0[6]}, v{g0[7]}')
        a(f'v_add_f32 v{T+8}, v{g1[6]}, v{g1[7]}')
        a(f'v_add_f32 v{T+9}, v{g1[8]}, v{g1[9]}')
        a(f'v_add_f32 v{T+10}, v{g1[10]}, v{g1[11]}')
        a(f'v_add_f32 v{L0}, v{L0}, v{T+3}')
        a(f'v_add_f32 v{L1}, v{L1}, v{T+4}')
        a(f'v_add_f32 v{T+5}, v{T+5}, v{T+7}')
        a(f'v_add_f32 v{T+6}, v{T+6}, v{T+8}')
        a(f'v_add_f32 v{T+9}, v{T+9}, v{T+10}')
        a(f'v_add_f32 v{L0}, v{L0}, v{T+5}')
        a(f'v_add_f32 v{L1}, v{L1}, v{T+6}')
        a('s_nop 0')
        a(f'v_add_f32 v{L1}, v{L1}, v{T+9}')
        xg2('add', L0, T + 3, L1, T + 4)
        a(f'v_rcp_f32 v{L0}, v{L0}')
        a(f'v_rcp_f32 v{L1}, v{L1}')
        a('s_nop 0')
        for regs, ll in ((g0, L0), (g1, L1)):
            for v in regs:
                a(f'v_mul_f32 v{v}, v{v}, v{ll}')
        O = 216
        a(f'v_cvt_pk_bf16_f32 v{O}, v{a0}, v{a0+1}')
        a(f'v_cvt_pk_bf16_f32 v{O+1}, v{a0+2}, v{a0+3}')
        a(f'v_cvt_pk_bf16_f32 v{O+2}, v{a1}, v{a1+1}')
        a(f'v_cvt_pk_bf16_f32 v{O+3}, v{a1+2}, v{a1+3}')
        a(f'v_cvt_pk_bf16_f32 v{O+4}, v{b1}, v{b1+1}')
        a(f'v_cvt_pk_bf16_f32 v{O+5}, v{b1+2}, v{b1+3}')
        a(f'v_cvt_pk_bf16_f32 v{O+6}, v{m0}, v{m0+1}')
        a(f'v_cvt_pk_bf16_f32 v{O+7}, v{m0+2}, v{m0+3}')
        a(f'v_cvt_pk_bf16_f32 v{O+8}, v{m1}, v{m1+1}')
        a(f'v_cvt_pk_bf16_f32 v{O+9}, v{m1+2}, v{m1+3}')
        a('s_and_b32 s42, s84, 1')
        a('s_mul_i32 s42, s42, 6144')
        a('s_add_u32 s43, s42, s18')
        a('s_add_u32 s42, s42, s19')
        a('v_add_u32 v14, s43, v15')
        a(f'v_add_u32 v{T}, s42, v15')
        a(f'ds_write_b64 v14, v[{O}:{O+1}]')
        a(f'ds_write_b128 v14, v[{O+2}:{O+5}] offset:1024')
        a('s_mov_b64 exec, s[98:99]')
        a(f'ds_write_b64 v{T}, v[{O+6}:{O+7}]')
        a(f'ds_write_b64 v{T}, v[{O+8}:{O+9}] offset:1024')
        a('s_mov_b64 exec, -1')
        a('v_mov_b32 v14, s89')
        a(f'ds_write_b32 v12, v14 offset:32')
        a('s_setprio 3')
    stamp(a, 6)
    a('s_xor_b32 s83, s83, 1')
    a('s_mul_i32 s42, s83, 24576')
    a('s_mul_i32 s43, s40, 12288')
    a('s_add_u32 s42, s42, s43')
    a(f's_add_u32 s42, s42, {L_KX}')
    a('v_add_u32 v7, s42, v15')
    a(f's_cmp_ge_u32 s84, {NSTEP-1}')
    a(f's_cbranch_scc1 {lbl("DONE")}')
    a('s_cmp_eq_u32 s40, 0')
    a(f's_cbranch_scc1 {lbl("SW0")}')
    if 'nox' not in OPT:
        def rd_xa():
            a(f'ds_read_b32 v{204}, v11 offset:{L_FLAG + 40}')
        lds_spin(a, lbl('SPINXA'), rd_xa, [204], 14)
        a('s_mov_b32 s43, s16')
        for i in range(24):
            a(f's_mov_b32 m0, {L_QX + 1024*i}')
            if i: a('s_add_u32 s43, s43, 1024')
            else: a('s_nop 0')
            a(f'buffer_load_dwordx4 v15, s[32:35], s43 offen lds')
        a('s_add_u32 s16, s16, 393216')
    a(f's_branch {lbl("NORED")}')
    a.label(lbl('SW0'))
    a(f's_branch {lbl("NORED")}')
    a.label(lbl('SRED'))
    a('s_mul_i32 s42, s86, 163840')
    a('s_add_u32 s42, s42, s81')
    a('s_add_u32 s43, s86, 1')
    a('s_and_b32 s43, s43, 3')
    a('s_mul_i32 s44, s43, 10240')
    a('s_add_u32 s43, s43, 2')
    a('s_and_b32 s43, s43, 3')
    a('s_mul_i32 s45, s43, 10240')
    a('s_cmp_lt_u32 s80, 8')
    a(f's_cbranch_scc1 {lbl("RED2")}')
    ZA = 228
    RD = 184
    for n, L_ in ((1, 'RED1'), (2, 'RED2')):
        a.label(lbl(L_))
        def ld_z():
            for k in range(n):
                for i in range(4):
                    a(f's_add_u32 s43, s42, {i*40960 + k*8192}')
                    a(f'buffer_load_dwordx4 v[{RD+16*k+4*i}:{RD+16*k+4*i+3}], v10, s[32:35], s43 offen sc1')
        if n == 1: stampc(a, 7)
        poll_sent(a, lbl(f'POLLZ{n}'), ld_z, [RD + 4*i + o for i in range(4*n) for o in (0, 2)], 14)
        stamp(a, 8)
        for i in range(4):
            for k in range(n):
                acc = ZA + 8 * k
                c = '0' if i == 0 else f'v[{acc}:{acc+3}]'
                a(f'v_mfma_f32_16x16x32_bf16 v[{acc}:{acc+3}], v[{RD+16*k+4*i}:{RD+16*k+4*i+3}], v[{SEL}:{SEL+3}], {c}')
        a('s_add_u32 s42, s44, s82')
        a('s_add_u32 s43, s45, s82')
        a('s_add_u32 s46, s44, s73')
        a('s_add_u32 s47, s45, s73')
        a('s_nop 7')
        for k in range(n):
            acc = ZA + 8 * k
            a(f'v_cvt_pk_bf16_f32 v{acc+4}, v{acc}, v{acc+1}')
            a(f'v_cvt_pk_bf16_f32 v{acc+5}, v{acc+2}, v{acc+3}')
        a('s_mov_b64 exec, s[64:65]')
        ins = [f'buffer_store_dwordx2 v[{ZA+4}:{ZA+5}], v15, s[32:35], s42 offen']
        if n == 2: ins.append(f'buffer_store_dwordx2 v[{ZA+12}:{ZA+13}], v15, s[32:35], s46 offen')
        ins.append(f'buffer_store_dwordx2 v[8:9], v15, s[32:35], s43 offen')
        if n == 2: ins.append(f'buffer_store_dwordx2 v[8:9], v15, s[32:35], s47 offen')
        pub(a, ins)
        a('s_mov_b64 exec, -1')
        if n == 1: a(f's_branch {lbl("NORED")}')
    a.label(lbl('NORED'))
    stamp(a, 9)
    a('s_add_u32 s84, s84, 1')
    a('s_add_u32 s89, s89, 1')
    a('s_and_b32 s86, s84, 3')
    a(f's_branch {lbl("SLOOP")}')
    a.label(lbl('ZWAVE'))
    MF = 144; AC = 184; YF = 192; UC = 200; ST = 204; YA = 228; PF = 240
    YF2 = MF + 32
    SN = 8
    if ZPRIO: a(f's_setprio {ZPRIO}')
    a('v_mov_b32 v12, 0')
    for r in (UC + 2, UC + 3, PF + 10, PF + 11):
        a(f'v_mov_b32 v{r}, 0')
    a('s_mul_i32 s75, s57, 5')
    a('s_add_u32 s75, s75, s74')
    a('s_mul_i32 s78, s58, 40')
    a('s_add_u32 s78, s78, s75')
    a('s_lshl_b32 s78, s78, 8')
    a(f's_add_u32 s78, s78, {WS_ZP}')
    a(f's_mul_i32 s17, s58, {SLAB}')
    a('s_lshl_b32 s42, s75, 9')
    a('s_add_u32 s17, s17, s42')
    a(f's_add_u32 s17, s17, {WS_SL}')
    a('s_lshl_b32 s42, s74, 11')
    a('s_add_u32 s69, s68, s42')
    a(f's_add_u32 s42, s42, {L_MEM}')
    a('v_add_u32 v7, s42, v15')
    a(f'v_add_u32 v6, {L_MEM}, v15')
    a('s_lshr_b32 s42, s61, 1')
    a('s_add_u32 s42, s42, 4')
    a('s_and_b32 s43, s61, 1')
    a('s_cmp_eq_u32 s79, 2')
    a('s_cselect_b32 s42, s42, s61')
    a('s_cselect_b32 s43, s43, s79')
    a('s_lshl_b32 s42, s42, 10')
    a('s_lshl_b32 s43, s43, 3')
    a('s_add_u32 s42, s42, s43')
    a('s_lshr_b32 s43, s57, 2')
    a('s_lshl_b32 s43, s43, 7')
    a('s_add_u32 s42, s42, s43')
    a('s_mul_i32 s43, s58, 6144')
    a('s_add_u32 s42, s42, s43')
    a(f's_add_u32 s72, s42, {WS_G2}')
    a(f's_add_u32 s76, s43, {WS_G2}')
    for r in range(8, 12):
        a(f'v_mov_b32 v{r}, -1')
    a('s_mov_b32 s83, 0')
    def y_compute(dst):
        a('s_mul_i32 s42, s83, 24576')
        a(f's_add_u32 s42, s42, {L_VX}')
        a('v_add_u32 v5, s42, v15')
        seq = [(hh, tt, b) for hh in range(2) for tt in range(2) for b in range(6)]
        NB = 6
        def rd(i):
            hh, tt, b = seq[i]
            r = ST + 4 * (i % NB)
            a(f'ds_read_b128 v[{r}:{r+3}], v5 offset:{hh*12288 + tt*6144 + b*1024}')
        for i in range(5): rd(i)
        for i in range(24):
            hh, tt, b = seq[i]
            a(f's_waitcnt lgkmcnt({min(4, 23 - i)})')
            r = ST + 4 * (i % NB)
            acc = YA + (hh * 2 + tt) * 4
            c = '0' if b == 0 else f'v[{acc}:{acc+3}]'
            w = WO + (hh * 6 + b) * 4
            a(f'v_mfma_f32_16x16x32_bf16 v[{acc}:{acc+3}], v[{r}:{r+3}], v[{w}:{w+3}], {c}')
            if i + 5 < 24: rd(i + 5)
        a('s_nop 7')
        for q in range(4):
            acc = YA + 4 * q
            a(f'v_cvt_pk_bf16_f32 v{dst+2*q}, v{acc}, v{acc+1}')
            a(f'v_cvt_pk_bf16_f32 v{dst+2*q+1}, v{acc+2}, v{acc+3}')
        a('s_xor_b32 s83, s83, 1')
    def zx_store():
        a('s_add_u32 s42, s17, 20480')
        a(f'buffer_store_dwordx2 v[{YA+8}:{YA+9}], v13, s[32:35], s17 offen sc1')
        a(f'buffer_store_dwordx2 v[{YA+10}:{YA+11}], v13, s[32:35], s42 offen sc1')
        a('s_add_u32 s17, s17, 40960')
    def zx(par_s, store=True):
        YO = YF2
        a(f's_and_b32 s42, s{par_s}, 1')
        a('s_mul_i32 s42, s42, 6144')
        a(f's_add_u32 s42, s42, {L_PXX}')
        a('v_add_u32 v5, s42, v15')
        for q in range(6):
            a(f'ds_read_b128 v[{ST+4*q}:{ST+4*q+3}], v5 offset:{1024*q}')
        for k in range(3):
            a(f's_waitcnt lgkmcnt({4 - 2*k})')
            A = (YO, YO + 4, UC)[k]
            for tt in range(2):
                acc = YA + 4 * tt
                c = '0' if k == 0 else f'v[{acc}:{acc+3}]'
                a(f'v_mfma_f32_16x16x32_bf16 v[{acc}:{acc+3}], v[{A}:{A+3}], v[{ST+8*k+4*tt}:{ST+8*k+4*tt+3}], {c}')
        a('s_nop 7')
        a('s_nop 1')
        for tt in range(2):
            acc = YA + 4 * tt
            a(f'v_cvt_pk_bf16_f32 v{YA+8+2*tt}, v{acc}, v{acc+1}')
            a(f'v_cvt_pk_bf16_f32 v{YA+9+2*tt}, v{acc+2}, v{acc+3}')
        if store: zx_store()
    y_compute(YF)
    a.label(lbl('ZLOOP'))
    stamp(a, 0)
    a('s_barrier')
    stamp(a, 1)
    a('s_cmp_eq_u32 s40, 3')
    a(f's_cbranch_scc1 {lbl("NODMA")}')
    a('s_and_b32 s42, s84, 3')
    a('s_cmp_lg_u32 s42, 2')
    a(f's_cbranch_scc1 {lbl("NOFL")}')
    a('s_add_u32 s42, s84, 2')
    a('s_lshl_b32 s42, s42, 8')
    a('s_add_u32 s93, s42, s77')
    a('buffer_load_dword v254, v12, s[32:35], s93 offen sc1')
    a.label(lbl('NOFL'))
    a('s_cmp_lg_u32 s40, 5')
    a(f's_cbranch_scc1 {lbl("NOHS")}')
    if mega.get('LOG'):
        a('s_memrealtime s[96:97]')
        a('s_lshl_b32 s42, s84, 2')
        a('s_lshl_b32 s43, s2, 12')
        a('s_add_u32 s42, s42, s43')
        a(f's_add_u32 s42, s42, {mega["LOG"]}')
        a('s_waitcnt lgkmcnt(0)')
        a('v_mov_b32 v14, s96')
        a('s_memtime s[96:97]')
        a('s_mov_b64 exec, 1')
        a('buffer_store_dword v14, v12, s[32:35], s42 offen')
        a('s_waitcnt lgkmcnt(0)')
        a('v_mov_b32 v14, s96')
        a('s_nop 1')
        a('buffer_store_dword v14, v12, s[32:35], s42 offen offset:256')
        a('s_mov_b64 exec, -1')
    a('s_and_b32 s42, s84, 3')
    a('s_cmp_lg_u32 s42, 1')
    a(f's_cbranch_scc1 {lbl("NOHS")}')
    a('s_cmp_eq_u32 s84, 1')
    a(f's_cbranch_scc1 {lbl("NOHS")}')
    a('s_lshr_b32 s42, s84, 2')
    a('v_mov_b32 v14, s42')
    a('s_mov_b64 exec, 1')
    a('buffer_store_dword v14, v12, s[32:35], s50 offen sc1')
    a('s_mov_b64 exec, -1')
    a.label(lbl('NOHS'))
    a('s_and_b32 s42, s84, 1')
    a('s_xor_b32 s42, s42, 1')
    a('s_mul_i32 s44, s42, 24576')
    a(f's_add_u32 s44, s44, {L_KX}')
    dma_blk(70, 44)
    a('s_add_u32 s70, s70, 393216')
    a.label(lbl('NODMA'))
    a('s_cmp_eq_u32 s79, 99')
    a(f's_cbranch_scc1 {lbl("NOV")}')
    for t in range(8):
        a(f'ds_read_b128 v[{MF+4*t}:{MF+4*t+3}], v6 offset:{1024*t}')
    for t in range(10):
        a(f's_waitcnt lgkmcnt({7 if t < 2 else 9 - t})')
        b = MF + 4 * (t % 8)
        for ai, W in ((0, VW + 4*t), (1, VW + 4*(t+10))):
            acc = AC + 4 * ai
            c = '0' if t == 0 else f'v[{acc}:{acc+3}]'
            a(f'v_mfma_f32_16x16x32_bf16 v[{acc}:{acc+3}], v[{W}:{W+3}], v[{b}:{b+3}], {c}')
        if t < 2:
            a(f'ds_read_b128 v[{MF+4*t}:{MF+4*t+3}], v6 offset:{1024*(t+8)}')
    a('s_mul_i32 s42, s86, 98304')
    a('s_add_u32 s42, s42, s72')
    a('s_nop 7')
    for r in range(4):
        a(f'v_add_f32_dpp v{AC+r}, v{AC+4+r}, v{AC+r} row_ror:8 row_mask:0xf bank_mask:0xf')
    a('s_nop 0')
    a(f'v_cvt_pk_bf16_f32 v{AC+4}, v{AC}, v{AC+1}')
    a(f'v_cvt_pk_bf16_f32 v{AC+5}, v{AC+2}, v{AC+3}')
    a('s_add_u32 s43, s86, 2')
    a('s_and_b32 s43, s43, 3')
    a('s_mul_i32 s43, s43, 98304')
    a('s_add_u32 s43, s43, s72')
    a('s_mov_b64 exec, s[64:65]')
    pub(a, [f'buffer_store_dwordx2 v[{AC+4}:{AC+5}], v15, s[32:35], s42 offen'])
    pub(a, [f'buffer_store_dwordx2 v[8:9], v15, s[32:35], s43 offen'])
    a('s_mov_b64 exec, -1')
    a.label(lbl('NOV'))
    stamp(a, 2)
    if 'nox' not in OPT:
        a('s_cmp_eq_u32 s84, 0')
        a(f's_cbranch_scc1 {lbl("NOZXX")}')
        a('s_add_u32 s48, s84, 1')
        zx(48, store=(ZXS == 0))
        a.label(lbl('NOZXX'))
    stamp(a, 9)
    a(f's_cmp_lg_u32 s40, {VPW}')
    a(f's_cbranch_scc1 {lbl("NOVP")}')
    a('s_mul_i32 s42, s86, 98304')
    a('s_add_u32 s42, s42, s76')
    a('s_add_u32 s43, s42, 4096')
    if D_V: a(f's_sleep {D_V}')
    def ld_g2():
        for b in range(6):
            so = 42 if b < 4 else 43
            a(f'buffer_load_dwordx4 v[{MF+4*b}:{MF+4*b+3}], v15, s[32:35], s{so} offen offset:{1024*(b%4)} sc1')
    poll_sent(a, lbl('POLLV'), ld_g2, [MF + 4*b + o for b in range(6) for o in (0, 2)], 14)
    for b in range(6):
        a(f'ds_write_b128 v15, v[{MF+4*b}:{MF+4*b+3}] offset:{L_VM + 1024*b}')
    a('v_mov_b32 v14, s89')
    a(f'ds_write_b32 v12, v14 offset:{L_FLAG + 32}')
    a.label(lbl('NOVP'))
    def rd_vm():
        a(f'ds_read_b32 v{PF+12}, v12 offset:{L_FLAG + 32}')
        for b in range(6):
            a(f'ds_read_b128 v[{ST+4*b}:{ST+4*b+3}], v15 offset:{L_VM + 1024*b}')
    lds_spin(a, lbl('SPINV'), rd_vm, [PF + 12], 14)
    stamp(a, 3)
    def vx_dma():
        a('s_cmp_eq_u32 s40, 3')
        a(f's_cbranch_scc1 {lbl("NODMA2")}')
        a('s_and_b32 s42, s84, 3')
        a('s_cmp_lg_u32 s42, 2')
        a(f's_cbranch_scc1 {lbl("T1W_OK")}')
        a('s_cmp_ge_u32 s84, 62')
        a(f's_cbranch_scc1 {lbl("T1W_OK")}')
        t1_wait(a, lbl('T1W'), 93, mega['T1THR'])
        a('s_and_b32 s42, s84, 1')
        a('s_mul_i32 s44, s42, 24576')
        a(f's_add_u32 s45, s44, {L_VX}')
        dma_blk(71, 45)
        a('s_add_u32 s71, s71, 393216')
        a.label(lbl('NODMA2'))
    for b in range(6):
        for hh in range(2):
            acc = YA + 4 * hh
            c = '0' if b == 0 else f'v[{acc}:{acc+3}]'
            w = WO + (hh * 6 + b) * 4
            a(f'v_mfma_f32_16x16x32_bf16 v[{acc}:{acc+3}], v[{ST+4*b}:{ST+4*b+3}], v[{w}:{w+3}], {c}')
    a('s_mov_b64 vcc, s[66:67]')
    a('s_nop 7')
    for r in range(4):
        a(f'v_cndmask_b32 v{YA+r}, v{YA+4+r}, v{YA+r}, vcc')
    a(f'v_cvt_pk_bf16_f32 v{UC}, v{YA}, v{YA+1}')
    a(f'v_cvt_pk_bf16_f32 v{UC+1}, v{YA+2}, v{YA+3}')
    if ZXS == 1 and 'nox' not in OPT:
        a('s_cmp_eq_u32 s84, 0')
        a(f's_cbranch_scc1 {lbl("NOZXS")}')
        zx_store()
        a.label(lbl('NOZXS'))
    stamp(a, 4)
    FA, FB_ = PF + 12, PF + 13
    def rd_p():
        a(f'ds_read_b32 v{FA}, v12 offset:{L_FLAG + 8}')
        a(f'ds_read_b32 v{FB_}, v12 offset:{L_FLAG + 12}')
        a(f'ds_read_b128 v[{PF}:{PF+3}], v15 offset:{L_PX}')
        a(f'ds_read_b128 v[{PF+4}:{PF+7}], v15 offset:{L_PX + 1024}')
        a(f'ds_read_b64 v[{PF+8}:{PF+9}], v13 offset:{L_PM}')
    lds_spin(a, lbl('SPINP'), rd_p, [FA, FB_], 14)
    stamp(a, 5)
    a(f'v_mfma_f32_16x16x32_bf16 v[{AC}:{AC+3}], v[{PF}:{PF+3}], v[{YF}:{YF+3}], 0')
    a(f'v_mfma_f32_16x16x32_bf16 v[{AC}:{AC+3}], v[{PF+4}:{PF+7}], v[{YF+4}:{YF+7}], v[{AC}:{AC+3}]')
    a(f'v_mfma_f32_16x16x32_bf16 v[{AC}:{AC+3}], v[{PF+8}:{PF+11}], v[{UC}:{UC+3}], v[{AC}:{AC+3}]')
    a('s_mul_i32 s42, s86, 163840')
    a('s_add_u32 s42, s42, s78')
    a('s_add_u32 s43, s86, 2')
    a('s_and_b32 s43, s43, 3')
    a('s_mul_i32 s43, s43, 163840')
    a('s_add_u32 s49, s43, s78')
    a('s_nop 7')
    a(f'v_cvt_pk_bf16_f32 v{AC+4}, v{AC}, v{AC+1}')
    a(f'v_cvt_pk_bf16_f32 v{AC+5}, v{AC+2}, v{AC+3}')
    a(f'v_mov_b32 v{AC+6}, v{AC+4}')
    a(f'v_mov_b32 v{AC+7}, v{AC+5}')
    a('s_nop 1')
    a(f'v_permlane16_swap_b32 v{AC+4}, v{AC+6}')
    a(f'v_permlane16_swap_b32 v{AC+5}, v{AC+7}')
    a('s_mov_b64 exec, 0xffff')
    a(f'buffer_store_dwordx4 v[{AC+4}:{AC+7}], v15, s[32:35], s42 offen sc1')
    a('s_mov_b64 exec, -1')
    stamp(a, 6)
    if ZXS == 2 and 'nox' not in OPT:
        a('s_cmp_eq_u32 s84, 0')
        a(f's_cbranch_scc1 {lbl("NOZXS")}')
        zx_store()
        a.label(lbl('NOZXS'))
    vx_dma()
    for r in range(8):
        a(f'v_mov_b32 v{YF2+r}, v{YF+r}')
    y_compute(YF)
    a('s_mov_b64 exec, 0xffff')
    a(f'buffer_store_dwordx4 v[{SN}:{SN+3}], v15, s[32:35], s49 offen sc1')
    a('s_mov_b64 exec, -1')
    stamp(a, 7)
    a(f's_cmp_ge_u32 s84, {NSTEP-1}')
    a(f's_cbranch_scc1 {lbl("DONE")}')
    a('s_add_u32 s84, s84, 1')
    a('s_add_u32 s89, s89, 1')
    a('s_and_b32 s86, s84, 3')
    a('s_mul_i32 s42, s86, 10240')
    a('s_add_u32 s42, s42, s69')
    if D_MEM: a(f's_sleep {D_MEM}')
    def ld_mem():
        a(f'buffer_load_dwordx4 v[{MF}:{MF+3}], v15, s[32:35], s42 offen sc1')
        a(f'buffer_load_dwordx4 v[{MF+4}:{MF+7}], v15, s[32:35], s42 offen offset:1024 sc1')
    poll_sent(a, lbl('POLLM'), ld_mem, [MF, MF + 2, MF + 4, MF + 6], 14)
    a(f'ds_write_b128 v7, v[{MF}:{MF+3}]')
    a(f'ds_write_b128 v7, v[{MF+4}:{MF+7}] offset:1024')
    a('s_waitcnt lgkmcnt(0)')
    stamp(a, 8)
    a(f's_branch {lbl("ZLOOP")}')
    a.label(lbl('DONE'))
    a('s_setprio 0')
    if 'tmo' in OPT:
        l = a.newlabel('TM')
        a(f's_cmp_lt_u32 s88, {TMO:#x}')
        a(f's_cbranch_scc1 {l}')
        a(f's_load_dwordx2 s[96:97], s[0:1], {KA["dbg"]}')
        a('s_waitcnt lgkmcnt(0)')
        a('v_mov_b32 v4, 0')
        a('v_mov_b32 v5, 1')
        a('s_mov_b64 exec, 1')
        a('global_atomic_add v4, v5, s[96:97]')
        a('s_lshl_b32 s42, s2, 8')
        a('s_or_b32 s42, s42, s40')
        a('s_or_b32 s42, s42, 0x10000')
        a('v_mov_b32 v5, s42')
        a('global_store_dword v4, v5, s[96:97] offset:4')
        a('s_mov_b64 exec, -1')
        a.label(l)
    a('s_waitcnt lgkmcnt(0)')
    a('s_barrier')
    if 'nox' not in OPT:
        a('s_cmp_lt_u32 s40, 3')
        a(f's_cbranch_scc1 {lbl("NOZXL")}')
        zx(84)
        a.label(lbl('NOZXL'))
    a('s_waitcnt vmcnt(0) lgkmcnt(0)')
    a('s_barrier')
    a('s_cmp_lg_u32 s40, 0')
    a(f's_cbranch_scc1 {lbl("NOHS2")}')
    a('v_mov_b32 v255, 16')
    a('v_mov_b32 v12, 0')
    a('s_mov_b64 exec, 1')
    a('buffer_store_dword v255, v12, s[32:35], s50 offen sc1')
    a('s_mov_b64 exec, -1')
    a.label(lbl('NOHS2'))
    if 'gst' in OPT:
        a('s_lshl_b32 s42, s2, 12')
        a('s_lshl_b32 s43, s40, 6')
        a('s_add_u32 s42, s42, s43')
        a(f's_add_u32 s42, s42, {0x1C00000}')
        a('v_mov_b32 v4, 0')
        a('s_mov_b64 exec, 1')
        for i in range(10):
            a(f'v_mov_b32 v5, s{SB+i}')
            a(f'buffer_store_dword v5, v4, s[32:35], s42 offen offset:{4*i}')
            a('s_nop 1')
        a('s_lshl_b32 s43, s54, 4')
        a('s_add_u32 s43, s43, s55')
        a('s_add_u32 s43, s43, 0x1000')
        a('v_mov_b32 v5, s43')
        a('buffer_store_dword v5, v4, s[32:35], s42 offen offset:40')
        a('s_mov_b64 exec, -1')
```

```python
from asmlib import *
from layout2 import *
from k_t1 import lane_decomp, OPT, SLOT
from k_chain import pub
import k_chain4
import os

C_REG = WS_CNT
C_QH = WS_CNT + 1024
C_MODA = WS_CNT + 2048
C_MODB = WS_CNT + 3072
C_LN1 = WS_CNT + 4096
C_LN2 = C_LN1 + 16384
C_FA = C_LN2 + 16384
F_T1 = C_FA + 16384
F_ZX = F_T1 + 16384 + 1024
CNT_BYTES = 4096 + 4 * 16384 + 1024 + 16384 + 3072
assert CNT_BYTES % 4096 == 0
L_SLOT = 155648
LDS_MEGA = 155648 + 256
T1THR = 48
NSELF = int(os.environ.get('NSELF', '2'))
NFINE = int(os.environ.get('NFINE', '0'))
SFX = ' sc1'
MAP = int(os.environ.get('MAP', '1'))
WS_LOG = 0x1C00000
LOG = 'log' in OPT
def rt(a, dst):
    a('s_memrealtime s[76:77]')
    a('s_waitcnt lgkmcnt(0)')
    a(f's_mov_b32 s{dst}, s76')
def log_entry(a):
    rt(a, 84)
    a('s_mov_b64 exec, 1')
    a('v_mov_b32 v4, s83')
    a('v_mov_b32 v5, s81')
    a('v_mov_b32 v6, s82')
    a('v_mov_b32 v7, s84')
    a('v_mov_b32 v8, 0')
    a('buffer_store_dwordx4 v[4:7], v8, s[32:35], s80 offen')
    a('s_mov_b64 exec, -1')
    a('s_add_u32 s80, s80, 16')
W_SLEEP = int(os.environ.get('W_SLEEP', '127'))
W_SHORT = int(os.environ.get('W_SHORT', '4'))

def row_allreduce(a, op, v):
    for r in (8, 4, 2, 1):
        a('s_nop 1')
        a(f'v_{op}_f32_dpp v{v}, v{v}, v{v} row_ror:{r} row_mask:0xf bank_mask:0xf')
def wave_allreduce_add(a, v, s0):
    row_allreduce(a, 'add', v)
    a('s_nop 1')
    for i in range(4):
        a(f'v_readlane_b32 s{s0+i}, v{v}, {16*i}')
    a('s_nop 1')
    a(f'v_mov_b32 v{v}, s{s0}')
    for i in range(1, 4):
        a(f'v_add_f32 v{v}, s{s0+i}, v{v}')
def bf16_round_f32(a, v):
    a(f'v_cvt_pk_bf16_f32 v{v}, v{v}, v{v}')
    a(f'v_lshlrev_b32 v{v}, 16, v{v}')

def body_mod(a, pfx):
    a('s_cmp_ge_u32 s56, 60')
    a(f's_cbranch_scc1 {pfx}_END')
    a(f's_load_dwordx2 s[4:5], s[0:1], {KA["c"]}')
    a(f's_load_dwordx2 s[6:7], s[0:1], {KA["wmod"]}')
    a('s_waitcnt lgkmcnt(0)')
    make_srd(a, 12, 4, 1280)
    make_srd(a, 16, 6, 640 * 3840 * 2)
    a('s_mul_i32 s42, s40, 80')
    a('v_add_u32 v5, s42, v3')
    a('v_lshlrev_b32 v6, 2, v5')
    a('v_mul_u32_u24 v7, 7680, v5')
    a('s_lshl_b32 s3, s56, 7')
    a('v_lshlrev_b32 v8, 3, v2')
    a('v_add3_u32 v7, v7, v8, s3')
    a('s_mov_b32 s25, 0')
    for u in range(20):
        a(f'buffer_load_dwordx2 v[{16+2*u}:{17+2*u}], v7, s[16:19], s25 offen')
        if u < 19: a('s_add_u32 s25, s25, 30720')
    a('v_lshlrev_b32 v4, 1, v0')
    a('buffer_load_ushort v10, v4, s[12:15], 0 offen')
    a('buffer_load_ushort v11, v4, s[12:15], 0 offen offset:1024')
    a('s_waitcnt vmcnt(0)')
    a(f's_mov_b32 s24, {f2u(-LOG2E):#x}')
    for v in (10, 11):
        a(f'v_lshlrev_b32 v{v}, 16, v{v}')
        a(f'v_mul_f32 v9, s24, v{v}')
        a('v_exp_f32 v9, v9')
        a('s_nop 0')
        a('v_add_f32 v9, 1.0, v9')
        a('v_rcp_f32 v9, v9')
        a('s_nop 0')
        a(f'v_mul_f32 v{v}, v{v}, v9')
        bf16_round_f32(a, v)
    a('v_lshlrev_b32 v4, 2, v0')
    a('ds_write_b32 v4, v10')
    a('ds_write_b32 v4, v11 offset:2048')
    a('s_waitcnt lgkmcnt(0)')
    a('s_barrier')
    for i in range(4):
        a(f'v_mov_b32 v{10+i}, 0')
    for u in range(20):
        a(f'ds_read_b32 v{60+u}, v6 offset:{16*u}')
        if u % 8 == 7: a('s_waitcnt lgkmcnt(0)')
    a('s_waitcnt lgkmcnt(0)')
    for u in range(20):
        lo, hi = 16 + 2 * u, 17 + 2 * u
        a(f'v_lshlrev_b32 v80, 16, v{lo}')
        a(f'v_and_b32 v81, 0xffff0000, v{lo}')
        a(f'v_lshlrev_b32 v82, 16, v{hi}')
        a(f'v_and_b32 v83, 0xffff0000, v{hi}')
        for i in range(4):
            a(f'v_fmac_f32 v{10+i}, v{60+u}, v{80+i}')
    a('v_lshl_add_u32 v5, s40, 2, v3')
    a('v_lshlrev_b32 v5, 8, v5')
    a('v_lshl_add_u32 v5, v2, 4, v5')
    a('ds_write_b128 v5, v[10:13] offset:8192')
    a('s_waitcnt lgkmcnt(0)')
    a('s_barrier')
    a('s_cmp_lg_u32 s40, 0')
    a(f's_cbranch_scc1 {pfx}_END')
    a('v_lshlrev_b32 v5, 2, v1')
    for h in range(4):
        for i in range(8):
            a(f'ds_read_b32 v{16+8*h+i}, v5 offset:{8192+256*(8*h+i)}')
        a('s_waitcnt lgkmcnt(0)')
    for i in range(1, 32):
        a(f'v_add_f32 v16, v16, v{16+i}')
    bf16_round_f32(a, 16)
    a('s_lshl_b32 s3, s56, 8')
    a(f's_add_u32 s3, s3, {WS_MOD}')
    a(f'buffer_store_dword v16, v5, s[32:35], s3 offen{SFX}')
    a.label(f'{pfx}_END')

def ln1_pre(a):
    a(f's_load_dwordx2 s[4:5], s[0:1], {KA["x"]}')
    a('s_waitcnt lgkmcnt(0)')
    make_srd(a, 12, 4, 2048 * 1280)
    a('s_lshl_b32 s3, s56, 4')
    a('s_lshl_b32 s42, s40, 1')
    a('s_add_u32 s3, s3, s42')
    a('s_mul_i32 s3, s3, 1280')
    a('v_lshl_add_u32 v4, v1, 2, s3')
    for r in range(2):
        for i in range(5):
            a(f'buffer_load_dword v{10+5*r+i}, v4, s[12:15], 0 offen offset:{1280*r+256*i}')
    a('s_waitcnt vmcnt(0)')
    a(f's_mov_b32 s24, {f2u(1.0/640):#x}')
    a(f's_mov_b32 s25, {f2u(1e-5):#x}')
    for r in range(2):
        N = 40 + 10 * r
        for i in range(5):
            a(f'v_lshlrev_b32 v{N+2*i}, 16, v{10+5*r+i}')
            a(f'v_and_b32 v{N+1+2*i}, 0xffff0000, v{10+5*r+i}')
        a(f'v_add_f32 v30, v{N}, v{N+1}')
        for i in range(2, 10):
            a(f'v_add_f32 v30, v30, v{N+i}')
        wave_allreduce_add(a, 30, 28)
        a('v_mul_f32 v30, s24, v30')
        for i in range(10):
            a(f'v_sub_f32 v{N+i}, v{N+i}, v30')
        a(f'v_mul_f32 v31, v{N}, v{N}')
        for i in range(1, 10):
            a(f'v_fmac_f32 v31, v{N+i}, v{N+i}')
        wave_allreduce_add(a, 31, 28)
        a('v_mul_f32 v31, s24, v31')
        a('v_add_f32 v31, s25, v31')
        a('v_rsq_f32 v31, v31')
        a('s_nop 0')
        for i in range(10):
            a(f'v_mul_f32 v{N+i}, v{N+i}, v31')

def body_ln1(a, pfx):
    a('v_lshlrev_b32 v5, 3, v1')
    a(f's_mov_b32 s24, {WS_MOD + 2560}')
    a(f's_mov_b32 s23, {WS_MOD}')
    for i in range(5):
        a(f'buffer_load_dwordx2 v[{60+2*i}:{61+2*i}], v5, s[32:35], s23 offen offset:{512*i}')
        a(f'buffer_load_dwordx2 v[{70+2*i}:{71+2*i}], v5, s[32:35], s24 offen offset:{512*i}')
    a(f's_mov_b32 s26, {WS_H1}')
    a('s_mul_i32 s42, s40, 2592')
    a('v_lshl_add_u32 v6, v1, 2, s42')
    a('s_waitcnt vmcnt(0)')
    for i in range(10):
        a(f'v_add_f32 v{70+i}, 1.0, v{70+i}')
    for i in range(10):
        bf16_round_f32(a, 70 + i)
    for r in range(2):
        N = 40 + 10 * r
        for i in range(10):
            a(f'v_fma_f32 v{N+i}, v{N+i}, v{70+i}, v{60+i}')
        for i in range(5):
            a(f'v_cvt_pk_bf16_f32 v{20+5*r+i}, v{N+2*i}, v{N+1+2*i}')
    if NSELF:
        a(f's_cmp_lt_u32 s56, {8*NSELF}')
        a(f's_cbranch_scc1 {pfx}_F')
    for r in range(2):
        for i in range(5):
            a(f'buffer_store_dword v{20+5*r+i}, v4, s[32:35], s26 offen offset:{1280*r+256*i}{SFX}')
    if NSELF:
        a(f's_branch {pfx}_END')
        a.label(f'{pfx}_F')
        for r in range(2):
            for i in range(5):
                a(f'ds_write_b32 v6, v{20+5*r+i} offset:{1296*r+256*i}')
        a('v_mul_u32_u24 v6, 1296, v2')
        a('v_lshl_add_u32 v6, v3, 3, v6')
        a('s_lshl_b32 s42, s40, 6')
        a('v_add_u32 v6, s42, v6')
        a('v_lshlrev_b32 v15, 4, v1')
        a('s_mul_i32 s42, s56, 20480')
        a('s_lshl_b32 s43, s40, 10')
        a('s_add_u32 s42, s42, s43')
        a(f's_add_u32 s42, s42, {WS_H1F}')
        a('s_waitcnt lgkmcnt(0)')
        a('s_barrier')
        for j in range(2):
            a(f'ds_read_b64 v[{60+4*j}:{61+4*j}], v6 offset:{512*j}')
            a(f'ds_read_b64 v[{62+4*j}:{63+4*j}], v6 offset:{512*j+32}')
        a('s_cmp_ge_u32 s40, 4')
        a(f's_cbranch_scc1 {pfx}_F2')
        a(f'ds_read_b64 v[68:69], v6 offset:1024')
        a(f'ds_read_b64 v[70:71], v6 offset:1056')
        a('s_add_u32 s43, s42, 16384')
        a('s_waitcnt lgkmcnt(0)')
        a(f'buffer_store_dwordx4 v[68:71], v15, s[32:35], s43 offen{SFX}')
        a.label(f'{pfx}_F2')
        a('s_waitcnt lgkmcnt(0)')
        a('s_add_u32 s43, s42, 8192')
        a(f'buffer_store_dwordx4 v[60:63], v15, s[32:35], s42 offen{SFX}')
        a(f'buffer_store_dwordx4 v[64:67], v15, s[32:35], s43 offen{SFX}')
        a.label(f'{pfx}_END')

def body_ln2(a, pfx, NSLAB=8):
    a(f's_load_dwordx2 s[4:5], s[0:1], {KA["x"]}')
    a('s_waitcnt lgkmcnt(0)')
    make_srd(a, 12, 4, 2048 * 1280)
    a('v_lshlrev_b32 v6, 3, v1')
    for idx, base in ((2, 60), (3, 40), (4, 50)):
        a(f's_mov_b32 s24, {WS_MOD + 2560*idx}')
        for i in range(5):
            a(f'buffer_load_dwordx2 v[{base+2*i}:{base+2*i+1}], v6, s[32:35], s24 offen offset:{512*i}')
    a('s_lshl_b32 s3, s56, 4')
    a('s_lshl_b32 s42, s40, 1')
    a('s_add_u32 s3, s3, s42')
    a('s_mul_i32 s42, s3, 2560')
    a('v_lshl_add_u32 v5, v1, 3, s42')
    a('s_mul_i32 s42, s3, 1280')
    a('v_lshl_add_u32 v4, v1, 2, s42')
    a(f's_mov_b32 s24, {f2u(1.0/640):#x}')
    a(f's_mov_b32 s25, {f2u(1e-5):#x}')
    for r in range(2):
        for i in range(5):
            a(f'buffer_load_dword v{10+i}, v4, s[12:15], 0 offen offset:{1280*r+256*i}')
        for half in range(NSLAB // 4):
            for hg in range(4):
                a(f's_mov_b32 s26, {WS_OP + (half*4 + hg)*5242880 + r*2560}')
                for i in range(5):
                    a(f'buffer_load_dwordx2 v[{70+10*hg+2*i}:{71+10*hg+2*i}], v5, s[32:35], s26 offen offset:{512*i}')
            a('s_waitcnt vmcnt(0)')
            if r == 0 and half == 0:
                for i in range(10):
                    a(f'v_add_f32 v{50+i}, 1.0, v{50+i}')
                for i in range(10):
                    bf16_round_f32(a, 50 + i)
            for i in range(10):
                a(f'v_add_f32 v{70+i}, v{70+i}, v{80+i}')
                a(f'v_add_f32 v{90+i}, v{90+i}, v{100+i}')
            for i in range(10):
                a(f'v_add_f32 v{70+i}, v{70+i}, v{90+i}')
            if NSLAB > 4:
                for i in range(10):
                    if half == 0:
                        a(f'v_mov_b32 v{112+i}, v{70+i}')
                    else:
                        a(f'v_add_f32 v{70+i}, v{70+i}, v{112+i}')
        for i in range(10):
            bf16_round_f32(a, 70 + i)
            a(f'v_mul_f32 v{70+i}, v{70+i}, v{60+i}')
            bf16_round_f32(a, 70 + i)
        for i in range(5):
            a(f'v_lshlrev_b32 v{20+2*i}, 16, v{10+i}')
            a(f'v_and_b32 v{21+2*i}, 0xffff0000, v{10+i}')
        for i in range(10):
            a(f'v_add_f32 v{20+i}, v{20+i}, v{70+i}')
        for i in range(5):
            a(f'v_cvt_pk_bf16_f32 v{32+i}, v{20+2*i}, v{21+2*i}')
        a(f's_mov_b32 s26, {WS_X1 + 1280*r}')
        for i in range(5):
            a(f'buffer_store_dword v{32+i}, v4, s[32:35], s26 offen offset:{256*i}{SFX}')
        for i in range(5):
            a(f'v_lshlrev_b32 v{20+2*i}, 16, v{32+i}')
            a(f'v_and_b32 v{21+2*i}, 0xffff0000, v{32+i}')
        a('v_add_f32 v30, v20, v21')
        for i in range(2, 10):
            a(f'v_add_f32 v30, v30, v{20+i}')
        wave_allreduce_add(a, 30, 28)
        a('v_mul_f32 v30, s24, v30')
        for i in range(10):
            a(f'v_sub_f32 v{20+i}, v{20+i}, v30')
        a('v_mul_f32 v31, v20, v20')
        for i in range(1, 10):
            a(f'v_fmac_f32 v31, v{20+i}, v{20+i}')
        wave_allreduce_add(a, 31, 28)
        a('v_mul_f32 v31, s24, v31')
        a('v_add_f32 v31, s25, v31')
        a('v_rsq_f32 v31, v31')
        a('s_nop 0')
        for i in range(10):
            a(f'v_mul_f32 v{20+i}, v{20+i}, v31')
            a(f'v_fma_f32 v{20+i}, v{20+i}, v{50+i}, v{40+i}')
        for i in range(5):
            a(f'v_cvt_pk_bf16_f32 v{110+i}, v{20+2*i}, v{21+2*i}')
        a(f's_mov_b32 s26, {WS_H2 + 1280*r}')
        for i in range(5):
            a(f'buffer_store_dword v{110+i}, v4, s[32:35], s26 offen offset:{256*i}{SFX}')

def k_init3(a):
    name = 'init_kernel'
    kernel_header(a, name)
    a('s_cmp_ge_u32 s2, 256')
    a('s_cbranch_scc1 IN_END')
    a(f's_load_dwordx2 s[52:53], s[0:1], {KA["ws"]}')
    a('s_waitcnt lgkmcnt(0)')
    make_srd(a, 32, 52, WS_SIZE)
    a('v_lshlrev_b32 v1, 4, v0')
    for r in range(4):
        a(f'v_mov_b32 v{4+r}, -1')
    a('s_lshl_b32 s3, s2, 14')
    a(f's_add_u32 s3, s3, {WS_MEMF}')
    for i in range(4):
        a(f's_add_u32 s12, s3, {4096*i}')
        a('buffer_store_dwordx4 v[4:7], v1, s[32:35], s12 offen')
    a(f's_cmp_ge_u32 s2, {CNT_BYTES // 4096}')
    a('s_cbranch_scc1 IN_END')
    for r in range(4):
        a(f'v_mov_b32 v{8+r}, 0')
    a('s_lshl_b32 s12, s2, 12')
    a(f's_add_u32 s12, s12, {WS_CNT}')
    a('buffer_store_dwordx4 v[8:11], v1, s[32:35], s12 offen')
    a.label('IN_END')
    a('s_endpgm')
    return name, kernel_desc(name, 64, 64, 64)

def register(a):
    a('s_getreg_b32 s54, hwreg(HW_REG_XCC_ID)')
    a('s_and_b32 s54, s54, 7')
    l0 = a.newlabel('RA'); l1 = a.newlabel('RA'); l2 = a.newlabel('RA')
    a('s_cmp_lg_u32 s40, 0')
    a(f's_cbranch_scc1 {l0}')
    a('v_mov_b32 v4, 1')
    a('s_lshl_b32 s42, s54, 7')
    a(f's_add_u32 s42, s42, {C_REG}')
    a('v_mov_b32 v5, 0')
    a('s_mov_b64 exec, 1')
    a('buffer_atomic_add v4, v5, s[32:35], s42 offen sc0 sc1')
    a('s_mov_b64 exec, 0xff')
    a('v_lshlrev_b32 v6, 7, v1')
    a(f's_mov_b32 s42, {C_REG}')
    a.label(l1)
    a('buffer_load_dword v7, v6, s[32:35], s42 offen sc1')
    a('s_waitcnt vmcnt(0)')
    for i in range(8):
        a(f'v_readlane_b32 s{8+i}, v7, {i}')
    a('s_add_u32 s43, s8, s9')
    for i in range(2, 8):
        a(f's_add_u32 s43, s43, s{8+i}')
    a('s_add_u32 s88, s88, 1')
    a('s_cmp_ge_u32 s88, 0x40000')
    a(f's_cbranch_scc1 {l2}')
    a('s_cmp_lt_u32 s43, 256')
    a(f's_cbranch_scc1 {l1}')
    a.label(l2)
    a('s_min_u32 s44, s8, s9')
    for i in range(2, 8):
        a(f's_min_u32 s44, s44, s{8+i}')
    a('s_mov_b32 s45, 0')
    for i in range(7):
        a(f's_cmp_gt_u32 s54, {i}')
        a(f's_cselect_b32 s42, s{8+i}, 0')
        a('s_add_u32 s45, s45, s42')
    a('s_mov_b64 exec, 1')
    a('v_add_u32 v6, s45, v4')
    a('v_mov_b32 v7, s44')
    a(f'v_mov_b32 v5, {L_SLOT}')
    a('ds_write_b32 v5, v4 offset:16')
    a('ds_write_b32 v5, v6 offset:20')
    a('ds_write_b32 v5, v7 offset:24')
    a('s_waitcnt lgkmcnt(0)')
    a('s_mov_b64 exec, -1')
    a.label(l0)
    a('s_barrier')
    a(f'v_mov_b32 v5, {L_SLOT}')
    a('ds_read_b32 v4, v5 offset:16')
    a('ds_read_b32 v6, v5 offset:20')
    a('ds_read_b32 v7, v5 offset:24')
    a('s_waitcnt lgkmcnt(0)')
    a('v_readfirstlane_b32 s55, v4')
    a('v_readfirstlane_b32 s42, v6')
    a('v_readfirstlane_b32 s43, v7')
    a('s_cmp_ge_u32 s43, 32')
    a('s_cselect_b32 s92, 1, 0')
    if 'slow' in OPT:
        a('s_mov_b32 s92, 0')
    a('s_cmp_eq_u32 s92, 1')
    a('s_cbranch_scc1 RG_FAST')
    a('s_and_b32 s54, s42, 7')
    a('s_lshr_b32 s55, s42, 3')
    a('s_cmp_lt_u32 s55, 16')
    a('s_cselect_b32 s93, 1, 0')
    a('s_branch RG_END')
    a.label('RG_FAST')
    if MAP == 1:
        a('s_cmp_lt_u32 s54, 4')
        a('s_cselect_b32 s93, 1, 0')
        a('s_and_b32 s54, s54, 3')
        a('s_lshl_b32 s54, s54, 1')
        a('s_lshr_b32 s42, s55, 4')
        a('s_and_b32 s43, s55, 1')
        a('s_cmp_eq_u32 s93, 1')
        a('s_cselect_b32 s42, s42, s43')
        a('s_add_u32 s54, s54, s42')
        a('s_and_b32 s55, s55, 15')
    else:
        a('s_cmp_lt_u32 s55, 16')
        a('s_cselect_b32 s93, 1, 0')
    a.label('RG_END')

T_NULL, T_MOD, T_LN1, T_T1, T_T2A, T_T2B, T_LN2, T_FA, T_FB, T_T1F = range(10)
Q_LN1 = 8
Q_T1 = 24
Q_T1N = Q_T1 + 12 * NFINE
Q_POST = Q_T1N + 4 * (16 - NSELF - NFINE)
SLOTS = [(T_FB, 2, 0), (T_FB, 2, 1), (T_FB, 2, 2), (T_FA, 1, 0), (T_FA, 1, 1), (T_FA, 1, 2), (T_LN2, 0, 0)]
RL = len(SLOTS)
NROUND = 18
Q_END = int(os.environ.get('Q_END', Q_POST + RL * NROUND))
N_T2B, N_FA = 40, 24

def decode(a):
    L = lambda n: f'DC_{n}'
    a('s_mov_b32 s95, 0')
    a('s_mov_b32 s97, 0')
    a('s_mov_b32 s91, 0')
    a('s_mov_b32 s87, 1')
    a(f's_mov_b32 s94, {C_REG}')
    a(f's_mov_b32 s96, {F_ZX}')
    a('s_lshl_b32 s86, s100, 7')
    a(f's_cmp_lt_u32 s3, {Q_LN1}')
    a(f's_cbranch_scc1 {L("MOD")}')
    a(f's_cmp_lt_u32 s3, {Q_T1}')
    a(f's_cbranch_scc1 {L("LN1")}')
    if NFINE:
        a(f's_cmp_lt_u32 s3, {Q_T1N}')
        a(f's_cbranch_scc1 {L("T1F")}')
    a(f's_cmp_lt_u32 s3, {Q_POST}')
    a(f's_cbranch_scc1 {L("T1")}')
    a(f's_sub_u32 s42, s3, {Q_POST}')
    M = (1 << 16) // RL + 1
    for j in range(RL * NROUND + 64): assert (j * M) >> 16 == j // RL
    a(f's_mul_i32 s43, s42, {M}')
    a('s_lshr_b32 s43, s43, 16')
    a(f's_mul_i32 s44, s43, {RL}')
    a('s_sub_u32 s42, s42, s44')
    tl = {T_FB: 'FB', T_FA: 'FA', T_LN2: 'LN2'}
    for k, (t, sk, sub) in enumerate(SLOTS):
        a(f's_sub_u32 s44, s43, {sk}')
        a(f's_mov_b32 s46, {sub}')
        a(f's_cmp_eq_u32 s42, {k}')
        a(f's_cbranch_scc1 {L(tl[t])}')
    a.label(L('LN2'))
    a(f's_mov_b32 s99, {T_LN2}')
    a('s_lshl_b32 s56, s44, 3')
    a('s_add_u32 s56, s56, s100')
    a('s_lshl_b32 s45, s44, 10')
    a(f's_mov_b32 s94, {F_ZX}')
    a('s_add_u32 s95, s44, 1')
    a(f's_mov_b32 s90, {C_MODB}')
    a('s_mov_b32 s91, 5')
    a('s_add_u32 s45, s45, s86')
    a(f's_add_u32 s101, s45, {C_LN2}')
    a(f's_branch {L("CHKRB")}')
    a.label(L('FA'))
    a(f's_mov_b32 s99, {T_FA}')
    a('s_mov_b32 s56, s44')
    a('s_mul_i32 s57, s100, 3')
    a('s_add_u32 s57, s57, s46')
    a('s_lshl_b32 s45, s44, 10')
    a(f's_add_u32 s94, s45, {C_LN2}')
    a('s_mov_b32 s95, 1')
    a('s_add_u32 s45, s45, s86')
    a(f's_add_u32 s101, s45, {C_FA}')
    a(f's_branch {L("CHKRB")}')
    a.label(L('FB'))
    a(f's_mov_b32 s99, {T_FB}')
    a('s_lshl_b32 s45, s44, 10')
    a(f's_add_u32 s94, s45, {C_FA}')
    a('s_mov_b32 s95, 3')
    a('s_mov_b32 s101, 0')
    a('s_lshl_b32 s45, s46, 3')
    a('s_add_u32 s47, s45, s100')
    a('s_cmp_lt_u32 s46, 2')
    a(f's_cbranch_scc1 {L("FB2")}')
    a('s_lshl_b32 s45, s43, 2')
    a('s_add_u32 s45, s45, s100')
    a('s_and_b32 s45, s45, 7')
    a('s_add_u32 s47, s45, 16')
    a('s_cmp_ge_u32 s45, 4')
    a(f's_cselect_b32 s99, {T_NULL}, s99')
    a.label(L('FB2'))
    a('s_cmp_ge_u32 s47, 10')
    a('s_cselect_b32 s45, 1, 0')
    a('s_cselect_b32 s46, 10, 0')
    a('s_sub_u32 s57, s47, s46')
    a('s_lshl_b32 s56, s44, 1')
    a('s_add_u32 s56, s56, s45')
    a.label(L('CHKRB'))
    a('s_cmp_ge_u32 s44, 16')
    a(f's_cselect_b32 s99, {T_NULL}, s99')
    a(f's_branch {L("END")}')
    a.label(L('MOD'))
    a(f's_mov_b32 s99, {T_MOD}')
    a('s_lshl_b32 s56, s3, 3')
    a('s_add_u32 s56, s56, s100')
    a('s_cmp_lt_u32 s3, 3')
    a(f's_cselect_b32 s101, {C_MODA}, {C_MODB}' if False else f's_mov_b32 s101, {C_MODB}')
    a(f's_mov_b32 s45, {C_MODA}')
    a('s_cselect_b32 s101, s45, s101')
    a('s_add_u32 s101, s101, s86')
    a(f's_branch {L("END")}')
    a.label(L('LN1'))
    a(f's_mov_b32 s99, {T_LN1}')
    a(f's_sub_u32 s44, s3, {Q_LN1}')
    a('s_lshl_b32 s56, s44, 3')
    a('s_add_u32 s56, s56, s100')
    a(f's_mov_b32 s94, {C_MODA}')
    a('s_mov_b32 s95, 3')
    a('s_mov_b32 s97, 1')
    a('s_lshl_b32 s45, s44, 10')
    a('s_add_u32 s45, s45, s86')
    a(f's_add_u32 s101, s45, {C_LN1}')
    a(f's_branch {L("END")}')
    if NFINE:
        a.label(L('T1F'))
        a(f's_mov_b32 s99, {T_T1F}')
        a(f's_sub_u32 s44, s3, {Q_T1}')
        a('s_mul_i32 s56, s44, 5462')
        a('s_lshr_b32 s56, s56, 16')
        a('s_mul_i32 s45, s56, 12')
        a('s_sub_u32 s44, s44, s45')
        a(f's_add_u32 s56, s56, {NSELF}')
        a('s_lshr_b32 s58, s44, 2')
        a('s_mov_b32 s87, 4')
        a(f's_branch {L("T1C")}')
    a.label(L('T1'))
    a(f's_mov_b32 s99, {T_T1}')
    a(f's_sub_u32 s44, s3, {Q_T1N}')
    a('s_lshr_b32 s56, s44, 2')
    a(f's_add_u32 s56, s56, {NSELF + NFINE}')
    a('s_mov_b32 s87, 12')
    a.label(L('T1C'))
    a('s_and_b32 s44, s44, 3')
    a('s_lshl_b32 s57, s100, 2')
    a('s_add_u32 s57, s57, s44')
    a('s_lshl_b32 s45, s56, 10')
    a(f's_add_u32 s94, s45, {C_LN1}')
    a('s_mov_b32 s95, 1')
    a('s_mov_b32 s97, 1')
    a('s_add_u32 s45, s45, s86')
    a(f's_add_u32 s101, s45, {F_T1}')
    a.label(L('END'))

def poll(a, lbl, s_addr, s_thr, adaptive, zx_ok=True):
    a('v_and_b32 v8, 7, v1')
    a('v_lshlrev_b32 v8, 7, v8')
    a('v_mov_b32 v5, 0')
    a('s_mov_b32 s79, 0')
    if zx_ok:
        a(f's_cmp_lg_u32 s99, {T_LN2}')
        a(f's_cbranch_scc1 {lbl}_2')
        a('v_lshlrev_b32 v8, 7, v1')
        a('s_mov_b32 s79, 8192')
    a.label(f'{lbl}_2')
    a(f's_add_u32 s78, s{s_addr}, s79')
    a(f'buffer_load_dword v6, v8, s[32:35], s{s_addr} offen sc1')
    a(f'buffer_load_dword v7, v8, s[32:35], s78 offen sc1')
    if adaptive:
        a('buffer_load_dword v9, v5, s[32:35], s96 offen sc1')
    a('s_waitcnt vmcnt(0)')
    a('v_min_u32 v6, v6, v7')
    a(f'v_cmp_gt_u32 vcc, s{s_thr}, v6')
    if adaptive:
        a('v_readfirstlane_b32 s43, v9')
    a('s_cmp_eq_u64 vcc, 0')
    a(f's_cbranch_scc1 {lbl}_3')
    a('s_add_u32 s98, s98, 1')
    a('s_cmp_ge_u32 s98, 0x8000')
    a(f's_cbranch_scc1 {lbl}_3')
    if adaptive:
        a('s_cmp_ge_u32 s43, 16')
        a('s_cselect_b32 s97, 1, s97')
    a(f's_sleep {W_SHORT}')
    if adaptive:
        a('s_cmp_eq_u32 s97, 1')
        a(f's_cbranch_scc1 {lbl}_2')
        for _ in range(W_SLEEP // 127): a('s_sleep 127')
        if W_SLEEP % 127: a(f's_sleep {W_SLEEP % 127}')
    a(f's_branch {lbl}_2')

def k_mega(a):
    from k_t1v import t1v_body
    from k_post import FA, FB, LN2B
    fa, fb, ln2 = FA(), FB(), LN2B()
    name = 'mega_kernel'
    kernel_header(a, name)
    a('s_cmp_ge_u32 s2, 256')
    a('s_cbranch_scc1 MG_END')
    a(f's_load_dwordx4 s[4:7], s[0:1], {KA["wq"]}')
    a(f's_load_dwordx4 s[48:51], s[0:1], {KA["wv"]}')
    a(f's_load_dwordx2 s[52:53], s[0:1], {KA["ws"]}')
    a(f's_load_dwordx2 s[94:95], s[0:1], {KA["mem0"]}')
    lane_decomp(a)
    for o in (fa, fb):
        for r in range(o.g.VA, o.g.VA + 2 * o.g.NC + 1):
            a(f'v_mov_b32 v{r}, 0')
    a('s_waitcnt lgkmcnt(0)')
    NW = 640 * 6144 * 2
    make_srd(a, 32, 52, WS_SIZE)
    a('s_mov_b32 s88, 0')
    if LOG:
        l = a.newlabel('KL')
        a('s_cmp_lg_u32 s40, 0')
        a(f's_cbranch_scc1 {l}')
        a('s_memrealtime s[96:97]')
        a('s_lshl_b32 s43, s2, 12')
        a(f's_add_u32 s42, s43, {WS_LOG + 131*4}')
        a('s_waitcnt lgkmcnt(0)')
        a('v_mov_b32 v250, s96')
        a('v_mov_b32 v251, 0')
        a('s_mov_b64 exec, 1')
        a('buffer_store_dword v250, v251, s[32:35], s42 offen')
        a('s_mov_b64 exec, -1')
        a.label(l)
    register(a)
    a('s_mov_b32 s100, s54')
    a('s_cmp_eq_u32 s93, 0')
    a('s_cbranch_scc1 WENTRY')
    make_srd(a, 8, 4, NW)
    make_srd(a, 12, 6, NW)
    make_srd(a, 16, 48, NW)
    make_srd(a, 28, 50, NW)
    make_srd(a, 36, 94, 8 * 1280)
    k_chain4.chain4_body(a, mega=dict(F_T1=F_T1, F_ZX=F_ZX, T1THR=T1THR, NSELF=NSELF, C_LN1=C_LN1, LOG=(WS_LOG if LOG else None)))
    lane_decomp(a)
    a.label('WENTRY')
    a('s_mov_b32 s98, 0')
    if LOG:
        a('s_lshl_b32 s80, s2, 12')
        a(f's_add_u32 s80, s80, {WS_LOG + 1024}')
    a.label('WLOOP')
    a('s_cmp_lg_u32 s40, 0')
    a('s_cbranch_scc1 WL_1')
    a('s_mov_b64 exec, 1')
    a('v_mov_b32 v4, 1')
    a('v_mov_b32 v5, 0')
    a('s_lshl_b32 s42, s100, 7')
    a(f's_add_u32 s42, s42, {C_QH}')
    a('buffer_atomic_add v4, v5, s[32:35], s42 offen sc0 sc1')
    a(f'v_mov_b32 v5, {L_SLOT}')
    a('s_waitcnt vmcnt(0)')
    a('ds_write_b32 v5, v4')
    a('s_waitcnt lgkmcnt(0)')
    a('s_mov_b64 exec, -1')
    a.label('WL_1')
    a('s_barrier')
    a(f'v_mov_b32 v5, {L_SLOT}')
    a('ds_read_b32 v4, v5')
    a('s_waitcnt lgkmcnt(0)')
    a('v_readfirstlane_b32 s3, v4')
    a(f's_cmp_ge_u32 s3, {Q_END}')
    a('s_cbranch_scc1 MG_END0')
    if LOG:
        rt(a, 81)
        a('s_lshl_b32 s83, s100, 16')
        a('s_or_b32 s83, s83, s3')
    decode(a)
    a(f's_cmp_eq_u32 s99, {T_NULL}')
    a('s_cbranch_scc1 WNULL')
    a('s_cmp_eq_u32 s91, 0')
    a('s_cbranch_scc1 WPRE')
    a('s_cmp_lg_u32 s40, 0')
    a('s_cbranch_scc1 WP_3')
    poll(a, 'WP', 90, 91, False, zx_ok=False)
    a.label('WP_3')
    a('s_barrier')
    a.label('WPRE')
    for t, l in ((T_LN2, 'P_LN2'), (T_FA, 'P_FA'), (T_FB, 'P_FB'), (T_LN1, 'P_LN1')):
        a(f's_cmp_eq_u32 s99, {t}')
        a(f's_cbranch_scc1 {l}')
    a.label('WWAIT')
    a('s_cmp_lg_u32 s40, 0')
    a('s_cbranch_scc1 WL_3')
    a('s_cmp_eq_u32 s95, 0')
    a('s_cbranch_scc1 WL_3')
    poll(a, 'WL', 94, 95, True)
    a.label('WL_3')
    a('s_barrier')
    if LOG: rt(a, 82)
    for t, l in ((T_T1, 'B_T1'),) + (((T_T1F, 'B_T1F'),) if NFINE else ()) + ((T_LN2, 'B_LN2'), (T_FA, 'B_FA'), (T_FB, 'B_FB'), (T_MOD, 'B_MOD')):
        a(f's_cmp_eq_u32 s99, {t}')
        a(f's_cbranch_scc1 {l}')
    body_ln1(a, 'LN1')
    a('s_branch WDONE')
    a.label('WNULL')
    a('s_barrier')
    a('s_branch WLOOP')
    for nm, o in (('LN2', ln2), ('FA', fa), ('FB', fb)):
        a.label(f'P_{nm}')
        o.pre(a)
        a('s_branch WWAIT')
    a.label('P_LN1')
    ln1_pre(a)
    a('s_branch WWAIT')
    a.label('B_MOD')
    body_mod(a, 'MOD')
    a('s_branch WDONE')
    a.label('B_T1')
    t1v_body(a, 'T1', SFX)
    a('s_branch WDONE')
    if NFINE:
        a.label('B_T1F')
        t1v_body(a, 'T1F', SFX, nm=1)
        a('s_branch WDONE')
    for nm, o in (('LN2', ln2), ('FA', fa), ('FB', fb)):
        a.label(f'B_{nm}')
        o.main(a)
        a('s_branch WDONE')
    a.label('WDONE')
    a('s_waitcnt vmcnt(0) lgkmcnt(0)')
    a('s_barrier')
    a('s_cmp_lg_u32 s40, 0')
    a('s_cbranch_scc1 WLOOP')
    if LOG: log_entry(a)
    a('s_cmp_eq_u32 s101, 0')
    a('s_cbranch_scc1 WLOOP')
    a('s_mov_b64 exec, 1')
    a('v_mov_b32 v4, s87')
    a('v_mov_b32 v5, 0')
    a('buffer_atomic_add v4, v5, s[32:35], s101 offen sc1')
    a('s_mov_b64 exec, -1')
    a('s_branch WLOOP')
    a.label('MG_END0')
    if 'tmo' in OPT:
        a('s_cmp_lt_u32 s98, 0x8000')
        a('s_cbranch_scc1 MG_END')
        a(f's_load_dwordx2 s[96:97], s[0:1], {KA["dbg"]}')
        a('s_waitcnt lgkmcnt(0)')
        a('v_mov_b32 v4, 0')
        a('v_mov_b32 v5, 1')
        a('s_mov_b64 exec, 1')
        a('global_atomic_add v4, v5, s[96:97] offset:8')
        a('s_mov_b64 exec, -1')
    a.label('MG_END')
    a('s_endpgm')
    return name, kernel_desc(name, 256, 102, 256)
```

```python
from asmlib import *
from layout2 import *
from k_t1 import lane_decomp, stamp, stamp_rt, stamp_out, OPT, SLOT
import os
DM0 = int(os.environ.get('DM0', '1'))
def k_t1v(a):
    name = 't1v_kernel'
    kernel_header(a, name)
    a('s_cmp_ge_u32 s2, 512')
    a('s_cbranch_scc1 T1_END')
    a(f's_load_dwordx2 s[52:53], s[0:1], {KA["ws"]}')
    lane_decomp(a)
    a('s_waitcnt lgkmcnt(0)')
    make_srd(a, 32, 52, WS_SIZE)
    a('s_and_b32 s54, s2, 7')
    a('s_lshr_b32 s55, s2, 3')
    a('s_and_b32 s56, s55, 15')
    a('s_lshr_b32 s55, s55, 4')
    a('s_lshl_b32 s55, s55, 3')
    a('s_add_u32 s57, s54, s55')
    t1v_body(a, 'T1', '')
    a.label('T1_END')
    a('s_endpgm')
    return name, kernel_desc(name, 256, 100, 256)

def t1v_body(a, pfx, sfx, nm=3):
    a(f's_load_dwordx4 s[4:7], s[0:1], {KA["wq"]}')
    a(f's_load_dwordx2 s[48:49], s[0:1], {KA["wv"]}')
    a('s_waitcnt lgkmcnt(0)')
    NW = 640 * 6144 * 2
    make_srd(a, 8, 4, NW)
    make_srd(a, 12, 6, NW)
    make_srd(a, 16, 48, NW)
    make_srd(a, 20, 52, 2048 * 1280, WS_H1)
    if nm == 1:
        a('s_cmp_eq_u32 s58, 1')
        a('s_cselect_b32 s8, s12, s8')
        a('s_cselect_b32 s9, s13, s9')
        a('s_cmp_eq_u32 s58, 2')
        a('s_cselect_b32 s8, s16, s8')
        a('s_cselect_b32 s9, s17, s9')
        a('s_mov_b32 s12, s8')
        a('s_mov_b32 s13, s9')
    a('s_cmp_lt_u32 s40, 4')
    a('s_cselect_b32 s24, s8, s12')
    a('s_cselect_b32 s25, s9, s13')
    a(f's_mov_b32 s26, {NW}')
    a('s_mov_b32 s27, 0x00020000')
    a('s_mov_b32 s47, 0x78')
    def woff(dst, ii_s):
        a(f'v_lshl_add_u32 v4, s{ii_s}, 6, v1')
        a('v_mul_u32_u24 v5, 2731, v4')
        a('v_lshrrev_b32 v5, 16, v5')
        a('v_mul_u32_u24 v6, 24, v5')
        a('v_sub_u32 v6, v4, v6')
        a('v_lshrrev_b32 v7, 1, v6')
        a('v_and_b32 v6, 1, v6')
        a('v_bfe_u32 v8, v5, 1, 1')
        a('v_bfe_u32 v9, v5, 3, 1')
        a('v_lshl_or_b32 v8, v9, 1, v8')
        a('v_xor_b32 v7, v7, v8')
        a(f'v_mul_u32_u24 v{dst}, 12288, v5')
        a(f'v_lshl_add_u32 v{dst}, v7, 5, v{dst}')
        a(f'v_lshl_add_u32 v{dst}, v6, 4, v{dst}')
    woff(88, 40)
    a('s_add_u32 s42, s41, 8')
    woff(89, 42)
    a('v_lshl_add_u32 v4, s40, 6, v1')
    a('v_lshrrev_b32 v5, 2, v4')
    a('v_and_b32 v6, 3, v4')
    a('v_bfe_u32 v7, v5, 2, 2')
    a('v_lshlrev_b32 v7, 1, v7')
    a('v_lshrrev_b32 v7, v7, s47')
    a('v_and_b32 v7, 3, v7')
    a('v_xor_b32 v6, v6, v7')
    a('s_lshl_b32 s43, s56, 7')
    a('v_add_u32 v5, s43, v5')
    a('v_mul_u32_u24 v90, 1280, v5')
    a('v_lshl_add_u32 v90, v6, 4, v90')
    a('s_lshl_b32 s44, s40, 10')
    a('s_lshl_b32 s42, s42, 10')
    a('s_mov_b32 s60, s44')
    a('s_add_u32 s61, s44, 12288')
    a('s_add_u32 s62, s44, 24576')
    a('s_add_u32 s63, s44, 36864')
    a('s_cmp_lt_u32 s40, 4')
    a('s_cselect_b32 s64, 0, 12288' if nm == 3 else 's_mov_b32 s64, 0')
    a('s_add_u32 s64, s64, s42')
    a('s_add_u32 s65, s42, 24576')
    a('s_mul_i32 s66, s57, 384')
    a('s_mov_b32 s67, 0')
    a('v_lshrrev_b32 v4, 2, v2')
    a('v_lshlrev_b32 v4, 1, v4')
    a('v_lshrrev_b32 v4, v4, s47')
    a('v_and_b32 v4, 3, v4')
    a('v_xor_b32 v4, v4, v3')
    a('v_lshl_add_u32 v5, s39, 6, v2')
    a('v_lshlrev_b32 v5, 6, v5')
    a('v_lshl_add_u32 v5, v4, 4, v5')
    a('v_add_u32 v91, 36864, v5')
    a('v_lshrrev_b32 v4, 2, v2')
    a('v_lshl_add_u32 v5, v3, 3, v4')
    a('v_lshrrev_b32 v6, 1, v4')
    a('v_and_b32 v7, 1, v3')
    a('v_lshl_or_b32 v6, v7, 1, v6')
    a('v_and_b32 v7, 3, v2')
    a('v_mul_u32_u24 v8, 384, v5')
    a('v_lshl_add_u32 v8, v7, 3, v8')
    a('s_mul_i32 s42, s41, 3')
    for j in range(3):
        a(f's_add_u32 s43, s42, {j}')
        a('v_xor_b32 v9, s43, v6')
        a(f'v_lshl_add_u32 v{92+j}, v9, 5, v8')
    if 'lin' in OPT:
        for j in range(3):
            a(f'v_lshlrev_b32 v{60+j}, 3, v1')
    if 'lint' in OPT:
        a(f'v_lshlrev_b32 v59, 4, v1')
    a('v_lshlrev_b32 v15, 4, v1')

    def step_dmas(slot_s):
        srds = [8, 12, 16, 20, 24, 16]
        voff = [88, 88, 88, 90, 89, 89]
        def mk(j):
            def f():
                a(f's_add_u32 m0, s{60+j}, s{slot_s}')
                so = 67 if j == 3 else 66
                a('s_nop 0')
                if 'nodma' not in OPT:
                    a(f'buffer_load_dwordx4 v{voff[j]}, s[{srds[j]}:{srds[j]+3}], s{so} offen lds')
                if j == 5:
                    a('s_add_u32 s66, s66, 393216')
                    a('s_add_u32 s67, s67, 64')
            return f
        if nm == 1:
            def adv():
                a('s_add_u32 s66, s66, 393216')
                a('s_add_u32 s67, s67, 64')
            def last():
                mk(4)(); adv()
            return [mk(0), mk(3), last]
        return [mk(j) for j in range(6)]
    def issue_step(slot_s):
        for f in step_dmas(slot_s): f()
    def wo_dmas(buf, cc):
        def mk(j):
            def f():
                a(f's_add_u32 m0, s44, {buf + j*8192}')
                a(f's_add_u32 s45, s68, {cc*256 + j*40960}')
                a(f'buffer_load_dwordx4 v10, s[28:31], s45 offen lds')
            return f
        return [mk(j) for j in range(6)]

    ACC = 112
    def accr(m, j, t4):
        return ACC + ((m * 3 + j) * 4 + t4) * 4
    ND = 6 if nm == 3 else 3
    for r in range(ACC, ACC + 48 * nm):
        a(f'v_mov_b32 v{r}, 0')
    for sl in range(3):
        a(f's_mov_b32 s70, {sl*SLOT}')
        issue_step(70)
    seq = [(m, j) for m in range(nm) for j in range(3)]
    NS_ = len(seq)
    WF = 48
    def set_addr(slot_expr):
        a(f'v_add_u32 v95, {slot_expr}, v91')
        for j in range(3):
            a(f'v_add_u32 v{96+j}, {slot_expr}, v{92+j}')
    def rd_T(ts):
        for t4 in range(4):
            a(f'ds_read_b128 v[{16+16*ts+4*t4}:{19+16*ts+4*t4}], v95 offset:{1024*t4}')
    def rd_W(i):
        m, j = seq[i]
        b = WF + 4 * i
        a(f'ds_read_b64_tr_b16 v[{b}:{b+1}], v{96+j} offset:{m*12288}')
        a(f'ds_read_b64_tr_b16 v[{b+2}:{b+3}], v{96+j} offset:{m*12288+1536}')
    a(f's_waitcnt vmcnt({2*ND})')
    a('s_barrier')
    set_addr(0)
    rd_T(0)
    for i in range(NS_): rd_W(i)
    a('s_mov_b32 s70, 0')
    a(f's_mov_b32 s71, {SLOT}')
    a('s_mov_b32 s72, 0')
    BG = 1
    def step1(ts, dmas, vm, rd_next=True):
        if vm is not None:
            a(f's_waitcnt vmcnt({vm}) lgkmcnt(0)')
        else:
            a('s_waitcnt lgkmcnt(0)')
        if rd_next:
            a('s_barrier')
            set_addr('s71')
            rd_T(ts ^ 1)
            for k in range(3): rd_W1(k, ts ^ 1)
        for d in dmas: d()
        for i in range(3):
            b = WF + 12 * ts + 4 * i
            for t4 in range(4):
                r = accr(0, i, t4)
                tr = 16 + 16 * ts + 4 * t4
                a(f'v_mfma_f32_16x16x32_bf16 v[{r}:{r+3}], v[{b}:{b+3}], v[{tr}:{tr+3}], v[{r}:{r+3}]')
    def rd_W1(i, ts):
        b = WF + 12 * ts + 4 * i
        a(f'ds_read_b64_tr_b16 v[{b}:{b+1}], v{96+i} offset:0')
        a(f'ds_read_b64_tr_b16 v[{b+2}:{b+3}], v{96+i} offset:1536')
    def step(ts, dmas, vm, rd_next=True):
        if nm == 1: return step1(ts, dmas, vm, rd_next)
        dmas = list(dmas)
        for i in range(9):
            m, j = seq[i]
            b = WF + 4 * i
            if i == 0:
                a('s_waitcnt lgkmcnt(14)')
            if i == 1:
                a('s_waitcnt lgkmcnt(12)')
            for t4 in range(4):
                r = accr(m, j, t4)
                tr = 16 + 16 * ts + 4 * t4
                a(f'v_mfma_f32_16x16x32_bf16 v[{r}:{r+3}], v[{b}:{b+3}], v[{tr}:{tr+3}], v[{r}:{r+3}]')
            if i == BG:
                if vm is not None:
                    a(f's_waitcnt vmcnt({vm}) lgkmcnt(0)')
                else:
                    a('s_waitcnt lgkmcnt(0)')
                a('s_barrier')
                if rd_next:
                    set_addr('s71')
                    rd_T(ts ^ 1)
                    for k in range(BG + 1): rd_W(k)
            elif i > BG:
                if rd_next: rd_W(i)
                if dmas: dmas.pop(0)()
        assert not dmas
    def advance():
        a('s_mov_b32 s70, s71')
        a(f's_add_u32 s71, s71, {SLOT}')
        a(f's_cmp_eq_u32 s71, {3*SLOT}')
        a('s_cselect_b32 s71, 0, s71')
    a.label(f'{pfx}_LOOP')
    step(0, step_dmas(70), ND); advance()
    step(1, step_dmas(70), ND); advance()
    a('s_add_u32 s72, s72, 1')
    a('s_cmp_lt_u32 s72, 8')
    a(f's_cbranch_scc1 {pfx}_LOOP')
    step(0, step_dmas(70), ND); advance()
    step(1, [], ND); advance()
    step(0, [], 0); advance()
    step(1, [], None, rd_next=False)
    a('s_nop 7')
    a('s_nop 1')
    FR = 16
    def fr(m, t4, j):
        return FR + m * 24 + (t4 * 3 + j) * 2
    a('v_lshlrev_b32 v14, 4, v1')
    a('s_lshl_b32 s42, s39, 1')
    a('s_lshl_b32 s43, s56, 2')
    a('s_add_u32 s42, s42, s43')
    a('s_lshl_b32 s42, s42, 5')
    a('s_add_u32 s73, s42, s57')
    a('s_mul_i32 s73, s73, 12288')
    a('s_lshl_b32 s42, s41, 10')
    a('s_add_u32 s74, s73, s42')
    a('s_lshr_b32 s42, s41, 1')
    a('s_lshl_b32 s42, s42, 10')
    a('s_add_u32 s42, s42, 4096')
    a('s_and_b32 s43, s41, 1')
    a('s_lshl_b32 s43, s43, 3')
    a('s_add_u32 s42, s42, s43')
    a('s_add_u32 s75, s73, s42')
    outs = ((0, WS_QF), (1, WS_KF), (2, WS_VF))
    if nm == 1:
        outs = ((0, 0),)
        a(f's_mov_b32 s45, {WS_QF}')
        a('s_cmp_eq_u32 s58, 1')
        a(f's_cselect_b32 s45, {WS_KF}, s45')
        a('s_cmp_eq_u32 s58, 2')
        a(f's_cselect_b32 s45, {WS_VF}, s45')
        a('s_add_u32 s74, s74, s45')
        a('s_add_u32 s75, s75, s45')
    for m, base in outs:
        for t4 in range(4):
            for j in range(3):
                f = fr(m, t4, j)
                a0 = accr(m, j, t4)
                a(f'v_cvt_pk_bf16_f32 v{f}, v{a0}, v{a0+1}')
                a(f'v_cvt_pk_bf16_f32 v{f+1}, v{a0+2}, v{a0+3}')
        for t4 in range(4):
            off = base + (t4 >> 1) * 32 * 12288 + (t4 & 1) * 6144
            f = fr(m, t4, 0)
            a(f's_add_u32 s42, s74, {off}')
            a(f's_add_u32 s43, s75, {off}')
            a(f'buffer_store_dwordx4 v[{f}:{f+3}], v15, s[32:35], s42 offen{sfx}')
            a(f'buffer_store_dwordx2 v[{f+4}:{f+5}], v15, s[32:35], s43 offen{sfx}')
```

```python
import sys
sys.path.insert(0, 'dev')
from asmlib import *
from gen import build
from k_mega5 import k_init3, k_mega, LDS_MEGA
if __name__ == '__main__':
    ks = [(k_init3, 256, 256, 0), (k_mega, 256, 512, LDS_MEGA)]
    build(ks, sys.argv[1] if len(sys.argv) > 1 else 'test.s')
```

```python
from asmlib import *
from layout2 import *
from k_t1 import lane_decomp, OPT
from k_chain import pub
TMO = 0x40000
def lds_spin(a, lbl, reads, flag_regs, vtmp):
    a.label(lbl)
    reads()
    a('s_waitcnt lgkmcnt(0)')
    a(f'v_cmp_ne_u32 vcc, s89, v{flag_regs[0]}')
    for f in flag_regs[1:]:
        a(f'v_cmp_ne_u32 s[90:91], s89, v{f}')
        a('s_or_b64 vcc, vcc, s[90:91]')
    a('s_add_u32 s88, s88, 1')
    a(f's_cmp_lt_u32 s88, {TMO:#x}')
    a('s_cselect_b64 s[90:91], vcc, 0')
    a('s_cmp_lg_u64 s[90:91], 0')
    a(f's_cbranch_scc1 {lbl}')
import os

L_FLAG = 0
L_PX = 256
L_PM = 2304
L_MEM = 4096
L_VM = 14336
L_KX = 20480
L_VX = 69632
L_QX = 118784
L_PXX = 143360
L_PMX = 147456
L_END4 = 155648
NSTEP = int(os.environ.get('NSTEP', '64'))
D_MEM = int(os.environ.get('D_MEM', '20'))
D_SC = int(os.environ.get('D_SC', '4'))
D_Z = int(os.environ.get('D_Z', '20'))
D_Z0 = int(os.environ.get('D_Z0', '0'))
D_V = int(os.environ.get('D_V', '12'))
VPW = 3
NT = ' nt' if os.environ.get('NT', '0') == '1' else ''
WOM = int(os.environ.get('WOM', '3'))
WOS = int(os.environ.get('WOS', '4'))
VSW = int(os.environ.get('VSW', '2'))
ZXS = int(os.environ.get('ZXS', '1'))
XPRIO = int(os.environ.get('XPRIO', '0'))
ZPRIO = int(os.environ.get('ZPRIO', '2'))
S_G1 = 196608
S_G2 = 98304
S_ZP = 163840
SLAB = 128 * 20480

SB = 20
def stamp(a, i):
    if 'stamp' not in OPT: return
    l = a.newlabel('ST')
    a('s_cmp_lg_u32 s84, 30')
    a(f's_cbranch_scc1 {l}')
    a('s_memrealtime s[96:97]' if 'gst' in OPT else 's_memtime s[96:97]')
    a('s_waitcnt lgkmcnt(0)')
    a(f's_mov_b32 s{SB+i}, s96')
    a.label(l)

def stampc(a, i):
    if 'stamp' not in OPT: return
    l = a.newlabel('ST')
    a('s_cmp_lg_u32 s84, 30')
    a(f's_cbranch_scc1 {l}')
    a(f's_mov_b32 s{SB+i}, s88')
    a.label(l)

def poll_sent(a, lbl, loads, check_regs, vtmp):
    a.label(lbl)
    loads()
    a('s_waitcnt vmcnt(0)')
    rs = list(check_regs)
    a(f'v_max_u32 v{vtmp}, v{rs[0]}, v{rs[1]}')
    rs = rs[2:]
    while len(rs) >= 2:
        a(f'v_max3_u32 v{vtmp}, v{vtmp}, v{rs[0]}, v{rs[1]}'); rs = rs[2:]
    if rs:
        a(f'v_max_u32 v{vtmp}, v{vtmp}, v{rs[0]}')
    a(f'v_cmp_eq_u32 vcc, -1, v{vtmp}')
    a('s_add_u32 s88, s88, 1')
    a(f's_cmp_lt_u32 s88, {TMO:#x}')
    a('s_cselect_b64 s[90:91], vcc, 0')
    a('s_cmp_lg_u64 s[90:91], 0')
    a(f's_cbranch_scc1 {lbl}')

def t1_wait(a, lbl, s_addr, thr, first=False):
    zv = 11 if first else 12
    if first:
        a(f'buffer_load_dword v254, v{zv}, s[32:35], s{s_addr} offen sc1')
    a.label(lbl)
    a('s_waitcnt vmcnt(0)')
    a('v_readfirstlane_b32 s42, v254')
    a(f's_cmp_ge_u32 s42, {thr}')
    a(f's_cbranch_scc1 {lbl}_OK')
    a('s_add_u32 s88, s88, 1')
    a(f's_cmp_ge_u32 s88, {TMO:#x}')
    a(f's_cbranch_scc1 {lbl}_OK')
    a('s_sleep 1' if first else 's_sleep 4')
    a(f'buffer_load_dword v254, v{zv}, s[32:35], s{s_addr} offen sc1')
    a(f's_branch {lbl}')
    a.label(f'{lbl}_OK')

def clog(a, mega, idx, wave=0):
    if not mega.get('LOG'): return
    l = a.newlabel('CL')
    a(f's_cmp_lg_u32 s40, {wave}')
    a(f's_cbranch_scc1 {l}')
    a('s_memrealtime s[96:97]')
    a('s_lshl_b32 s43, s2, 12')
    a(f's_add_u32 s42, s43, {mega["LOG"] + idx*4}')
    a('s_waitcnt lgkmcnt(0)')
    a('v_mov_b32 v250, s96')
    a('v_mov_b32 v251, 0')
    a('s_mov_b64 exec, 1')
    a('buffer_store_dword v250, v251, s[32:35], s42 offen')
    a('s_mov_b64 exec, -1')
    a.label(l)

def self_t1(a, mega, lbl, WQ, WK, VW):
    NS = mega['NSELF']
    if not NS: return
    N = 4 * NS
    BUF = [L_KX + 40960 * i for i in range(3)]
    if not mega.get('EARLYPOLL'):
        a('s_cmp_lg_u32 s40, 0')
        a(f's_cbranch_scc1 {lbl("ST_W")}')
        a('v_and_b32 v4, 7, v1')
        a('v_lshlrev_b32 v4, 7, v4')
        a(f's_mov_b32 s42, {mega["C_LN1"]}')
        a.label(lbl('ST_P'))
        for r in range(NS):
            a(f'buffer_load_dword v{5+r}, v4, s[32:35], s42 offen offset:{1024*r} sc1')
        a('s_waitcnt vmcnt(0)')
        for r in range(1, NS):
            a(f'v_min_u32 v5, v5, v{5+r}')
        a('v_cmp_eq_u32 vcc, 0, v5')
        a('s_add_u32 s88, s88, 1')
        a(f's_cmp_lt_u32 s88, {TMO:#x}')
        a('s_cselect_b64 s[90:91], vcc, 0')
        a('s_cmp_lg_u64 s[90:91], 0')
        a(f's_cbranch_scc0 {lbl("ST_W")}')
        a('s_sleep 2')
        a(f's_branch {lbl("ST_P")}')
        a.label(lbl('ST_W'))
        a('s_barrier')
    clog(a, mega, 132)
    a('s_cmp_ge_u32 s40, 6')
    a('s_cselect_b32 s46, 2, 0')
    a('s_sub_u32 s46, s40, s46')
    a('s_mul_i32 s46, s46, 7168')
    NI = 7
    def issue(b, on=True):
        if not on: return
        for i in range(NI):
            a(f's_add_u32 s43, s46, {1024*i}')
            a('s_min_u32 s43, s43, 39936')
            a(f's_add_u32 m0, s43, {BUF[b % 3]}')
            a(f's_add_u32 s43, s43, {WS_H1F + b*40960}')
            a('buffer_load_dwordx4 v15, s[32:35], s43 offen lds')
    nl = a.newlabel('STN')
    a('s_cmp_eq_u32 s40, 4')
    a(f's_cbranch_scc1 {nl}')
    a('s_cmp_eq_u32 s40, 5')
    a(f's_cbranch_scc1 {nl}')
    issue(0); issue(1); issue(2)
    a.label(nl)
    a('s_cmp_lt_u32 s40, 3')
    a('s_cselect_b32 s45, s40, s79')
    a('s_lshr_b32 s42, s61, 1')
    a('s_add_u32 s42, s42, 4')
    a('s_and_b32 s43, s61, 1')
    a('s_cmp_eq_u32 s45, 2')
    a('s_cselect_b32 s42, s42, s61')
    a('s_cselect_b32 s43, s43, s45')
    a('s_lshl_b32 s42, s42, 10')
    a('s_lshl_b32 s43, s43, 3')
    a('s_add_u32 s42, s42, s43')
    a('s_mul_i32 s43, s59, 12288')
    a('s_add_u32 s44, s42, s43')
    a('s_cmp_lt_u32 s40, 3')
    a(f's_cbranch_scc1 {lbl("ST_S")}')
    a('s_cmp_eq_u32 s79, 99')
    a(f's_cbranch_scc1 {lbl("ST_N")}')
    for kind, nst, MF, AC, Ws, outs in (('V', 2, 144, 184, [VW], [WS_VF]), ('S', 4, 180, 220, [WQ, WK], [WS_QF, WS_KF]), ('N', 0, 0, 0, [], [])):
        a.label(lbl(f'ST_{kind}'))
        q = [('I', 0)] * NI + [('I', 1)] * NI + [('I', 2)] * NI
        for b in range(N):
            if kind == 'N':
                if b == 0 and WOM == 1:
                    a(f's_sleep {WOS}')
                    mega['WOL']()
                a('s_barrier')
                if b == 0 and WOM == 2: mega['WOL']()
                continue
            last = max(i for i, o in enumerate(q) if o == ('I', b))
            vm = len(q) - 1 - last
            a(f's_waitcnt vmcnt({vm})')
            if kind == 'S': clog(a, mega, 150 + b)
            a('s_barrier')
            if kind == 'S': clog(a, mega, 140 + b)
            if b >= 1 and b + 2 < N:
                issue(b + 2); q += [('I', b + 2)] * NI
            q += [('S', b)] * nst
            a(f'v_add_u32 v4, {BUF[b % 3]}, v15')
            def rd(t):
                sl = MF + 8 * (t % 5)
                a(f'ds_read_b128 v[{sl}:{sl+3}], v4 offset:{1024*t}')
                a(f'ds_read_b128 v[{sl+4}:{sl+7}], v4 offset:{20480 + 1024*t}')
            for t in range(5): rd(t)
            for t in range(20):
                a(f's_waitcnt lgkmcnt({2 * min(4, 19 - t)})')
                sl = MF + 8 * (t % 5)
                for tt in range(2):
                    for m, W in enumerate(Ws):
                        acc = AC + (m * 2 + tt) * 4
                        c = '0' if t == 0 else f'v[{acc}:{acc+3}]'
                        a(f'v_mfma_f32_16x16x32_bf16 v[{acc}:{acc+3}], v[{W+4*t}:{W+4*t+3}], v[{sl+4*tt}:{sl+4*tt+3}], {c}')
                if t + 5 < 20: rd(t + 5)
            a('s_nop 7')
            a('s_nop 1')
            ins = []
            for m, W in enumerate(Ws):
                for tt in range(2):
                    acc = AC + (m * 2 + tt) * 4
                    a(f'v_cvt_pk_bf16_f32 v{acc}, v{acc}, v{acc+1}')
                    a(f'v_cvt_pk_bf16_f32 v{acc+1}, v{acc+2}, v{acc+3}')
            for m, W in enumerate(Ws):
                for tt in range(2):
                    a(f's_add_u32 s{8+m*2+tt}, s44, {outs[m] + b*393216 + tt*6144}')
                    acc = AC + (m * 2 + tt) * 4
                    ins.append(f'buffer_store_dwordx2 v[{acc}:{acc+1}], v15, s[32:35], s{8+m*2+tt} offen')
            pub(a, ins)
        if kind != 'N': a(f's_branch {lbl("ST_E")}')
    a.label(lbl('ST_E'))
    clog(a, mega, 144)
    a('s_waitcnt vmcnt(0)')
    clog(a, mega, 145)
    clog(a, mega, 146, wave=4)
    a('s_barrier')
    a('s_cmp_lg_u32 s40, 0')
    a(f's_cbranch_scc1 {lbl("ST_X")}')
    a('s_lshl_b32 s42, s54, 7')
    a(f's_add_u32 s42, s42, {mega["F_T1"]}')
    a(f'v_mov_b32 v4, {mega["T1THR"] // 16}')
    a('v_mov_b32 v5, 0')
    a('s_mov_b64 exec, 1')
    pub(a, [f'buffer_atomic_add v4, v5, s[32:35], s42 offen offset:{1024*r}' for r in range(NS)])
    a('s_mov_b64 exec, -1')
    a.label(lbl('ST_X'))
    clog(a, mega, 133)

def chain4_body(a, mega):
    NW = 640 * 6144 * 2
    def lbl(n): return f'C4_{n}'
    clog(a, mega, 128)
    if mega.get('LOG'):
        a('s_lshl_b32 s43, s2, 12')
        a(f's_add_u32 s42, s43, {mega["LOG"] + 134*4}')
        a('s_lshl_b32 s43, s54, 8')
        a('s_or_b32 s43, s43, s55')
        a('v_mov_b32 v250, s43')
        a('v_mov_b32 v251, 0')
        a('buffer_store_dword v250, v251, s[32:35], s42 offen')
    a('s_lshr_b32 s56, s55, 3')
    a('s_and_b32 s57, s55, 7')
    a('s_lshl_b32 s58, s54, 1')
    a('s_add_u32 s58, s58, s56')
    a('s_lshr_b32 s59, s57, 2')
    a('s_lshl_b32 s60, s58, 1')
    a('s_add_u32 s59, s59, s60')
    a('s_and_b32 s61, s57, 3')
    a('s_mul_i32 s42, s59, 384')
    a('s_mul_i32 s43, s61, 96')
    a('s_add_u32 s62, s42, s43')
    a(f's_add_u32 s44, s61, {VSW}')
    a('s_and_b32 s44, s44, 3')
    a('s_mul_i32 s43, s44, 96')
    a('s_add_u32 s63, s42, s43')
    a('s_cmp_ge_u32 s40, 3')
    a('s_cselect_b32 s61, s44, s61')
    a('s_and_b32 s41, s40, 3')
    a('s_cmp_lt_u32 s40, 4')
    a('s_cselect_b32 s24, s8, s12')
    a('s_cselect_b32 s25, s9, s13')
    a(f's_mov_b32 s26, {NW}')
    a('s_mov_b32 s27, 0x00020000')
    a('s_mul_i32 s42, s41, 960')
    STG = 180
    def wdma(stage=False):
        for i in range(15):
            a(f's_add_u32 s43, s42, {64*i}')
            a('v_add_u32 v4, s43, v1')
            a('v_mul_u32_u24 v5, 10923, v4')
            a('v_lshrrev_b32 v5, 16, v5')
            a('v_mul_u32_u24 v6, 6, v5')
            a('v_sub_u32 v6, v4, v6')
            a('v_mul_u32_u24 v5, 12288, v5')
            a('v_lshl_add_u32 v5, v6, 4, v5')
            if stage:
                a(f'buffer_load_dwordx4 v[{STG+4*i}:{STG+4*i+3}], v5, s[24:27], s63 offen{NT}')
                continue
            a('s_mul_i32 s43, s40, 15360')
            a(f's_add_u32 m0, s43, {1024*i}')
            a('s_nop 0')
            a(f'buffer_load_dwordx4 v5, s[24:27], s62 offen{NT} lds')
    M0R = 240
    def mem0_early():
        for i in range(2):
            a(f'v_add_u32 v4, {512*i}, v0')
            a('v_min_u32 v4, 639, v4')
            a('v_lshrrev_b32 v5, 6, v4')
            a('v_bfe_u32 v6, v4, 3, 1')
            a('v_mul_u32_u24 v6, 10, v6')
            a('v_add_u32 v5, v5, v6')
            a('v_bfe_u32 v6, v4, 4, 2')
            a('v_and_b32 v7, 7, v4')
            a('v_mul_u32_u24 v7, 1280, v7')
            a('v_lshl_add_u32 v7, v5, 6, v7')
            a('v_lshl_add_u32 v7, v6, 3, v7')
            a(f'buffer_load_dwordx2 v[{M0R+4*i}:{M0R+4*i+1}], v7, s[36:39], 0 offen')
            a(f'buffer_load_dwordx2 v[{M0R+4*i+2}:{M0R+4*i+3}], v7, s[36:39], 0 offen offset:32')
    wdma()
    a('v_lshlrev_b32 v15, 4, v1')
    a('v_lshlrev_b32 v13, 3, v1')
    STO = 100
    a('s_cmp_ge_u32 s40, 4')
    a(f's_cbranch_scc1 {lbl("R2WO")}')
    a('s_mov_b32 s24, s16')
    a('s_mov_b32 s25, s17')
    wdma(True)
    mem0_early()
    a('s_waitcnt vmcnt(19)')
    a(f's_branch {lbl("R2END")}')
    a.label(lbl('R2WO'))
    mem0_early()
    a('s_waitcnt vmcnt(4)')
    a.label(lbl('R2END'))
    a('s_barrier')
    clog(a, mega, 130)
    def wo_loads():
        a('s_mul_i32 s44, s58, 491520')
        a('s_mul_i32 s45, s57, 160')
        a('s_add_u32 s44, s44, s45')
        a('s_sub_u32 s42, s40, 4')
        a('s_mul_i32 s42, s42, 1920')
        for i in range(30):
            a(f's_add_u32 s43, s42, {64*i}')
            a('v_add_u32 v5, s43, v1')
            a('v_mul_u32_u24 v6, 6554, v5')
            a('v_lshrrev_b32 v6, 16, v6')
            a('v_mul_u32_u24 v7, 10, v6')
            a('v_sub_u32 v7, v5, v7')
            a('v_mul_u32_u24 v6, 1280, v6')
            a('v_lshl_add_u32 v6, v7, 4, v6')
            a(f'buffer_load_dwordx4 v[{STO+4*i}:{STO+4*i+3}], v6, s[28:31], s44 offen{NT}')
    if WOM == 3:
        a('s_cmp_lt_u32 s40, 4')
        a(f's_cbranch_scc1 {lbl("R2W45")}')
        a('s_cmp_ge_u32 s40, 6')
        a(f's_cbranch_scc1 {lbl("R2W45")}')
        wo_loads()
        a.label(lbl('R2W45'))
    if mega.get('EARLYPOLL'): mega['EARLYPOLL'](a)
    WQ, WK = 20, 100
    a('v_lshrrev_b32 v4, 2, v2')
    a('v_lshl_add_u32 v4, v3, 2, v4')
    a('v_mul_u32_u24 v4, 96, v4')
    a('v_and_b32 v5, 3, v2')
    a('v_lshl_add_u32 v4, v5, 3, v4')
    a('s_cmp_ge_u32 s40, 3')
    a(f's_cbranch_scc1 {lbl("NOSW")}')
    a('s_lshl_b32 s42, s40, 5')
    a('v_add_u32 v8, s42, v4')
    a('v_add_u32 v9, 61440, v8')
    for base, ad in ((WQ, 8), (WK, 9)):
        for t in range(20):
            f = base + 4 * t
            a(f'ds_read_b64_tr_b16 v[{f}:{f+1}], v{ad} offset:{t*3072}')
            a(f'ds_read_b64_tr_b16 v[{f+2}:{f+3}], v{ad} offset:{t*3072+1536}')
            if t % 4 == 3:
                a('s_waitcnt lgkmcnt(0)')
    a.label(lbl('NOSW'))
    a('s_waitcnt lgkmcnt(0)')
    a('s_barrier')
    a('s_cmp_ge_u32 s40, 4')
    a(f's_cbranch_scc1 {lbl("NOVS")}')
    a('s_mul_i32 s43, s40, 15360')
    a('v_add_u32 v5, s43, v15')
    for i in range(15):
        a(f's_waitcnt vmcnt({18-i})')
        a(f'ds_write_b128 v5, v[{STG+4*i}:{STG+4*i+3}] offset:{1024*i}')
    a.label(lbl('NOVS'))
    a('s_waitcnt lgkmcnt(0)')
    a('s_barrier')
    WO, VW = 16, 64
    a('s_sub_u32 s74, s40, 3')
    a('s_mov_b32 s79, 99')
    for wv, tl in ((3, 0), (7, 1), (6, 2)):
        a(f's_cmp_eq_u32 s40, {wv}')
        a(f's_cselect_b32 s79, {tl}, s79')
    a('s_cmp_eq_u32 s79, 99')
    a(f's_cbranch_scc1 {lbl("NOVW")}')
    a('v_lshrrev_b32 v4, 2, v2')
    a('v_lshl_add_u32 v4, v3, 2, v4')
    a('v_mul_u32_u24 v4, 96, v4')
    a('v_and_b32 v5, 3, v2')
    a('v_lshl_add_u32 v4, v5, 3, v4')
    a('s_lshl_b32 s42, s79, 5')
    a('v_add_u32 v8, s42, v4')
    for t in range(20):
        f = VW + 4 * t
        a(f'ds_read_b64_tr_b16 v[{f}:{f+1}], v8 offset:{t*3072}')
        a(f'ds_read_b64_tr_b16 v[{f+2}:{f+3}], v8 offset:{t*3072+1536}')
        if t % 4 == 3:
            a('s_waitcnt lgkmcnt(0)')
    a.label(lbl('NOVW'))
    a('s_waitcnt lgkmcnt(0)')
    a('s_barrier')
    mega['WOL'] = wo_loads
    if WOM == 0 or (not mega['NSELF'] and WOM != 3):
        a('s_cmp_lt_u32 s40, 4')
        a(f's_cbranch_scc1 {lbl("R2W67")}')
        a('s_cmp_ge_u32 s40, 6')
        a(f's_cbranch_scc1 {lbl("R2W67")}')
        wo_loads()
        a.label(lbl('R2W67'))
    clog(a, mega, 129)
    if mega.get('EARLYCHK'): mega['EARLYCHK'](a)
    if mega.get('GATE'): mega['GATE'](a, 'GC')
    self_t1(a, mega, lbl, WQ, WK, VW)
    WOB = 20480
    a('s_cmp_eq_u32 s40, 4')
    a(f's_cbranch_scc1 {lbl("WOW")}')
    a('s_cmp_lg_u32 s40, 5')
    a(f's_cbranch_scc1 {lbl("WOW2")}')
    a.label(lbl('WOW'))
    a('s_sub_u32 s42, s40, 4')
    a('s_mul_i32 s42, s42, 30720')
    a(f's_add_u32 s42, s42, {WOB}')
    a('v_add_u32 v5, s42, v15')
    a('s_waitcnt vmcnt(0)')
    for i in range(30):
        a(f'ds_write_b128 v5, v[{STO+4*i}:{STO+4*i+3}] offset:{1024*i}')
    a.label(lbl('WOW2'))
    a('s_waitcnt lgkmcnt(0)')
    a('s_barrier')
    a('s_cmp_lt_u32 s40, 3')
    a(f's_cbranch_scc1 {lbl("NOZW")}')
    a('v_lshrrev_b32 v5, 2, v2')
    a('v_lshl_add_u32 v5, v3, 2, v5')
    a('v_mul_u32_u24 v5, 160, v5')
    a('v_and_b32 v6, 3, v2')
    a('v_lshl_add_u32 v5, v6, 3, v5')
    a('s_lshl_b32 s42, s74, 5')
    a(f's_add_u32 s42, s42, {WOB}')
    a('v_add_u32 v5, s42, v5')
    for hh in range(2):
        for b in range(6):
            f = WO + (hh * 6 + b) * 4
            ta, tb = BLK[b]
            a(f'ds_read_b64_tr_b16 v[{f}:{f+1}], v5 offset:{(hh*192 + 16*ta)*160}')
            a(f'ds_read_b64_tr_b16 v[{f+2}:{f+3}], v5 offset:{(hh*192 + 16*tb)*160}')
        a('s_waitcnt lgkmcnt(0)')
    a.label(lbl('NOZW'))
    a('s_waitcnt lgkmcnt(0)')
    a('s_barrier')
    clog(a, mega, 135)
    a('v_mov_b32 v11, 0')
    a('v_cmp_gt_u32 vcc, 8, v2')
    a('s_mov_b64 s[64:65], vcc')
    a('s_mov_b32 s66, -1')
    a('s_mov_b32 s67, 0')
    a('s_mov_b32 s98, 0')
    a('s_mov_b32 s99, -1')
    a('ds_write_b32 v11, v11 offset:8')
    a('ds_write_b32 v11, v11 offset:12')
    a('ds_write_b32 v11, v11 offset:32')
    a('ds_write_b32 v11, v11 offset:40')
    a('ds_write_b32 v11, v11 offset:44')
    for r in range(4): a(f'v_mov_b32 v{4+r}, 0')
    a('v_lshlrev_b32 v8, 4, v0')
    a(f'v_add_u32 v8, {L_PXX}, v8')
    a('s_cmp_ge_u32 s40, 6')
    a(f's_cbranch_scc1 {lbl("NOZX")}')
    a('ds_write_b128 v8, v[4:7]')
    a('ds_write_b128 v8, v[4:7] offset:6144')
    a.label(lbl('NOZX'))
    a('v_lshlrev_b32 v6, 4, v0')
    a('s_waitcnt vmcnt(0)')
    a(f'ds_write_b128 v6, v[{M0R}:{M0R+3}] offset:{L_MEM}')
    a('s_cmp_ge_u32 s40, 2')
    a(f's_cbranch_scc1 {lbl("M0S")}')
    a(f'ds_write_b128 v6, v[{M0R+4}:{M0R+7}] offset:{L_MEM + 8192}')
    a.label(lbl('M0S'))
    a('v_mov_b32 v11, 0')
    a('s_lshr_b32 s68, s54, 1')
    a('s_mul_i32 s68, s68, 40960')
    a(f's_add_u32 s68, s68, {WS_MEMF}')
    a('s_mul_i32 s42, s58, 24576')
    a(f's_add_u32 s70, s42, {WS_KF}')
    a(f's_add_u32 s71, s42, {WS_VF}')
    a(f's_add_u32 s16, s42, {WS_QF}')
    a('s_sub_u32 s46, s40, 4')
    a('s_mul_i32 s46, s46, 6144')
    def dma_blk(src_s, lds_s):
        a(f's_add_u32 s43, s{src_s}, s46')
        a(f's_add_u32 s47, s{lds_s}, s46')
        for i in range(6):
            a(f's_add_u32 m0, s47, {1024*i}')
            if i:
                a('s_add_u32 s43, s43, 1024')
            else:
                a('s_nop 0')
            a(f'buffer_load_dwordx4 v15, s[32:35], s43 offen lds')
    a('s_lshl_b32 s77, s54, 7')
    a(f's_add_u32 s77, s77, {mega["F_T1"]}')
    a('s_lshl_b32 s50, s54, 4')
    a('s_add_u32 s50, s50, s55')
    a('s_lshl_b32 s50, s50, 7')
    a(f's_add_u32 s50, s50, {mega["F_ZX"]}')
    a('v_mov_b32 v255, 1')
    a('s_cmp_lt_u32 s40, 4')
    a(f's_cbranch_scc1 {lbl("NOPD")}')
    t1_wait(a, lbl('T1W0'), 77, mega['T1THR'], first=True)
    clog(a, mega, 136, wave=4)
    a(f's_mov_b32 s45, {L_KX}')
    dma_blk(70, 45)
    a(f's_mov_b32 s45, {L_VX}')
    dma_blk(71, 45)
    a(f's_mov_b32 s45, {L_QX}')
    dma_blk(16, 45)
    a('s_add_u32 s71, s71, 393216')
    a(f's_mov_b32 s45, {L_VX + 24576}')
    dma_blk(71, 45)
    a.label(lbl('NOPD'))
    a('s_mul_i32 s42, s58, 24576')
    a(f's_add_u32 s70, s42, {WS_KF + 393216}')
    a(f's_add_u32 s71, s42, {WS_VF + 2*393216}')
    a(f's_add_u32 s16, s42, {WS_QF + 393216}')
    a('s_mov_b32 s84, 0')
    a('s_mov_b32 s86, 0')
    a('s_mov_b32 s89, 1')
    a('s_waitcnt vmcnt(0) lgkmcnt(0)')
    a('s_barrier')
    clog(a, mega, 137)
    a('s_cmp_ge_u32 s40, 3')
    a(f's_cbranch_scc1 {lbl("ZWAVE")}')
    SEL = 16
    MF = 180
    AC = 220
    a('s_setprio 3')
    a(f's_mov_b32 s87, {f2u(192 ** -0.5 * LOG2E):#x}')
    for r in range(4):
        a(f'v_mov_b32 v{SEL+r}, 0')
        a(f'v_mov_b32 v4, 0x3f80')
        a(f'v_cmp_eq_u32 vcc, {2*r}, v2')
        a(f'v_cndmask_b32 v{SEL+r}, v{SEL+r}, v4, vcc')
        a(f'v_mov_b32 v4, 0x3f800000')
        a(f'v_cmp_eq_u32 vcc, {2*r+1}, v2')
        a(f'v_cndmask_b32 v{SEL+r}, v{SEL+r}, v4, vcc')
    for r in range(4):
        a(f'v_lshl_add_u32 v4, v3, 2, {r}')
        a(f'v_cmp_le_u32 s[{8+2*r}:{9+2*r}], v4, v2')
    a('s_lshr_b32 s42, s61, 1')
    a('s_add_u32 s42, s42, 4')
    a('s_and_b32 s43, s61, 1')
    a('s_cmp_eq_u32 s40, 2')
    a('s_cselect_b32 s42, s42, s61')
    a('s_cselect_b32 s43, s43, s40')
    a('s_lshl_b32 s42, s42, 10')
    a('s_lshl_b32 s43, s43, 3')
    a('s_add_u32 s42, s42, s43')
    a('s_mul_i32 s43, s59, 6144')
    a('s_add_u32 s42, s42, s43')
    a(f's_add_u32 s72, s42, {WS_G1}')
    a('s_lshl_b32 s42, s58, 1')
    a('s_add_u32 s42, s42, s40')
    a('s_mul_i32 s42, s42, 6144')
    a(f's_add_u32 s75, s42, {WS_G1}')
    a('s_and_b32 s42, s54, 1')
    a('s_lshl_b32 s42, s42, 4')
    a('s_add_u32 s80, s42, s55')
    a('s_lshl_b32 s81, s80, 8')
    a(f's_add_u32 s81, s81, {WS_ZP}')
    a('v_mul_u32_u24 v10, 10240, v3')
    a('v_lshl_add_u32 v10, v2, 4, v10')
    def memf_base(dst, ct_s):
        a(f's_lshr_b32 s42, s{ct_s}, 1')
        a('s_cmp_ge_u32 s42, 10')
        a('s_cselect_b32 s43, 10, 0')
        a('s_cselect_b32 s44, 128, 0')
        a('s_sub_u32 s42, s42, s43')
        a('s_lshl_b32 s42, s42, 10')
        a('s_add_u32 s42, s42, s44')
        a(f's_and_b32 s43, s{ct_s}, 1')
        a('s_lshl_b32 s43, s43, 3')
        a('s_add_u32 s42, s42, s43')
        a(f's_add_u32 s{dst}, s42, s68')
    memf_base(82, 80)
    a('s_add_u32 s45, s80, 32')
    memf_base(73, 45)
    a(f'v_add_u32 v6, {L_MEM}, v15')
    a('s_mul_i32 s42, s40, 12288')
    a(f's_add_u32 s42, s42, {L_KX}')
    a('v_add_u32 v7, s42, v15')
    a('v_mov_b32 v8, -1')
    a('v_mov_b32 v9, -1')
    a('s_lshl_b32 s42, s40, 10')
    a(f's_add_u32 s42, s42, {L_PX}')
    a('v_add_u32 v5, s42, v15')
    a('s_cmp_eq_u32 s40, 0')
    a('s_cselect_b32 s42, 0, 256')
    a(f's_add_u32 s42, s42, {L_PM - 256}')
    a('v_add_u32 v4, s42, v13')
    a('s_lshl_b32 s42, s40, 2')
    a(f's_add_u32 s42, s42, {L_FLAG + 8}')
    a('v_mov_b32 v12, s42')
    a('s_mul_i32 s17, s40, 12288')
    a(f's_add_u32 s17, s17, {L_QX}')
    a('s_lshl_b32 s18, s40, 11')
    a(f's_add_u32 s18, s18, {L_PXX}')
    a('s_cmp_eq_u32 s40, 0')
    a('s_cselect_b32 s19, 0, 512')
    a(f's_add_u32 s19, s19, {L_PMX - 512}')
    a('s_mov_b32 s83, 0')
    a.label(lbl('SLOOP'))
    a('s_cmp_eq_u32 s40, 1')
    a(f's_cbranch_scc1 {lbl("SNW")}')
    a('s_waitcnt vmcnt(0)')
    a.label(lbl('SNW'))
    stamp(a, 0)
    a('s_barrier')
    stamp(a, 1)
    for t in range(10):
        a(f'ds_read_b128 v[{MF+4*t}:{MF+4*t+3}], v6 offset:{1024*t}')
    for t in range(10):
        a(f's_waitcnt lgkmcnt({9-t})')
        b = MF + 4 * t
        for ai, W in ((0, WQ + 4*t), (1, WQ + 4*(t+10)), (2, WK + 4*t), (3, WK + 4*(t+10))):
            acc = AC + 4 * ai
            c = '0' if t == 0 else f'v[{acc}:{acc+3}]'
            a(f'v_mfma_f32_16x16x32_bf16 v[{acc}:{acc+3}], v[{W}:{W+3}], v[{b}:{b+3}], {c}')
    a('s_mul_i32 s42, s86, 196608')
    a('s_add_u32 s42, s42, s72')
    a('s_nop 7')
    for r in range(4):
        a(f'v_add_f32_dpp v{AC+r}, v{AC+4+r}, v{AC+r} row_ror:8 row_mask:0xf bank_mask:0xf')
    for r in range(4):
        a(f'v_add_f32_dpp v{AC+12+r}, v{AC+8+r}, v{AC+12+r} row_ror:8 row_mask:0xf bank_mask:0xf')
    for r in range(4):
        a(f'v_mul_f32 v{AC+r}, s87, v{AC+r}')
    a('s_mov_b64 vcc, s[64:65]')
    for r in range(4):
        a(f'v_cndmask_b32 v{AC+r}, v{AC+12+r}, v{AC+r}, vcc')
    a(f'v_cvt_pk_bf16_f32 v{AC+4}, v{AC}, v{AC+1}')
    a(f'v_cvt_pk_bf16_f32 v{AC+5}, v{AC+2}, v{AC+3}')
    pub(a, [f'buffer_store_dwordx2 v[{AC+4}:{AC+5}], v15, s[32:35], s42 offen'])
    stamp(a, 2)
    a('s_add_u32 s43, s86, 2')
    a('s_and_b32 s43, s43, 3')
    a('s_mul_i32 s43, s43, 196608')
    a('s_add_u32 s43, s43, s72')
    pub(a, [f'buffer_store_dwordx2 v[8:9], v15, s[32:35], s43 offen'])
    a('s_cmp_lg_u32 s40, 2')
    a(f's_cbranch_scc1 {lbl("SC01")}')
    a(f's_cmp_ge_u32 s84, {NSTEP-1}')
    a(f's_cbranch_scc1 {lbl("DONE")}')
    def rd_pf():
        a(f'ds_read_b32 v{180}, v11 offset:{L_FLAG + 8}')
        a(f'ds_read_b32 v{181}, v11 offset:{L_FLAG + 12}')
    lds_spin(a, lbl('SPINR'), rd_pf, [180, 181], 14)
    if D_Z: a(f's_sleep {D_Z}')
    a(f's_branch {lbl("SRED")}')
    a.label(lbl('SC01'))
    R = 180
    KS = 204
    SC = 244
    def rd_k(i, slot):
        a(f'ds_read_b128 v[{KS+4*slot}:{KS+4*slot+3}], v7 offset:{1024*i}')
    for i in range(10): rd_k(i, i)
    a('s_mul_i32 s42, s86, 196608')
    a('s_add_u32 s42, s42, s75')
    a('s_add_u32 s43, s42, 4096')
    if D_SC: a(f's_sleep {D_SC}')
    def ld_g1():
        for b in range(6):
            so = 42 if b < 4 else 43
            a(f'buffer_load_dwordx4 v[{R+4*b}:{R+4*b+3}], v15, s[32:35], s{so} offen offset:{1024*(b%4)} sc1')
    poll_sent(a, lbl('POLLG'), ld_g1, [R + 4*b + o for b in range(6) for o in (0, 2)], 14)
    stamp(a, 3)
    a('s_waitcnt lgkmcnt(0)')
    for b in range(6):
        c = '0' if b == 0 else f'v[{SC+4}:{SC+7}]'
        a(f'v_mfma_f32_16x16x32_bf16 v[{SC+4}:{SC+7}], v[{KS+4*b}:{KS+4*b+3}], v[{R+4*b}:{R+4*b+3}], {c}')
    rd_k(10, 0); rd_k(11, 1)
    for b in range(6):
        c = '0' if b == 0 else f'v[{SC}:{SC+3}]'
        a(f'v_mfma_f32_16x16x32_bf16 v[{SC}:{SC+3}], v[{R+4*b}:{R+4*b+3}], v[{R+4*b}:{R+4*b+3}], {c}')
    a('s_waitcnt lgkmcnt(0)')
    for b in range(6):
        c = '0' if b == 0 else f'v[{SC+8}:{SC+11}]'
        sl = (6 + b) if b < 4 else (b - 4)
        a(f'v_mfma_f32_16x16x32_bf16 v[{SC+8}:{SC+11}], v[{KS+4*sl}:{KS+4*sl+3}], v[{R+4*b}:{R+4*b+3}], {c}')
    a(f'v_mov_b32 v14, {f2u(-1e30):#x}')
    a('v_cmp_gt_u32 vcc, 2, v3')
    a('s_nop 7')
    stamp(a, 4)
    for r in range(4):
        a(f'v_cndmask_b32 v{SC+r}, v{SC+r}, v14, vcc')
    M = 204
    a(f'v_max3_f32 v{M}, v{SC+4}, v{SC+5}, v{SC+6}')
    a(f'v_max3_f32 v{M+1}, v{SC+7}, v{SC+8}, v{SC+9}')
    a(f'v_max3_f32 v{M+2}, v{SC+10}, v{SC+11}, v{SC}')
    a(f'v_max3_f32 v{M+3}, v{SC+1}, v{SC+2}, v{SC+3}')
    a(f'v_max3_f32 v{M}, v{M}, v{M+1}, v{M+2}')
    a(f'v_max_f32 v{M}, v{M}, v{M+3}')
    def xg(op, v, t):
        a(f'v_mov_b32 v{t}, v{v}')
        a('s_nop 1')
        a(f'v_permlane32_swap_b32 v{v}, v{t}')
        a('s_nop 1')
        a(f'v_{op}_f32 v{v}, v{v}, v{t}')
        a(f'v_mov_b32 v{t}, v{v}')
        a('s_nop 1')
        a(f'v_permlane16_swap_b32 v{v}, v{t}')
        a('s_nop 1')
        a(f'v_{op}_f32 v{v}, v{v}, v{t}')
    def xg2(op, v, t, v2, t2):
        for sw in ('32', '16'):
            a(f'v_mov_b32 v{t}, v{v}')
            a(f'v_mov_b32 v{t2}, v{v2}')
            a('s_nop 0')
            a(f'v_permlane{sw}_swap_b32 v{v}, v{t}')
            a(f'v_permlane{sw}_swap_b32 v{v2}, v{t2}')
            a('s_nop 0')
            a(f'v_{op}_f32 v{v}, v{v}, v{t}')
            a(f'v_{op}_f32 v{v2}, v{v2}, v{t2}')
    xg('max', M, M + 1)
    for r in range(12):
        a(f'v_sub_f32 v{SC+r}, v{SC+r}, v{M}')
    for r in range(12):
        a(f'v_exp_f32 v{SC+r}, v{SC+r}')
    a('s_nop 0')
    L = M + 2
    a(f'v_add_f32 v{L}, v{SC}, v{SC+1}')
    a(f'v_add_f32 v{L+1}, v{SC+2}, v{SC+3}')
    a(f'v_add_f32 v{L+2}, v{SC+4}, v{SC+5}')
    a(f'v_add_f32 v{L+3}, v{SC+6}, v{SC+7}')
    a(f'v_add_f32 v{L+4}, v{SC+8}, v{SC+9}')
    a(f'v_add_f32 v{L+5}, v{SC+10}, v{SC+11}')
    a(f'v_add_f32 v{L}, v{L}, v{L+1}')
    a(f'v_add_f32 v{L+2}, v{L+2}, v{L+3}')
    a(f'v_add_f32 v{L+4}, v{L+4}, v{L+5}')
    a(f'v_add_f32 v{L}, v{L}, v{L+2}')
    a(f'v_add_f32 v{L}, v{L}, v{L+4}')
    xg('add', L, L + 1)
    a(f'v_rcp_f32 v{L}, v{L}')
    a('s_nop 0')
    for r in range(12):
        a(f'v_mul_f32 v{SC+r}, v{SC+r}, v{L}')
    PO = 216
    a(f'v_cvt_pk_bf16_f32 v{PO}, v{SC+4}, v{SC+5}')
    a(f'v_cvt_pk_bf16_f32 v{PO+1}, v{SC+6}, v{SC+7}')
    a(f'v_cvt_pk_bf16_f32 v{PO+2}, v{SC+8}, v{SC+9}')
    a(f'v_cvt_pk_bf16_f32 v{PO+3}, v{SC+10}, v{SC+11}')
    a(f'v_cvt_pk_bf16_f32 v{PO+4}, v{SC}, v{SC+1}')
    a(f'v_cvt_pk_bf16_f32 v{PO+5}, v{SC+2}, v{SC+3}')
    a('v_mov_b32 v14, s89')
    a(f'ds_write_b128 v5, v[{PO}:{PO+3}]')
    a('s_mov_b64 exec, s[98:99]')
    a(f'ds_write_b64 v4, v[{PO+4}:{PO+5}]')
    a('s_mov_b64 exec, -1')
    a(f'ds_write_b32 v12, v14')
    stamp(a, 5)
    if 'nox' not in OPT:
        a(f's_setprio {XPRIO}')
        def rd_p1():
            a(f'ds_read_b32 v{M}, v11 offset:{L_FLAG + 12}')
        lds_spin(a, lbl('SPINQ'), rd_p1, [M], 14)
        ST0, ST1, XA = 204, 220, 236
        m0, a0, m1, a1, b1 = XA, XA + 4, XA + 8, XA + 12, XA + 16
        a('v_add_u32 v14, s17, v15')
        def rdx(b, S):
            a(f'ds_read_b128 v[{S}:{S+3}], v14 offset:{1024*b}')
            a(f'ds_read_b128 v[{S+4}:{S+7}], v14 offset:{6144 + 1024*b}')
            a(f'ds_read_b128 v[{S+8}:{S+11}], v7 offset:{1024*b}')
            a(f'ds_read_b128 v[{S+12}:{S+15}], v7 offset:{6144 + 1024*b}')
        rdx(0, ST0); rdx(1, ST1)
        for b in range(6):
            S = ST0 if b % 2 == 0 else ST1
            a(f's_waitcnt lgkmcnt({4 if b < 5 else 0})')
            for acc, A, B in ((m0, R + 4*b, S), (a0, S + 8, S), (m1, R + 4*b, S + 4), (a1, S + 8, S + 4), (b1, S + 12, S + 4)):
                c = '0' if b == 0 else f'v[{acc}:{acc+3}]'
                a(f'v_mfma_f32_16x16x32_bf16 v[{acc}:{acc+3}], v[{A}:{A+3}], v[{B}:{B+3}], {c}')
            if b + 2 < 6: rdx(b + 2, S)
        T = 204
        a(f'v_mov_b32 v{T}, {f2u(-1e30):#x}')
        a('s_nop 7')
        for r in range(4):
            a(f'v_cndmask_b32 v{m0+r}, v{T}, v{m0+r}, s[98:99]')
            a(f'v_cndmask_b32 v{m1+r}, v{T}, v{m1+r}, s[98:99]')
            a(f'v_cndmask_b32 v{a0+r}, v{T}, v{a0+r}, s[{8+2*r}:{9+2*r}]')
            a(f'v_cndmask_b32 v{b1+r}, v{T}, v{b1+r}, s[{8+2*r}:{9+2*r}]')
        M0, M1 = T + 1, T + 2
        a(f'v_max3_f32 v{M0}, v{m0}, v{m0+1}, v{m0+2}')
        a(f'v_max3_f32 v{M1}, v{m1}, v{m1+1}, v{m1+2}')
        a(f'v_max3_f32 v{M0}, v{M0}, v{m0+3}, v{a0}')
        a(f'v_max3_f32 v{M1}, v{M1}, v{m1+3}, v{a1}')
        a(f'v_max3_f32 v{M0}, v{M0}, v{a0+1}, v{a0+2}')
        a(f'v_max3_f32 v{M1}, v{M1}, v{a1+1}, v{a1+2}')
        a(f'v_max_f32 v{M0}, v{M0}, v{a0+3}')
        a(f'v_max3_f32 v{M1}, v{M1}, v{a1+3}, v{b1}')
        a(f'v_max3_f32 v{M1}, v{M1}, v{b1+1}, v{b1+2}')
        a(f'v_max_f32 v{M1}, v{M1}, v{b1+3}')
        xg2('max', M0, T + 3, M1, T + 4)
        a(f'v_mul_f32 v{M0}, s87, v{M0}')
        a(f'v_mul_f32 v{M1}, s87, v{M1}')
        g0 = [m0 + r for r in range(4)] + [a0 + r for r in range(4)]
        g1 = [m1 + r for r in range(4)] + [a1 + r for r in range(4)] + [b1 + r for r in range(4)]
        for regs, mm in ((g0, M0), (g1, M1)):
            for v in regs:
                a(f'v_fma_f32 v{v}, v{v}, s87, -v{mm}')
        for v in g0 + g1:
            a(f'v_exp_f32 v{v}, v{v}')
        a('s_nop 0')
        L0, L1 = T + 1, T + 2
        a(f'v_add_f32 v{L0}, v{g0[0]}, v{g0[1]}')
        a(f'v_add_f32 v{L1}, v{g1[0]}, v{g1[1]}')
        a(f'v_add_f32 v{T+3}, v{g0[2]}, v{g0[3]}')
        a(f'v_add_f32 v{T+4}, v{g1[2]}, v{g1[3]}')
        a(f'v_add_f32 v{T+5}, v{g0[4]}, v{g0[5]}')
        a(f'v_add_f32 v{T+6}, v{g1[4]}, v{g1[5]}')
        a(f'v_add_f32 v{T+7}, v{g0[6]}, v{g0[7]}')
        a(f'v_add_f32 v{T+8}, v{g1[6]}, v{g1[7]}')
        a(f'v_add_f32 v{T+9}, v{g1[8]}, v{g1[9]}')
        a(f'v_add_f32 v{T+10}, v{g1[10]}, v{g1[11]}')
        a(f'v_add_f32 v{L0}, v{L0}, v{T+3}')
        a(f'v_add_f32 v{L1}, v{L1}, v{T+4}')
        a(f'v_add_f32 v{T+5}, v{T+5}, v{T+7}')
        a(f'v_add_f32 v{T+6}, v{T+6}, v{T+8}')
        a(f'v_add_f32 v{T+9}, v{T+9}, v{T+10}')
        a(f'v_add_f32 v{L0}, v{L0}, v{T+5}')
        a(f'v_add_f32 v{L1}, v{L1}, v{T+6}')
        a('s_nop 0')
        a(f'v_add_f32 v{L1}, v{L1}, v{T+9}')
        xg2('add', L0, T + 3, L1, T + 4)
        a(f'v_rcp_f32 v{L0}, v{L0}')
        a(f'v_rcp_f32 v{L1}, v{L1}')
        a('s_nop 0')
        for regs, ll in ((g0, L0), (g1, L1)):
            for v in regs:
                a(f'v_mul_f32 v{v}, v{v}, v{ll}')
        O = 216
        a(f'v_cvt_pk_bf16_f32 v{O}, v{a0}, v{a0+1}')
        a(f'v_cvt_pk_bf16_f32 v{O+1}, v{a0+2}, v{a0+3}')
        a(f'v_cvt_pk_bf16_f32 v{O+2}, v{a1}, v{a1+1}')
        a(f'v_cvt_pk_bf16_f32 v{O+3}, v{a1+2}, v{a1+3}')
        a(f'v_cvt_pk_bf16_f32 v{O+4}, v{b1}, v{b1+1}')
        a(f'v_cvt_pk_bf16_f32 v{O+5}, v{b1+2}, v{b1+3}')
        a(f'v_cvt_pk_bf16_f32 v{O+6}, v{m0}, v{m0+1}')
        a(f'v_cvt_pk_bf16_f32 v{O+7}, v{m0+2}, v{m0+3}')
        a(f'v_cvt_pk_bf16_f32 v{O+8}, v{m1}, v{m1+1}')
        a(f'v_cvt_pk_bf16_f32 v{O+9}, v{m1+2}, v{m1+3}')
        a('s_and_b32 s42, s84, 1')
        a('s_mul_i32 s42, s42, 6144')
        a('s_add_u32 s43, s42, s18')
        a('s_add_u32 s42, s42, s19')
        a('v_add_u32 v14, s43, v15')
        a(f'v_add_u32 v{T}, s42, v15')
        a(f'ds_write_b64 v14, v[{O}:{O+1}]')
        a(f'ds_write_b128 v14, v[{O+2}:{O+5}] offset:1024')
        a('s_mov_b64 exec, s[98:99]')
        a(f'ds_write_b64 v{T}, v[{O+6}:{O+7}]')
        a(f'ds_write_b64 v{T}, v[{O+8}:{O+9}] offset:1024')
        a('s_mov_b64 exec, -1')
        a('v_mov_b32 v14, s89')
        a(f'ds_write_b32 v12, v14 offset:32')
        a('s_setprio 3')
    stamp(a, 6)
    a('s_xor_b32 s83, s83, 1')
    a('s_mul_i32 s42, s83, 24576')
    a('s_mul_i32 s43, s40, 12288')
    a('s_add_u32 s42, s42, s43')
    a(f's_add_u32 s42, s42, {L_KX}')
    a('v_add_u32 v7, s42, v15')
    a(f's_cmp_ge_u32 s84, {NSTEP-1}')
    a(f's_cbranch_scc1 {lbl("DONE")}')
    a('s_cmp_eq_u32 s40, 0')
    a(f's_cbranch_scc1 {lbl("SW0")}')
    if 'nox' not in OPT:
        def rd_xa():
            a(f'ds_read_b32 v{204}, v11 offset:{L_FLAG + 40}')
        lds_spin(a, lbl('SPINXA'), rd_xa, [204], 14)
        a('s_mov_b32 s43, s16')
        for i in range(24):
            a(f's_mov_b32 m0, {L_QX + 1024*i}')
            if i: a('s_add_u32 s43, s43, 1024')
            else: a('s_nop 0')
            a(f'buffer_load_dwordx4 v15, s[32:35], s43 offen lds')
        a('s_add_u32 s16, s16, 393216')
    a(f's_branch {lbl("NORED")}')
    a.label(lbl('SW0'))
    a(f's_branch {lbl("NORED")}')
    a.label(lbl('SRED'))
    a('s_mul_i32 s42, s86, 163840')
    a('s_add_u32 s42, s42, s81')
    a('s_add_u32 s43, s86, 1')
    a('s_and_b32 s43, s43, 3')
    a('s_mul_i32 s44, s43, 10240')
    a('s_add_u32 s43, s43, 2')
    a('s_and_b32 s43, s43, 3')
    a('s_mul_i32 s45, s43, 10240')
    a('s_cmp_lt_u32 s80, 8')
    a(f's_cbranch_scc1 {lbl("RED2")}')
    ZA = 228
    RD = 184
    for n, L_ in ((1, 'RED1'), (2, 'RED2')):
        a.label(lbl(L_))
        def ld_z():
            for k in range(n):
                for i in range(4):
                    a(f's_add_u32 s43, s42, {i*40960 + k*8192}')
                    a(f'buffer_load_dwordx4 v[{RD+16*k+4*i}:{RD+16*k+4*i+3}], v10, s[32:35], s43 offen sc1')
        if n == 1: stampc(a, 7)
        poll_sent(a, lbl(f'POLLZ{n}'), ld_z, [RD + 4*i + o for i in range(4*n) for o in (0, 2)], 14)
        stamp(a, 8)
        for i in range(4):
            for k in range(n):
                acc = ZA + 8 * k
                c = '0' if i == 0 else f'v[{acc}:{acc+3}]'
                a(f'v_mfma_f32_16x16x32_bf16 v[{acc}:{acc+3}], v[{RD+16*k+4*i}:{RD+16*k+4*i+3}], v[{SEL}:{SEL+3}], {c}')
        a('s_add_u32 s42, s44, s82')
        a('s_add_u32 s43, s45, s82')
        a('s_add_u32 s46, s44, s73')
        a('s_add_u32 s47, s45, s73')
        a('s_nop 7')
        for k in range(n):
            acc = ZA + 8 * k
            a(f'v_cvt_pk_bf16_f32 v{acc+4}, v{acc}, v{acc+1}')
            a(f'v_cvt_pk_bf16_f32 v{acc+5}, v{acc+2}, v{acc+3}')
        a('s_mov_b64 exec, s[64:65]')
        ins = [f'buffer_store_dwordx2 v[{ZA+4}:{ZA+5}], v15, s[32:35], s42 offen']
        if n == 2: ins.append(f'buffer_store_dwordx2 v[{ZA+12}:{ZA+13}], v15, s[32:35], s46 offen')
        ins.append(f'buffer_store_dwordx2 v[8:9], v15, s[32:35], s43 offen')
        if n == 2: ins.append(f'buffer_store_dwordx2 v[8:9], v15, s[32:35], s47 offen')
        pub(a, ins)
        a('s_mov_b64 exec, -1')
        if n == 1: a(f's_branch {lbl("NORED")}')
    a.label(lbl('NORED'))
    stamp(a, 9)
    a('s_add_u32 s84, s84, 1')
    a('s_add_u32 s89, s89, 1')
    a('s_and_b32 s86, s84, 3')
    a(f's_branch {lbl("SLOOP")}')
    a.label(lbl('ZWAVE'))
    MF = 144; AC = 184; YF = 192; UC = 200; ST = 204; YA = 228; PF = 240
    YF2 = MF + 32
    SN = 8
    if ZPRIO: a(f's_setprio {ZPRIO}')
    a('v_mov_b32 v12, 0')
    for r in (UC + 2, UC + 3, PF + 10, PF + 11):
        a(f'v_mov_b32 v{r}, 0')
    a('s_mul_i32 s75, s57, 5')
    a('s_add_u32 s75, s75, s74')
    a('s_mul_i32 s78, s58, 40')
    a('s_add_u32 s78, s78, s75')
    a('s_lshl_b32 s78, s78, 8')
    a(f's_add_u32 s78, s78, {WS_ZP}')
    a(f's_mul_i32 s17, s58, {SLAB}')
    a('s_lshl_b32 s42, s75, 9')
    a('s_add_u32 s17, s17, s42')
    a(f's_add_u32 s17, s17, {WS_SL}')
    a('s_lshl_b32 s42, s74, 11')
    a('s_add_u32 s69, s68, s42')
    a(f's_add_u32 s42, s42, {L_MEM}')
    a('v_add_u32 v7, s42, v15')
    a(f'v_add_u32 v6, {L_MEM}, v15')
    a('s_lshr_b32 s42, s61, 1')
    a('s_add_u32 s42, s42, 4')
    a('s_and_b32 s43, s61, 1')
    a('s_cmp_eq_u32 s79, 2')
    a('s_cselect_b32 s42, s42, s61')
    a('s_cselect_b32 s43, s43, s79')
    a('s_lshl_b32 s42, s42, 10')
    a('s_lshl_b32 s43, s43, 3')
    a('s_add_u32 s42, s42, s43')
    a('s_lshr_b32 s43, s57, 2')
    a('s_lshl_b32 s43, s43, 7')
    a('s_add_u32 s42, s42, s43')
    a('s_mul_i32 s43, s58, 6144')
    a('s_add_u32 s42, s42, s43')
    a(f's_add_u32 s72, s42, {WS_G2}')
    a(f's_add_u32 s76, s43, {WS_G2}')
    for r in range(8, 12):
        a(f'v_mov_b32 v{r}, -1')
    a('s_mov_b32 s83, 0')
    def y_compute(dst):
        a('s_mul_i32 s42, s83, 24576')
        a(f's_add_u32 s42, s42, {L_VX}')
        a('v_add_u32 v5, s42, v15')
        seq = [(hh, tt, b) for hh in range(2) for tt in range(2) for b in range(6)]
        NB = 6
        def rd(i):
            hh, tt, b = seq[i]
            r = ST + 4 * (i % NB)
            a(f'ds_read_b128 v[{r}:{r+3}], v5 offset:{hh*12288 + tt*6144 + b*1024}')
        for i in range(5): rd(i)
        for i in range(24):
            hh, tt, b = seq[i]
            a(f's_waitcnt lgkmcnt({min(4, 23 - i)})')
            r = ST + 4 * (i % NB)
            acc = YA + (hh * 2 + tt) * 4
            c = '0' if b == 0 else f'v[{acc}:{acc+3}]'
            w = WO + (hh * 6 + b) * 4
            a(f'v_mfma_f32_16x16x32_bf16 v[{acc}:{acc+3}], v[{r}:{r+3}], v[{w}:{w+3}], {c}')
            if i + 5 < 24: rd(i + 5)
        a('s_nop 7')
        for q in range(4):
            acc = YA + 4 * q
            a(f'v_cvt_pk_bf16_f32 v{dst+2*q}, v{acc}, v{acc+1}')
            a(f'v_cvt_pk_bf16_f32 v{dst+2*q+1}, v{acc+2}, v{acc+3}')
        a('s_xor_b32 s83, s83, 1')
    def zx_store():
        a('s_add_u32 s42, s17, 20480')
        a(f'buffer_store_dwordx2 v[{YA+8}:{YA+9}], v13, s[32:35], s17 offen sc1')
        a(f'buffer_store_dwordx2 v[{YA+10}:{YA+11}], v13, s[32:35], s42 offen sc1')
        a('s_add_u32 s17, s17, 40960')
    def zx(par_s, store=True):
        YO = YF2
        a(f's_and_b32 s42, s{par_s}, 1')
        a('s_mul_i32 s42, s42, 6144')
        a(f's_add_u32 s42, s42, {L_PXX}')
        a('v_add_u32 v5, s42, v15')
        for q in range(6):
            a(f'ds_read_b128 v[{ST+4*q}:{ST+4*q+3}], v5 offset:{1024*q}')
        for k in range(3):
            a(f's_waitcnt lgkmcnt({4 - 2*k})')
            A = (YO, YO + 4, UC)[k]
            for tt in range(2):
                acc = YA + 4 * tt
                c = '0' if k == 0 else f'v[{acc}:{acc+3}]'
                a(f'v_mfma_f32_16x16x32_bf16 v[{acc}:{acc+3}], v[{A}:{A+3}], v[{ST+8*k+4*tt}:{ST+8*k+4*tt+3}], {c}')
        a('s_nop 7')
        a('s_nop 1')
        for tt in range(2):
            acc = YA + 4 * tt
            a(f'v_cvt_pk_bf16_f32 v{YA+8+2*tt}, v{acc}, v{acc+1}')
            a(f'v_cvt_pk_bf16_f32 v{YA+9+2*tt}, v{acc+2}, v{acc+3}')
        if store: zx_store()
    y_compute(YF)
    a.label(lbl('ZLOOP'))
    stamp(a, 0)
    a('s_barrier')
    stamp(a, 1)
    a('s_cmp_eq_u32 s40, 3')
    a(f's_cbranch_scc1 {lbl("NODMA")}')
    a('s_and_b32 s42, s84, 3')
    a('s_cmp_lg_u32 s42, 2')
    a(f's_cbranch_scc1 {lbl("NOFL")}')
    a('s_add_u32 s42, s84, 2')
    a('s_lshl_b32 s42, s42, 8')
    a('s_add_u32 s93, s42, s77')
    a('buffer_load_dword v254, v12, s[32:35], s93 offen sc1')
    a.label(lbl('NOFL'))
    a('s_cmp_lg_u32 s40, 5')
    a(f's_cbranch_scc1 {lbl("NOHS")}')
    if mega.get('LOG'):
        a('s_memrealtime s[96:97]')
        a('s_lshl_b32 s42, s84, 2')
        a('s_lshl_b32 s43, s2, 12')
        a('s_add_u32 s42, s42, s43')
        a(f's_add_u32 s42, s42, {mega["LOG"]}')
        a('s_waitcnt lgkmcnt(0)')
        a('v_mov_b32 v14, s96')
        a('s_memtime s[96:97]')
        a('s_mov_b64 exec, 1')
        a('buffer_store_dword v14, v12, s[32:35], s42 offen')
        a('s_waitcnt lgkmcnt(0)')
        a('v_mov_b32 v14, s96')
        a('s_nop 1')
        a('buffer_store_dword v14, v12, s[32:35], s42 offen offset:256')
        a('s_mov_b64 exec, -1')
    a('s_and_b32 s42, s84, 3')
    a('s_cmp_lg_u32 s42, 1')
    a(f's_cbranch_scc1 {lbl("NOHS")}')
    a('s_cmp_eq_u32 s84, 1')
    a(f's_cbranch_scc1 {lbl("NOHS")}')
    a('s_lshr_b32 s42, s84, 2')
    a('v_mov_b32 v14, s42')
    a('s_mov_b64 exec, 1')
    a('buffer_store_dword v14, v12, s[32:35], s50 offen sc1')
    a('s_mov_b64 exec, -1')
    a.label(lbl('NOHS'))
    a('s_and_b32 s42, s84, 1')
    a('s_xor_b32 s42, s42, 1')
    a('s_mul_i32 s44, s42, 24576')
    a(f's_add_u32 s44, s44, {L_KX}')
    dma_blk(70, 44)
    a('s_add_u32 s70, s70, 393216')
    a.label(lbl('NODMA'))
    a('s_cmp_eq_u32 s79, 99')
    a(f's_cbranch_scc1 {lbl("NOV")}')
    for t in range(8):
        a(f'ds_read_b128 v[{MF+4*t}:{MF+4*t+3}], v6 offset:{1024*t}')
    for t in range(10):
        a(f's_waitcnt lgkmcnt({7 if t < 2 else 9 - t})')
        b = MF + 4 * (t % 8)
        for ai, W in ((0, VW + 4*t), (1, VW + 4*(t+10))):
            acc = AC + 4 * ai
            c = '0' if t == 0 else f'v[{acc}:{acc+3}]'
            a(f'v_mfma_f32_16x16x32_bf16 v[{acc}:{acc+3}], v[{W}:{W+3}], v[{b}:{b+3}], {c}')
        if t < 2:
            a(f'ds_read_b128 v[{MF+4*t}:{MF+4*t+3}], v6 offset:{1024*(t+8)}')
    a('s_mul_i32 s42, s86, 98304')
    a('s_add_u32 s42, s42, s72')
    a('s_nop 7')
    for r in range(4):
        a(f'v_add_f32_dpp v{AC+r}, v{AC+4+r}, v{AC+r} row_ror:8 row_mask:0xf bank_mask:0xf')
    a('s_nop 0')
    a(f'v_cvt_pk_bf16_f32 v{AC+4}, v{AC}, v{AC+1}')
    a(f'v_cvt_pk_bf16_f32 v{AC+5}, v{AC+2}, v{AC+3}')
    a('s_add_u32 s43, s86, 2')
    a('s_and_b32 s43, s43, 3')
    a('s_mul_i32 s43, s43, 98304')
    a('s_add_u32 s43, s43, s72')
    a('s_mov_b64 exec, s[64:65]')
    pub(a, [f'buffer_store_dwordx2 v[{AC+4}:{AC+5}], v15, s[32:35], s42 offen'])
    pub(a, [f'buffer_store_dwordx2 v[8:9], v15, s[32:35], s43 offen'])
    a('s_mov_b64 exec, -1')
    a.label(lbl('NOV'))
    stamp(a, 2)
    if 'nox' not in OPT:
        a('s_cmp_eq_u32 s84, 0')
        a(f's_cbranch_scc1 {lbl("NOZXX")}')
        a('s_add_u32 s48, s84, 1')
        zx(48, store=(ZXS == 0))
        a.label(lbl('NOZXX'))
    stamp(a, 9)
    a(f's_cmp_lg_u32 s40, {VPW}')
    a(f's_cbranch_scc1 {lbl("NOVP")}')
    a('s_mul_i32 s42, s86, 98304')
    a('s_add_u32 s42, s42, s76')
    a('s_add_u32 s43, s42, 4096')
    if D_V: a(f's_sleep {D_V}')
    def ld_g2():
        for b in range(6):
            so = 42 if b < 4 else 43
            a(f'buffer_load_dwordx4 v[{MF+4*b}:{MF+4*b+3}], v15, s[32:35], s{so} offen offset:{1024*(b%4)} sc1')
    poll_sent(a, lbl('POLLV'), ld_g2, [MF + 4*b + o for b in range(6) for o in (0, 2)], 14)
    for b in range(6):
        a(f'ds_write_b128 v15, v[{MF+4*b}:{MF+4*b+3}] offset:{L_VM + 1024*b}')
    a('v_mov_b32 v14, s89')
    a(f'ds_write_b32 v12, v14 offset:{L_FLAG + 32}')
    a.label(lbl('NOVP'))
    def rd_vm():
        a(f'ds_read_b32 v{PF+12}, v12 offset:{L_FLAG + 32}')
        for b in range(6):
            a(f'ds_read_b128 v[{ST+4*b}:{ST+4*b+3}], v15 offset:{L_VM + 1024*b}')
    lds_spin(a, lbl('SPINV'), rd_vm, [PF + 12], 14)
    stamp(a, 3)
    def vx_dma():
        a('s_cmp_eq_u32 s40, 3')
        a(f's_cbranch_scc1 {lbl("NODMA2")}')
        a('s_and_b32 s42, s84, 3')
        a('s_cmp_lg_u32 s42, 2')
        a(f's_cbranch_scc1 {lbl("T1W_OK")}')
        a('s_cmp_ge_u32 s84, 62')
        a(f's_cbranch_scc1 {lbl("T1W_OK")}')
        t1_wait(a, lbl('T1W'), 93, mega['T1THR'])
        a('s_and_b32 s42, s84, 1')
        a('s_mul_i32 s44, s42, 24576')
        a(f's_add_u32 s45, s44, {L_VX}')
        dma_blk(71, 45)
        a('s_add_u32 s71, s71, 393216')
        a.label(lbl('NODMA2'))
    for b in range(6):
        for hh in range(2):
            acc = YA + 4 * hh
            c = '0' if b == 0 else f'v[{acc}:{acc+3}]'
            w = WO + (hh * 6 + b) * 4
            a(f'v_mfma_f32_16x16x32_bf16 v[{acc}:{acc+3}], v[{ST+4*b}:{ST+4*b+3}], v[{w}:{w+3}], {c}')
    a('s_mov_b64 vcc, s[66:67]')
    a('s_nop 7')
    for r in range(4):
        a(f'v_cndmask_b32 v{YA+r}, v{YA+4+r}, v{YA+r}, vcc')
    a(f'v_cvt_pk_bf16_f32 v{UC}, v{YA}, v{YA+1}')
    a(f'v_cvt_pk_bf16_f32 v{UC+1}, v{YA+2}, v{YA+3}')
    if ZXS == 1 and 'nox' not in OPT:
        a('s_cmp_eq_u32 s84, 0')
        a(f's_cbranch_scc1 {lbl("NOZXS")}')
        zx_store()
        a.label(lbl('NOZXS'))
    stamp(a, 4)
    FA, FB_ = PF + 12, PF + 13
    def rd_p():
        a(f'ds_read_b32 v{FA}, v12 offset:{L_FLAG + 8}')
        a(f'ds_read_b32 v{FB_}, v12 offset:{L_FLAG + 12}')
        a(f'ds_read_b128 v[{PF}:{PF+3}], v15 offset:{L_PX}')
        a(f'ds_read_b128 v[{PF+4}:{PF+7}], v15 offset:{L_PX + 1024}')
        a(f'ds_read_b64 v[{PF+8}:{PF+9}], v13 offset:{L_PM}')
    lds_spin(a, lbl('SPINP'), rd_p, [FA, FB_], 14)
    stamp(a, 5)
    a(f'v_mfma_f32_16x16x32_bf16 v[{AC}:{AC+3}], v[{PF}:{PF+3}], v[{YF}:{YF+3}], 0')
    a(f'v_mfma_f32_16x16x32_bf16 v[{AC}:{AC+3}], v[{PF+4}:{PF+7}], v[{YF+4}:{YF+7}], v[{AC}:{AC+3}]')
    a(f'v_mfma_f32_16x16x32_bf16 v[{AC}:{AC+3}], v[{PF+8}:{PF+11}], v[{UC}:{UC+3}], v[{AC}:{AC+3}]')
    a('s_mul_i32 s42, s86, 163840')
    a('s_add_u32 s42, s42, s78')
    a('s_add_u32 s43, s86, 2')
    a('s_and_b32 s43, s43, 3')
    a('s_mul_i32 s43, s43, 163840')
    a('s_add_u32 s49, s43, s78')
    a('s_nop 7')
    a(f'v_cvt_pk_bf16_f32 v{AC+4}, v{AC}, v{AC+1}')
    a(f'v_cvt_pk_bf16_f32 v{AC+5}, v{AC+2}, v{AC+3}')
    a(f'v_mov_b32 v{AC+6}, v{AC+4}')
    a(f'v_mov_b32 v{AC+7}, v{AC+5}')
    a('s_nop 1')
    a(f'v_permlane16_swap_b32 v{AC+4}, v{AC+6}')
    a(f'v_permlane16_swap_b32 v{AC+5}, v{AC+7}')
    a('s_mov_b64 exec, 0xffff')
    a(f'buffer_store_dwordx4 v[{AC+4}:{AC+7}], v15, s[32:35], s42 offen sc1')
    a('s_mov_b64 exec, -1')
    stamp(a, 6)
    if ZXS == 2 and 'nox' not in OPT:
        a('s_cmp_eq_u32 s84, 0')
        a(f's_cbranch_scc1 {lbl("NOZXS")}')
        zx_store()
        a.label(lbl('NOZXS'))
    vx_dma()
    for r in range(8):
        a(f'v_mov_b32 v{YF2+r}, v{YF+r}')
    y_compute(YF)
    a('s_mov_b64 exec, 0xffff')
    a(f'buffer_store_dwordx4 v[{SN}:{SN+3}], v15, s[32:35], s49 offen sc1')
    a('s_mov_b64 exec, -1')
    stamp(a, 7)
    a(f's_cmp_ge_u32 s84, {NSTEP-1}')
    a(f's_cbranch_scc1 {lbl("DONE")}')
    a('s_add_u32 s84, s84, 1')
    a('s_add_u32 s89, s89, 1')
    a('s_and_b32 s86, s84, 3')
    a('s_mul_i32 s42, s86, 10240')
    a('s_add_u32 s42, s42, s69')
    if D_MEM: a(f's_sleep {D_MEM}')
    def ld_mem():
        a(f'buffer_load_dwordx4 v[{MF}:{MF+3}], v15, s[32:35], s42 offen sc1')
        a(f'buffer_load_dwordx4 v[{MF+4}:{MF+7}], v15, s[32:35], s42 offen offset:1024 sc1')
    poll_sent(a, lbl('POLLM'), ld_mem, [MF, MF + 2, MF + 4, MF + 6], 14)
    a(f'ds_write_b128 v7, v[{MF}:{MF+3}]')
    a(f'ds_write_b128 v7, v[{MF+4}:{MF+7}] offset:1024')
    a('s_waitcnt lgkmcnt(0)')
    stamp(a, 8)
    a(f's_branch {lbl("ZLOOP")}')
    a.label(lbl('DONE'))
    a('s_setprio 0')
    if 'tmo' in OPT:
        l = a.newlabel('TM')
        a(f's_cmp_lt_u32 s88, {TMO:#x}')
        a(f's_cbranch_scc1 {l}')
        a(f's_load_dwordx2 s[96:97], s[0:1], {KA["dbg"]}')
        a('s_waitcnt lgkmcnt(0)')
        a('v_mov_b32 v4, 0')
        a('v_mov_b32 v5, 1')
        a('s_mov_b64 exec, 1')
        a('global_atomic_add v4, v5, s[96:97] offset:8')
        a('s_lshl_b32 s42, s2, 8')
        a('s_or_b32 s42, s42, s40')
        a('s_or_b32 s42, s42, 0x10000')
        a('v_mov_b32 v5, s42')
        a('global_store_dword v4, v5, s[96:97] offset:12')
        a('s_mov_b64 exec, -1')
        a.label(l)
    a('s_waitcnt lgkmcnt(0)')
    a('s_barrier')
    if 'nox' not in OPT:
        a('s_cmp_lt_u32 s40, 3')
        a(f's_cbranch_scc1 {lbl("NOZXL")}')
        zx(84)
        a.label(lbl('NOZXL'))
    a('s_waitcnt vmcnt(0) lgkmcnt(0)')
    a('s_barrier')
    a('s_cmp_lg_u32 s40, 0')
    a(f's_cbranch_scc1 {lbl("NOHS2")}')
    a('v_mov_b32 v255, 16')
    a('v_mov_b32 v12, 0')
    a('s_mov_b64 exec, 1')
    a('buffer_store_dword v255, v12, s[32:35], s50 offen sc1')
    a('s_mov_b64 exec, -1')
    a.label(lbl('NOHS2'))
    if 'gst' in OPT:
        a('s_lshl_b32 s42, s2, 12')
        a('s_lshl_b32 s43, s40, 6')
        a('s_add_u32 s42, s42, s43')
        a(f's_add_u32 s42, s42, {0x1C00000}')
        a('v_mov_b32 v4, 0')
        a('s_mov_b64 exec, 1')
        for i in range(10):
            a(f'v_mov_b32 v5, s{SB+i}')
            a(f'buffer_store_dword v5, v4, s[32:35], s42 offen offset:{4*i}')
            a('s_nop 1')
        a('s_lshl_b32 s43, s54, 4')
        a('s_add_u32 s43, s43, s55')
        a('s_add_u32 s43, s43, 0x1000')
        a('v_mov_b32 v5, s43')
        a('buffer_store_dword v5, v4, s[32:35], s42 offen offset:40')
        a('s_mov_b64 exec, -1')
```

```python
from asmlib import *
from layout2 import *
from k_t1 import lane_decomp, OPT, SLOT
from k_chain import pub
import k_chain4
import os

C_REG = WS_CNT
C_QH = WS_CNT + 1024
C_MODA = WS_CNT + 2048
C_MODB = WS_CNT + 3072
C_LN1 = WS_CNT + 4096
C_LN2 = C_LN1 + 16384
C_FA = C_LN2 + 16384
F_T1 = C_FA + 16384
F_ZX = F_T1 + 16384 + 1024
CNT_BYTES = 4096 + 4 * 16384 + 1024 + 16384 + 3072
assert CNT_BYTES % 4096 == 0
L_SLOT = 155648
LDS_MEGA = 155648 + 256
T1THR = 48
NSELF = int(os.environ.get('NSELF', '2'))
NFINE = int(os.environ.get('NFINE', '0'))
EP = int(os.environ.get('EP', '1'))
SFX = ' sc1'
MAP = int(os.environ.get('MAP', '1'))
WS_LOG = 0x1C00000
LOG = 'log' in OPT
def rt(a, dst):
    a('s_memrealtime s[76:77]')
    a('s_waitcnt lgkmcnt(0)')
    a(f's_mov_b32 s{dst}, s76')
def log_entry(a):
    rt(a, 84)
    a('s_mov_b64 exec, 1')
    a('v_mov_b32 v4, s83')
    a('v_mov_b32 v5, s81')
    a('v_mov_b32 v6, s82')
    a('v_mov_b32 v7, s84')
    a('v_mov_b32 v8, 0')
    a('buffer_store_dwordx4 v[4:7], v8, s[32:35], s80 offen')
    a('s_mov_b64 exec, -1')
    a('s_add_u32 s80, s80, 16')
W_SLEEP = int(os.environ.get('W_SLEEP', '127'))
W_SHORT = int(os.environ.get('W_SHORT', '4'))

def row_allreduce(a, op, v):
    for r in (8, 4, 2, 1):
        a('s_nop 1')
        a(f'v_{op}_f32_dpp v{v}, v{v}, v{v} row_ror:{r} row_mask:0xf bank_mask:0xf')
def wave_allreduce_add(a, v, s0):
    row_allreduce(a, 'add', v)
    a('s_nop 1')
    for i in range(4):
        a(f'v_readlane_b32 s{s0+i}, v{v}, {16*i}')
    a('s_nop 1')
    a(f'v_mov_b32 v{v}, s{s0}')
    for i in range(1, 4):
        a(f'v_add_f32 v{v}, s{s0+i}, v{v}')
def bf16_round_f32(a, v):
    a(f'v_cvt_pk_bf16_f32 v{v}, v{v}, v{v}')
    a(f'v_lshlrev_b32 v{v}, 16, v{v}')

def body_mod(a, pfx):
    a('s_cmp_ge_u32 s56, 60')
    a(f's_cbranch_scc1 {pfx}_END')
    a(f's_load_dwordx2 s[4:5], s[0:1], {KA["c"]}')
    a(f's_load_dwordx2 s[6:7], s[0:1], {KA["wmod"]}')
    a('s_waitcnt lgkmcnt(0)')
    make_srd(a, 12, 4, 1280)
    make_srd(a, 16, 6, 640 * 3840 * 2)
    a('s_mul_i32 s42, s40, 80')
    a('v_add_u32 v5, s42, v3')
    a('v_lshlrev_b32 v6, 2, v5')
    a('v_mul_u32_u24 v7, 7680, v5')
    a('s_lshl_b32 s3, s56, 7')
    a('v_lshlrev_b32 v8, 3, v2')
    a('v_add3_u32 v7, v7, v8, s3')
    a('s_mov_b32 s25, 0')
    for u in range(20):
        a(f'buffer_load_dwordx2 v[{16+2*u}:{17+2*u}], v7, s[16:19], s25 offen')
        if u < 19: a('s_add_u32 s25, s25, 30720')
    a('v_lshlrev_b32 v4, 1, v0')
    a('buffer_load_ushort v10, v4, s[12:15], 0 offen')
    a('buffer_load_ushort v11, v4, s[12:15], 0 offen offset:1024')
    a('s_waitcnt vmcnt(0)')
    a(f's_mov_b32 s24, {f2u(-LOG2E):#x}')
    for v in (10, 11):
        a(f'v_lshlrev_b32 v{v}, 16, v{v}')
        a(f'v_mul_f32 v9, s24, v{v}')
        a('v_exp_f32 v9, v9')
        a('s_nop 0')
        a('v_add_f32 v9, 1.0, v9')
        a('v_rcp_f32 v9, v9')
        a('s_nop 0')
        a(f'v_mul_f32 v{v}, v{v}, v9')
        bf16_round_f32(a, v)
    a('v_lshlrev_b32 v4, 2, v0')
    a('ds_write_b32 v4, v10')
    a('ds_write_b32 v4, v11 offset:2048')
    a('s_waitcnt lgkmcnt(0)')
    a('s_barrier')
    for i in range(4):
        a(f'v_mov_b32 v{10+i}, 0')
    for u in range(20):
        a(f'ds_read_b32 v{60+u}, v6 offset:{16*u}')
        if u % 8 == 7: a('s_waitcnt lgkmcnt(0)')
    a('s_waitcnt lgkmcnt(0)')
    for u in range(20):
        lo, hi = 16 + 2 * u, 17 + 2 * u
        a(f'v_lshlrev_b32 v80, 16, v{lo}')
        a(f'v_and_b32 v81, 0xffff0000, v{lo}')
        a(f'v_lshlrev_b32 v82, 16, v{hi}')
        a(f'v_and_b32 v83, 0xffff0000, v{hi}')
        for i in range(4):
            a(f'v_fmac_f32 v{10+i}, v{60+u}, v{80+i}')
    a('v_lshl_add_u32 v5, s40, 2, v3')
    a('v_lshlrev_b32 v5, 8, v5')
    a('v_lshl_add_u32 v5, v2, 4, v5')
    a('ds_write_b128 v5, v[10:13] offset:8192')
    a('s_waitcnt lgkmcnt(0)')
    a('s_barrier')
    a('s_cmp_lg_u32 s40, 0')
    a(f's_cbranch_scc1 {pfx}_END')
    a('v_lshlrev_b32 v5, 2, v1')
    for h in range(4):
        for i in range(8):
            a(f'ds_read_b32 v{16+8*h+i}, v5 offset:{8192+256*(8*h+i)}')
        a('s_waitcnt lgkmcnt(0)')
    for i in range(1, 32):
        a(f'v_add_f32 v16, v16, v{16+i}')
    bf16_round_f32(a, 16)
    a('s_lshl_b32 s3, s56, 8')
    a(f's_add_u32 s3, s3, {WS_MOD}')
    a(f'buffer_store_dword v16, v5, s[32:35], s3 offen{SFX}')
    a.label(f'{pfx}_END')

def ln1_pre(a):
    a(f's_load_dwordx2 s[4:5], s[0:1], {KA["x"]}')
    a('s_waitcnt lgkmcnt(0)')
    make_srd(a, 12, 4, 2048 * 1280)
    a('s_lshl_b32 s3, s56, 4')
    a('s_lshl_b32 s42, s40, 1')
    a('s_add_u32 s3, s3, s42')
    a('s_mul_i32 s3, s3, 1280')
    a('v_lshl_add_u32 v4, v1, 2, s3')
    for r in range(2):
        for i in range(5):
            a(f'buffer_load_dword v{10+5*r+i}, v4, s[12:15], 0 offen offset:{1280*r+256*i}')
    a('s_waitcnt vmcnt(0)')
    a(f's_mov_b32 s24, {f2u(1.0/640):#x}')
    a(f's_mov_b32 s25, {f2u(1e-5):#x}')
    for r in range(2):
        N = 40 + 10 * r
        for i in range(5):
            a(f'v_lshlrev_b32 v{N+2*i}, 16, v{10+5*r+i}')
            a(f'v_and_b32 v{N+1+2*i}, 0xffff0000, v{10+5*r+i}')
        a(f'v_add_f32 v30, v{N}, v{N+1}')
        for i in range(2, 10):
            a(f'v_add_f32 v30, v30, v{N+i}')
        wave_allreduce_add(a, 30, 28)
        a('v_mul_f32 v30, s24, v30')
        for i in range(10):
            a(f'v_sub_f32 v{N+i}, v{N+i}, v30')
        a(f'v_mul_f32 v31, v{N}, v{N}')
        for i in range(1, 10):
            a(f'v_fmac_f32 v31, v{N+i}, v{N+i}')
        wave_allreduce_add(a, 31, 28)
        a('v_mul_f32 v31, s24, v31')
        a('v_add_f32 v31, s25, v31')
        a('v_rsq_f32 v31, v31')
        a('s_nop 0')
        for i in range(10):
            a(f'v_mul_f32 v{N+i}, v{N+i}, v31')

def body_ln1(a, pfx):
    a('v_lshlrev_b32 v5, 3, v1')
    a(f's_mov_b32 s24, {WS_MOD + 2560}')
    a(f's_mov_b32 s23, {WS_MOD}')
    for i in range(5):
        a(f'buffer_load_dwordx2 v[{60+2*i}:{61+2*i}], v5, s[32:35], s23 offen offset:{512*i}')
        a(f'buffer_load_dwordx2 v[{70+2*i}:{71+2*i}], v5, s[32:35], s24 offen offset:{512*i}')
    a(f's_mov_b32 s26, {WS_H1}')
    a('s_mul_i32 s42, s40, 2592')
    a('v_lshl_add_u32 v6, v1, 2, s42')
    a('s_waitcnt vmcnt(0)')
    for i in range(10):
        a(f'v_add_f32 v{70+i}, 1.0, v{70+i}')
    for i in range(10):
        bf16_round_f32(a, 70 + i)
    for r in range(2):
        N = 40 + 10 * r
        for i in range(10):
            a(f'v_fma_f32 v{N+i}, v{N+i}, v{70+i}, v{60+i}')
        for i in range(5):
            a(f'v_cvt_pk_bf16_f32 v{20+5*r+i}, v{N+2*i}, v{N+1+2*i}')
    if NSELF:
        a(f's_cmp_lt_u32 s56, {8*NSELF}')
        a(f's_cbranch_scc1 {pfx}_F')
    for r in range(2):
        for i in range(5):
            a(f'buffer_store_dword v{20+5*r+i}, v4, s[32:35], s26 offen offset:{1280*r+256*i}{SFX}')
    if NSELF:
        a(f's_branch {pfx}_END')
        a.label(f'{pfx}_F')
        for r in range(2):
            for i in range(5):
                a(f'ds_write_b32 v6, v{20+5*r+i} offset:{1296*r+256*i}')
        a('v_mul_u32_u24 v6, 1296, v2')
        a('v_lshl_add_u32 v6, v3, 3, v6')
        a('s_lshl_b32 s42, s40, 6')
        a('v_add_u32 v6, s42, v6')
        a('v_lshlrev_b32 v15, 4, v1')
        a('s_mul_i32 s42, s56, 20480')
        a('s_lshl_b32 s43, s40, 10')
        a('s_add_u32 s42, s42, s43')
        a(f's_add_u32 s42, s42, {WS_H1F}')
        a('s_waitcnt lgkmcnt(0)')
        a('s_barrier')
        for j in range(2):
            a(f'ds_read_b64 v[{60+4*j}:{61+4*j}], v6 offset:{512*j}')
            a(f'ds_read_b64 v[{62+4*j}:{63+4*j}], v6 offset:{512*j+32}')
        a('s_cmp_ge_u32 s40, 4')
        a(f's_cbranch_scc1 {pfx}_F2')
        a(f'ds_read_b64 v[68:69], v6 offset:1024')
        a(f'ds_read_b64 v[70:71], v6 offset:1056')
        a('s_add_u32 s43, s42, 16384')
        a('s_waitcnt lgkmcnt(0)')
        a(f'buffer_store_dwordx4 v[68:71], v15, s[32:35], s43 offen{SFX}')
        a.label(f'{pfx}_F2')
        a('s_waitcnt lgkmcnt(0)')
        a('s_add_u32 s43, s42, 8192')
        a(f'buffer_store_dwordx4 v[60:63], v15, s[32:35], s42 offen{SFX}')
        a(f'buffer_store_dwordx4 v[64:67], v15, s[32:35], s43 offen{SFX}')
        a.label(f'{pfx}_END')

def body_ln2(a, pfx, NSLAB=8):
    a(f's_load_dwordx2 s[4:5], s[0:1], {KA["x"]}')
    a('s_waitcnt lgkmcnt(0)')
    make_srd(a, 12, 4, 2048 * 1280)
    a('v_lshlrev_b32 v6, 3, v1')
    for idx, base in ((2, 60), (3, 40), (4, 50)):
        a(f's_mov_b32 s24, {WS_MOD + 2560*idx}')
        for i in range(5):
            a(f'buffer_load_dwordx2 v[{base+2*i}:{base+2*i+1}], v6, s[32:35], s24 offen offset:{512*i}')
    a('s_lshl_b32 s3, s56, 4')
    a('s_lshl_b32 s42, s40, 1')
    a('s_add_u32 s3, s3, s42')
    a('s_mul_i32 s42, s3, 2560')
    a('v_lshl_add_u32 v5, v1, 3, s42')
    a('s_mul_i32 s42, s3, 1280')
    a('v_lshl_add_u32 v4, v1, 2, s42')
    a(f's_mov_b32 s24, {f2u(1.0/640):#x}')
    a(f's_mov_b32 s25, {f2u(1e-5):#x}')
    for r in range(2):
        for i in range(5):
            a(f'buffer_load_dword v{10+i}, v4, s[12:15], 0 offen offset:{1280*r+256*i}')
        for half in range(NSLAB // 4):
            for hg in range(4):
                a(f's_mov_b32 s26, {WS_OP + (half*4 + hg)*5242880 + r*2560}')
                for i in range(5):
                    a(f'buffer_load_dwordx2 v[{70+10*hg+2*i}:{71+10*hg+2*i}], v5, s[32:35], s26 offen offset:{512*i}')
            a('s_waitcnt vmcnt(0)')
            if r == 0 and half == 0:
                for i in range(10):
                    a(f'v_add_f32 v{50+i}, 1.0, v{50+i}')
                for i in range(10):
                    bf16_round_f32(a, 50 + i)
            for i in range(10):
                a(f'v_add_f32 v{70+i}, v{70+i}, v{80+i}')
                a(f'v_add_f32 v{90+i}, v{90+i}, v{100+i}')
            for i in range(10):
                a(f'v_add_f32 v{70+i}, v{70+i}, v{90+i}')
            if NSLAB > 4:
                for i in range(10):
                    if half == 0:
                        a(f'v_mov_b32 v{112+i}, v{70+i}')
                    else:
                        a(f'v_add_f32 v{70+i}, v{70+i}, v{112+i}')
        for i in range(10):
            bf16_round_f32(a, 70 + i)
            a(f'v_mul_f32 v{70+i}, v{70+i}, v{60+i}')
            bf16_round_f32(a, 70 + i)
        for i in range(5):
            a(f'v_lshlrev_b32 v{20+2*i}, 16, v{10+i}')
            a(f'v_and_b32 v{21+2*i}, 0xffff0000, v{10+i}')
        for i in range(10):
            a(f'v_add_f32 v{20+i}, v{20+i}, v{70+i}')
        for i in range(5):
            a(f'v_cvt_pk_bf16_f32 v{32+i}, v{20+2*i}, v{21+2*i}')
        a(f's_mov_b32 s26, {WS_X1 + 1280*r}')
        for i in range(5):
            a(f'buffer_store_dword v{32+i}, v4, s[32:35], s26 offen offset:{256*i}{SFX}')
        for i in range(5):
            a(f'v_lshlrev_b32 v{20+2*i}, 16, v{32+i}')
            a(f'v_and_b32 v{21+2*i}, 0xffff0000, v{32+i}')
        a('v_add_f32 v30, v20, v21')
        for i in range(2, 10):
            a(f'v_add_f32 v30, v30, v{20+i}')
        wave_allreduce_add(a, 30, 28)
        a('v_mul_f32 v30, s24, v30')
        for i in range(10):
            a(f'v_sub_f32 v{20+i}, v{20+i}, v30')
        a('v_mul_f32 v31, v20, v20')
        for i in range(1, 10):
            a(f'v_fmac_f32 v31, v{20+i}, v{20+i}')
        wave_allreduce_add(a, 31, 28)
        a('v_mul_f32 v31, s24, v31')
        a('v_add_f32 v31, s25, v31')
        a('v_rsq_f32 v31, v31')
        a('s_nop 0')
        for i in range(10):
            a(f'v_mul_f32 v{20+i}, v{20+i}, v31')
            a(f'v_fma_f32 v{20+i}, v{20+i}, v{50+i}, v{40+i}')
        for i in range(5):
            a(f'v_cvt_pk_bf16_f32 v{110+i}, v{20+2*i}, v{21+2*i}')
        a(f's_mov_b32 s26, {WS_H2 + 1280*r}')
        for i in range(5):
            a(f'buffer_store_dword v{110+i}, v4, s[32:35], s26 offen offset:{256*i}{SFX}')

def k_init3(a):
    name = 'init_kernel'
    kernel_header(a, name)
    a('s_cmp_ge_u32 s2, 256')
    a('s_cbranch_scc1 IN_END')
    a(f's_load_dwordx2 s[52:53], s[0:1], {KA["ws"]}')
    a('s_waitcnt lgkmcnt(0)')
    make_srd(a, 32, 52, WS_SIZE)
    a('v_lshlrev_b32 v1, 4, v0')
    for r in range(4):
        a(f'v_mov_b32 v{4+r}, -1')
    a('s_lshl_b32 s3, s2, 14')
    a(f's_add_u32 s3, s3, {WS_MEMF}')
    for i in range(4):
        a(f's_add_u32 s12, s3, {4096*i}')
        a('buffer_store_dwordx4 v[4:7], v1, s[32:35], s12 offen')
    a(f's_cmp_ge_u32 s2, {CNT_BYTES // 4096}')
    a('s_cbranch_scc1 IN_END')
    for r in range(4):
        a(f'v_mov_b32 v{8+r}, 0')
    a('s_lshl_b32 s12, s2, 12')
    a(f's_add_u32 s12, s12, {WS_CNT}')
    a('buffer_store_dwordx4 v[8:11], v1, s[32:35], s12 offen')
    a.label('IN_END')
    a('s_endpgm')
    return name, kernel_desc(name, 64, 64, 64)

def role_map(a):
    a('s_cmp_lt_u32 s54, 4')
    a('s_cselect_b32 s93, 1, 0')
    a('s_and_b32 s54, s54, 3')
    a('s_lshl_b32 s54, s54, 1')
    a('s_lshr_b32 s42, s55, 4')
    a('s_and_b32 s43, s55, 1')
    a('s_lshr_b32 s44, s55, 1')
    a('s_and_b32 s55, s55, 15')
    a('s_cmp_eq_u32 s93, 1')
    a('s_cselect_b32 s42, s42, s43')
    a('s_cselect_b32 s55, s55, s44')
    a('s_add_u32 s54, s54, s42')

def gate(a, pfx):
    a('s_cmp_lg_u32 s85, 0')
    a(f's_cbranch_scc1 {pfx}_GD')
    a('s_mov_b32 s85, 1')
    a('s_cmp_lg_u32 s40, 0')
    a(f's_cbranch_scc1 {pfx}_G2')
    a(f's_load_dwordx2 s[76:77], s[0:1], {KA["dbg"]}')
    a('v_and_b32 v5, 3, v1')
    a('v_lshlrev_b32 v5, 6, v5')
    a('s_mov_b32 s78, 0')
    a('s_waitcnt vmcnt(0) lgkmcnt(0)')
    a.label(f'{pfx}_G1')
    a('global_load_dword v6, v5, s[76:77] sc1')
    a('s_waitcnt vmcnt(0)')
    for i in range(4):
        a(f'v_readlane_b32 s{42+i}, v6, {i}')
    a('s_add_u32 s42, s42, s43')
    a('s_add_u32 s44, s44, s45')
    a('s_add_u32 s42, s42, s44')
    a('s_add_u32 s78, s78, 1')
    a('s_cmp_ge_u32 s78, 0x40000')
    a(f's_cbranch_scc1 {pfx}_G3')
    a('s_and_b32 s43, s42, 0xff')
    a('s_cmp_eq_u32 s43, 0')
    a(f's_cbranch_scc0 {pfx}_G1')
    a.label(f'{pfx}_G3')
    a('s_lshr_b32 s42, s42, 16')
    a('v_mov_b32 v6, s42')
    a(f'v_mov_b32 v5, {L_SLOT}')
    a('ds_write_b32 v5, v6 offset:32')
    a('s_waitcnt lgkmcnt(0)')
    a.label(f'{pfx}_G2')
    a('s_barrier')
    a(f'v_mov_b32 v5, {L_SLOT}')
    a('ds_read_b32 v6, v5 offset:32')
    a('s_waitcnt lgkmcnt(0)')
    a('v_readfirstlane_b32 s42, v6')
    a('s_cmp_lg_u32 s42, 0')
    a('s_cbranch_scc1 FALLBACK')
    a.label(f'{pfx}_GD')

def early_poll(a):
    a('s_cmp_lg_u32 s40, 7')
    a('s_cbranch_scc1 EP_END')
    a(f's_load_dwordx2 s[76:77], s[0:1], {KA["dbg"]}')
    a('v_and_b32 v5, 3, v1')
    a('v_lshlrev_b32 v5, 6, v5')
    a('v_and_b32 v4, 7, v1')
    a('v_lshlrev_b32 v4, 7, v4')
    a(f's_mov_b32 s46, {C_LN1}')
    a('s_mov_b32 s78, 0')
    a('s_waitcnt vmcnt(0) lgkmcnt(0)')
    a.label('EP_1')
    a('s_sleep 8')
    a('global_load_dword v6, v5, s[76:77] sc1')
    for r in range(NSELF):
        a(f'buffer_load_dword v{7+r}, v4, s[32:35], s46 offen offset:{1024*r} sc1')
    a('s_waitcnt vmcnt(0)')
    for i in range(4):
        a(f'v_readlane_b32 s{42+i}, v6, {i}')
    a('s_add_u32 s42, s42, s43')
    a('s_add_u32 s44, s44, s45')
    a('s_add_u32 s42, s42, s44')
    a('s_cmp_lg_u32 s85, 0')
    a('s_cselect_b32 s42, 0, s42')
    a('s_add_u32 s78, s78, 1')
    a('s_cmp_ge_u32 s78, 0x40000')
    a('s_cbranch_scc1 EP_2')
    a('s_and_b32 s43, s42, 0xff')
    a('s_cmp_eq_u32 s43, 0')
    a('s_cbranch_scc0 EP_1')
    a('s_lshr_b32 s43, s42, 16')
    a('s_cmp_lg_u32 s43, 0')
    a('s_cbranch_scc1 EP_2')
    if NSELF:
        for r in range(1, NSELF):
            a(f'v_min_u32 v7, v7, v{7+r}')
        a('v_cmp_eq_u32 vcc, 0, v7')
        a('s_cmp_eq_u64 vcc, 0')
        a('s_cbranch_scc0 EP_1')
    a.label('EP_2')
    a('s_lshr_b32 s42, s42, 16')
    a('v_mov_b32 v6, s42')
    a(f'v_mov_b32 v5, {L_SLOT}')
    a('ds_write_b32 v5, v6 offset:32')
    a.label('EP_END')

def early_chk(a):
    a(f'v_mov_b32 v5, {L_SLOT}')
    a('ds_read_b32 v6, v5 offset:32')
    a('s_mov_b32 s85, 1')
    a('s_waitcnt lgkmcnt(0)')
    a('v_readfirstlane_b32 s42, v6')
    a('s_cmp_lg_u32 s42, 0')
    a('s_cbranch_scc1 FALLBACK')

def register(a):
    a('s_getreg_b32 s54, hwreg(HW_REG_XCC_ID)')
    a('s_and_b32 s54, s54, 7')
    l0 = a.newlabel('RA'); l1 = a.newlabel('RA'); l2 = a.newlabel('RA')
    a('s_cmp_lg_u32 s40, 0')
    a(f's_cbranch_scc1 {l0}')
    a('v_mov_b32 v4, 1')
    a('s_lshl_b32 s42, s54, 7')
    a(f's_add_u32 s42, s42, {C_REG}')
    a('v_mov_b32 v5, 0')
    a('s_mov_b64 exec, 1')
    a('buffer_atomic_add v4, v5, s[32:35], s42 offen sc0 sc1')
    a('s_mov_b64 exec, 0xff')
    a('v_lshlrev_b32 v6, 7, v1')
    a(f's_mov_b32 s42, {C_REG}')
    a.label(l1)
    a('buffer_load_dword v7, v6, s[32:35], s42 offen sc1')
    a('s_waitcnt vmcnt(0)')
    for i in range(8):
        a(f'v_readlane_b32 s{8+i}, v7, {i}')
    a('s_add_u32 s43, s8, s9')
    for i in range(2, 8):
        a(f's_add_u32 s43, s43, s{8+i}')
    a('s_add_u32 s88, s88, 1')
    a('s_cmp_ge_u32 s88, 0x40000')
    a(f's_cbranch_scc1 {l2}')
    a('s_cmp_lt_u32 s43, 256')
    a(f's_cbranch_scc1 {l1}')
    a.label(l2)
    a('s_min_u32 s44, s8, s9')
    for i in range(2, 8):
        a(f's_min_u32 s44, s44, s{8+i}')
    a('s_mov_b32 s45, 0')
    for i in range(7):
        a(f's_cmp_gt_u32 s54, {i}')
        a(f's_cselect_b32 s42, s{8+i}, 0')
        a('s_add_u32 s45, s45, s42')
    a('s_mov_b64 exec, 1')
    a('v_add_u32 v6, s45, v4')
    a('v_mov_b32 v7, s44')
    a(f'v_mov_b32 v5, {L_SLOT}')
    a('ds_write_b32 v5, v4 offset:16')
    a('ds_write_b32 v5, v6 offset:20')
    a('ds_write_b32 v5, v7 offset:24')
    a('s_waitcnt lgkmcnt(0)')
    a('s_mov_b64 exec, -1')
    a.label(l0)
    a('s_barrier')
    a(f'v_mov_b32 v5, {L_SLOT}')
    a('ds_read_b32 v4, v5 offset:16')
    a('ds_read_b32 v6, v5 offset:20')
    a('ds_read_b32 v7, v5 offset:24')
    a('s_waitcnt lgkmcnt(0)')
    a('v_readfirstlane_b32 s55, v4')
    a('v_readfirstlane_b32 s42, v6')
    a('v_readfirstlane_b32 s43, v7')
    a('s_cmp_ge_u32 s43, 32')
    a('s_cselect_b32 s92, 1, 0')
    if 'slow' in OPT:
        a('s_mov_b32 s92, 0')
    a('s_cmp_eq_u32 s92, 1')
    a('s_cbranch_scc1 RG_FAST')
    a('s_and_b32 s54, s42, 7')
    a('s_lshr_b32 s55, s42, 3')
    a('s_cmp_lt_u32 s55, 16')
    a('s_cselect_b32 s93, 1, 0')
    a('s_and_b32 s55, s55, 15')
    a('s_branch RG_END')
    a.label('RG_FAST')
    role_map(a)
    a.label('RG_END')

T_NULL, T_MOD, T_LN1, T_T1, T_T2A, T_T2B, T_LN2, T_FA, T_FB, T_T1F = range(10)
Q_LN1 = 8
Q_T1 = 24
Q_T1N = Q_T1 + 12 * NFINE
Q_POST = Q_T1N + 4 * (16 - NSELF - NFINE)
SLOTS = [(T_FB, 2, 0), (T_FB, 2, 1), (T_FB, 2, 2), (T_FA, 1, 0), (T_FA, 1, 1), (T_FA, 1, 2), (T_LN2, 0, 0)]
RL = len(SLOTS)
NROUND = 18
Q_END = int(os.environ.get('Q_END', Q_POST + RL * NROUND))
N_T2B, N_FA = 40, 24

def decode(a):
    L = lambda n: f'DC_{n}'
    a('s_mov_b32 s95, 0')
    a('s_mov_b32 s97, 0')
    a('s_mov_b32 s91, 0')
    a('s_mov_b32 s87, 1')
    a(f's_mov_b32 s94, {C_REG}')
    a(f's_mov_b32 s96, {F_ZX}')
    a('s_lshl_b32 s86, s100, 7')
    a(f's_cmp_lt_u32 s3, {Q_LN1}')
    a(f's_cbranch_scc1 {L("MOD")}')
    a(f's_cmp_lt_u32 s3, {Q_T1}')
    a(f's_cbranch_scc1 {L("LN1")}')
    if NFINE:
        a(f's_cmp_lt_u32 s3, {Q_T1N}')
        a(f's_cbranch_scc1 {L("T1F")}')
    a(f's_cmp_lt_u32 s3, {Q_POST}')
    a(f's_cbranch_scc1 {L("T1")}')
    a(f's_sub_u32 s42, s3, {Q_POST}')
    M = (1 << 16) // RL + 1
    for j in range(RL * NROUND + 64): assert (j * M) >> 16 == j // RL
    a(f's_mul_i32 s43, s42, {M}')
    a('s_lshr_b32 s43, s43, 16')
    a(f's_mul_i32 s44, s43, {RL}')
    a('s_sub_u32 s42, s42, s44')
    tl = {T_FB: 'FB', T_FA: 'FA', T_LN2: 'LN2'}
    for k, (t, sk, sub) in enumerate(SLOTS):
        a(f's_sub_u32 s44, s43, {sk}')
        a(f's_mov_b32 s46, {sub}')
        a(f's_cmp_eq_u32 s42, {k}')
        a(f's_cbranch_scc1 {L(tl[t])}')
    a.label(L('LN2'))
    a(f's_mov_b32 s99, {T_LN2}')
    a('s_lshl_b32 s56, s44, 3')
    a('s_add_u32 s56, s56, s100')
    a('s_lshl_b32 s45, s44, 10')
    a(f's_mov_b32 s94, {F_ZX}')
    a('s_add_u32 s95, s44, 1')
    a(f's_mov_b32 s90, {C_MODB}')
    a('s_mov_b32 s91, 5')
    a('s_add_u32 s45, s45, s86')
    a(f's_add_u32 s101, s45, {C_LN2}')
    a(f's_branch {L("CHKRB")}')
    a.label(L('FA'))
    a(f's_mov_b32 s99, {T_FA}')
    a('s_mov_b32 s56, s44')
    a('s_mul_i32 s57, s100, 3')
    a('s_add_u32 s57, s57, s46')
    a('s_lshl_b32 s45, s44, 10')
    a(f's_add_u32 s94, s45, {C_LN2}')
    a('s_mov_b32 s95, 1')
    a('s_add_u32 s45, s45, s86')
    a(f's_add_u32 s101, s45, {C_FA}')
    a(f's_branch {L("CHKRB")}')
    a.label(L('FB'))
    a(f's_mov_b32 s99, {T_FB}')
    a('s_lshl_b32 s45, s44, 10')
    a(f's_add_u32 s94, s45, {C_FA}')
    a('s_mov_b32 s95, 3')
    a('s_mov_b32 s101, 0')
    a('s_lshl_b32 s45, s46, 3')
    a('s_add_u32 s47, s45, s100')
    a('s_cmp_lt_u32 s46, 2')
    a(f's_cbranch_scc1 {L("FB2")}')
    a('s_lshl_b32 s45, s43, 2')
    a('s_add_u32 s45, s45, s100')
    a('s_and_b32 s45, s45, 7')
    a('s_add_u32 s47, s45, 16')
    a('s_cmp_ge_u32 s45, 4')
    a(f's_cselect_b32 s99, {T_NULL}, s99')
    a.label(L('FB2'))
    a('s_cmp_ge_u32 s47, 10')
    a('s_cselect_b32 s45, 1, 0')
    a('s_cselect_b32 s46, 10, 0')
    a('s_sub_u32 s57, s47, s46')
    a('s_lshl_b32 s56, s44, 1')
    a('s_add_u32 s56, s56, s45')
    a.label(L('CHKRB'))
    a('s_cmp_ge_u32 s44, 16')
    a(f's_cselect_b32 s99, {T_NULL}, s99')
    a(f's_branch {L("END")}')
    a.label(L('MOD'))
    a(f's_mov_b32 s99, {T_MOD}')
    a('s_lshl_b32 s56, s3, 3')
    a('s_add_u32 s56, s56, s100')
    a('s_cmp_lt_u32 s3, 3')
    a(f's_cselect_b32 s101, {C_MODA}, {C_MODB}' if False else f's_mov_b32 s101, {C_MODB}')
    a(f's_mov_b32 s45, {C_MODA}')
    a('s_cselect_b32 s101, s45, s101')
    a('s_add_u32 s101, s101, s86')
    a(f's_branch {L("END")}')
    a.label(L('LN1'))
    a(f's_mov_b32 s99, {T_LN1}')
    a(f's_sub_u32 s44, s3, {Q_LN1}')
    a('s_lshl_b32 s56, s44, 3')
    a('s_add_u32 s56, s56, s100')
    a(f's_mov_b32 s94, {C_MODA}')
    a('s_mov_b32 s95, 3')
    a('s_mov_b32 s97, 1')
    a('s_lshl_b32 s45, s44, 10')
    a('s_add_u32 s45, s45, s86')
    a(f's_add_u32 s101, s45, {C_LN1}')
    a(f's_branch {L("END")}')
    if NFINE:
        a.label(L('T1F'))
        a(f's_mov_b32 s99, {T_T1F}')
        a(f's_sub_u32 s44, s3, {Q_T1}')
        a('s_mul_i32 s56, s44, 5462')
        a('s_lshr_b32 s56, s56, 16')
        a('s_mul_i32 s45, s56, 12')
        a('s_sub_u32 s44, s44, s45')
        a(f's_add_u32 s56, s56, {NSELF}')
        a('s_lshr_b32 s58, s44, 2')
        a('s_mov_b32 s87, 4')
        a(f's_branch {L("T1C")}')
    a.label(L('T1'))
    a(f's_mov_b32 s99, {T_T1}')
    a(f's_sub_u32 s44, s3, {Q_T1N}')
    a('s_lshr_b32 s56, s44, 2')
    a(f's_add_u32 s56, s56, {NSELF + NFINE}')
    a('s_mov_b32 s87, 12')
    a.label(L('T1C'))
    a('s_and_b32 s44, s44, 3')
    a('s_lshl_b32 s57, s100, 2')
    a('s_add_u32 s57, s57, s44')
    a('s_lshl_b32 s45, s56, 10')
    a(f's_add_u32 s94, s45, {C_LN1}')
    a('s_mov_b32 s95, 1')
    a('s_mov_b32 s97, 1')
    a('s_add_u32 s45, s45, s86')
    a(f's_add_u32 s101, s45, {F_T1}')
    a.label(L('END'))

def poll(a, lbl, s_addr, s_thr, adaptive, zx_ok=True):
    a('v_and_b32 v8, 7, v1')
    a('v_lshlrev_b32 v8, 7, v8')
    a('v_mov_b32 v5, 0')
    a('s_mov_b32 s79, 0')
    if zx_ok:
        a(f's_cmp_lg_u32 s99, {T_LN2}')
        a(f's_cbranch_scc1 {lbl}_2')
        a('v_lshlrev_b32 v8, 7, v1')
        a('s_mov_b32 s79, 8192')
    a.label(f'{lbl}_2')
    a(f's_add_u32 s78, s{s_addr}, s79')
    a(f'buffer_load_dword v6, v8, s[32:35], s{s_addr} offen sc1')
    a(f'buffer_load_dword v7, v8, s[32:35], s78 offen sc1')
    if adaptive:
        a('buffer_load_dword v9, v5, s[32:35], s96 offen sc1')
    a('s_waitcnt vmcnt(0)')
    a('v_min_u32 v6, v6, v7')
    a(f'v_cmp_gt_u32 vcc, s{s_thr}, v6')
    if adaptive:
        a('v_readfirstlane_b32 s43, v9')
    a('s_cmp_eq_u64 vcc, 0')
    a(f's_cbranch_scc1 {lbl}_3')
    a('s_add_u32 s98, s98, 1')
    a('s_cmp_ge_u32 s98, 0x8000')
    a(f's_cbranch_scc1 {lbl}_3')
    if adaptive:
        a('s_cmp_ge_u32 s43, 16')
        a('s_cselect_b32 s97, 1, s97')
    a(f's_sleep {W_SHORT}')
    if adaptive:
        a('s_cmp_eq_u32 s97, 1')
        a(f's_cbranch_scc1 {lbl}_2')
        for _ in range(W_SLEEP // 127): a('s_sleep 127')
        if W_SLEEP % 127: a(f's_sleep {W_SLEEP % 127}')
    a(f's_branch {lbl}_2')

def k_mega(a):
    from k_t1v import t1v_body
    from k_post import FA, FB, LN2B
    fa, fb, ln2 = FA(), FB(), LN2B()
    name = 'mega_kernel'
    kernel_header(a, name)
    a('s_cmp_ge_u32 s2, 256')
    a('s_cbranch_scc1 MG_END')
    a(f's_load_dwordx2 s[52:53], s[0:1], {KA["ws"]}')
    a(f's_load_dwordx2 s[96:97], s[0:1], {KA["dbg"]}')
    lane_decomp(a)
    for r in range(4, 16): a(f'v_mov_b32 v{r}, 0')
    for o in (fa, fb):
        for r in range(o.g.VA, o.g.VA + 2 * o.g.NC + 1):
            a(f'v_mov_b32 v{r}, 0')
    a('s_waitcnt lgkmcnt(0)')
    NW = 640 * 6144 * 2
    make_srd(a, 32, 52, WS_SIZE)
    a('s_mov_b32 s88, 0')
    a('s_mov_b32 s85, 0')
    if LOG:
        l = a.newlabel('KL')
        a('s_cmp_lg_u32 s40, 0')
        a(f's_cbranch_scc1 {l}')
        a('s_memrealtime s[98:99]')
        a('s_lshl_b32 s43, s2, 12')
        a(f's_add_u32 s42, s43, {WS_LOG + 131*4}')
        a('s_waitcnt lgkmcnt(0)')
        a('v_mov_b32 v250, s98')
        a('v_mov_b32 v251, 0')
        a('s_mov_b64 exec, 1')
        a('buffer_store_dword v250, v251, s[32:35], s42 offen')
        a('s_mov_b64 exec, -1')
        a.label(l)
    a('s_getreg_b32 s46, hwreg(HW_REG_XCC_ID)')
    a('s_and_b32 s46, s46, 7')
    a('s_and_b32 s54, s2, 7')
    a('s_lshr_b32 s55, s2, 3')
    a('s_cmp_lg_u32 s46, s54')
    a('s_cselect_b32 s46, 0x10001, 1')
    if 'fb' in OPT:
        a('s_cmp_eq_u32 s2, 0')
        a('s_cselect_b32 s46, 0x10001, s46')
    role_map(a)
    a('s_mov_b32 s92, 1')
    if 'slow' in OPT: a('s_mov_b32 s92, 0')
    a('s_cmp_eq_u32 s93, 1')
    a('s_cbranch_scc1 ARRIVE')
    a('s_mov_b32 s46, 1')
    a('s_cmp_lt_u32 s55, 8')
    a('s_cbranch_scc1 ARRIVE')
    a('s_lshl_b32 s42, s54, 3')
    a('s_add_u32 s42, s42, s55')
    a('s_sub_u32 s42, s42, 8')
    a('v_lshlrev_b32 v10, 4, v0')
    for r in range(4):
        a(f'v_mov_b32 v{4+r}, -1')
        a(f'v_mov_b32 v{12+r}, 0')
    a('s_lshl_b32 s43, s42, 15')
    a(f's_add_u32 s43, s43, {WS_MEMF}')
    for i in range(4):
        a(f'buffer_store_dwordx4 v[4:7], v10, s[32:35], s43 offen sc1')
        if i < 3: a('s_add_u32 s43, s43, 8192')
    assert CNT_BYTES % 64 == 0 and (CNT_BYTES // 64) % 16 == 0
    a(f's_mul_i32 s43, s42, {CNT_BYTES // 64}')
    a(f's_add_u32 s43, s43, {WS_CNT}')
    a(f'v_cmp_gt_u32 vcc, {CNT_BYTES // 64 // 16}, v0')
    a('s_and_saveexec_b64 s[44:45], vcc')
    a('s_cbranch_execz NOCZ')
    a('buffer_store_dwordx4 v[12:15], v10, s[32:35], s43 offen sc1')
    a.label('NOCZ')
    a('s_mov_b64 exec, s[44:45]')
    a('s_waitcnt vmcnt(0)')
    a('s_barrier')
    a.label('ARRIVE')
    a('s_cmp_lg_u32 s40, 0')
    a('s_cbranch_scc1 ARR2')
    a('s_lshr_b32 s42, s2, 3')
    a('s_and_b32 s42, s42, 3')
    a('s_lshl_b32 s42, s42, 6')
    a('v_mov_b32 v4, s42')
    a('v_mov_b32 v5, s46')
    a('s_mov_b64 exec, 1')
    a('global_atomic_add v4, v5, s[96:97] sc1')
    a('s_mov_b64 exec, -1')
    a.label('ARR2')
    a('s_branch DISPATCH')
    a.label('FALLBACK')
    a('s_waitcnt vmcnt(0) lgkmcnt(0)')
    a('s_barrier')
    a('s_setprio 0')
    lane_decomp(a)
    register(a)
    a.label('DISPATCH')
    a(f's_load_dwordx4 s[4:7], s[0:1], {KA["wq"]}')
    a(f's_load_dwordx4 s[48:51], s[0:1], {KA["wv"]}')
    a(f's_load_dwordx2 s[94:95], s[0:1], {KA["mem0"]}')
    a('s_waitcnt lgkmcnt(0)')
    a('s_mov_b32 s100, s54')
    a('s_cmp_eq_u32 s93, 0')
    a('s_cbranch_scc1 WENTRY0')
    make_srd(a, 8, 4, NW)
    make_srd(a, 12, 6, NW)
    make_srd(a, 16, 48, NW)
    make_srd(a, 28, 50, NW)
    make_srd(a, 36, 94, 8 * 1280)
    k_chain4.chain4_body(a, mega=dict(F_T1=F_T1, F_ZX=F_ZX, T1THR=T1THR, NSELF=NSELF, C_LN1=C_LN1, LOG=(WS_LOG if LOG else None), **(dict(EARLYPOLL=early_poll, EARLYCHK=early_chk) if EP else dict(GATE=gate))))
    lane_decomp(a)
    a('s_mov_b32 s55, -1')
    a.label('WENTRY0')
    a('s_mov_b32 s98, 0')
    if LOG:
        a('s_lshl_b32 s80, s2, 12')
        a(f's_add_u32 s80, s80, {WS_LOG + 1024}')
    a('s_mov_b32 s3, s55')
    a('s_cmp_eq_u32 s55, -1')
    a('s_cbranch_scc0 WFIRST')
    a.label('WLOOP')
    a('s_cmp_lg_u32 s40, 0')
    a('s_cbranch_scc1 WL_1')
    a('s_mov_b64 exec, 1')
    a('v_mov_b32 v4, 1')
    a('v_mov_b32 v5, 0')
    a('s_lshl_b32 s42, s100, 7')
    a(f's_add_u32 s42, s42, {C_QH}')
    a('buffer_atomic_add v4, v5, s[32:35], s42 offen sc0 sc1')
    a(f'v_mov_b32 v5, {L_SLOT}')
    a('s_waitcnt vmcnt(0)')
    a('ds_write_b32 v5, v4')
    a('s_waitcnt lgkmcnt(0)')
    a('s_mov_b64 exec, -1')
    a.label('WL_1')
    a('s_barrier')
    a(f'v_mov_b32 v5, {L_SLOT}')
    a('ds_read_b32 v4, v5')
    a('s_waitcnt lgkmcnt(0)')
    a('v_readfirstlane_b32 s3, v4')
    a('s_add_u32 s3, s3, 16')
    a.label('WFIRST')
    a(f's_cmp_ge_u32 s3, {Q_END}')
    a('s_cbranch_scc1 MG_END0')
    if LOG:
        rt(a, 81)
        a('s_lshl_b32 s83, s100, 16')
        a('s_or_b32 s83, s83, s3')
    decode(a)
    a(f's_cmp_eq_u32 s99, {T_NULL}')
    a('s_cbranch_scc1 WNULL')
    a('s_cmp_eq_u32 s91, 0')
    a('s_cbranch_scc1 WPRE')
    a('s_cmp_lg_u32 s40, 0')
    a('s_cbranch_scc1 WP_3')
    poll(a, 'WP', 90, 91, False, zx_ok=False)
    a.label('WP_3')
    a('s_barrier')
    a.label('WPRE')
    for t, l in ((T_LN2, 'P_LN2'), (T_FA, 'P_FA'), (T_FB, 'P_FB'), (T_LN1, 'P_LN1')):
        a(f's_cmp_eq_u32 s99, {t}')
        a(f's_cbranch_scc1 {l}')
    a.label('WWAIT')
    a('s_cmp_eq_u32 s95, 0')
    a('s_cbranch_scc1 WL_3')
    gate(a, 'GW')
    a('s_cmp_lg_u32 s40, 0')
    a('s_cbranch_scc1 WL_3')
    poll(a, 'WL', 94, 95, True)
    a.label('WL_3')
    a('s_barrier')
    if LOG: rt(a, 82)
    for t, l in ((T_T1, 'B_T1'),) + (((T_T1F, 'B_T1F'),) if NFINE else ()) + ((T_LN2, 'B_LN2'), (T_FA, 'B_FA'), (T_FB, 'B_FB'), (T_MOD, 'B_MOD')):
        a(f's_cmp_eq_u32 s99, {t}')
        a(f's_cbranch_scc1 {l}')
    body_ln1(a, 'LN1')
    a('s_branch WDONE')
    a.label('WNULL')
    a('s_barrier')
    a('s_branch WLOOP')
    for nm, o in (('LN2', ln2), ('FA', fa), ('FB', fb)):
        a.label(f'P_{nm}')
        o.pre(a)
        a('s_branch WWAIT')
    a.label('P_LN1')
    ln1_pre(a)
    a('s_branch WWAIT')
    a.label('B_MOD')
    body_mod(a, 'MOD')
    a('s_branch WDONE')
    a.label('B_T1')
    t1v_body(a, 'T1', SFX)
    a('s_branch WDONE')
    if NFINE:
        a.label('B_T1F')
        t1v_body(a, 'T1F', SFX, nm=1)
        a('s_branch WDONE')
    for nm, o in (('LN2', ln2), ('FA', fa), ('FB', fb)):
        a.label(f'B_{nm}')
        o.main(a)
        a('s_branch WDONE')
    a.label('WDONE')
    a('s_waitcnt vmcnt(0) lgkmcnt(0)')
    a('s_barrier')
    gate(a, 'GD')
    a('s_cmp_lg_u32 s40, 0')
    a('s_cbranch_scc1 WLOOP')
    if LOG: log_entry(a)
    a('s_cmp_eq_u32 s101, 0')
    a('s_cbranch_scc1 WLOOP')
    a('s_mov_b64 exec, 1')
    a('v_mov_b32 v4, s87')
    a('v_mov_b32 v5, 0')
    a('buffer_atomic_add v4, v5, s[32:35], s101 offen sc1')
    a('s_mov_b64 exec, -1')
    a('s_branch WLOOP')
    a.label('MG_END0')
    if 'tmo' in OPT:
        a('s_cmp_lt_u32 s98, 0x8000')
        a('s_cbranch_scc1 MG_END')
        a(f's_load_dwordx2 s[96:97], s[0:1], {KA["dbg"]}')
        a('s_waitcnt lgkmcnt(0)')
        a('v_mov_b32 v4, 0')
        a('v_mov_b32 v5, 1')
        a('s_mov_b64 exec, 1')
        a('global_atomic_add v4, v5, s[96:97] offset:16')
        a('s_mov_b64 exec, -1')
    a.label('MG_END')
    a('s_endpgm')
    return name, kernel_desc(name, 256, 102, 256)
```

```python
WS_MOD = 0x0000000
WS_CNT = 0x0010000
WS_H1  = 0x0100000
WS_H2  = 0x0400000
WS_X1  = 0x0700000
WS_ACT = 0x0D00000
WS_MEMF = 0x1400000
WS_G1  = 0x1500000
WS_G2  = 0x1600000
WS_ZP  = 0x1700000
WS_QF  = 0x2100000
WS_KF  = 0x3A00000
WS_VF  = 0x5300000
WS_HQK = 0x6C00000
WS_HV  = 0x7900000
WS_OF  = 0x8100000
WS_OP  = 0xD100000
WS_SIZE = 0x10000000
LOG2E = 1.4426950408889634
import struct
def f2u(f):
    return struct.unpack('<I', struct.pack('<f', f))[0]
BLK = [(0, 1), (3, 4), (6, 7), (9, 10), (2, 5), (8, 11)]
def blk_of(et):
    for b, (p, q) in enumerate(BLK):
        if et == p: return b, 0
        if et == q: return b, 1
WS_OPB = 0xD100000
WS_X1F = 0x0700000
WS_H2F = 0x0400000
WS_SL = 0x8100000
WS_H1F = 0x0A00000
WS_MEMF = 0x1400000
WS_G1 = 0x1428000
WS_G2 = 0x14E8000
WS_ZP = 0x1548000
```

```python
import sys
sys.path.insert(0, 'dev')
from asmlib import *
from gen import build
from k_mega6 import k_mega, LDS_MEGA
if __name__ == '__main__':
    ks = [(k_mega, 256, 512, LDS_MEGA)]
    build(ks, sys.argv[1] if len(sys.argv) > 1 else 'test.s')
```

```python
from asmlib import *
from layout2 import *
from k_t1 import lane_decomp, OPT
from k_chain import pub
TMO = 0x40000
def lds_spin(a, lbl, reads, flag_regs, vtmp):
    a.label(lbl)
    reads()
    a('s_waitcnt lgkmcnt(0)')
    a(f'v_cmp_ne_u32 vcc, s89, v{flag_regs[0]}')
    for f in flag_regs[1:]:
        a(f'v_cmp_ne_u32 s[90:91], s89, v{f}')
        a('s_or_b64 vcc, vcc, s[90:91]')
    a('s_add_u32 s88, s88, 1')
    a(f's_cmp_lt_u32 s88, {TMO:#x}')
    a('s_cselect_b64 s[90:91], vcc, 0')
    a('s_cmp_lg_u64 s[90:91], 0')
    a(f's_cbranch_scc1 {lbl}')
import os

L_FLAG = 0
L_PX = 256
L_PM = 2304
L_MEM = 4096
L_VM = 14336
L_KX = 20480
L_VX = 69632
L_QX = 118784
L_PXX = 143360
L_PMX = 147456
L_END4 = 155648
NSTEP = int(os.environ.get('NSTEP', '64'))
D_MEM = int(os.environ.get('D_MEM', '20'))
D_SC = int(os.environ.get('D_SC', '4'))
D_Z = int(os.environ.get('D_Z', '20'))
D_Z0 = int(os.environ.get('D_Z0', '0'))
D_V = int(os.environ.get('D_V', '12'))
VPW = 3
QOWN = int(os.environ.get('QOWN', '0'))
QPS = int(os.environ.get('QPS', '0'))
PFV = int(os.environ.get('PFV', '0'))
ZEARLY = int(os.environ.get('ZEARLY', '64'))
LASTF = int(os.environ.get('LASTF', '0'))
PZ = int(os.environ.get('PZ', '0'))
PZ2 = int(os.environ.get('PZ2', '2'))
PZS = int(os.environ.get('PZS', '4'))
PFS = int(os.environ.get('PFS', '0'))
PFN = int(os.environ.get('PFN', '24'))
NT = ' nt' if os.environ.get('NT', '0') == '1' else ''
WOM = int(os.environ.get('WOM', '3'))
WOS = int(os.environ.get('WOS', '4'))
VSW = int(os.environ.get('VSW', '2'))
ZXS = int(os.environ.get('ZXS', '1'))
XPRIO = int(os.environ.get('XPRIO', '0'))
ZPRIO = int(os.environ.get('ZPRIO', '2'))
S_G1 = 196608
S_G2 = 98304
S_ZP = 163840
SLAB = 128 * 20480

SB = 20
def stamp(a, i):
    if 'stamp' not in OPT: return
    l = a.newlabel('ST')
    a('s_cmp_lg_u32 s84, 30')
    a(f's_cbranch_scc1 {l}')
    a('s_memrealtime s[96:97]' if 'gst' in OPT else 's_memtime s[96:97]')
    a('s_waitcnt lgkmcnt(0)')
    a(f's_mov_b32 s{SB+i}, s96')
    a.label(l)

def stampc(a, i):
    if 'stamp' not in OPT: return
    l = a.newlabel('ST')
    a('s_cmp_lg_u32 s84, 30')
    a(f's_cbranch_scc1 {l}')
    a(f's_mov_b32 s{SB+i}, s88')
    a.label(l)

def poll_sent(a, lbl, loads, check_regs, vtmp):
    a.label(lbl)
    loads()
    a('s_waitcnt vmcnt(0)')
    rs = list(check_regs)
    a(f'v_max_u32 v{vtmp}, v{rs[0]}, v{rs[1]}')
    rs = rs[2:]
    while len(rs) >= 2:
        a(f'v_max3_u32 v{vtmp}, v{vtmp}, v{rs[0]}, v{rs[1]}'); rs = rs[2:]
    if rs:
        a(f'v_max_u32 v{vtmp}, v{vtmp}, v{rs[0]}')
    a(f'v_cmp_eq_u32 vcc, -1, v{vtmp}')
    a('s_add_u32 s88, s88, 1')
    a(f's_cmp_lt_u32 s88, {TMO:#x}')
    a('s_cselect_b64 s[90:91], vcc, 0')
    a('s_cmp_lg_u64 s[90:91], 0')
    a(f's_cbranch_scc1 {lbl}')

def t1_wait(a, lbl, s_addr, thr, first=False):
    zv = 11 if first else 12
    if first:
        a(f'buffer_load_dword v254, v{zv}, s[32:35], s{s_addr} offen sc1')
    a.label(lbl)
    a('s_waitcnt vmcnt(0)')
    a('v_readfirstlane_b32 s42, v254')
    a(f's_cmp_ge_u32 s42, {thr}')
    a(f's_cbranch_scc1 {lbl}_OK')
    a('s_add_u32 s88, s88, 1')
    a(f's_cmp_ge_u32 s88, {TMO:#x}')
    a(f's_cbranch_scc1 {lbl}_OK')
    a('s_sleep 1' if first else 's_sleep 4')
    a(f'buffer_load_dword v254, v{zv}, s[32:35], s{s_addr} offen sc1')
    a(f's_branch {lbl}')
    a.label(f'{lbl}_OK')

def clog(a, mega, idx, wave=0):
    if not mega.get('LOG'): return
    l = a.newlabel('CL')
    a(f's_cmp_lg_u32 s40, {wave}')
    a(f's_cbranch_scc1 {l}')
    a('s_memrealtime s[96:97]')
    a('s_lshl_b32 s43, s2, 12')
    a(f's_add_u32 s42, s43, {mega["LOG"] + idx*4}')
    a('s_waitcnt lgkmcnt(0)')
    a('v_mov_b32 v250, s96')
    a('v_mov_b32 v251, 0')
    a('s_mov_b64 exec, 1')
    a('buffer_store_dword v250, v251, s[32:35], s42 offen')
    a('s_mov_b64 exec, -1')
    a.label(l)

def self_t1(a, mega, lbl, WQ, WK, VW):
    NS = mega['NSELF']
    if not NS: return
    N = 4 * NS
    BUF = [L_KX + 40960 * i for i in range(3)]
    if not mega.get('EARLYPOLL'):
        a('s_cmp_lg_u32 s40, 0')
        a(f's_cbranch_scc1 {lbl("ST_W")}')
        a('v_and_b32 v4, 7, v1')
        a('v_lshlrev_b32 v4, 7, v4')
        a(f's_mov_b32 s42, {mega["C_LN1"]}')
        a.label(lbl('ST_P'))
        for r in range(NS):
            a(f'buffer_load_dword v{5+r}, v4, s[32:35], s42 offen offset:{1024*r} sc1')
        a('s_waitcnt vmcnt(0)')
        for r in range(1, NS):
            a(f'v_min_u32 v5, v5, v{5+r}')
        a('v_cmp_eq_u32 vcc, 0, v5')
        a('s_add_u32 s88, s88, 1')
        a(f's_cmp_lt_u32 s88, {TMO:#x}')
        a('s_cselect_b64 s[90:91], vcc, 0')
        a('s_cmp_lg_u64 s[90:91], 0')
        a(f's_cbranch_scc0 {lbl("ST_W")}')
        a('s_sleep 2')
        a(f's_branch {lbl("ST_P")}')
        a.label(lbl('ST_W'))
        a('s_barrier')
    clog(a, mega, 132)
    a('s_cmp_ge_u32 s40, 6')
    a('s_cselect_b32 s46, 2, 0')
    a('s_sub_u32 s46, s40, s46')
    a('s_mul_i32 s46, s46, 7168')
    NI = 7
    def issue(b, on=True):
        if not on: return
        for i in range(NI):
            a(f's_add_u32 s43, s46, {1024*i}')
            a('s_min_u32 s43, s43, 39936')
            a(f's_add_u32 m0, s43, {BUF[b % 3]}')
            a(f's_add_u32 s43, s43, {WS_H1F + b*40960}')
            a('buffer_load_dwordx4 v15, s[32:35], s43 offen lds')
    nl = a.newlabel('STN')
    a('s_cmp_eq_u32 s40, 4')
    a(f's_cbranch_scc1 {nl}')
    a('s_cmp_eq_u32 s40, 5')
    a(f's_cbranch_scc1 {nl}')
    issue(0); issue(1); issue(2)
    a.label(nl)
    a('s_cmp_lt_u32 s40, 3')
    a('s_cselect_b32 s45, s40, s79')
    a('s_lshr_b32 s42, s61, 1')
    a('s_add_u32 s42, s42, 4')
    a('s_and_b32 s43, s61, 1')
    a('s_cmp_eq_u32 s45, 2')
    a('s_cselect_b32 s42, s42, s61')
    a('s_cselect_b32 s43, s43, s45')
    a('s_lshl_b32 s42, s42, 10')
    a('s_lshl_b32 s43, s43, 3')
    a('s_add_u32 s42, s42, s43')
    a('s_mul_i32 s43, s59, 12288')
    a('s_add_u32 s44, s42, s43')
    a('s_cmp_lt_u32 s40, 3')
    a(f's_cbranch_scc1 {lbl("ST_S")}')
    a('s_cmp_eq_u32 s79, 99')
    a(f's_cbranch_scc1 {lbl("ST_N")}')
    for kind, nst, MF, AC, Ws, outs in (('V', 2, 144, 184, [VW], [WS_VF]), ('S', 4, 180, 220, [WQ, WK], [WS_QF, WS_KF]), ('N', 0, 0, 0, [], [])):
        a.label(lbl(f'ST_{kind}'))
        q = [('I', 0)] * NI + [('I', 1)] * NI + [('I', 2)] * NI
        for b in range(N):
            if kind == 'N':
                if b == 0 and WOM == 1:
                    a(f's_sleep {WOS}')
                    mega['WOL']()
                a('s_barrier')
                if b == 0 and WOM == 2: mega['WOL']()
                continue
            last = max(i for i, o in enumerate(q) if o == ('I', b))
            vm = len(q) - 1 - last
            a(f's_waitcnt vmcnt({vm})')
            if kind == 'S': clog(a, mega, 150 + b)
            a('s_barrier')
            if kind == 'S': clog(a, mega, 140 + b)
            if b >= 1 and b + 2 < N:
                issue(b + 2); q += [('I', b + 2)] * NI
            q += [('S', b)] * nst
            a(f'v_add_u32 v4, {BUF[b % 3]}, v15')
            def rd(t):
                sl = MF + 8 * (t % 5)
                a(f'ds_read_b128 v[{sl}:{sl+3}], v4 offset:{1024*t}')
                a(f'ds_read_b128 v[{sl+4}:{sl+7}], v4 offset:{20480 + 1024*t}')
            for t in range(5): rd(t)
            for t in range(20):
                a(f's_waitcnt lgkmcnt({2 * min(4, 19 - t)})')
                sl = MF + 8 * (t % 5)
                for tt in range(2):
                    for m, W in enumerate(Ws):
                        acc = AC + (m * 2 + tt) * 4
                        c = '0' if t == 0 else f'v[{acc}:{acc+3}]'
                        a(f'v_mfma_f32_16x16x32_bf16 v[{acc}:{acc+3}], v[{W+4*t}:{W+4*t+3}], v[{sl+4*tt}:{sl+4*tt+3}], {c}')
                if t + 5 < 20: rd(t + 5)
            a('s_nop 7')
            a('s_nop 1')
            ins = []
            for m, W in enumerate(Ws):
                for tt in range(2):
                    acc = AC + (m * 2 + tt) * 4
                    a(f'v_cvt_pk_bf16_f32 v{acc}, v{acc}, v{acc+1}')
                    a(f'v_cvt_pk_bf16_f32 v{acc+1}, v{acc+2}, v{acc+3}')
            for m, W in enumerate(Ws):
                for tt in range(2):
                    a(f's_add_u32 s{8+m*2+tt}, s44, {outs[m] + b*393216 + tt*6144}')
                    acc = AC + (m * 2 + tt) * 4
                    ins.append(f'buffer_store_dwordx2 v[{acc}:{acc+1}], v15, s[32:35], s{8+m*2+tt} offen')
            pub(a, ins)
        if kind != 'N': a(f's_branch {lbl("ST_E")}')
    a.label(lbl('ST_E'))
    clog(a, mega, 144)
    a('s_waitcnt vmcnt(0)')
    clog(a, mega, 145)
    clog(a, mega, 146, wave=4)
    a('s_barrier')
    a('s_cmp_lg_u32 s40, 0')
    a(f's_cbranch_scc1 {lbl("ST_X")}')
    a('s_lshl_b32 s42, s54, 7')
    a(f's_add_u32 s42, s42, {mega["F_T1"]}')
    a(f'v_mov_b32 v4, {mega["T1THR"] // 16}')
    a('v_mov_b32 v5, 0')
    a('s_mov_b64 exec, 1')
    pub(a, [f'buffer_atomic_add v4, v5, s[32:35], s42 offen offset:{1024*r}' for r in range(NS)])
    a('s_mov_b64 exec, -1')
    a.label(lbl('ST_X'))
    clog(a, mega, 133)

def chain4_body(a, mega):
    NW = 640 * 6144 * 2
    def lbl(n): return f'C4_{n}'
    clog(a, mega, 128)
    if mega.get('LOG'):
        a('s_lshl_b32 s43, s2, 12')
        a(f's_add_u32 s42, s43, {mega["LOG"] + 134*4}')
        a('s_lshl_b32 s43, s54, 8')
        a('s_or_b32 s43, s43, s55')
        a('v_mov_b32 v250, s43')
        a('v_mov_b32 v251, 0')
        a('buffer_store_dword v250, v251, s[32:35], s42 offen')
    a('s_lshr_b32 s56, s55, 3')
    a('s_and_b32 s57, s55, 7')
    a('s_lshl_b32 s58, s54, 1')
    a('s_add_u32 s58, s58, s56')
    a('s_lshr_b32 s59, s57, 2')
    a('s_lshl_b32 s60, s58, 1')
    a('s_add_u32 s59, s59, s60')
    a('s_and_b32 s61, s57, 3')
    a('s_mul_i32 s42, s59, 384')
    a('s_mul_i32 s43, s61, 96')
    a('s_add_u32 s62, s42, s43')
    a(f's_add_u32 s44, s61, {VSW}')
    a('s_and_b32 s44, s44, 3')
    a('s_mul_i32 s43, s44, 96')
    a('s_add_u32 s63, s42, s43')
    a('s_cmp_ge_u32 s40, 3')
    a('s_cselect_b32 s61, s44, s61')
    a('s_and_b32 s41, s40, 3')
    a('s_cmp_lt_u32 s40, 4')
    a('s_cselect_b32 s24, s8, s12')
    a('s_cselect_b32 s25, s9, s13')
    a(f's_mov_b32 s26, {NW}')
    a('s_mov_b32 s27, 0x00020000')
    a('s_mul_i32 s42, s41, 960')
    STG = 180
    def wdma(stage=False):
        for i in range(15):
            a(f's_add_u32 s43, s42, {64*i}')
            a('v_add_u32 v4, s43, v1')
            a('v_mul_u32_u24 v5, 10923, v4')
            a('v_lshrrev_b32 v5, 16, v5')
            a('v_mul_u32_u24 v6, 6, v5')
            a('v_sub_u32 v6, v4, v6')
            a('v_mul_u32_u24 v5, 12288, v5')
            a('v_lshl_add_u32 v5, v6, 4, v5')
            if stage:
                a(f'buffer_load_dwordx4 v[{STG+4*i}:{STG+4*i+3}], v5, s[24:27], s63 offen{NT}')
                continue
            a('s_mul_i32 s43, s40, 15360')
            a(f's_add_u32 m0, s43, {1024*i}')
            a('s_nop 0')
            a(f'buffer_load_dwordx4 v5, s[24:27], s62 offen{NT} lds')
    M0R = 240
    def mem0_early():
        for i in range(2):
            a(f'v_add_u32 v4, {512*i}, v0')
            a('v_min_u32 v4, 639, v4')
            a('v_lshrrev_b32 v5, 6, v4')
            a('v_bfe_u32 v6, v4, 3, 1')
            a('v_mul_u32_u24 v6, 10, v6')
            a('v_add_u32 v5, v5, v6')
            a('v_bfe_u32 v6, v4, 4, 2')
            a('v_and_b32 v7, 7, v4')
            a('v_mul_u32_u24 v7, 1280, v7')
            a('v_lshl_add_u32 v7, v5, 6, v7')
            a('v_lshl_add_u32 v7, v6, 3, v7')
            a(f'buffer_load_dwordx2 v[{M0R+4*i}:{M0R+4*i+1}], v7, s[36:39], 0 offen')
            a(f'buffer_load_dwordx2 v[{M0R+4*i+2}:{M0R+4*i+3}], v7, s[36:39], 0 offen offset:32')
    wdma()
    a('v_lshlrev_b32 v15, 4, v1')
    a('v_lshlrev_b32 v13, 3, v1')
    STO = 100
    a('s_cmp_ge_u32 s40, 4')
    a(f's_cbranch_scc1 {lbl("R2WO")}')
    a('s_mov_b32 s24, s16')
    a('s_mov_b32 s25, s17')
    wdma(True)
    mem0_early()
    a('s_waitcnt vmcnt(19)')
    a(f's_branch {lbl("R2END")}')
    a.label(lbl('R2WO'))
    mem0_early()
    a('s_waitcnt vmcnt(4)')
    a.label(lbl('R2END'))
    a('s_barrier')
    clog(a, mega, 130)
    def wo_loads():
        a('s_mul_i32 s44, s58, 491520')
        a('s_mul_i32 s45, s57, 160')
        a('s_add_u32 s44, s44, s45')
        a('s_sub_u32 s42, s40, 4')
        a('s_mul_i32 s42, s42, 1920')
        for i in range(30):
            a(f's_add_u32 s43, s42, {64*i}')
            a('v_add_u32 v5, s43, v1')
            a('v_mul_u32_u24 v6, 6554, v5')
            a('v_lshrrev_b32 v6, 16, v6')
            a('v_mul_u32_u24 v7, 10, v6')
            a('v_sub_u32 v7, v5, v7')
            a('v_mul_u32_u24 v6, 1280, v6')
            a('v_lshl_add_u32 v6, v7, 4, v6')
            a(f'buffer_load_dwordx4 v[{STO+4*i}:{STO+4*i+3}], v6, s[28:31], s44 offen{NT}')
    if WOM == 3:
        a('s_cmp_lt_u32 s40, 4')
        a(f's_cbranch_scc1 {lbl("R2W45")}')
        a('s_cmp_ge_u32 s40, 6')
        a(f's_cbranch_scc1 {lbl("R2W45")}')
        wo_loads()
        a.label(lbl('R2W45'))
    if mega.get('EARLYPOLL'): mega['EARLYPOLL'](a)
    WQ, WK = 20, 100
    a('v_lshrrev_b32 v4, 2, v2')
    a('v_lshl_add_u32 v4, v3, 2, v4')
    a('v_mul_u32_u24 v4, 96, v4')
    a('v_and_b32 v5, 3, v2')
    a('v_lshl_add_u32 v4, v5, 3, v4')
    a('s_cmp_ge_u32 s40, 3')
    a(f's_cbranch_scc1 {lbl("NOSW")}')
    a('s_lshl_b32 s42, s40, 5')
    a('v_add_u32 v8, s42, v4')
    a('v_add_u32 v9, 61440, v8')
    for base, ad in ((WQ, 8), (WK, 9)):
        for t in range(20):
            f = base + 4 * t
            a(f'ds_read_b64_tr_b16 v[{f}:{f+1}], v{ad} offset:{t*3072}')
            a(f'ds_read_b64_tr_b16 v[{f+2}:{f+3}], v{ad} offset:{t*3072+1536}')
            if t % 4 == 3:
                a('s_waitcnt lgkmcnt(0)')
    a.label(lbl('NOSW'))
    a('s_waitcnt lgkmcnt(0)')
    a('s_barrier')
    a('s_cmp_ge_u32 s40, 4')
    a(f's_cbranch_scc1 {lbl("NOVS")}')
    a('s_mul_i32 s43, s40, 15360')
    a('v_add_u32 v5, s43, v15')
    for i in range(15):
        a(f's_waitcnt vmcnt({18-i})')
        a(f'ds_write_b128 v5, v[{STG+4*i}:{STG+4*i+3}] offset:{1024*i}')
    a.label(lbl('NOVS'))
    a('s_waitcnt lgkmcnt(0)')
    a('s_barrier')
    WO, VW = 16, 64
    a('s_sub_u32 s74, s40, 3')
    a('s_mov_b32 s79, 99')
    for wv, tl in ((3, 0), (7, 1), (6, 2)):
        a(f's_cmp_eq_u32 s40, {wv}')
        a(f's_cselect_b32 s79, {tl}, s79')
    a('s_cmp_eq_u32 s79, 99')
    a(f's_cbranch_scc1 {lbl("NOVW")}')
    a('v_lshrrev_b32 v4, 2, v2')
    a('v_lshl_add_u32 v4, v3, 2, v4')
    a('v_mul_u32_u24 v4, 96, v4')
    a('v_and_b32 v5, 3, v2')
    a('v_lshl_add_u32 v4, v5, 3, v4')
    a('s_lshl_b32 s42, s79, 5')
    a('v_add_u32 v8, s42, v4')
    for t in range(20):
        f = VW + 4 * t
        a(f'ds_read_b64_tr_b16 v[{f}:{f+1}], v8 offset:{t*3072}')
        a(f'ds_read_b64_tr_b16 v[{f+2}:{f+3}], v8 offset:{t*3072+1536}')
        if t % 4 == 3:
            a('s_waitcnt lgkmcnt(0)')
    a.label(lbl('NOVW'))
    a('s_waitcnt lgkmcnt(0)')
    a('s_barrier')
    mega['WOL'] = wo_loads
    if mega.get('S1') is not None and mega['S1'] < 64:
        a('s_cmp_lt_u32 s40, 3')
        a(f's_cbranch_scc1 {lbl("NOSI")}')
        a('s_mul_i32 s42, s57, 5')
        a('s_add_u32 s42, s42, s74')
        a('s_lshl_b32 s42, s42, 9')
        a(f's_mul_i32 s43, s58, {SLAB}')
        a('s_add_u32 s42, s42, s43')
        a(f's_add_u32 s42, s42, {WS_SL + mega["S1"]*40960}')
        a('v_mov_b32 v4, -1')
        a('v_mov_b32 v5, -1')
        for i in range(2 * (64 - mega['S1'])):
            a('buffer_store_dwordx2 v[4:5], v13, s[32:35], s42 offen sc1')
            a('s_add_u32 s42, s42, 20480')
        a.label(lbl('NOSI'))
    if WOM == 0 or (not mega['NSELF'] and WOM != 3):
        a('s_cmp_lt_u32 s40, 4')
        a(f's_cbranch_scc1 {lbl("R2W67")}')
        a('s_cmp_ge_u32 s40, 6')
        a(f's_cbranch_scc1 {lbl("R2W67")}')
        wo_loads()
        a.label(lbl('R2W67'))
    clog(a, mega, 129)
    if mega.get('EARLYCHK'): mega['EARLYCHK'](a)
    if mega.get('GATE'): mega['GATE'](a, 'GC')
    self_t1(a, mega, lbl, WQ, WK, VW)
    WOB = 20480
    a('s_cmp_eq_u32 s40, 4')
    a(f's_cbranch_scc1 {lbl("WOW")}')
    a('s_cmp_lg_u32 s40, 5')
    a(f's_cbranch_scc1 {lbl("WOW2")}')
    a.label(lbl('WOW'))
    a('s_sub_u32 s42, s40, 4')
    a('s_mul_i32 s42, s42, 30720')
    a(f's_add_u32 s42, s42, {WOB}')
    a('v_add_u32 v5, s42, v15')
    a('s_waitcnt vmcnt(0)')
    for i in range(30):
        a(f'ds_write_b128 v5, v[{STO+4*i}:{STO+4*i+3}] offset:{1024*i}')
    a.label(lbl('WOW2'))
    a('s_waitcnt lgkmcnt(0)')
    a('s_barrier')
    a('s_cmp_lt_u32 s40, 3')
    a(f's_cbranch_scc1 {lbl("NOZW")}')
    a('v_lshrrev_b32 v5, 2, v2')
    a('v_lshl_add_u32 v5, v3, 2, v5')
    a('v_mul_u32_u24 v5, 160, v5')
    a('v_and_b32 v6, 3, v2')
    a('v_lshl_add_u32 v5, v6, 3, v5')
    a('s_lshl_b32 s42, s74, 5')
    a(f's_add_u32 s42, s42, {WOB}')
    a('v_add_u32 v5, s42, v5')
    for hh in range(2):
        for b in range(6):
            f = WO + (hh * 6 + b) * 4
            ta, tb = BLK[b]
            a(f'ds_read_b64_tr_b16 v[{f}:{f+1}], v5 offset:{(hh*192 + 16*ta)*160}')
            a(f'ds_read_b64_tr_b16 v[{f+2}:{f+3}], v5 offset:{(hh*192 + 16*tb)*160}')
        a('s_waitcnt lgkmcnt(0)')
    a.label(lbl('NOZW'))
    a('s_waitcnt lgkmcnt(0)')
    a('s_barrier')
    clog(a, mega, 135)
    a('v_mov_b32 v11, 0')
    a('v_cmp_gt_u32 vcc, 8, v2')
    a('s_mov_b64 s[64:65], vcc')
    a('s_mov_b32 s66, -1')
    a('s_mov_b32 s67, 0')
    a('s_mov_b32 s98, 0')
    a('s_mov_b32 s99, -1')
    a('ds_write_b32 v11, v11 offset:8')
    a('ds_write_b32 v11, v11 offset:12')
    if LASTF:
        a('ds_write_b32 v11, v11 offset:16')
        a('ds_write_b32 v11, v11 offset:20')
    a('ds_write_b32 v11, v11 offset:32')
    a('ds_write_b32 v11, v11 offset:40')
    a('ds_write_b32 v11, v11 offset:44')
    for r in range(4): a(f'v_mov_b32 v{4+r}, 0')
    a('v_lshlrev_b32 v8, 4, v0')
    a(f'v_add_u32 v8, {L_PXX}, v8')
    a('s_cmp_ge_u32 s40, 6')
    a(f's_cbranch_scc1 {lbl("NOZX")}')
    a('ds_write_b128 v8, v[4:7]')
    a('ds_write_b128 v8, v[4:7] offset:6144')
    a.label(lbl('NOZX'))
    a('v_lshlrev_b32 v6, 4, v0')
    a('s_waitcnt vmcnt(0)')
    a(f'ds_write_b128 v6, v[{M0R}:{M0R+3}] offset:{L_MEM}')
    a('s_cmp_ge_u32 s40, 2')
    a(f's_cbranch_scc1 {lbl("M0S")}')
    a(f'ds_write_b128 v6, v[{M0R+4}:{M0R+7}] offset:{L_MEM + 8192}')
    a.label(lbl('M0S'))
    a('v_mov_b32 v11, 0')
    a('s_lshr_b32 s68, s54, 1')
    a('s_mul_i32 s68, s68, 40960')
    a(f's_add_u32 s68, s68, {WS_MEMF}')
    a('s_mul_i32 s42, s58, 24576')
    a(f's_add_u32 s70, s42, {WS_KF}')
    a(f's_add_u32 s71, s42, {WS_VF}')
    a(f's_add_u32 s16, s42, {WS_QF}')
    a('s_sub_u32 s46, s40, 4')
    a('s_mul_i32 s46, s46, 6144')
    def dma_blk(src_s, lds_s):
        a(f's_add_u32 s43, s{src_s}, s46')
        a(f's_add_u32 s47, s{lds_s}, s46')
        for i in range(6):
            a(f's_add_u32 m0, s47, {1024*i}')
            if i:
                a('s_add_u32 s43, s43, 1024')
            else:
                a('s_nop 0')
            a(f'buffer_load_dwordx4 v15, s[32:35], s43 offen lds')
    a('s_lshl_b32 s77, s54, 7')
    a(f's_add_u32 s77, s77, {mega["F_T1"]}')
    a('s_lshl_b32 s50, s54, 4')
    a('s_add_u32 s50, s50, s55')
    a('s_lshl_b32 s50, s50, 7')
    a(f's_add_u32 s50, s50, {mega["F_ZX"]}')
    a('v_mov_b32 v255, 1')
    a('s_cmp_lt_u32 s40, 4')
    a(f's_cbranch_scc1 {lbl("NOPD")}')
    t1_wait(a, lbl('T1W0'), 77, mega['T1THR'], first=True)
    clog(a, mega, 136, wave=4)
    a(f's_mov_b32 s45, {L_KX}')
    dma_blk(70, 45)
    a(f's_mov_b32 s45, {L_VX}')
    dma_blk(71, 45)
    a(f's_mov_b32 s45, {L_QX}')
    dma_blk(16, 45)
    a('s_add_u32 s71, s71, 393216')
    a(f's_mov_b32 s45, {L_VX + 24576}')
    dma_blk(71, 45)
    a.label(lbl('NOPD'))
    a('s_mul_i32 s42, s58, 24576')
    a(f's_add_u32 s70, s42, {WS_KF + 393216}')
    a(f's_add_u32 s71, s42, {WS_VF + 2*393216}')
    a(f's_add_u32 s16, s42, {WS_QF + 393216}')
    a('s_mov_b32 s84, 0')
    a('s_mov_b32 s86, 0')
    a('s_mov_b32 s89, 1')
    a('s_waitcnt vmcnt(0) lgkmcnt(0)')
    a('s_barrier')
    clog(a, mega, 137)
    a('s_cmp_ge_u32 s40, 3')
    a(f's_cbranch_scc1 {lbl("ZWAVE")}')
    SEL = 16
    MF = 180
    AC = 220
    a('s_setprio 3')
    a(f's_mov_b32 s87, {f2u(192 ** -0.5 * LOG2E):#x}')
    for r in range(4):
        a(f'v_mov_b32 v{SEL+r}, 0')
        a(f'v_mov_b32 v4, 0x3f80')
        a(f'v_cmp_eq_u32 vcc, {2*r}, v2')
        a(f'v_cndmask_b32 v{SEL+r}, v{SEL+r}, v4, vcc')
        a(f'v_mov_b32 v4, 0x3f800000')
        a(f'v_cmp_eq_u32 vcc, {2*r+1}, v2')
        a(f'v_cndmask_b32 v{SEL+r}, v{SEL+r}, v4, vcc')
    for r in range(4):
        a(f'v_lshl_add_u32 v4, v3, 2, {r}')
        a(f'v_cmp_le_u32 s[{8+2*r}:{9+2*r}], v4, v2')
    a('s_lshr_b32 s42, s61, 1')
    a('s_add_u32 s42, s42, 4')
    a('s_and_b32 s43, s61, 1')
    a('s_cmp_eq_u32 s40, 2')
    a('s_cselect_b32 s42, s42, s61')
    a('s_cselect_b32 s43, s43, s40')
    a('s_lshl_b32 s42, s42, 10')
    a('s_lshl_b32 s43, s43, 3')
    a('s_add_u32 s42, s42, s43')
    a('s_mul_i32 s43, s59, 6144')
    a('s_add_u32 s42, s42, s43')
    a(f's_add_u32 s72, s42, {WS_G1}')
    a('s_lshl_b32 s42, s58, 1')
    a('s_add_u32 s42, s42, s40')
    a('s_mul_i32 s42, s42, 6144')
    a(f's_add_u32 s75, s42, {WS_G1}')
    a('s_and_b32 s42, s54, 1')
    a('s_lshl_b32 s42, s42, 4')
    a('s_add_u32 s80, s42, s55')
    a('s_lshl_b32 s81, s80, 8')
    a(f's_add_u32 s81, s81, {WS_ZP}')
    a('v_mul_u32_u24 v10, 10240, v3')
    a('v_lshl_add_u32 v10, v2, 4, v10')
    def memf_base(dst, ct_s):
        a(f's_lshr_b32 s42, s{ct_s}, 1')
        a('s_cmp_ge_u32 s42, 10')
        a('s_cselect_b32 s43, 10, 0')
        a('s_cselect_b32 s44, 128, 0')
        a('s_sub_u32 s42, s42, s43')
        a('s_lshl_b32 s42, s42, 10')
        a('s_add_u32 s42, s42, s44')
        a(f's_and_b32 s43, s{ct_s}, 1')
        a('s_lshl_b32 s43, s43, 3')
        a('s_add_u32 s42, s42, s43')
        a(f's_add_u32 s{dst}, s42, s68')
    memf_base(82, 80)
    a('s_add_u32 s45, s80, 32')
    memf_base(73, 45)
    a(f'v_add_u32 v6, {L_MEM}, v15')
    a('s_mul_i32 s42, s40, 12288')
    a(f's_add_u32 s42, s42, {L_KX}')
    a('v_add_u32 v7, s42, v15')
    a('v_mov_b32 v8, -1')
    a('v_mov_b32 v9, -1')
    a('s_lshl_b32 s42, s40, 10')
    a(f's_add_u32 s42, s42, {L_PX}')
    a('v_add_u32 v5, s42, v15')
    a('s_cmp_eq_u32 s40, 0')
    a('s_cselect_b32 s42, 0, 256')
    a(f's_add_u32 s42, s42, {L_PM - 256}')
    a('v_add_u32 v4, s42, v13')
    a('s_lshl_b32 s42, s40, 2')
    a(f's_add_u32 s42, s42, {L_FLAG + 8}')
    a('v_mov_b32 v12, s42')
    a('s_mul_i32 s17, s40, 12288')
    a(f's_add_u32 s17, s17, {L_QX}')
    a('s_lshl_b32 s18, s40, 11')
    a(f's_add_u32 s18, s18, {L_PXX}')
    a('s_cmp_eq_u32 s40, 0')
    a('s_cselect_b32 s19, 0, 512')
    a(f's_add_u32 s19, s19, {L_PMX - 512}')
    a('s_mov_b32 s83, 0')
    a.label(lbl('SLOOP'))
    a('s_cmp_lt_u32 s40, 2' if QOWN else 's_cmp_eq_u32 s40, 1')
    a(f's_cbranch_scc1 {lbl("SNW")}')
    a('s_waitcnt vmcnt(0)')
    a.label(lbl('SNW'))
    stamp(a, 0)
    a('s_barrier')
    stamp(a, 1)
    for t in range(10):
        a(f'ds_read_b128 v[{MF+4*t}:{MF+4*t+3}], v6 offset:{1024*t}')
    for t in range(10):
        a(f's_waitcnt lgkmcnt({9-t})')
        b = MF + 4 * t
        for ai, W in ((0, WQ + 4*t), (1, WQ + 4*(t+10)), (2, WK + 4*t), (3, WK + 4*(t+10))):
            acc = AC + 4 * ai
            c = '0' if t == 0 else f'v[{acc}:{acc+3}]'
            a(f'v_mfma_f32_16x16x32_bf16 v[{acc}:{acc+3}], v[{W}:{W+3}], v[{b}:{b+3}], {c}')
    a('s_mul_i32 s42, s86, 196608')
    a('s_add_u32 s42, s42, s72')
    a('s_nop 7')
    for r in range(4):
        a(f'v_add_f32_dpp v{AC+r}, v{AC+4+r}, v{AC+r} row_ror:8 row_mask:0xf bank_mask:0xf')
    for r in range(4):
        a(f'v_add_f32_dpp v{AC+12+r}, v{AC+8+r}, v{AC+12+r} row_ror:8 row_mask:0xf bank_mask:0xf')
    for r in range(4):
        a(f'v_mul_f32 v{AC+r}, s87, v{AC+r}')
    a('s_mov_b64 vcc, s[64:65]')
    for r in range(4):
        a(f'v_cndmask_b32 v{AC+r}, v{AC+12+r}, v{AC+r}, vcc')
    a(f'v_cvt_pk_bf16_f32 v{AC+4}, v{AC}, v{AC+1}')
    a(f'v_cvt_pk_bf16_f32 v{AC+5}, v{AC+2}, v{AC+3}')
    pub(a, [f'buffer_store_dwordx2 v[{AC+4}:{AC+5}], v15, s[32:35], s42 offen'])
    stamp(a, 2)
    a('s_add_u32 s43, s86, 2')
    a('s_and_b32 s43, s43, 3')
    a('s_mul_i32 s43, s43, 196608')
    a('s_add_u32 s43, s43, s72')
    pub(a, [f'buffer_store_dwordx2 v[8:9], v15, s[32:35], s43 offen'])
    a('s_cmp_lg_u32 s40, 2')
    a(f's_cbranch_scc1 {lbl("SC01")}')
    a(f's_cmp_ge_u32 s84, {NSTEP-1}')
    a(f's_cbranch_scc1 {lbl("DONE")}')
    def rd_pf():
        a(f'ds_read_b32 v{180}, v11 offset:{L_FLAG + 8}')
        a(f'ds_read_b32 v{181}, v11 offset:{L_FLAG + 12}')
    lds_spin(a, lbl('SPINR'), rd_pf, [180, 181], 14)
    if PFS:
        a('s_add_u32 s42, s84, 2')
        a('s_mul_i32 s42, s42, 393216')
        a('s_mul_i32 s43, s58, 24576')
        a('s_add_u32 s42, s42, s43')
        a('s_mul_i32 s43, s57, 3072')
        a('s_add_u32 s42, s42, s43')
        a(f's_add_u32 s43, s42, {WS_KF}')
        a(f's_add_u32 s44, s42, {WS_VF + 393216}')
        a(f's_add_u32 s45, s42, {WS_QF}')
        for i in range(PFN):
            for r in (43, 45, 44):
                a(f's_buffer_load_dword s4, s[32:35], s{r} offset:{128*i}')
    if D_Z: a(f's_sleep {D_Z}')
    a(f's_branch {lbl("SRED")}')
    a.label(lbl('SC01'))
    R = 180
    KS = 204
    SC = 244
    def rd_k(i, slot):
        a(f'ds_read_b128 v[{KS+4*slot}:{KS+4*slot+3}], v7 offset:{1024*i}')
    for i in range(10): rd_k(i, i)
    a('s_mul_i32 s42, s86, 196608')
    a('s_add_u32 s42, s42, s75')
    a('s_add_u32 s43, s42, 4096')
    if D_SC: a(f's_sleep {D_SC}')
    def ld_g1():
        for b in range(6):
            so = 42 if b < 4 else 43
            a(f'buffer_load_dwordx4 v[{R+4*b}:{R+4*b+3}], v15, s[32:35], s{so} offen offset:{1024*(b%4)} sc1')
    poll_sent(a, lbl('POLLG'), ld_g1, [R + 4*b + o for b in range(6) for o in (0, 2)], 14)
    stamp(a, 3)
    a('s_waitcnt lgkmcnt(0)')
    if LASTF:
        a(f's_cmp_ge_u32 s84, {NSTEP-1}')
        a(f's_cbranch_scc1 {lbl("XPATH")}')
    for b in range(6):
        c = '0' if b == 0 else f'v[{SC+4}:{SC+7}]'
        a(f'v_mfma_f32_16x16x32_bf16 v[{SC+4}:{SC+7}], v[{KS+4*b}:{KS+4*b+3}], v[{R+4*b}:{R+4*b+3}], {c}')
    rd_k(10, 0); rd_k(11, 1)
    for b in range(6):
        c = '0' if b == 0 else f'v[{SC}:{SC+3}]'
        a(f'v_mfma_f32_16x16x32_bf16 v[{SC}:{SC+3}], v[{R+4*b}:{R+4*b+3}], v[{R+4*b}:{R+4*b+3}], {c}')
    a('s_waitcnt lgkmcnt(0)')
    for b in range(6):
        c = '0' if b == 0 else f'v[{SC+8}:{SC+11}]'
        sl = (6 + b) if b < 4 else (b - 4)
        a(f'v_mfma_f32_16x16x32_bf16 v[{SC+8}:{SC+11}], v[{KS+4*sl}:{KS+4*sl+3}], v[{R+4*b}:{R+4*b+3}], {c}')
    a(f'v_mov_b32 v14, {f2u(-1e30):#x}')
    a('v_cmp_gt_u32 vcc, 2, v3')
    a('s_nop 7')
    stamp(a, 4)
    for r in range(4):
        a(f'v_cndmask_b32 v{SC+r}, v{SC+r}, v14, vcc')
    M = 204
    a(f'v_max3_f32 v{M}, v{SC+4}, v{SC+5}, v{SC+6}')
    a(f'v_max3_f32 v{M+1}, v{SC+7}, v{SC+8}, v{SC+9}')
    a(f'v_max3_f32 v{M+2}, v{SC+10}, v{SC+11}, v{SC}')
    a(f'v_max3_f32 v{M+3}, v{SC+1}, v{SC+2}, v{SC+3}')
    a(f'v_max3_f32 v{M}, v{M}, v{M+1}, v{M+2}')
    a(f'v_max_f32 v{M}, v{M}, v{M+3}')
    def xg(op, v, t):
        a(f'v_mov_b32 v{t}, v{v}')
        a('s_nop 1')
        a(f'v_permlane32_swap_b32 v{v}, v{t}')
        a('s_nop 1')
        a(f'v_{op}_f32 v{v}, v{v}, v{t}')
        a(f'v_mov_b32 v{t}, v{v}')
        a('s_nop 1')
        a(f'v_permlane16_swap_b32 v{v}, v{t}')
        a('s_nop 1')
        a(f'v_{op}_f32 v{v}, v{v}, v{t}')
    def xg2(op, v, t, v2, t2):
        for sw in ('32', '16'):
            a(f'v_mov_b32 v{t}, v{v}')
            a(f'v_mov_b32 v{t2}, v{v2}')
            a('s_nop 0')
            a(f'v_permlane{sw}_swap_b32 v{v}, v{t}')
            a(f'v_permlane{sw}_swap_b32 v{v2}, v{t2}')
            a('s_nop 0')
            a(f'v_{op}_f32 v{v}, v{v}, v{t}')
            a(f'v_{op}_f32 v{v2}, v{v2}, v{t2}')
    xg('max', M, M + 1)
    for r in range(12):
        a(f'v_sub_f32 v{SC+r}, v{SC+r}, v{M}')
    for r in range(12):
        a(f'v_exp_f32 v{SC+r}, v{SC+r}')
    a('s_nop 0')
    L = M + 2
    a(f'v_add_f32 v{L}, v{SC}, v{SC+1}')
    a(f'v_add_f32 v{L+1}, v{SC+2}, v{SC+3}')
    a(f'v_add_f32 v{L+2}, v{SC+4}, v{SC+5}')
    a(f'v_add_f32 v{L+3}, v{SC+6}, v{SC+7}')
    a(f'v_add_f32 v{L+4}, v{SC+8}, v{SC+9}')
    a(f'v_add_f32 v{L+5}, v{SC+10}, v{SC+11}')
    a(f'v_add_f32 v{L}, v{L}, v{L+1}')
    a(f'v_add_f32 v{L+2}, v{L+2}, v{L+3}')
    a(f'v_add_f32 v{L+4}, v{L+4}, v{L+5}')
    a(f'v_add_f32 v{L}, v{L}, v{L+2}')
    a(f'v_add_f32 v{L}, v{L}, v{L+4}')
    xg('add', L, L + 1)
    a(f'v_rcp_f32 v{L}, v{L}')
    a('s_nop 0')
    for r in range(12):
        a(f'v_mul_f32 v{SC+r}, v{SC+r}, v{L}')
    PO = 216
    a(f'v_cvt_pk_bf16_f32 v{PO}, v{SC+4}, v{SC+5}')
    a(f'v_cvt_pk_bf16_f32 v{PO+1}, v{SC+6}, v{SC+7}')
    a(f'v_cvt_pk_bf16_f32 v{PO+2}, v{SC+8}, v{SC+9}')
    a(f'v_cvt_pk_bf16_f32 v{PO+3}, v{SC+10}, v{SC+11}')
    a(f'v_cvt_pk_bf16_f32 v{PO+4}, v{SC}, v{SC+1}')
    a(f'v_cvt_pk_bf16_f32 v{PO+5}, v{SC+2}, v{SC+3}')
    a('v_mov_b32 v14, s89')
    a(f'ds_write_b128 v5, v[{PO}:{PO+3}]')
    a('s_mov_b64 exec, s[98:99]')
    a(f'ds_write_b64 v4, v[{PO+4}:{PO+5}]')
    a('s_mov_b64 exec, -1')
    a(f'ds_write_b32 v12, v14')
    stamp(a, 5)
    a.label(lbl('XPATH'))
    if 'nox' not in OPT:
        a(f's_setprio {XPRIO}')
        def rd_p1():
            a(f'ds_read_b32 v{M}, v11 offset:{L_FLAG + (20 if LASTF else 12)}')
        if LASTF:
            a('v_mov_b32 v14, s89')
            a(f'ds_write_b32 v12, v14 offset:8')
        if not QOWN: lds_spin(a, lbl('SPINQ'), rd_p1, [M], 14)
        ST0, ST1, XA = 204, 220, 236
        m0, a0, m1, a1, b1 = XA, XA + 4, XA + 8, XA + 12, XA + 16
        a('v_add_u32 v14, s17, v15')
        def rdx(b, S):
            a(f'ds_read_b128 v[{S}:{S+3}], v14 offset:{1024*b}')
            a(f'ds_read_b128 v[{S+4}:{S+7}], v14 offset:{6144 + 1024*b}')
            a(f'ds_read_b128 v[{S+8}:{S+11}], v7 offset:{1024*b}')
            a(f'ds_read_b128 v[{S+12}:{S+15}], v7 offset:{6144 + 1024*b}')
        rdx(0, ST0); rdx(1, ST1)
        for b in range(6):
            S = ST0 if b % 2 == 0 else ST1
            a(f's_waitcnt lgkmcnt({4 if b < 5 else 0})')
            for acc, A, B in ((m0, R + 4*b, S), (a0, S + 8, S), (m1, R + 4*b, S + 4), (a1, S + 8, S + 4), (b1, S + 12, S + 4)):
                c = '0' if b == 0 else f'v[{acc}:{acc+3}]'
                a(f'v_mfma_f32_16x16x32_bf16 v[{acc}:{acc+3}], v[{A}:{A+3}], v[{B}:{B+3}], {c}')
            if b + 2 < 6: rdx(b + 2, S)
        T = 204
        a(f'v_mov_b32 v{T}, {f2u(-1e30):#x}')
        a('s_nop 7')
        for r in range(4):
            a(f'v_cndmask_b32 v{m0+r}, v{T}, v{m0+r}, s[98:99]')
            a(f'v_cndmask_b32 v{m1+r}, v{T}, v{m1+r}, s[98:99]')
            a(f'v_cndmask_b32 v{a0+r}, v{T}, v{a0+r}, s[{8+2*r}:{9+2*r}]')
            a(f'v_cndmask_b32 v{b1+r}, v{T}, v{b1+r}, s[{8+2*r}:{9+2*r}]')
        M0, M1 = T + 1, T + 2
        a(f'v_max3_f32 v{M0}, v{m0}, v{m0+1}, v{m0+2}')
        a(f'v_max3_f32 v{M1}, v{m1}, v{m1+1}, v{m1+2}')
        a(f'v_max3_f32 v{M0}, v{M0}, v{m0+3}, v{a0}')
        a(f'v_max3_f32 v{M1}, v{M1}, v{m1+3}, v{a1}')
        a(f'v_max3_f32 v{M0}, v{M0}, v{a0+1}, v{a0+2}')
        a(f'v_max3_f32 v{M1}, v{M1}, v{a1+1}, v{a1+2}')
        a(f'v_max_f32 v{M0}, v{M0}, v{a0+3}')
        a(f'v_max3_f32 v{M1}, v{M1}, v{a1+3}, v{b1}')
        a(f'v_max3_f32 v{M1}, v{M1}, v{b1+1}, v{b1+2}')
        a(f'v_max_f32 v{M1}, v{M1}, v{b1+3}')
        xg2('max', M0, T + 3, M1, T + 4)
        a(f'v_mul_f32 v{M0}, s87, v{M0}')
        a(f'v_mul_f32 v{M1}, s87, v{M1}')
        g0 = [m0 + r for r in range(4)] + [a0 + r for r in range(4)]
        g1 = [m1 + r for r in range(4)] + [a1 + r for r in range(4)] + [b1 + r for r in range(4)]
        for regs, mm in ((g0, M0), (g1, M1)):
            for v in regs:
                a(f'v_fma_f32 v{v}, v{v}, s87, -v{mm}')
        for v in g0 + g1:
            a(f'v_exp_f32 v{v}, v{v}')
        a('s_nop 0')
        L0, L1 = T + 1, T + 2
        a(f'v_add_f32 v{L0}, v{g0[0]}, v{g0[1]}')
        a(f'v_add_f32 v{L1}, v{g1[0]}, v{g1[1]}')
        a(f'v_add_f32 v{T+3}, v{g0[2]}, v{g0[3]}')
        a(f'v_add_f32 v{T+4}, v{g1[2]}, v{g1[3]}')
        a(f'v_add_f32 v{T+5}, v{g0[4]}, v{g0[5]}')
        a(f'v_add_f32 v{T+6}, v{g1[4]}, v{g1[5]}')
        a(f'v_add_f32 v{T+7}, v{g0[6]}, v{g0[7]}')
        a(f'v_add_f32 v{T+8}, v{g1[6]}, v{g1[7]}')
        a(f'v_add_f32 v{T+9}, v{g1[8]}, v{g1[9]}')
        a(f'v_add_f32 v{T+10}, v{g1[10]}, v{g1[11]}')
        a(f'v_add_f32 v{L0}, v{L0}, v{T+3}')
        a(f'v_add_f32 v{L1}, v{L1}, v{T+4}')
        a(f'v_add_f32 v{T+5}, v{T+5}, v{T+7}')
        a(f'v_add_f32 v{T+6}, v{T+6}, v{T+8}')
        a(f'v_add_f32 v{T+9}, v{T+9}, v{T+10}')
        a(f'v_add_f32 v{L0}, v{L0}, v{T+5}')
        a(f'v_add_f32 v{L1}, v{L1}, v{T+6}')
        a('s_nop 0')
        a(f'v_add_f32 v{L1}, v{L1}, v{T+9}')
        xg2('add', L0, T + 3, L1, T + 4)
        a(f'v_rcp_f32 v{L0}, v{L0}')
        a(f'v_rcp_f32 v{L1}, v{L1}')
        a('s_nop 0')
        for regs, ll in ((g0, L0), (g1, L1)):
            for v in regs:
                a(f'v_mul_f32 v{v}, v{v}, v{ll}')
        O = 216
        a(f'v_cvt_pk_bf16_f32 v{O}, v{a0}, v{a0+1}')
        a(f'v_cvt_pk_bf16_f32 v{O+1}, v{a0+2}, v{a0+3}')
        a(f'v_cvt_pk_bf16_f32 v{O+2}, v{a1}, v{a1+1}')
        a(f'v_cvt_pk_bf16_f32 v{O+3}, v{a1+2}, v{a1+3}')
        a(f'v_cvt_pk_bf16_f32 v{O+4}, v{b1}, v{b1+1}')
        a(f'v_cvt_pk_bf16_f32 v{O+5}, v{b1+2}, v{b1+3}')
        a(f'v_cvt_pk_bf16_f32 v{O+6}, v{m0}, v{m0+1}')
        a(f'v_cvt_pk_bf16_f32 v{O+7}, v{m0+2}, v{m0+3}')
        a(f'v_cvt_pk_bf16_f32 v{O+8}, v{m1}, v{m1+1}')
        a(f'v_cvt_pk_bf16_f32 v{O+9}, v{m1+2}, v{m1+3}')
        a('s_and_b32 s42, s84, 1')
        a('s_mul_i32 s42, s42, 6144')
        a('s_add_u32 s43, s42, s18')
        a('s_add_u32 s42, s42, s19')
        a('v_add_u32 v14, s43, v15')
        a(f'v_add_u32 v{T}, s42, v15')
        a(f'ds_write_b64 v14, v[{O}:{O+1}]')
        a(f'ds_write_b128 v14, v[{O+2}:{O+5}] offset:1024')
        a('s_mov_b64 exec, s[98:99]')
        a(f'ds_write_b64 v{T}, v[{O+6}:{O+7}]')
        a(f'ds_write_b64 v{T}, v[{O+8}:{O+9}] offset:1024')
        a('s_mov_b64 exec, -1')
        a('v_mov_b32 v14, s89')
        a(f'ds_write_b32 v12, v14 offset:32')
        a('s_setprio 3')
    stamp(a, 6)
    a('s_xor_b32 s83, s83, 1')
    a('s_mul_i32 s42, s83, 24576')
    a('s_mul_i32 s43, s40, 12288')
    a('s_add_u32 s42, s42, s43')
    a(f's_add_u32 s42, s42, {L_KX}')
    a('v_add_u32 v7, s42, v15')
    a(f's_cmp_ge_u32 s84, {NSTEP-1}')
    a(f's_cbranch_scc1 {lbl("DONE")}')
    if QOWN:
        a('s_mul_i32 s42, s40, 12288')
        a('s_add_u32 s43, s16, s42')
        for i in range(12):
            a(f's_add_u32 m0, s17, {1024*i}')
            if i: a('s_add_u32 s43, s43, 1024')
            else: a('s_nop 0')
            a(f'buffer_load_dwordx4 v15, s[32:35], s43 offen lds')
            if QPS and i < 11: a(f's_sleep {QPS}')
        a('s_add_u32 s16, s16, 393216')
        a(f's_branch {lbl("NORED")}')
    a('s_cmp_eq_u32 s40, 0')
    a(f's_cbranch_scc1 {lbl("SW0")}')
    if 'nox' not in OPT:
        def rd_xa():
            a(f'ds_read_b32 v{204}, v11 offset:{L_FLAG + 40}')
        lds_spin(a, lbl('SPINXA'), rd_xa, [204], 14)
        a('s_mov_b32 s43, s16')
        for i in range(0 if 'noqx' in OPT else 24):
            a(f's_mov_b32 m0, {L_QX + 1024*i}')
            if i: a('s_add_u32 s43, s43, 1024')
            else: a('s_nop 0')
            a(f'buffer_load_dwordx4 v15, s[32:35], s43 offen lds')
        a('s_add_u32 s16, s16, 393216')
    a(f's_branch {lbl("NORED")}')
    a.label(lbl('SW0'))
    a(f's_branch {lbl("NORED")}')
    a.label(lbl('SRED'))
    a('s_mul_i32 s42, s86, 163840')
    a('s_add_u32 s42, s42, s81')
    a('s_add_u32 s43, s86, 1')
    a('s_and_b32 s43, s43, 3')
    a('s_mul_i32 s44, s43, 10240')
    a('s_add_u32 s43, s43, 2')
    a('s_and_b32 s43, s43, 3')
    a('s_mul_i32 s45, s43, 10240')
    a('s_cmp_lt_u32 s80, 8')
    a(f's_cbranch_scc1 {lbl("RED2")}')
    if PZ:
        RD = 180
        AC0 = (244, 248); CV = (252, 254)
        for n, L_ in ((1, 'RED1'), (2, 'RED2')):
            a.label(lbl(L_))
            K = PZ if n == 1 else PZ2
            L = 4 * n
            def issue(k):
                for kk in range(n):
                    for i in range(4):
                        r = RD + k * 16 * n + 16 * kk + 4 * i
                        a(f's_add_u32 s43, s42, {i*40960 + kk*8192}')
                        a(f'buffer_load_dwordx4 v[{r}:{r+3}], v10, s[32:35], s43 offen sc1')
            for k in range(K):
                issue(k)
                if k < K - 1: a(f's_sleep {PZS}')
            a.label(lbl(f'PZL{n}'))
            for k in range(K):
                a(f's_waitcnt vmcnt({(K-1)*L})')
                rs = [RD + k*16*n + 4*i + o for i in range(4*n) for o in (0, 2)]
                a(f'v_max_u32 v14, v{rs[0]}, v{rs[1]}')
                rs = rs[2:]
                while len(rs) >= 2:
                    a(f'v_max3_u32 v14, v14, v{rs[0]}, v{rs[1]}'); rs = rs[2:]
                a('v_cmp_eq_u32 vcc, -1, v14')
                a('s_add_u32 s88, s88, 1')
                a(f's_cmp_lt_u32 s88, {TMO:#x}')
                a('s_cselect_b64 s[90:91], vcc, 0')
                a('s_cmp_lg_u64 s[90:91], 0')
                a(f's_cbranch_scc0 {lbl(f"PZD{n}_{k}")}')
                issue(k)
            a(f's_branch {lbl(f"PZL{n}")}')
            for k in range(K):
                a.label(lbl(f'PZD{n}_{k}'))
                for i in range(4):
                    for kk in range(n):
                        acc = AC0[kk]
                        r = RD + k * 16 * n + 16 * kk + 4 * i
                        cc = '0' if i == 0 else f'v[{acc}:{acc+3}]'
                        a(f'v_mfma_f32_16x16x32_bf16 v[{acc}:{acc+3}], v[{r}:{r+3}], v[{SEL}:{SEL+3}], {cc}')
                if k < K - 1: a(f's_branch {lbl(f"PZC{n}")}')
            a.label(lbl(f'PZC{n}'))
            stamp(a, 8)
            a('s_add_u32 s42, s44, s82')
            a('s_add_u32 s43, s45, s82')
            a('s_add_u32 s46, s44, s73')
            a('s_add_u32 s47, s45, s73')
            a('s_nop 7')
            for kk in range(n):
                a(f'v_cvt_pk_bf16_f32 v{CV[kk]}, v{AC0[kk]}, v{AC0[kk]+1}')
                a(f'v_cvt_pk_bf16_f32 v{CV[kk]+1}, v{AC0[kk]+2}, v{AC0[kk]+3}')
            a('s_mov_b64 exec, s[64:65]')
            ins = [f'buffer_store_dwordx2 v[{CV[0]}:{CV[0]+1}], v15, s[32:35], s42 offen']
            if n == 2: ins.append(f'buffer_store_dwordx2 v[{CV[1]}:{CV[1]+1}], v15, s[32:35], s46 offen')
            ins.append(f'buffer_store_dwordx2 v[8:9], v15, s[32:35], s43 offen')
            if n == 2: ins.append(f'buffer_store_dwordx2 v[8:9], v15, s[32:35], s47 offen')
            pub(a, ins)
            a('s_mov_b64 exec, -1')
            if n == 1: a(f's_branch {lbl("NORED")}')
    else:
        ZA = 228
        RD = 184
        for n, L_ in ((1, 'RED1'), (2, 'RED2')):
            a.label(lbl(L_))
            def ld_z():
                for k in range(n):
                    for i in range(4):
                        a(f's_add_u32 s43, s42, {i*40960 + k*8192}')
                        a(f'buffer_load_dwordx4 v[{RD+16*k+4*i}:{RD+16*k+4*i+3}], v10, s[32:35], s43 offen sc1')
            if n == 1: stampc(a, 7)
            poll_sent(a, lbl(f'POLLZ{n}'), ld_z, [RD + 4*i + o for i in range(4*n) for o in (0, 2)], 14)
            stamp(a, 8)
            for i in range(4):
                for k in range(n):
                    acc = ZA + 8 * k
                    c = '0' if i == 0 else f'v[{acc}:{acc+3}]'
                    a(f'v_mfma_f32_16x16x32_bf16 v[{acc}:{acc+3}], v[{RD+16*k+4*i}:{RD+16*k+4*i+3}], v[{SEL}:{SEL+3}], {c}')
            a('s_add_u32 s42, s44, s82')
            a('s_add_u32 s43, s45, s82')
            a('s_add_u32 s46, s44, s73')
            a('s_add_u32 s47, s45, s73')
            a('s_nop 7')
            for k in range(n):
                acc = ZA + 8 * k
                a(f'v_cvt_pk_bf16_f32 v{acc+4}, v{acc}, v{acc+1}')
                a(f'v_cvt_pk_bf16_f32 v{acc+5}, v{acc+2}, v{acc+3}')
            a('s_mov_b64 exec, s[64:65]')
            ins = [f'buffer_store_dwordx2 v[{ZA+4}:{ZA+5}], v15, s[32:35], s42 offen']
            if n == 2: ins.append(f'buffer_store_dwordx2 v[{ZA+12}:{ZA+13}], v15, s[32:35], s46 offen')
            ins.append(f'buffer_store_dwordx2 v[8:9], v15, s[32:35], s43 offen')
            if n == 2: ins.append(f'buffer_store_dwordx2 v[8:9], v15, s[32:35], s47 offen')
            pub(a, ins)
            a('s_mov_b64 exec, -1')
            if n == 1: a(f's_branch {lbl("NORED")}')
    a.label(lbl('NORED'))
    stamp(a, 9)
    a('s_add_u32 s84, s84, 1')
    a('s_add_u32 s89, s89, 1')
    a('s_and_b32 s86, s84, 3')
    a(f's_branch {lbl("SLOOP")}')
    a.label(lbl('ZWAVE'))
    MF = 144; AC = 184; YF = 192; UC = 200; ST = 204; YA = 228; PF = 240
    YF2 = MF + 32
    SN = 8
    if ZPRIO: a(f's_setprio {ZPRIO}')
    a('v_mov_b32 v12, 0')
    for r in (UC + 2, UC + 3, PF + 10, PF + 11):
        a(f'v_mov_b32 v{r}, 0')
    a('s_mul_i32 s75, s57, 5')
    a('s_add_u32 s75, s75, s74')
    a('s_mul_i32 s78, s58, 40')
    a('s_add_u32 s78, s78, s75')
    a('s_lshl_b32 s78, s78, 8')
    a(f's_add_u32 s78, s78, {WS_ZP}')
    a(f's_mul_i32 s17, s58, {SLAB}')
    a('s_lshl_b32 s42, s75, 9')
    a('s_add_u32 s17, s17, s42')
    a(f's_add_u32 s17, s17, {WS_SL}')
    a('s_lshl_b32 s42, s74, 11')
    a('s_add_u32 s69, s68, s42')
    a(f's_add_u32 s42, s42, {L_MEM}')
    a('v_add_u32 v7, s42, v15')
    a(f'v_add_u32 v6, {L_MEM}, v15')
    a('s_lshr_b32 s42, s61, 1')
    a('s_add_u32 s42, s42, 4')
    a('s_and_b32 s43, s61, 1')
    a('s_cmp_eq_u32 s79, 2')
    a('s_cselect_b32 s42, s42, s61')
    a('s_cselect_b32 s43, s43, s79')
    a('s_lshl_b32 s42, s42, 10')
    a('s_lshl_b32 s43, s43, 3')
    a('s_add_u32 s42, s42, s43')
    a('s_lshr_b32 s43, s57, 2')
    a('s_lshl_b32 s43, s43, 7')
    a('s_add_u32 s42, s42, s43')
    a('s_mul_i32 s43, s58, 6144')
    a('s_add_u32 s42, s42, s43')
    a(f's_add_u32 s72, s42, {WS_G2}')
    a(f's_add_u32 s76, s43, {WS_G2}')
    for r in range(8, 12):
        a(f'v_mov_b32 v{r}, -1')
    a('s_mov_b32 s83, 0')
    def y_compute(dst):
        a('s_mul_i32 s42, s83, 24576')
        a(f's_add_u32 s42, s42, {L_VX}')
        a('v_add_u32 v5, s42, v15')
        seq = [(hh, tt, b) for hh in range(2) for tt in range(2) for b in range(6)]
        NB = 6
        def rd(i):
            hh, tt, b = seq[i]
            r = ST + 4 * (i % NB)
            a(f'ds_read_b128 v[{r}:{r+3}], v5 offset:{hh*12288 + tt*6144 + b*1024}')
        for i in range(5): rd(i)
        for i in range(24):
            hh, tt, b = seq[i]
            a(f's_waitcnt lgkmcnt({min(4, 23 - i)})')
            r = ST + 4 * (i % NB)
            acc = YA + (hh * 2 + tt) * 4
            c = '0' if b == 0 else f'v[{acc}:{acc+3}]'
            w = WO + (hh * 6 + b) * 4
            a(f'v_mfma_f32_16x16x32_bf16 v[{acc}:{acc+3}], v[{r}:{r+3}], v[{w}:{w+3}], {c}')
            if i + 5 < 24: rd(i + 5)
        a('s_nop 7')
        for q in range(4):
            acc = YA + 4 * q
            a(f'v_cvt_pk_bf16_f32 v{dst+2*q}, v{acc}, v{acc+1}')
            a(f'v_cvt_pk_bf16_f32 v{dst+2*q+1}, v{acc+2}, v{acc+3}')
        a('s_xor_b32 s83, s83, 1')
    def zx_store():
        a('s_add_u32 s42, s17, 20480')
        a(f'buffer_store_dwordx2 v[{YA+8}:{YA+9}], v13, s[32:35], s17 offen sc1')
        a(f'buffer_store_dwordx2 v[{YA+10}:{YA+11}], v13, s[32:35], s42 offen sc1')
        a('s_add_u32 s17, s17, 40960')
    def zx(par_s, store=True):
        YO = YF2
        a(f's_and_b32 s42, s{par_s}, 1')
        a('s_mul_i32 s42, s42, 6144')
        a(f's_add_u32 s42, s42, {L_PXX}')
        a('v_add_u32 v5, s42, v15')
        for q in range(6):
            a(f'ds_read_b128 v[{ST+4*q}:{ST+4*q+3}], v5 offset:{1024*q}')
        for k in range(3):
            a(f's_waitcnt lgkmcnt({4 - 2*k})')
            A = (YO, YO + 4, UC)[k]
            for tt in range(2):
                acc = YA + 4 * tt
                c = '0' if k == 0 else f'v[{acc}:{acc+3}]'
                a(f'v_mfma_f32_16x16x32_bf16 v[{acc}:{acc+3}], v[{A}:{A+3}], v[{ST+8*k+4*tt}:{ST+8*k+4*tt+3}], {c}')
        a('s_nop 7')
        a('s_nop 1')
        for tt in range(2):
            acc = YA + 4 * tt
            a(f'v_cvt_pk_bf16_f32 v{YA+8+2*tt}, v{acc}, v{acc+1}')
            a(f'v_cvt_pk_bf16_f32 v{YA+9+2*tt}, v{acc+2}, v{acc+3}')
        if store: zx_store()
    y_compute(YF)
    a.label(lbl('ZLOOP'))
    stamp(a, 0)
    a('s_barrier')
    stamp(a, 1)
    if PFV:
        a('s_cmp_lg_u32 s40, 3')
        a(f's_cbranch_scc1 {lbl("PFN3")}')
        a('s_and_b32 s42, s84, 3')
        a('s_cmp_lg_u32 s42, 0')
        a(f's_cbranch_scc1 {lbl("NODMA")}')
        a('s_add_u32 s42, s84, 4')
        a('s_lshl_b32 s42, s42, 8')
        a('s_add_u32 s93, s42, s77')
        a('buffer_load_dword v254, v12, s[32:35], s93 offen sc1')
        a(f's_branch {lbl("NODMA")}')
        a.label(lbl('PFN3'))
    a('s_cmp_eq_u32 s40, 3')
    a(f's_cbranch_scc1 {lbl("NODMA")}')
    a('s_and_b32 s42, s84, 3')
    a('s_cmp_lg_u32 s42, 2')
    a(f's_cbranch_scc1 {lbl("NOFL")}')
    a('s_add_u32 s42, s84, 2')
    a('s_lshl_b32 s42, s42, 8')
    a('s_add_u32 s93, s42, s77')
    a('buffer_load_dword v254, v12, s[32:35], s93 offen sc1')
    a.label(lbl('NOFL'))
    a('s_cmp_lg_u32 s40, 5')
    a(f's_cbranch_scc1 {lbl("NOHS")}')
    if mega.get('LOG'):
        a('s_memrealtime s[96:97]')
        a('s_lshl_b32 s42, s84, 2')
        a('s_lshl_b32 s43, s2, 12')
        a('s_add_u32 s42, s42, s43')
        a(f's_add_u32 s42, s42, {mega["LOG"]}')
        a('s_waitcnt lgkmcnt(0)')
        a('v_mov_b32 v14, s96')
        a('s_memtime s[96:97]')
        a('s_mov_b64 exec, 1')
        a('buffer_store_dword v14, v12, s[32:35], s42 offen')
        a('s_waitcnt lgkmcnt(0)')
        a('v_mov_b32 v14, s96')
        a('s_nop 1')
        a('buffer_store_dword v14, v12, s[32:35], s42 offen offset:256')
        a('s_mov_b64 exec, -1')
    a('s_and_b32 s42, s84, 3')
    if mega.get('S0') is not None:
        a('s_cmp_eq_u32 s42, 1')
        a('s_cselect_b32 s42, 1, 0')
        a(f's_cmp_ge_u32 s84, {mega["S0"]}')
        a('s_cselect_b32 s42, 1, s42')
        a('s_cmp_eq_u32 s42, 0')
        a(f's_cbranch_scc1 {lbl("NOHS")}')
        a('s_cmp_le_u32 s84, 1')
        a(f's_cbranch_scc1 {lbl("NOHS")}')
        a('s_sub_u32 s42, s84, 1')
    else:
        a('s_cmp_lg_u32 s42, 1')
        a(f's_cbranch_scc1 {lbl("NOHS")}')
        a('s_cmp_eq_u32 s84, 1')
        a(f's_cbranch_scc1 {lbl("NOHS")}')
        a('s_lshr_b32 s42, s84, 2')
    a('v_mov_b32 v14, s42')
    a('s_mov_b64 exec, 1')
    a('buffer_store_dword v14, v12, s[32:35], s50 offen sc1')
    a('s_mov_b64 exec, -1')
    a.label(lbl('NOHS'))
    a('s_and_b32 s42, s84, 1')
    a('s_xor_b32 s42, s42, 1')
    a('s_mul_i32 s44, s42, 24576')
    a(f's_add_u32 s44, s44, {L_KX}')
    if 'nokx' not in OPT: dma_blk(70, 44)
    a('s_add_u32 s70, s70, 393216')
    a.label(lbl('NODMA'))
    a('s_cmp_eq_u32 s79, 99')
    a(f's_cbranch_scc1 {lbl("NOV")}')
    for t in range(8):
        a(f'ds_read_b128 v[{MF+4*t}:{MF+4*t+3}], v6 offset:{1024*t}')
    for t in range(10):
        a(f's_waitcnt lgkmcnt({7 if t < 2 else 9 - t})')
        b = MF + 4 * (t % 8)
        for ai, W in ((0, VW + 4*t), (1, VW + 4*(t+10))):
            acc = AC + 4 * ai
            c = '0' if t == 0 else f'v[{acc}:{acc+3}]'
            a(f'v_mfma_f32_16x16x32_bf16 v[{acc}:{acc+3}], v[{W}:{W+3}], v[{b}:{b+3}], {c}')
        if t < 2:
            a(f'ds_read_b128 v[{MF+4*t}:{MF+4*t+3}], v6 offset:{1024*(t+8)}')
    a('s_mul_i32 s42, s86, 98304')
    a('s_add_u32 s42, s42, s72')
    a('s_nop 7')
    for r in range(4):
        a(f'v_add_f32_dpp v{AC+r}, v{AC+4+r}, v{AC+r} row_ror:8 row_mask:0xf bank_mask:0xf')
    a('s_nop 0')
    a(f'v_cvt_pk_bf16_f32 v{AC+4}, v{AC}, v{AC+1}')
    a(f'v_cvt_pk_bf16_f32 v{AC+5}, v{AC+2}, v{AC+3}')
    a('s_add_u32 s43, s86, 2')
    a('s_and_b32 s43, s43, 3')
    a('s_mul_i32 s43, s43, 98304')
    a('s_add_u32 s43, s43, s72')
    a('s_mov_b64 exec, s[64:65]')
    pub(a, [f'buffer_store_dwordx2 v[{AC+4}:{AC+5}], v15, s[32:35], s42 offen'])
    pub(a, [f'buffer_store_dwordx2 v[8:9], v15, s[32:35], s43 offen'])
    a('s_mov_b64 exec, -1')
    a.label(lbl('NOV'))
    stamp(a, 2)
    if 'nox' not in OPT:
        a('s_cmp_eq_u32 s84, 0')
        a(f's_cbranch_scc1 {lbl("NOZXX")}')
        a('s_add_u32 s48, s84, 1')
        zx(48, store=(ZXS == 0))
        if ZXS == 1 and ZEARLY < 64:
            a(f's_cmp_lt_u32 s84, {ZEARLY}')
            a(f's_cbranch_scc1 {lbl("NOZXX")}')
            zx_store()
        a.label(lbl('NOZXX'))
    stamp(a, 9)
    a(f's_cmp_lg_u32 s40, {VPW}')
    a(f's_cbranch_scc1 {lbl("NOVP")}')
    a('s_mul_i32 s42, s86, 98304')
    a('s_add_u32 s42, s42, s76')
    a('s_add_u32 s43, s42, 4096')
    if D_V: a(f's_sleep {D_V}')
    def ld_g2():
        for b in range(6):
            so = 42 if b < 4 else 43
            a(f'buffer_load_dwordx4 v[{MF+4*b}:{MF+4*b+3}], v15, s[32:35], s{so} offen offset:{1024*(b%4)} sc1')
    poll_sent(a, lbl('POLLV'), ld_g2, [MF + 4*b + o for b in range(6) for o in (0, 2)], 14)
    for b in range(6):
        a(f'ds_write_b128 v15, v[{MF+4*b}:{MF+4*b+3}] offset:{L_VM + 1024*b}')
    a('v_mov_b32 v14, s89')
    a(f'ds_write_b32 v12, v14 offset:{L_FLAG + 32}')
    a.label(lbl('NOVP'))
    def rd_vm():
        a(f'ds_read_b32 v{PF+12}, v12 offset:{L_FLAG + 32}')
        for b in range(6):
            a(f'ds_read_b128 v[{ST+4*b}:{ST+4*b+3}], v15 offset:{L_VM + 1024*b}')
    lds_spin(a, lbl('SPINV'), rd_vm, [PF + 12], 14)
    stamp(a, 3)
    def vx_dma():
        if PFV:
            a('s_cmp_lg_u32 s40, 3')
            a(f's_cbranch_scc1 {lbl("PFN4")}')
            a('s_cmp_ge_u32 s84, 61')
            a(f's_cbranch_scc1 {lbl("NODMA2")}')
            a('s_and_b32 s42, s84, 3')
            a('s_cmp_lg_u32 s42, 1')
            a(f's_cbranch_scc1 {lbl("T1P_OK")}')
            t1_wait(a, lbl('T1P'), 93, mega['T1THR'])
            a('s_add_u32 s42, s84, 2')
            a('s_mul_i32 s42, s42, 393216')
            a('s_mul_i32 s43, s58, 24576')
            a('s_add_u32 s42, s42, s43')
            a('s_mul_i32 s43, s57, 3072')
            a('s_add_u32 s42, s42, s43')
            a('v_min_u32 v14, 23, v1')
            a('v_lshlrev_b32 v14, 7, v14')
            for off in (WS_QF, WS_KF, WS_VF + 393216):
                a(f's_add_u32 s43, s42, {off}')
                a('buffer_load_dword v255, v14, s[32:35], s43 offen')
            a(f's_branch {lbl("NODMA2")}')
            a.label(lbl('PFN4'))
        a('s_cmp_eq_u32 s40, 3')
        a(f's_cbranch_scc1 {lbl("NODMA2")}')
        a('s_and_b32 s42, s84, 3')
        a('s_cmp_lg_u32 s42, 2')
        a(f's_cbranch_scc1 {lbl("T1W_OK")}')
        a('s_cmp_ge_u32 s84, 62')
        a(f's_cbranch_scc1 {lbl("T1W_OK")}')
        t1_wait(a, lbl('T1W'), 93, mega['T1THR'])
        a('s_and_b32 s42, s84, 1')
        a('s_mul_i32 s44, s42, 24576')
        a(f's_add_u32 s45, s44, {L_VX}')
        if 'novx' not in OPT: dma_blk(71, 45)
        a('s_add_u32 s71, s71, 393216')
        a.label(lbl('NODMA2'))
    for b in range(6):
        for hh in range(2):
            acc = YA + 4 * hh
            c = '0' if b == 0 else f'v[{acc}:{acc+3}]'
            w = WO + (hh * 6 + b) * 4
            a(f'v_mfma_f32_16x16x32_bf16 v[{acc}:{acc+3}], v[{ST+4*b}:{ST+4*b+3}], v[{w}:{w+3}], {c}')
    a('s_mov_b64 vcc, s[66:67]')
    a('s_nop 7')
    for r in range(4):
        a(f'v_cndmask_b32 v{YA+r}, v{YA+4+r}, v{YA+r}, vcc')
    a(f'v_cvt_pk_bf16_f32 v{UC}, v{YA}, v{YA+1}')
    a(f'v_cvt_pk_bf16_f32 v{UC+1}, v{YA+2}, v{YA+3}')
    if ZXS == 1 and 'nox' not in OPT:
        a('s_cmp_eq_u32 s84, 0')
        a(f's_cbranch_scc1 {lbl("NOZXS")}')
        if ZEARLY < 64:
            a(f's_cmp_ge_u32 s84, {ZEARLY}')
            a(f's_cbranch_scc1 {lbl("NOZXS")}')
        zx_store()
        a.label(lbl('NOZXS'))
    if LASTF:
        a(f's_cmp_ge_u32 s84, {NSTEP-1}')
        a(f's_cbranch_scc1 {lbl("ZFIN")}')
    stamp(a, 4)
    FA, FB_ = PF + 12, PF + 13
    def rd_p():
        a(f'ds_read_b32 v{FA}, v12 offset:{L_FLAG + 8}')
        a(f'ds_read_b32 v{FB_}, v12 offset:{L_FLAG + 12}')
        a(f'ds_read_b128 v[{PF}:{PF+3}], v15 offset:{L_PX}')
        a(f'ds_read_b128 v[{PF+4}:{PF+7}], v15 offset:{L_PX + 1024}')
        a(f'ds_read_b64 v[{PF+8}:{PF+9}], v13 offset:{L_PM}')
    lds_spin(a, lbl('SPINP'), rd_p, [FA, FB_], 14)
    stamp(a, 5)
    a(f'v_mfma_f32_16x16x32_bf16 v[{AC}:{AC+3}], v[{PF}:{PF+3}], v[{YF}:{YF+3}], 0')
    a(f'v_mfma_f32_16x16x32_bf16 v[{AC}:{AC+3}], v[{PF+4}:{PF+7}], v[{YF+4}:{YF+7}], v[{AC}:{AC+3}]')
    a(f'v_mfma_f32_16x16x32_bf16 v[{AC}:{AC+3}], v[{PF+8}:{PF+11}], v[{UC}:{UC+3}], v[{AC}:{AC+3}]')
    a('s_mul_i32 s42, s86, 163840')
    a('s_add_u32 s42, s42, s78')
    a('s_add_u32 s43, s86, 2')
    a('s_and_b32 s43, s43, 3')
    a('s_mul_i32 s43, s43, 163840')
    a('s_add_u32 s49, s43, s78')
    a('s_nop 7')
    a(f'v_cvt_pk_bf16_f32 v{AC+4}, v{AC}, v{AC+1}')
    a(f'v_cvt_pk_bf16_f32 v{AC+5}, v{AC+2}, v{AC+3}')
    a(f'v_mov_b32 v{AC+6}, v{AC+4}')
    a(f'v_mov_b32 v{AC+7}, v{AC+5}')
    a('s_nop 1')
    a(f'v_permlane16_swap_b32 v{AC+4}, v{AC+6}')
    a(f'v_permlane16_swap_b32 v{AC+5}, v{AC+7}')
    a('s_mov_b64 exec, 0xffff')
    a(f'buffer_store_dwordx4 v[{AC+4}:{AC+7}], v15, s[32:35], s42 offen sc1')
    a('s_mov_b64 exec, -1')
    stamp(a, 6)
    if ZXS == 2 and 'nox' not in OPT:
        a('s_cmp_eq_u32 s84, 0')
        a(f's_cbranch_scc1 {lbl("NOZXS")}')
        zx_store()
        a.label(lbl('NOZXS'))
    vx_dma()
    for r in range(8):
        a(f'v_mov_b32 v{YF2+r}, v{YF+r}')
    y_compute(YF)
    a('s_mov_b64 exec, 0xffff')
    a(f'buffer_store_dwordx4 v[{SN}:{SN+3}], v15, s[32:35], s49 offen sc1')
    a('s_mov_b64 exec, -1')
    stamp(a, 7)
    a(f's_cmp_ge_u32 s84, {NSTEP-1}')
    a(f's_cbranch_scc1 {lbl("DONE")}')
    a('s_add_u32 s84, s84, 1')
    a('s_add_u32 s89, s89, 1')
    a('s_and_b32 s86, s84, 3')
    a('s_mul_i32 s42, s86, 10240')
    a('s_add_u32 s42, s42, s69')
    if D_MEM: a(f's_sleep {D_MEM}')
    def ld_mem():
        a(f'buffer_load_dwordx4 v[{MF}:{MF+3}], v15, s[32:35], s42 offen sc1')
        a(f'buffer_load_dwordx4 v[{MF+4}:{MF+7}], v15, s[32:35], s42 offen offset:1024 sc1')
    poll_sent(a, lbl('POLLM'), ld_mem, [MF, MF + 2, MF + 4, MF + 6], 14)
    a(f'ds_write_b128 v7, v[{MF}:{MF+3}]')
    a(f'ds_write_b128 v7, v[{MF+4}:{MF+7}] offset:1024')
    a('s_waitcnt lgkmcnt(0)')
    stamp(a, 8)
    a(f's_branch {lbl("ZLOOP")}')
    a.label(lbl('ZFIN'))
    for r in range(8):
        a(f'v_mov_b32 v{YF2+r}, v{YF+r}')
    a.label(lbl('DONE'))
    a('s_setprio 0')
    if 'tmo' in OPT:
        l = a.newlabel('TM')
        a(f's_cmp_lt_u32 s88, {TMO:#x}')
        a(f's_cbranch_scc1 {l}')
        a(f's_load_dwordx2 s[96:97], s[0:1], {KA["dbg"]}')
        a('s_waitcnt lgkmcnt(0)')
        a('v_mov_b32 v4, 0')
        a('v_mov_b32 v5, 1')
        a('s_mov_b64 exec, 1')
        a('global_atomic_add v4, v5, s[96:97] offset:8')
        a('s_lshl_b32 s42, s2, 8')
        a('s_or_b32 s42, s42, s40')
        a('s_or_b32 s42, s42, 0x10000')
        a('v_mov_b32 v5, s42')
        a('global_store_dword v4, v5, s[96:97] offset:12')
        a('s_mov_b64 exec, -1')
        a.label(l)
    a('s_waitcnt lgkmcnt(0)')
    a('s_barrier')
    if 'nox' not in OPT:
        a('s_cmp_lt_u32 s40, 3')
        a(f's_cbranch_scc1 {lbl("NOZXL")}')
        zx(84)
        a.label(lbl('NOZXL'))
    a('s_waitcnt vmcnt(0) lgkmcnt(0)')
    a('s_barrier')
    a('s_cmp_lg_u32 s40, 0')
    a(f's_cbranch_scc1 {lbl("NOHS2")}')
    a(f'v_mov_b32 v255, {64 if mega.get("S0") is not None else 16}')
    a('v_mov_b32 v12, 0')
    a('s_mov_b64 exec, 1')
    a('buffer_store_dword v255, v12, s[32:35], s50 offen sc1')
    a('s_mov_b64 exec, -1')
    a.label(lbl('NOHS2'))
    if 'gst' in OPT:
        a('s_lshl_b32 s42, s2, 12')
        a('s_lshl_b32 s43, s40, 6')
        a('s_add_u32 s42, s42, s43')
        a(f's_add_u32 s42, s42, {0x1C00000}')
        a('v_mov_b32 v4, 0')
        a('s_mov_b64 exec, 1')
        for i in range(10):
            a(f'v_mov_b32 v5, s{SB+i}')
            a(f'buffer_store_dword v5, v4, s[32:35], s42 offen offset:{4*i}')
            a('s_nop 1')
        a('s_lshl_b32 s43, s54, 4')
        a('s_add_u32 s43, s43, s55')
        a('s_add_u32 s43, s43, 0x1000')
        a('v_mov_b32 v5, s43')
        a('buffer_store_dword v5, v4, s[32:35], s42 offen offset:40')
        a('s_mov_b64 exec, -1')
```

```python
from asmlib import *
from layout2 import *
from k_t2 import xg_reduce
import os
SFX = ' sc1'
WS_ST = 0x0B00000
SLAB = 128 * 20480
PSL = int(os.environ.get('PSL', '4'))
PS1 = int(os.environ.get('PS1', '2'))
TMOF = 0x40000

def bf16r(a, v):
    a(f'v_cvt_pk_bf16_f32 v{v}, v{v}, v{v}')
    a(f'v_lshlrev_b32 v{v}, 16, v{v}')

def wait_flags(a, pfx, vaddr_all, vaddr_one, s_base, s_thr, two_phase=True):
    if two_phase:
        a.label(f'{pfx}_P1')
        a(f'buffer_load_dword v6, v{vaddr_one}, s[32:35], s{s_base} offen sc1')
        a('s_waitcnt vmcnt(0)')
        a('v_readfirstlane_b32 s43, v6')
        a(f's_cmp_ge_u32 s43, s{s_thr}')
        a(f's_cbranch_scc1 {pfx}_P2')
        a('s_add_u32 s98, s98, 1')
        a(f's_cmp_ge_u32 s98, {TMOF:#x}')
        a(f's_cbranch_scc1 {pfx}_P3')
        a(f's_sleep {PSL}')
        a(f's_branch {pfx}_P1')
    a.label(f'{pfx}_P2')
    a(f'buffer_load_dword v6, v{vaddr_all}, s[32:35], s{s_base} offen sc1')
    a('s_waitcnt vmcnt(0)')
    a(f'v_cmp_gt_u32 vcc, s{s_thr}, v6')
    a('s_cmp_eq_u64 vcc, 0')
    a(f's_cbranch_scc1 {pfx}_P3')
    a('s_add_u32 s98, s98, 1')
    a(f's_cmp_ge_u32 s98, {TMOF:#x}')
    a(f's_cbranch_scc1 {pfx}_P3')
    if not two_phase: a(f's_sleep {PSL}')
    a(f's_branch {pfx}_P2')
    a.label(f'{pfx}_P3')

def sent_p1(a, pfx, vzero, s_addr):
    a.label(f'{pfx}_S1')
    a(f'buffer_load_dword v6, v{vzero}, s[32:35], s{s_addr} offen sc1')
    a('s_waitcnt vmcnt(0)')
    a('v_readfirstlane_b32 s43, v6')
    a('s_cmp_lg_u32 s43, -1')
    a(f's_cbranch_scc1 {pfx}_S1X')
    a('s_add_u32 s98, s98, 1')
    a(f's_cmp_ge_u32 s98, {TMOF:#x}')
    a(f's_cbranch_scc1 {pfx}_S1X')
    a(f's_sleep {PS1}')
    a(f's_branch {pfx}_S1')
    a.label(f'{pfx}_S1X')

def sent_p2(a, pfx, loads, regs):
    a.label(f'{pfx}_S2')
    loads()
    a('s_waitcnt vmcnt(0)')
    rs = list(regs)
    a(f'v_max_u32 v6, v{rs[0]}, v{rs[1]}')
    rs = rs[2:]
    while len(rs) >= 2:
        a(f'v_max3_u32 v6, v6, v{rs[0]}, v{rs[1]}'); rs = rs[2:]
    if rs: a(f'v_max_u32 v6, v6, v{rs[0]}')
    a('v_cmp_eq_u32 vcc, -1, v6')
    a('s_add_u32 s98, s98, 1')
    a(f's_cmp_lt_u32 s98, {TMOF:#x}')
    a('s_cselect_b64 s[90:91], vcc, 0')
    a('s_cmp_lg_u64 s[90:91], 0')
    a(f's_cbranch_scc1 {pfx}_S2')

def flog(a, cfg, slot):
    if not cfg.get('LOG'): return
    l = a.newlabel('FL')
    a('s_cmp_lg_u32 s40, 0')
    a(f's_cbranch_scc1 {l}')
    a('s_cmp_lt_u32 s60, 48')
    a(f's_cbranch_scc1 {l}')
    a('s_memrealtime s[76:77]')
    a('s_lshl_b32 s43, s2, 12')
    a('s_sub_u32 s42, s60, 48')
    a('s_lshl_b32 s42, s42, 4')
    a('s_add_u32 s42, s42, s43')
    a(f's_add_u32 s42, s42, {cfg["LOG"] + 3072 + slot*4}')
    a('s_waitcnt lgkmcnt(0)')
    a('v_mov_b32 v250, s76')
    a('v_mov_b32 v251, 0')
    a('s_mov_b64 exec, 1')
    a('buffer_store_dword v250, v251, s[32:35], s42 offen')
    a('s_mov_b64 exec, -1')
    a.label(l)

def flag_store(a, lbl):
    a('s_cmp_lg_u32 s40, 0')
    a(f's_cbranch_scc1 {lbl}')
    a('v_mov_b32 v6, s64')
    a('v_mov_b32 v5, 0')
    a('s_mov_b64 exec, 1')
    a(f'buffer_store_dword v6, v5, s[32:35], s61 offen{SFX}')
    a('s_mov_b64 exec, -1')
    a.label(lbl)

def sump(a, cfg):
    S0 = cfg['S0']; S1 = cfg['S1']; F_ZX = cfg['F_ZX']; F_SUM = cfg['F_SUM']
    a(f's_load_dwordx2 s[4:5], s[0:1], {KA["x"]}')
    a('s_waitcnt lgkmcnt(0)')
    make_srd(a, 12, 4, 2048 * 1280)
    a('v_lshlrev_b32 v13, 3, v1')
    a('v_lshlrev_b32 v15, 4, v1')
    a('v_mov_b32 v11, 0')
    a('s_mul_i32 s58, s57, 5')
    a('s_add_u32 s58, s58, s40')
    a('s_min_u32 s58, s58, 39')
    GA, CB, SEL, X, R, ACC, T, NEG = 16, 20, 24, 28, 32, 96, 100, 112
    a('v_lshlrev_b32 v5, 4, v3')
    a('s_lshl_b32 s42, s58, 6')
    a(f's_add_u32 s43, s42, {WS_MOD + 2*2560}')
    a(f'buffer_load_dwordx4 v[{GA}:{GA+3}], v5, s[32:35], s43 offen')
    a(f's_add_u32 s43, s42, {WS_MOD + 4*2560}')
    a(f'buffer_load_dwordx4 v[{CB}:{CB+3}], v5, s[32:35], s43 offen')
    a('v_lshlrev_b32 v5, 2, v3')
    a('v_sub_u32 v5, v2, v5')
    for q in range(2):
        a(f'v_mov_b32 v{SEL+q}, 0')
        a('v_mov_b32 v6, 0x3f80')
        a(f'v_cmp_eq_u32 vcc, {2*q}, v5')
        a(f'v_cndmask_b32 v{SEL+q}, v{SEL+q}, v6, vcc')
        a('v_mov_b32 v6, 0x3f800000')
        a(f'v_cmp_eq_u32 vcc, {2*q+1}, v5')
        a(f'v_cndmask_b32 v{SEL+q}, v{SEL+q}, v6, vcc')
    a(f'v_mov_b32 v{SEL+2}, v{SEL}')
    a(f'v_mov_b32 v{SEL+3}, v{SEL+1}')
    a('v_mul_u32_u24 v4, 1280, v2')
    a('v_lshl_add_u32 v4, v3, 3, v4')
    a('v_and_b32 v8, 15, v1')
    a('v_lshlrev_b32 v8, 10, v8')
    a('s_lshl_b32 s59, s57, 7')
    a(f's_add_u32 s59, s59, {F_ZX}')
    a('s_lshl_b32 s61, s56, 3')
    a('s_add_u32 s61, s61, s57')
    a('s_lshl_b32 s61, s61, 7')
    a(f's_add_u32 s61, s61, {F_SUM}')
    a('s_lshr_b32 s62, s58, 1')
    a('s_lshl_b32 s62, s62, 10')
    a('s_and_b32 s42, s58, 1')
    a('s_lshl_b32 s42, s42, 3')
    a('s_add_u32 s62, s62, s42')
    a('v_lshlrev_b32 v10, 3, v2')
    a('s_lshl_b32 s65, s58, 7')
    a(f's_add_u32 s65, s65, {WS_ST}')
    a(f'v_mov_b32 v{NEG}, -1')
    a(f'v_mov_b32 v{NEG+1}, -1')
    a('s_cmp_ge_u32 s40, 5')
    a('s_cbranch_scc1 SP_NI')
    for s in range(S1, 64):
        a(f's_add_u32 s63, s56, {2*s}')
        a('s_mul_i32 s44, s63, 20480')
        a('s_add_u32 s44, s44, s62')
        a(f's_add_u32 s45, s44, {WS_H2F}')
        a(f's_add_u32 s44, s44, {WS_X1F}')
        a('s_mul_i32 s46, s63, 5120')
        a('s_add_u32 s46, s46, s65')
        a(f'buffer_store_dwordx2 v[{NEG}:{NEG+1}], v15, s[32:35], s44 offen{SFX}')
        a(f'buffer_store_dwordx2 v[{NEG}:{NEG+1}], v15, s[32:35], s45 offen{SFX}')
        a(f'buffer_store_dwordx2 v[{NEG}:{NEG+1}], v10, s[32:35], s46 offen{SFX}')
    a.label('SP_NI')
    a('s_waitcnt vmcnt(0)')
    for r in range(4):
        a(f'v_add_f32 v{CB+r}, 1.0, v{CB+r}')
        bf16r(a, CB + r)
    a(f's_mov_b32 s60, {S0}')
    def body(mode):
        p = 'SPF' if mode == 'flag' else 'SPS'
        a.label(f'{p}_LOOP')
        a('s_lshl_b32 s63, s60, 1')
        a('s_add_u32 s63, s63, s56')
        a('s_add_u32 s64, s60, 1')
        if mode == 'flag':
            a('s_cmp_eq_u32 s40, 5')
            a(f's_cbranch_scc1 {p}_POLL')
        a('s_cmp_ge_u32 s40, 5')
        a(f's_cbranch_scc1 {p}_B1' if mode == 'flag' else f's_cbranch_scc1 {p}_B2')
        a('s_mul_i32 s42, s63, 20480')
        a('s_lshl_b32 s43, s58, 5')
        a('s_add_u32 s42, s42, s43')
        a(f'buffer_load_dwordx2 v[{X}:{X+1}], v4, s[12:15], s42 offen')
        if mode == 'flag':
            a(f's_branch {p}_B1')
            a.label(f'{p}_POLL')
            wait_flags(a, f'{p}W', 8, 8, 59, 64, two_phase=False)
            a.label(f'{p}_B1')
            a('s_barrier')
            flog(a, cfg, 0)
            a('s_cmp_ge_u32 s40, 5')
            a(f's_cbranch_scc1 {p}_B2')
        a('s_mul_i32 s47, s63, 20480')
        a('s_lshl_b32 s43, s58, 9')
        a('s_add_u32 s47, s47, s43')
        a(f's_add_u32 s47, s47, {WS_SL}')
        def loads(sc):
            a('s_mov_b32 s42, s47')
            for j in range(16):
                r = R + (j // 2) * 4 + (j & 1) * 2
                a(f'buffer_load_dwordx2 v[{r}:{r+1}], v13, s[32:35], s42 offen{sc}')
                if j < 15: a(f's_add_u32 s42, s42, {SLAB}')
        a('s_mul_i32 s44, s63, 20480')
        a('s_add_u32 s44, s44, s62')
        a(f's_add_u32 s45, s44, {WS_H2F}')
        a(f's_add_u32 s44, s44, {WS_X1F}')
        a('s_mul_i32 s46, s63, 5120')
        a('s_add_u32 s46, s46, s65')
        if mode == 'flag':
            loads('')
        else:
            a(f's_add_u32 s66, s47, {15*SLAB}')
            sent_p1(a, p, 11, 66)
            sent_p2(a, p, lambda: loads(' sc1'), [R + 2*j for j in range(16)])
            flog(a, cfg, 0)
        for jp in range(8):
            if mode == 'flag': a(f's_waitcnt vmcnt({14 - 2*jp})')
            cc = '0' if jp == 0 else f'v[{ACC}:{ACC+3}]'
            a(f'v_mfma_f32_16x16x32_bf16 v[{ACC}:{ACC+3}], v[{SEL}:{SEL+3}], v[{R+4*jp}:{R+4*jp+3}], {cc}')
        a(f'v_lshlrev_b32 v{T}, 16, v{X}')
        a(f'v_and_b32 v{T+1}, 0xffff0000, v{X}')
        a(f'v_lshlrev_b32 v{T+2}, 16, v{X+1}')
        a(f'v_and_b32 v{T+3}, 0xffff0000, v{X+1}')
        a('s_nop 7')
        for r in range(4):
            bf16r(a, ACC + r)
            a(f'v_mul_f32 v{ACC+r}, v{ACC+r}, v{GA+r}')
            bf16r(a, ACC + r)
            a(f'v_add_f32 v{ACC+r}, v{ACC+r}, v{T+r}')
        a(f'v_cvt_pk_bf16_f32 v{T+4}, v{ACC}, v{ACC+1}')
        a(f'v_cvt_pk_bf16_f32 v{T+5}, v{ACC+2}, v{ACC+3}')
        a(f'v_lshlrev_b32 v{ACC}, 16, v{T+4}')
        a(f'v_and_b32 v{ACC+1}, 0xffff0000, v{T+4}')
        a(f'v_lshlrev_b32 v{ACC+2}, 16, v{T+5}')
        a(f'v_and_b32 v{ACC+3}, 0xffff0000, v{T+5}')
        for r in range(4):
            a(f'v_mul_f32 v{T+r}, v{ACC+r}, v{CB+r}')
        a(f'v_cvt_pk_bf16_f32 v{T+6}, v{T}, v{T+1}')
        a(f'v_cvt_pk_bf16_f32 v{T+7}, v{T+2}, v{T+3}')
        a(f'buffer_store_dwordx2 v[{T+6}:{T+7}], v15, s[32:35], s45 offen{SFX}')
        S1_, S2_ = T + 8, T + 9
        a(f'v_add_f32 v{S1_}, v{ACC}, v{ACC+1}')
        a(f'v_add_f32 v{T}, v{ACC+2}, v{ACC+3}')
        a(f'v_mul_f32 v{S2_}, v{ACC}, v{ACC}')
        a(f'v_add_f32 v{S1_}, v{S1_}, v{T}')
        for r in range(1, 4):
            a(f'v_fmac_f32 v{S2_}, v{ACC+r}, v{ACC+r}')
        xg_reduce(a, 'add', S1_, T + 10)
        xg_reduce(a, 'add', S2_, T + 10)
        a('s_mov_b64 exec, 0xffff')
        a(f'buffer_store_dwordx2 v[{S1_}:{S2_}], v10, s[32:35], s46 offen{SFX}')
        a('s_mov_b64 exec, -1')
        a(f'buffer_store_dwordx2 v[{T+4}:{T+5}], v15, s[32:35], s44 offen{SFX}')
        a.label(f'{p}_B2')
        if mode == 'flag':
            a('s_waitcnt vmcnt(0)')
            a('s_barrier')
            flag_store(a, f'{p}_NF')
        flog(a, cfg, 1)
        a('s_add_u32 s60, s60, 1')
        a(f's_cmp_lt_u32 s60, {S1 if mode == "flag" else 64}')
        a(f's_cbranch_scc1 {p}_LOOP')
    if S1 > S0: body('flag')
    if S1 < 64: body('sent')

def fap(a, cfg):
    S0 = cfg['S0']; S1 = cfg['S1']; F_SUM = cfg['F_SUM']; F_FA = cfg['F_FA']
    a(f's_load_dwordx4 s[4:7], s[0:1], {KA["wg"]}')
    a('s_waitcnt lgkmcnt(0)')
    NW = 640 * 1536 * 2
    make_srd(a, 8, 4, NW)
    make_srd(a, 12, 6, NW)
    a('v_lshlrev_b32 v15, 4, v1')
    a('v_mov_b32 v12, 0')
    W, B, ACC, UC, T = 16, 96, 116, 132, 148
    PART = 81920
    a('v_lshrrev_b32 v4, 2, v1')
    a('v_mul_u32_u24 v4, 3072, v4')
    a('v_and_b32 v5, 3, v1')
    a('v_lshl_add_u32 v4, v5, 4, v4')
    a('s_mul_i32 s42, s40, 49152')
    a('s_lshl_b32 s43, s56, 6')
    a('s_add_u32 s42, s42, s43')
    a('s_lshl_b32 s44, s40, 10')
    for m in range(2):
        for k in range(5):
            a(f's_add_u32 m0, s44, {m*40960 + k*8192}')
            a(f's_add_u32 s43, s42, {k*8*49152}')
            a(f'buffer_load_dwordx4 v4, s[{8+4*m}:{11+4*m}], s43 offen lds')
    a('v_cmp_eq_u32 vcc, 0, v2')
    a(f'v_mov_b32 v5, {3*2560}')
    a(f'v_mov_b32 v6, {4*2560}')
    a('v_cndmask_b32 v5, v5, v6, vcc')
    a('v_lshl_add_u32 v5, v3, 4, v5')
    a('s_mul_i32 s42, s41, 640')
    a(f's_add_u32 s42, s42, {WS_MOD}')
    MV = 160
    for j in range(5):
        a(f'buffer_load_dwordx4 v[{MV+8*j}:{MV+8*j+3}], v5, s[32:35], s42 offen offset:{128*j}')
        a(f'buffer_load_dwordx4 v[{MV+8*j+4}:{MV+8*j+7}], v5, s[32:35], s42 offen offset:{128*j+64}')
    a('s_lshl_b32 s62, s56, 10')
    a('s_lshl_b32 s43, s41, 3')
    a('s_add_u32 s62, s62, s43')
    a(f's_add_u32 s62, s62, {WS_ACT}')
    a(f'v_mov_b32 v{T}, -1')
    a(f'v_mov_b32 v{T+1}, -1')
    a('s_cmp_ge_u32 s41, 2')
    a('s_cbranch_scc1 FP_NI')
    for s in range(S1, 64):
        a(f's_add_u32 s63, s39, {2*s}')
        a('s_mul_i32 s42, s63, 49152')
        a('s_add_u32 s42, s42, s62')
        a(f'buffer_store_dwordx2 v[{T}:{T+1}], v15, s[32:35], s42 offen{SFX}')
    a.label('FP_NI')
    a('s_waitcnt vmcnt(0)')
    a('s_barrier')
    a('v_lshrrev_b32 v6, 2, v2')
    a('v_lshl_add_u32 v6, v3, 2, v6')
    a('v_lshlrev_b32 v6, 6, v6')
    a('v_and_b32 v7, 3, v2')
    a('v_lshl_add_u32 v6, v7, 3, v6')
    a('s_mul_i32 s42, s41, 10240')
    a('v_add_u32 v6, s42, v6')
    for j in range(5):
        for c in range(4):
            m, cc = c >> 1, c & 1
            f = W + (j * 4 + c) * 4
            o = m * 40960 + j * 2048 + cc * 32
            a(f'ds_read_b64_tr_b16 v[{f}:{f+1}], v6 offset:{o}')
            a(f'ds_read_b64_tr_b16 v[{f+2}:{f+3}], v6 offset:{o+1024}')
        a('s_waitcnt lgkmcnt(0)')
    a('v_cmp_eq_u32 s[44:45], 0, v2')
    a('v_cmp_gt_u32 vcc, 2, v2')
    for j in range(5):
        for r in range(8):
            v = MV + 8 * j + r
            a(f'v_add_f32 v{T}, 1.0, v{v}')
            a(f'v_cndmask_b32 v{v}, v{v}, v{T}, s[44:45]')
        for q in range(4):
            a(f'v_cvt_pk_bf16_f32 v{B+4*j+q}, v{MV+8*j+2*q}, v{MV+8*j+2*q+1}')
            a(f'v_cndmask_b32 v{B+4*j+q}, 0, v{B+4*j+q}, vcc')
    a('s_lshl_b32 s42, s40, 12')
    a(f's_add_u32 s42, s42, {PART}')
    a('v_add_u32 v7, s42, v15')
    a('s_lshl_b32 s42, s39, 14')
    a('s_lshl_b32 s43, s41, 10')
    a('s_add_u32 s42, s42, s43')
    a(f's_add_u32 s42, s42, {PART}')
    a('v_add_u32 v8, s42, v15')
    def mm(wait):
        for j in range(5):
            if wait: a(f's_waitcnt vmcnt({4 - j})')
            for c in range(4):
                acc = ACC + 4 * c; f = W + (j * 4 + c) * 4
                cc = '0' if j == 0 else f'v[{acc}:{acc+3}]'
                a(f'v_mfma_f32_16x16x32_bf16 v[{acc}:{acc+3}], v[{f}:{f+3}], v[{B+4*j}:{B+4*j+3}], {cc}')
        a('s_nop 7')
        a('s_nop 1')
        for c in range(4):
            a(f'ds_write_b128 v7, v[{ACC+4*c}:{ACC+4*c+3}] offset:{1024*c}')
        a('s_waitcnt lgkmcnt(0)')
        a('s_barrier')
    P = 160
    def rdsum():
        for kq in range(4):
            a(f'ds_read_b128 v[{P+8*kq}:{P+8*kq+3}], v8 offset:{4096*kq}')
            a(f'ds_read_b128 v[{P+8*kq+4}:{P+8*kq+7}], v8 offset:{4096*kq+2048}')
        a('s_waitcnt lgkmcnt(4)')
        for r in range(8):
            a(f'v_add_f32 v{ACC+r}, v{P+r}, v{P+8+r}')
        a('s_waitcnt lgkmcnt(0)')
        for r in range(8):
            a(f'v_add_f32 v{P+16+r}, v{P+16+r}, v{P+24+r}')
        for r in range(8):
            a(f'v_add_f32 v{ACC+r}, v{ACC+r}, v{P+16+r}')
    mm(False)
    a('s_cmp_ge_u32 s41, 2')
    a('s_cbranch_scc1 FP_NU')
    rdsum()
    a('v_and_b32 v5, 48, v1')
    a('v_lshlrev_b32 v5, 2, v5')
    a('v_add_u32 v6, 4, v5')
    for r in range(8):
        a(f'ds_bpermute_b32 v{UC+r}, v5, v{ACC+r}')
        a(f'ds_bpermute_b32 v{UC+8+r}, v6, v{ACC+r}')
    a('s_waitcnt lgkmcnt(0)')
    a.label('FP_NU')
    a('v_and_b32 v9, 15, v1')
    a('v_lshlrev_b32 v9, 7, v9')
    a('s_and_b32 s42, s56, 15')
    a('s_lshl_b32 s42, s42, 7')
    a('v_mov_b32 v10, s42')
    a(f's_mov_b32 s59, {F_SUM}')
    a('s_lshl_b32 s61, s56, 7')
    a(f's_add_u32 s61, s61, {F_FA}')
    a('v_mul_u32_u24 v11, 1280, v3')
    a('v_lshl_add_u32 v11, v2, 3, v11')
    a(f's_mov_b32 s24, {f2u(1.0/640):#x}')
    a(f's_mov_b32 s25, {f2u(1e-5):#x}')
    C1 = -2.0 * LOG2E * 0.7978845608028654
    a(f's_mov_b32 s26, {f2u(C1):#x}')
    a(f's_mov_b32 s27, {f2u(C1 * 0.044715):#x}')
    a(f's_mov_b32 s60, {S0}')
    ST = 192
    def body(mode):
        p = 'FPF' if mode == 'flag' else 'FPS'
        sc = '' if mode == 'flag' else ' sc1'
        a.label(f'{p}_LOOP')
        a('s_lshl_b32 s63, s60, 1')
        a('s_add_u32 s63, s63, s39')
        a('s_add_u32 s64, s60, 1')
        if mode == 'flag':
            a('s_cmp_lg_u32 s40, 7')
            a(f's_cbranch_scc1 {p}_B1')
            wait_flags(a, f'{p}W', 9, 10, 59, 64)
            a.label(f'{p}_B1')
            a('s_barrier')
            flog(a, cfg, 0)
        a('s_mul_i32 s46, s63, 5120')
        a(f's_add_u32 s46, s46, {WS_ST}')
        a('s_mul_i32 s44, s63, 20480')
        a('s_mul_i32 s43, s41, 5120')
        a('s_add_u32 s44, s44, s43')
        a(f's_add_u32 s44, s44, {WS_H2F}')
        a('s_add_u32 s45, s44, 4096')
        def ld_st():
            for i in range(10):
                a(f'buffer_load_dwordx2 v[{ST+2*i}:{ST+2*i+1}], v11, s[32:35], s46 offen offset:{128*i}{sc}')
        def ld_b():
            for j in range(5):
                so = 44 if j < 4 else 45
                a(f'buffer_load_dwordx4 v[{B+4*j}:{B+4*j+3}], v15, s[32:35], s{so} offen offset:{1024*(j%4)}{sc}')
        if mode == 'flag':
            a('s_cmp_ge_u32 s41, 2')
            a(f's_cbranch_scc1 {p}_NS')
            ld_st()
            a.label(f'{p}_NS')
            ld_b()
            mm(True)
        else:
            sent_p1(a, p, 12, 45)
            a('s_cmp_ge_u32 s41, 2')
            a(f's_cbranch_scc1 {p}_NS')
            sent_p2(a, p + 'A', lambda: (ld_st(), ld_b()), [B + 4*j + o for j in range(5) for o in (0, 2)] + [ST + 2*i for i in range(10)])
            a(f's_branch {p}_NS2')
            a.label(f'{p}_NS')
            sent_p2(a, p + 'B', ld_b, [B + 4*j + o for j in range(5) for o in (0, 2)])
            a.label(f'{p}_NS2')
            flog(a, cfg, 0)
            mm(False)
        a('s_cmp_ge_u32 s41, 2')
        a(f's_cbranch_scc1 {p}_B3')
        rdsum()
        for i in (0, 2, 4, 6):
            a(f'v_add_f32 v{ST+2*i}, v{ST+2*i}, v{ST+2*i+2}')
            a(f'v_add_f32 v{ST+2*i+1}, v{ST+2*i+1}, v{ST+2*i+3}')
        a(f'v_add_f32 v{ST+16}, v{ST+16}, v{ST+18}')
        a(f'v_add_f32 v{ST+17}, v{ST+17}, v{ST+19}')
        for i in (0, 4):
            a(f'v_add_f32 v{ST+2*i}, v{ST+2*i}, v{ST+2*i+4}')
            a(f'v_add_f32 v{ST+2*i+1}, v{ST+2*i+1}, v{ST+2*i+5}')
        a(f'v_add_f32 v{ST}, v{ST}, v{ST+8}')
        a(f'v_add_f32 v{ST+1}, v{ST+1}, v{ST+9}')
        a(f'v_add_f32 v{ST}, v{ST}, v{ST+16}')
        a(f'v_add_f32 v{ST+1}, v{ST+1}, v{ST+17}')
        xg_reduce(a, 'add', ST, ST + 4)
        xg_reduce(a, 'add', ST + 1, ST + 4)
        a(f'v_mul_f32 v{ST}, s24, v{ST}')
        a(f'v_mul_f32 v{ST+1}, s24, v{ST+1}')
        a(f'v_fma_f32 v{ST+1}, -v{ST}, v{ST}, v{ST+1}')
        a(f'v_max_f32 v{ST+1}, 0, v{ST+1}')
        a(f'v_add_f32 v{ST+1}, s25, v{ST+1}')
        a(f'v_rsq_f32 v{ST+1}, v{ST+1}')
        a('s_nop 0')
        a(f'v_mul_f32 v{ST}, v{ST}, v{ST+1}')
        for r in range(8):
            a(f'v_fma_f32 v{T}, -v{ST}, v{UC+r}, v{UC+8+r}')
            a(f'v_fma_f32 v{ACC+r}, v{ST+1}, v{ACC+r}, v{T}')
        for r in range(4):
            gg = ACC + r; u = ACC + 4 + r
            t0 = T; t1 = T + 1; t2 = T + 2
            a(f'v_cvt_pk_bf16_f32 v{t0}, v{gg}, v{u}')
            a(f'v_lshlrev_b32 v{gg}, 16, v{t0}')
            a(f'v_and_b32 v{u}, 0xffff0000, v{t0}')
            a(f'v_mul_f32 v{t1}, v{gg}, v{gg}')
            a(f'v_mov_b32 v{t2}, s26')
            a(f'v_fmac_f32 v{t2}, s27, v{t1}')
            a(f'v_mul_f32 v{t2}, v{t2}, v{gg}')
            a(f'v_exp_f32 v{t2}, v{t2}')
            a('s_nop 0')
            a(f'v_add_f32 v{t2}, 1.0, v{t2}')
            a(f'v_rcp_f32 v{t2}, v{t2}')
            a('s_nop 0')
            a(f'v_mul_f32 v{t2}, v{t2}, v{gg}')
            a(f'v_cvt_pk_bf16_f32 v{t2}, v{t2}, v{t2}')
            a(f'v_lshlrev_b32 v{t2}, 16, v{t2}')
            a(f'v_mul_f32 v{gg}, v{t2}, v{u}')
        a(f'v_cvt_pk_bf16_f32 v{T}, v{ACC}, v{ACC+1}')
        a(f'v_cvt_pk_bf16_f32 v{T+1}, v{ACC+2}, v{ACC+3}')
        a('s_mul_i32 s42, s63, 49152')
        a('s_add_u32 s42, s42, s62')
        a(f'buffer_store_dwordx2 v[{T}:{T+1}], v15, s[32:35], s42 offen{SFX}')
        a.label(f'{p}_B3')
        if mode == 'flag':
            a('s_waitcnt vmcnt(0)')
            a('s_barrier')
            flag_store(a, f'{p}_NF')
        else:
            a('s_barrier')
        flog(a, cfg, 1)
        a('s_add_u32 s60, s60, 1')
        a(f's_cmp_lt_u32 s60, {S1 if mode == "flag" else 64}')
        a(f's_cbranch_scc1 {p}_LOOP')
    if S1 > S0: body('flag')
    if S1 < 64: body('sent')

def fbp(a, cfg):
    S0 = cfg['S0']; S1 = cfg['S1']; F_FA = cfg['F_FA']
    a(f's_load_dwordx2 s[4:5], s[0:1], {KA["wd"]}')
    a(f's_load_dwordx2 s[6:7], s[0:1], {KA["out"]}')
    a('s_waitcnt lgkmcnt(0)')
    make_srd(a, 8, 4, 1536 * 1280)
    make_srd(a, 12, 6, 2048 * 1280)
    a('v_lshlrev_b32 v15, 4, v1')
    a('v_mov_b32 v12, 0')
    W, B, ACC, GB, X1, P = 16, 64, 88, 96, 100, 104
    PART = 98304
    a('v_lshrrev_b32 v4, 2, v1')
    a('v_mul_u32_u24 v4, 1280, v4')
    a('v_and_b32 v5, 3, v1')
    a('v_lshl_add_u32 v4, v5, 4, v4')
    a(f's_mul_i32 s42, s40, {192*1280}')
    a('s_lshl_b32 s43, s56, 6')
    a('s_add_u32 s42, s42, s43')
    a('s_mul_i32 s44, s40, 12288')
    for k in range(12):
        a(f's_add_u32 m0, s44, {k*1024}')
        a(f's_add_u32 s43, s42, {k*16*1280}')
        a('buffer_load_dwordx4 v4, s[8:11], s43 offen lds')
    a('s_and_b32 s45, s40, 1')
    a('s_lshl_b32 s42, s56, 7')
    a('s_lshl_b32 s43, s45, 6')
    a('s_add_u32 s42, s42, s43')
    a(f's_add_u32 s42, s42, {WS_MOD + 5*2560}')
    a('v_lshlrev_b32 v5, 4, v3')
    a(f'buffer_load_dwordx4 v[{GB}:{GB+3}], v5, s[32:35], s42 offen')
    a('v_lshrrev_b32 v6, 2, v2')
    a('v_lshl_add_u32 v6, v3, 2, v6')
    a('v_lshlrev_b32 v6, 6, v6')
    a('v_and_b32 v7, 3, v2')
    a('v_lshl_add_u32 v6, v7, 3, v6')
    a('v_add_u32 v6, s44, v6')
    a('s_waitcnt vmcnt(0)')
    for j in range(6):
        for c in range(2):
            f = W + (j * 2 + c) * 4
            o = j * 2048 + c * 32
            a(f'ds_read_b64_tr_b16 v[{f}:{f+1}], v6 offset:{o}')
            a(f'ds_read_b64_tr_b16 v[{f+2}:{f+3}], v6 offset:{o+1024}')
        if j % 2 == 1: a('s_waitcnt lgkmcnt(0)')
    a('s_lshl_b32 s42, s40, 11')
    a(f's_add_u32 s42, s42, {PART}')
    a('v_add_u32 v7, s42, v15')
    a('s_lshl_b32 s42, s45, 10')
    a(f's_add_u32 s42, s42, {PART}')
    a('v_add_u32 v8, s42, v15')
    a('v_min_u32 v9, 47, v1')
    a('v_lshlrev_b32 v9, 7, v9')
    a('s_lshl_b32 s42, s56, 1')
    a('s_add_u32 s42, s42, s57')
    a('s_lshl_b32 s42, s42, 7')
    a('v_mov_b32 v10, s42')
    a(f's_mov_b32 s59, {F_FA}')
    a('v_mul_u32_u24 v4, 1280, v2')
    a('v_lshl_add_u32 v4, v3, 3, v4')
    a('s_lshl_b32 s62, s56, 6')
    a('s_lshl_b32 s43, s45, 5')
    a('s_add_u32 s62, s62, s43')
    a('s_lshl_b32 s61, s56, 10')
    a('s_lshl_b32 s43, s45, 3')
    a('s_add_u32 s61, s61, s43')
    a(f's_add_u32 s61, s61, {WS_X1F}')
    a(f's_mov_b32 s60, {S0}')
    def body(mode):
        p = 'BPF' if mode == 'flag' else 'BPS'
        sc = '' if mode == 'flag' else ' sc1'
        a.label(f'{p}_LOOP')
        a('s_lshl_b32 s63, s60, 1')
        a('s_add_u32 s63, s63, s57')
        a('s_add_u32 s64, s60, 1')
        if mode == 'flag':
            a('s_cmp_lg_u32 s40, 7')
            a(f's_cbranch_scc1 {p}_B1')
            wait_flags(a, f'{p}W', 9, 10, 59, 64)
            a.label(f'{p}_B1')
            a('s_barrier')
            flog(a, cfg, 0)
        a('s_mul_i32 s46, s63, 20480')
        a('s_add_u32 s46, s46, s61')
        a('s_mul_i32 s44, s63, 49152')
        a('s_mul_i32 s43, s40, 6144')
        a('s_add_u32 s44, s44, s43')
        a(f's_add_u32 s44, s44, {WS_ACT}')
        a('s_add_u32 s45, s44, 4096')
        def ld_x():
            a(f'buffer_load_dwordx2 v[{X1}:{X1+1}], v15, s[32:35], s46 offen{sc}')
        def ld_b():
            for j in range(6):
                so = 44 if j < 4 else 45
                a(f'buffer_load_dwordx4 v[{B+4*j}:{B+4*j+3}], v15, s[32:35], s{so} offen offset:{1024*(j%4)}{sc}')
        if mode == 'flag':
            a('s_cmp_ge_u32 s40, 2')
            a(f's_cbranch_scc1 {p}_NX')
            ld_x()
            a.label(f'{p}_NX')
            ld_b()
        else:
            sent_p1(a, p, 12, 45)
            a('s_cmp_ge_u32 s40, 2')
            a(f's_cbranch_scc1 {p}_NX')
            sent_p2(a, p + 'A', lambda: (ld_x(), ld_b()), [B + 4*j + o for j in range(6) for o in (0, 2)] + [X1, X1])
            a(f's_branch {p}_NX2')
            a.label(f'{p}_NX')
            sent_p2(a, p + 'B', ld_b, [B + 4*j + o for j in range(6) for o in (0, 2)])
            a.label(f'{p}_NX2')
            flog(a, cfg, 0)
        for j in range(6):
            if mode == 'flag': a(f's_waitcnt vmcnt({5 - j})')
            for c in range(2):
                acc = ACC + 4 * c; f = W + (j * 2 + c) * 4
                cc = '0' if j == 0 else f'v[{acc}:{acc+3}]'
                a(f'v_mfma_f32_16x16x32_bf16 v[{acc}:{acc+3}], v[{f}:{f+3}], v[{B+4*j}:{B+4*j+3}], {cc}')
        a('s_nop 7')
        a('s_nop 1')
        for c in range(2):
            a(f'ds_write_b128 v7, v[{ACC+4*c}:{ACC+4*c+3}] offset:{1024*c}')
        a('s_waitcnt lgkmcnt(0)')
        a('s_barrier')
        a('s_cmp_ge_u32 s40, 2')
        a(f's_cbranch_scc1 {p}_NE')
        for k in range(8):
            a(f'ds_read_b128 v[{P+4*k}:{P+4*k+3}], v8 offset:{2048*k}')
        a('s_waitcnt lgkmcnt(4)')
        for r in range(4):
            a(f'v_add_f32 v{P+r}, v{P+r}, v{P+4+r}')
            a(f'v_add_f32 v{P+8+r}, v{P+8+r}, v{P+12+r}')
        a('s_waitcnt lgkmcnt(0)')
        for r in range(4):
            a(f'v_add_f32 v{P+16+r}, v{P+16+r}, v{P+20+r}')
            a(f'v_add_f32 v{P+24+r}, v{P+24+r}, v{P+28+r}')
        for r in range(4):
            a(f'v_add_f32 v{P+r}, v{P+r}, v{P+8+r}')
            a(f'v_add_f32 v{P+16+r}, v{P+16+r}, v{P+24+r}')
        for r in range(4):
            a(f'v_add_f32 v{P+r}, v{P+r}, v{P+16+r}')
            bf16r(a, P + r)
            a(f'v_mul_f32 v{P+r}, v{P+r}, v{GB+r}')
            bf16r(a, P + r)
        a(f'v_lshlrev_b32 v{P+4}, 16, v{X1}')
        a(f'v_and_b32 v{P+5}, 0xffff0000, v{X1}')
        a(f'v_lshlrev_b32 v{P+6}, 16, v{X1+1}')
        a(f'v_and_b32 v{P+7}, 0xffff0000, v{X1+1}')
        for r in range(4):
            a(f'v_add_f32 v{P+r}, v{P+r}, v{P+4+r}')
        a(f'v_cvt_pk_bf16_f32 v{P+8}, v{P}, v{P+1}')
        a(f'v_cvt_pk_bf16_f32 v{P+9}, v{P+2}, v{P+3}')
        a('s_mul_i32 s42, s63, 20480')
        a('s_add_u32 s42, s42, s62')
        a(f'buffer_store_dwordx2 v[{P+8}:{P+9}], v4, s[12:15], s42 offen')
        a.label(f'{p}_NE')
        a('s_barrier')
        flog(a, cfg, 1)
        a('s_add_u32 s60, s60, 1')
        a(f's_cmp_lt_u32 s60, {S1 if mode == "flag" else 64}')
        a(f's_cbranch_scc1 {p}_LOOP')
    if S1 > S0: body('flag')
    if S1 < 64: body('sent')
```

```python
from asmlib import *
from layout2 import *
from k_t1 import lane_decomp, OPT, SLOT
from k_chain import pub
import k_chain4
import k_fine
import os

C_REG = WS_CNT
C_QH = WS_CNT + 1024
C_MODA = WS_CNT + 2048
C_MODB = WS_CNT + 3072
C_LN1 = WS_CNT + 4096
C_LN2 = C_LN1 + 16384
C_FA = C_LN2 + 16384
F_T1 = C_FA + 16384
F_ZX = F_T1 + 16384 + 1024
F_SUM = F_ZX + 16384
F_FA = F_SUM + 2048
CNT_BYTES = 98304
assert F_FA + 48 * 128 <= WS_CNT + CNT_BYTES
assert CNT_BYTES % 4096 == 0
R0 = int(os.environ.get('R0', '12'))
S0 = 4 * R0
S1 = int(os.environ.get('S1', '60'))
L_SLOT = 155648
LDS_MEGA = 155648 + 256
T1THR = 48
NSELF = int(os.environ.get('NSELF', '2'))
NFINE = int(os.environ.get('NFINE', '0'))
EP = int(os.environ.get('EP', '1'))
SFX = ' sc1'
MAP = int(os.environ.get('MAP', '1'))
WS_LOG = 0x1C00000
LOG = 'log' in OPT
def rt(a, dst):
    a('s_memrealtime s[76:77]')
    a('s_waitcnt lgkmcnt(0)')
    a(f's_mov_b32 s{dst}, s76')
def log_entry(a):
    rt(a, 84)
    a('s_mov_b64 exec, 1')
    a('v_mov_b32 v4, s83')
    a('v_mov_b32 v5, s81')
    a('v_mov_b32 v6, s82')
    a('v_mov_b32 v7, s84')
    a('v_mov_b32 v8, 0')
    a('buffer_store_dwordx4 v[4:7], v8, s[32:35], s80 offen')
    a('s_mov_b64 exec, -1')
    a('s_add_u32 s80, s80, 16')
W_SLEEP = int(os.environ.get('W_SLEEP', '127'))
W_SHORT = int(os.environ.get('W_SHORT', '4'))

def row_allreduce(a, op, v):
    for r in (8, 4, 2, 1):
        a('s_nop 1')
        a(f'v_{op}_f32_dpp v{v}, v{v}, v{v} row_ror:{r} row_mask:0xf bank_mask:0xf')
def wave_allreduce_add(a, v, s0):
    row_allreduce(a, 'add', v)
    a('s_nop 1')
    for i in range(4):
        a(f'v_readlane_b32 s{s0+i}, v{v}, {16*i}')
    a('s_nop 1')
    a(f'v_mov_b32 v{v}, s{s0}')
    for i in range(1, 4):
        a(f'v_add_f32 v{v}, s{s0+i}, v{v}')
def bf16_round_f32(a, v):
    a(f'v_cvt_pk_bf16_f32 v{v}, v{v}, v{v}')
    a(f'v_lshlrev_b32 v{v}, 16, v{v}')

def body_mod(a, pfx):
    a('s_cmp_ge_u32 s56, 60')
    a(f's_cbranch_scc1 {pfx}_END')
    a(f's_load_dwordx2 s[4:5], s[0:1], {KA["c"]}')
    a(f's_load_dwordx2 s[6:7], s[0:1], {KA["wmod"]}')
    a('s_waitcnt lgkmcnt(0)')
    make_srd(a, 12, 4, 1280)
    make_srd(a, 16, 6, 640 * 3840 * 2)
    a('s_mul_i32 s42, s40, 80')
    a('v_add_u32 v5, s42, v3')
    a('v_lshlrev_b32 v6, 2, v5')
    a('v_mul_u32_u24 v7, 7680, v5')
    a('s_lshl_b32 s3, s56, 7')
    a('v_lshlrev_b32 v8, 3, v2')
    a('v_add3_u32 v7, v7, v8, s3')
    a('s_mov_b32 s25, 0')
    for u in range(20):
        a(f'buffer_load_dwordx2 v[{16+2*u}:{17+2*u}], v7, s[16:19], s25 offen')
        if u < 19: a('s_add_u32 s25, s25, 30720')
    a('v_lshlrev_b32 v4, 1, v0')
    a('buffer_load_ushort v10, v4, s[12:15], 0 offen')
    a('buffer_load_ushort v11, v4, s[12:15], 0 offen offset:1024')
    a('s_waitcnt vmcnt(0)')
    a(f's_mov_b32 s24, {f2u(-LOG2E):#x}')
    for v in (10, 11):
        a(f'v_lshlrev_b32 v{v}, 16, v{v}')
        a(f'v_mul_f32 v9, s24, v{v}')
        a('v_exp_f32 v9, v9')
        a('s_nop 0')
        a('v_add_f32 v9, 1.0, v9')
        a('v_rcp_f32 v9, v9')
        a('s_nop 0')
        a(f'v_mul_f32 v{v}, v{v}, v9')
        bf16_round_f32(a, v)
    a('v_lshlrev_b32 v4, 2, v0')
    a('ds_write_b32 v4, v10')
    a('ds_write_b32 v4, v11 offset:2048')
    a('s_waitcnt lgkmcnt(0)')
    a('s_barrier')
    for i in range(4):
        a(f'v_mov_b32 v{10+i}, 0')
    for u in range(20):
        a(f'ds_read_b32 v{60+u}, v6 offset:{16*u}')
        if u % 8 == 7: a('s_waitcnt lgkmcnt(0)')
    a('s_waitcnt lgkmcnt(0)')
    for u in range(20):
        lo, hi = 16 + 2 * u, 17 + 2 * u
        a(f'v_lshlrev_b32 v80, 16, v{lo}')
        a(f'v_and_b32 v81, 0xffff0000, v{lo}')
        a(f'v_lshlrev_b32 v82, 16, v{hi}')
        a(f'v_and_b32 v83, 0xffff0000, v{hi}')
        for i in range(4):
            a(f'v_fmac_f32 v{10+i}, v{60+u}, v{80+i}')
    a('v_lshl_add_u32 v5, s40, 2, v3')
    a('v_lshlrev_b32 v5, 8, v5')
    a('v_lshl_add_u32 v5, v2, 4, v5')
    a('ds_write_b128 v5, v[10:13] offset:8192')
    a('s_waitcnt lgkmcnt(0)')
    a('s_barrier')
    a('s_cmp_lg_u32 s40, 0')
    a(f's_cbranch_scc1 {pfx}_END')
    a('v_lshlrev_b32 v5, 2, v1')
    for h in range(4):
        for i in range(8):
            a(f'ds_read_b32 v{16+8*h+i}, v5 offset:{8192+256*(8*h+i)}')
        a('s_waitcnt lgkmcnt(0)')
    for i in range(1, 32):
        a(f'v_add_f32 v16, v16, v{16+i}')
    bf16_round_f32(a, 16)
    a('s_lshl_b32 s3, s56, 8')
    a(f's_add_u32 s3, s3, {WS_MOD}')
    a(f'buffer_store_dword v16, v5, s[32:35], s3 offen{SFX}')
    a.label(f'{pfx}_END')

def ln1_pre(a):
    a(f's_load_dwordx2 s[4:5], s[0:1], {KA["x"]}')
    a('s_waitcnt lgkmcnt(0)')
    make_srd(a, 12, 4, 2048 * 1280)
    a('s_lshl_b32 s3, s56, 4')
    a('s_lshl_b32 s42, s40, 1')
    a('s_add_u32 s3, s3, s42')
    a('s_mul_i32 s3, s3, 1280')
    a('v_lshl_add_u32 v4, v1, 2, s3')
    for r in range(2):
        for i in range(5):
            a(f'buffer_load_dword v{10+5*r+i}, v4, s[12:15], 0 offen offset:{1280*r+256*i}')
    a('s_waitcnt vmcnt(0)')
    a(f's_mov_b32 s24, {f2u(1.0/640):#x}')
    a(f's_mov_b32 s25, {f2u(1e-5):#x}')
    for r in range(2):
        N = 40 + 10 * r
        for i in range(5):
            a(f'v_lshlrev_b32 v{N+2*i}, 16, v{10+5*r+i}')
            a(f'v_and_b32 v{N+1+2*i}, 0xffff0000, v{10+5*r+i}')
        a(f'v_add_f32 v30, v{N}, v{N+1}')
        for i in range(2, 10):
            a(f'v_add_f32 v30, v30, v{N+i}')
        wave_allreduce_add(a, 30, 28)
        a('v_mul_f32 v30, s24, v30')
        for i in range(10):
            a(f'v_sub_f32 v{N+i}, v{N+i}, v30')
        a(f'v_mul_f32 v31, v{N}, v{N}')
        for i in range(1, 10):
            a(f'v_fmac_f32 v31, v{N+i}, v{N+i}')
        wave_allreduce_add(a, 31, 28)
        a('v_mul_f32 v31, s24, v31')
        a('v_add_f32 v31, s25, v31')
        a('v_rsq_f32 v31, v31')
        a('s_nop 0')
        for i in range(10):
            a(f'v_mul_f32 v{N+i}, v{N+i}, v31')

def body_ln1(a, pfx):
    a('v_lshlrev_b32 v5, 3, v1')
    a(f's_mov_b32 s24, {WS_MOD + 2560}')
    a(f's_mov_b32 s23, {WS_MOD}')
    for i in range(5):
        a(f'buffer_load_dwordx2 v[{60+2*i}:{61+2*i}], v5, s[32:35], s23 offen offset:{512*i}')
        a(f'buffer_load_dwordx2 v[{70+2*i}:{71+2*i}], v5, s[32:35], s24 offen offset:{512*i}')
    a(f's_mov_b32 s26, {WS_H1}')
    a('s_mul_i32 s42, s40, 2592')
    a('v_lshl_add_u32 v6, v1, 2, s42')
    a('s_waitcnt vmcnt(0)')
    for i in range(10):
        a(f'v_add_f32 v{70+i}, 1.0, v{70+i}')
    for i in range(10):
        bf16_round_f32(a, 70 + i)
    for r in range(2):
        N = 40 + 10 * r
        for i in range(10):
            a(f'v_fma_f32 v{N+i}, v{N+i}, v{70+i}, v{60+i}')
        for i in range(5):
            a(f'v_cvt_pk_bf16_f32 v{20+5*r+i}, v{N+2*i}, v{N+1+2*i}')
    if NSELF:
        a(f's_cmp_lt_u32 s56, {8*NSELF}')
        a(f's_cbranch_scc1 {pfx}_F')
    for r in range(2):
        for i in range(5):
            a(f'buffer_store_dword v{20+5*r+i}, v4, s[32:35], s26 offen offset:{1280*r+256*i}{SFX}')
    if NSELF:
        a(f's_branch {pfx}_END')
        a.label(f'{pfx}_F')
        for r in range(2):
            for i in range(5):
                a(f'ds_write_b32 v6, v{20+5*r+i} offset:{1296*r+256*i}')
        a('v_mul_u32_u24 v6, 1296, v2')
        a('v_lshl_add_u32 v6, v3, 3, v6')
        a('s_lshl_b32 s42, s40, 6')
        a('v_add_u32 v6, s42, v6')
        a('v_lshlrev_b32 v15, 4, v1')
        a('s_mul_i32 s42, s56, 20480')
        a('s_lshl_b32 s43, s40, 10')
        a('s_add_u32 s42, s42, s43')
        a(f's_add_u32 s42, s42, {WS_H1F}')
        a('s_waitcnt lgkmcnt(0)')
        a('s_barrier')
        for j in range(2):
            a(f'ds_read_b64 v[{60+4*j}:{61+4*j}], v6 offset:{512*j}')
            a(f'ds_read_b64 v[{62+4*j}:{63+4*j}], v6 offset:{512*j+32}')
        a('s_cmp_ge_u32 s40, 4')
        a(f's_cbranch_scc1 {pfx}_F2')
        a(f'ds_read_b64 v[68:69], v6 offset:1024')
        a(f'ds_read_b64 v[70:71], v6 offset:1056')
        a('s_add_u32 s43, s42, 16384')
        a('s_waitcnt lgkmcnt(0)')
        a(f'buffer_store_dwordx4 v[68:71], v15, s[32:35], s43 offen{SFX}')
        a.label(f'{pfx}_F2')
        a('s_waitcnt lgkmcnt(0)')
        a('s_add_u32 s43, s42, 8192')
        a(f'buffer_store_dwordx4 v[60:63], v15, s[32:35], s42 offen{SFX}')
        a(f'buffer_store_dwordx4 v[64:67], v15, s[32:35], s43 offen{SFX}')
        a.label(f'{pfx}_END')

def body_ln2(a, pfx, NSLAB=8):
    a(f's_load_dwordx2 s[4:5], s[0:1], {KA["x"]}')
    a('s_waitcnt lgkmcnt(0)')
    make_srd(a, 12, 4, 2048 * 1280)
    a('v_lshlrev_b32 v6, 3, v1')
    for idx, base in ((2, 60), (3, 40), (4, 50)):
        a(f's_mov_b32 s24, {WS_MOD + 2560*idx}')
        for i in range(5):
            a(f'buffer_load_dwordx2 v[{base+2*i}:{base+2*i+1}], v6, s[32:35], s24 offen offset:{512*i}')
    a('s_lshl_b32 s3, s56, 4')
    a('s_lshl_b32 s42, s40, 1')
    a('s_add_u32 s3, s3, s42')
    a('s_mul_i32 s42, s3, 2560')
    a('v_lshl_add_u32 v5, v1, 3, s42')
    a('s_mul_i32 s42, s3, 1280')
    a('v_lshl_add_u32 v4, v1, 2, s42')
    a(f's_mov_b32 s24, {f2u(1.0/640):#x}')
    a(f's_mov_b32 s25, {f2u(1e-5):#x}')
    for r in range(2):
        for i in range(5):
            a(f'buffer_load_dword v{10+i}, v4, s[12:15], 0 offen offset:{1280*r+256*i}')
        for half in range(NSLAB // 4):
            for hg in range(4):
                a(f's_mov_b32 s26, {WS_OP + (half*4 + hg)*5242880 + r*2560}')
                for i in range(5):
                    a(f'buffer_load_dwordx2 v[{70+10*hg+2*i}:{71+10*hg+2*i}], v5, s[32:35], s26 offen offset:{512*i}')
            a('s_waitcnt vmcnt(0)')
            if r == 0 and half == 0:
                for i in range(10):
                    a(f'v_add_f32 v{50+i}, 1.0, v{50+i}')
                for i in range(10):
                    bf16_round_f32(a, 50 + i)
            for i in range(10):
                a(f'v_add_f32 v{70+i}, v{70+i}, v{80+i}')
                a(f'v_add_f32 v{90+i}, v{90+i}, v{100+i}')
            for i in range(10):
                a(f'v_add_f32 v{70+i}, v{70+i}, v{90+i}')
            if NSLAB > 4:
                for i in range(10):
                    if half == 0:
                        a(f'v_mov_b32 v{112+i}, v{70+i}')
                    else:
                        a(f'v_add_f32 v{70+i}, v{70+i}, v{112+i}')
        for i in range(10):
            bf16_round_f32(a, 70 + i)
            a(f'v_mul_f32 v{70+i}, v{70+i}, v{60+i}')
            bf16_round_f32(a, 70 + i)
        for i in range(5):
            a(f'v_lshlrev_b32 v{20+2*i}, 16, v{10+i}')
            a(f'v_and_b32 v{21+2*i}, 0xffff0000, v{10+i}')
        for i in range(10):
            a(f'v_add_f32 v{20+i}, v{20+i}, v{70+i}')
        for i in range(5):
            a(f'v_cvt_pk_bf16_f32 v{32+i}, v{20+2*i}, v{21+2*i}')
        a(f's_mov_b32 s26, {WS_X1 + 1280*r}')
        for i in range(5):
            a(f'buffer_store_dword v{32+i}, v4, s[32:35], s26 offen offset:{256*i}{SFX}')
        for i in range(5):
            a(f'v_lshlrev_b32 v{20+2*i}, 16, v{32+i}')
            a(f'v_and_b32 v{21+2*i}, 0xffff0000, v{32+i}')
        a('v_add_f32 v30, v20, v21')
        for i in range(2, 10):
            a(f'v_add_f32 v30, v30, v{20+i}')
        wave_allreduce_add(a, 30, 28)
        a('v_mul_f32 v30, s24, v30')
        for i in range(10):
            a(f'v_sub_f32 v{20+i}, v{20+i}, v30')
        a('v_mul_f32 v31, v20, v20')
        for i in range(1, 10):
            a(f'v_fmac_f32 v31, v{20+i}, v{20+i}')
        wave_allreduce_add(a, 31, 28)
        a('v_mul_f32 v31, s24, v31')
        a('v_add_f32 v31, s25, v31')
        a('v_rsq_f32 v31, v31')
        a('s_nop 0')
        for i in range(10):
            a(f'v_mul_f32 v{20+i}, v{20+i}, v31')
            a(f'v_fma_f32 v{20+i}, v{20+i}, v{50+i}, v{40+i}')
        for i in range(5):
            a(f'v_cvt_pk_bf16_f32 v{110+i}, v{20+2*i}, v{21+2*i}')
        a(f's_mov_b32 s26, {WS_H2 + 1280*r}')
        for i in range(5):
            a(f'buffer_store_dword v{110+i}, v4, s[32:35], s26 offen offset:{256*i}{SFX}')

def k_init3(a):
    name = 'init_kernel'
    kernel_header(a, name)
    a('s_cmp_ge_u32 s2, 256')
    a('s_cbranch_scc1 IN_END')
    a(f's_load_dwordx2 s[52:53], s[0:1], {KA["ws"]}')
    a('s_waitcnt lgkmcnt(0)')
    make_srd(a, 32, 52, WS_SIZE)
    a('v_lshlrev_b32 v1, 4, v0')
    for r in range(4):
        a(f'v_mov_b32 v{4+r}, -1')
    a('s_lshl_b32 s3, s2, 14')
    a(f's_add_u32 s3, s3, {WS_MEMF}')
    for i in range(4):
        a(f's_add_u32 s12, s3, {4096*i}')
        a('buffer_store_dwordx4 v[4:7], v1, s[32:35], s12 offen')
    a(f's_cmp_ge_u32 s2, {CNT_BYTES // 4096}')
    a('s_cbranch_scc1 IN_END')
    for r in range(4):
        a(f'v_mov_b32 v{8+r}, 0')
    a('s_lshl_b32 s12, s2, 12')
    a(f's_add_u32 s12, s12, {WS_CNT}')
    a('buffer_store_dwordx4 v[8:11], v1, s[32:35], s12 offen')
    a.label('IN_END')
    a('s_endpgm')
    return name, kernel_desc(name, 64, 64, 64)

def role_map(a):
    a('s_cmp_lt_u32 s54, 4')
    a('s_cselect_b32 s93, 1, 0')
    a('s_and_b32 s54, s54, 3')
    a('s_lshl_b32 s54, s54, 1')
    a('s_lshr_b32 s42, s55, 4')
    a('s_and_b32 s43, s55, 1')
    a('s_lshr_b32 s44, s55, 1')
    a('s_and_b32 s55, s55, 15')
    a('s_cmp_eq_u32 s93, 1')
    a('s_cselect_b32 s42, s42, s43')
    a('s_cselect_b32 s55, s55, s44')
    a('s_add_u32 s54, s54, s42')

def gate(a, pfx):
    a('s_cmp_lg_u32 s85, 0')
    a(f's_cbranch_scc1 {pfx}_GD')
    a('s_mov_b32 s85, 1')
    a('s_cmp_lg_u32 s40, 0')
    a(f's_cbranch_scc1 {pfx}_G2')
    a(f's_load_dwordx2 s[76:77], s[0:1], {KA["dbg"]}')
    a('v_and_b32 v5, 3, v1')
    a('v_lshlrev_b32 v5, 6, v5')
    a('s_mov_b32 s78, 0')
    a('s_waitcnt vmcnt(0) lgkmcnt(0)')
    a.label(f'{pfx}_G1')
    a('global_load_dword v6, v5, s[76:77] sc1')
    a('s_waitcnt vmcnt(0)')
    for i in range(4):
        a(f'v_readlane_b32 s{42+i}, v6, {i}')
    a('s_add_u32 s42, s42, s43')
    a('s_add_u32 s44, s44, s45')
    a('s_add_u32 s42, s42, s44')
    a('s_add_u32 s78, s78, 1')
    a('s_cmp_ge_u32 s78, 0x40000')
    a(f's_cbranch_scc1 {pfx}_G3')
    a('s_and_b32 s43, s42, 0xff')
    a('s_cmp_eq_u32 s43, 0')
    a(f's_cbranch_scc0 {pfx}_G1')
    a.label(f'{pfx}_G3')
    a('s_lshr_b32 s42, s42, 16')
    a('v_mov_b32 v6, s42')
    a(f'v_mov_b32 v5, {L_SLOT}')
    a('ds_write_b32 v5, v6 offset:32')
    a('s_waitcnt lgkmcnt(0)')
    a.label(f'{pfx}_G2')
    a('s_barrier')
    a(f'v_mov_b32 v5, {L_SLOT}')
    a('ds_read_b32 v6, v5 offset:32')
    a('s_waitcnt lgkmcnt(0)')
    a('v_readfirstlane_b32 s42, v6')
    a('s_cmp_lg_u32 s42, 0')
    a('s_cbranch_scc1 FALLBACK')
    a.label(f'{pfx}_GD')

def early_poll(a):
    a('s_cmp_lg_u32 s40, 7')
    a('s_cbranch_scc1 EP_END')
    a(f's_load_dwordx2 s[76:77], s[0:1], {KA["dbg"]}')
    a('v_and_b32 v5, 3, v1')
    a('v_lshlrev_b32 v5, 6, v5')
    a('v_and_b32 v4, 7, v1')
    a('v_lshlrev_b32 v4, 7, v4')
    a(f's_mov_b32 s46, {C_LN1}')
    a('s_mov_b32 s78, 0')
    a('s_waitcnt vmcnt(0) lgkmcnt(0)')
    a.label('EP_1')
    a('s_sleep 8')
    a('global_load_dword v6, v5, s[76:77] sc1')
    for r in range(NSELF):
        a(f'buffer_load_dword v{7+r}, v4, s[32:35], s46 offen offset:{1024*r} sc1')
    a('s_waitcnt vmcnt(0)')
    for i in range(4):
        a(f'v_readlane_b32 s{42+i}, v6, {i}')
    a('s_add_u32 s42, s42, s43')
    a('s_add_u32 s44, s44, s45')
    a('s_add_u32 s42, s42, s44')
    a('s_cmp_lg_u32 s85, 0')
    a('s_cselect_b32 s42, 0, s42')
    a('s_add_u32 s78, s78, 1')
    a('s_cmp_ge_u32 s78, 0x40000')
    a('s_cbranch_scc1 EP_2')
    a('s_and_b32 s43, s42, 0xff')
    a('s_cmp_eq_u32 s43, 0')
    a('s_cbranch_scc0 EP_1')
    a('s_lshr_b32 s43, s42, 16')
    a('s_cmp_lg_u32 s43, 0')
    a('s_cbranch_scc1 EP_2')
    if NSELF:
        for r in range(1, NSELF):
            a(f'v_min_u32 v7, v7, v{7+r}')
        a('v_cmp_eq_u32 vcc, 0, v7')
        a('s_cmp_eq_u64 vcc, 0')
        a('s_cbranch_scc0 EP_1')
    a.label('EP_2')
    a('s_lshr_b32 s42, s42, 16')
    a('v_mov_b32 v6, s42')
    a(f'v_mov_b32 v5, {L_SLOT}')
    a('ds_write_b32 v5, v6 offset:32')
    a.label('EP_END')

def early_chk(a):
    a(f'v_mov_b32 v5, {L_SLOT}')
    a('ds_read_b32 v6, v5 offset:32')
    a('s_mov_b32 s85, 1')
    a('s_waitcnt lgkmcnt(0)')
    a('v_readfirstlane_b32 s42, v6')
    a('s_cmp_lg_u32 s42, 0')
    a('s_cbranch_scc1 FALLBACK')

def register(a):
    a('s_getreg_b32 s54, hwreg(HW_REG_XCC_ID)')
    a('s_and_b32 s54, s54, 7')
    l0 = a.newlabel('RA'); l1 = a.newlabel('RA'); l2 = a.newlabel('RA')
    a('s_cmp_lg_u32 s40, 0')
    a(f's_cbranch_scc1 {l0}')
    a('v_mov_b32 v4, 1')
    a('s_lshl_b32 s42, s54, 7')
    a(f's_add_u32 s42, s42, {C_REG}')
    a('v_mov_b32 v5, 0')
    a('s_mov_b64 exec, 1')
    a('buffer_atomic_add v4, v5, s[32:35], s42 offen sc0 sc1')
    a('s_mov_b64 exec, 0xff')
    a('v_lshlrev_b32 v6, 7, v1')
    a(f's_mov_b32 s42, {C_REG}')
    a.label(l1)
    a('buffer_load_dword v7, v6, s[32:35], s42 offen sc1')
    a('s_waitcnt vmcnt(0)')
    for i in range(8):
        a(f'v_readlane_b32 s{8+i}, v7, {i}')
    a('s_add_u32 s43, s8, s9')
    for i in range(2, 8):
        a(f's_add_u32 s43, s43, s{8+i}')
    a('s_add_u32 s88, s88, 1')
    a('s_cmp_ge_u32 s88, 0x40000')
    a(f's_cbranch_scc1 {l2}')
    a('s_cmp_lt_u32 s43, 256')
    a(f's_cbranch_scc1 {l1}')
    a.label(l2)
    a('s_min_u32 s44, s8, s9')
    for i in range(2, 8):
        a(f's_min_u32 s44, s44, s{8+i}')
    a('s_mov_b32 s45, 0')
    for i in range(7):
        a(f's_cmp_gt_u32 s54, {i}')
        a(f's_cselect_b32 s42, s{8+i}, 0')
        a('s_add_u32 s45, s45, s42')
    a('s_mov_b64 exec, 1')
    a('v_add_u32 v6, s45, v4')
    a('v_mov_b32 v7, s44')
    a(f'v_mov_b32 v5, {L_SLOT}')
    a('ds_write_b32 v5, v4 offset:16')
    a('ds_write_b32 v5, v6 offset:20')
    a('ds_write_b32 v5, v7 offset:24')
    a('s_waitcnt lgkmcnt(0)')
    a('s_mov_b64 exec, -1')
    a.label(l0)
    a('s_barrier')
    a(f'v_mov_b32 v5, {L_SLOT}')
    a('ds_read_b32 v4, v5 offset:16')
    a('ds_read_b32 v6, v5 offset:20')
    a('ds_read_b32 v7, v5 offset:24')
    a('s_waitcnt lgkmcnt(0)')
    a('v_readfirstlane_b32 s55, v4')
    a('v_readfirstlane_b32 s42, v6')
    a('v_readfirstlane_b32 s43, v7')
    a('s_cmp_ge_u32 s43, 32')
    a('s_cselect_b32 s92, 1, 0')
    if 'slow' in OPT:
        a('s_mov_b32 s92, 0')
    a('s_cmp_eq_u32 s92, 1')
    a('s_cbranch_scc1 RG_FAST')
    a('s_and_b32 s54, s42, 7')
    a('s_lshr_b32 s55, s42, 3')
    a('s_cmp_lt_u32 s55, 16')
    a('s_cselect_b32 s93, 1, 0')
    a('s_and_b32 s55, s55, 15')
    a('s_branch RG_END')
    a.label('RG_FAST')
    role_map(a)
    a.label('RG_END')

T_NULL, T_MOD, T_LN1, T_T1, T_T2A, T_T2B, T_LN2, T_FA, T_FB, T_T1F, T_SUMP, T_FAP, T_FBP = range(13)
Q_LN1 = 8
Q_T1 = 24
Q_T1N = Q_T1 + 12 * NFINE
Q_POST = Q_T1N + 4 * (16 - NSELF - NFINE)
SLOTS = [(T_FB, 2, 0), (T_FB, 2, 1), (T_FB, 2, 2), (T_FA, 1, 0), (T_FA, 1, 1), (T_FA, 1, 2), (T_LN2, 0, 0)]
RL = len(SLOTS)
NROUND = R0 + 2
Q_P = Q_POST + RL * NROUND
Q_END = Q_P + 13
N_T2B, N_FA = 40, 24

def decode(a):
    L = lambda n: f'DC_{n}'
    a('s_mov_b32 s95, 0')
    a('s_mov_b32 s97, 0')
    a('s_mov_b32 s91, 0')
    a('s_mov_b32 s87, 1')
    a(f's_mov_b32 s94, {C_REG}')
    a(f's_mov_b32 s96, {F_ZX}')
    a('s_lshl_b32 s86, s100, 7')
    a(f's_cmp_lt_u32 s3, {Q_LN1}')
    a(f's_cbranch_scc1 {L("MOD")}')
    a(f's_cmp_lt_u32 s3, {Q_T1}')
    a(f's_cbranch_scc1 {L("LN1")}')
    if NFINE:
        a(f's_cmp_lt_u32 s3, {Q_T1N}')
        a(f's_cbranch_scc1 {L("T1F")}')
    a(f's_cmp_lt_u32 s3, {Q_POST}')
    a(f's_cbranch_scc1 {L("T1")}')
    a(f's_cmp_ge_u32 s3, {Q_P}')
    a(f's_cbranch_scc1 {L("PERS")}')
    a(f's_sub_u32 s42, s3, {Q_POST}')
    M = (1 << 16) // RL + 1
    for j in range(RL * NROUND + 64): assert (j * M) >> 16 == j // RL
    a(f's_mul_i32 s43, s42, {M}')
    a('s_lshr_b32 s43, s43, 16')
    a(f's_mul_i32 s44, s43, {RL}')
    a('s_sub_u32 s42, s42, s44')
    tl = {T_FB: 'FB', T_FA: 'FA', T_LN2: 'LN2'}
    for k, (t, sk, sub) in enumerate(SLOTS):
        a(f's_sub_u32 s44, s43, {sk}')
        a(f's_mov_b32 s46, {sub}')
        a(f's_cmp_eq_u32 s42, {k}')
        a(f's_cbranch_scc1 {L(tl[t])}')
    a.label(L('LN2'))
    a(f's_mov_b32 s99, {T_LN2}')
    a('s_lshl_b32 s56, s44, 3')
    a('s_add_u32 s56, s56, s100')
    a('s_lshl_b32 s45, s44, 10')
    a(f's_mov_b32 s94, {F_ZX}')
    a('s_add_u32 s95, s44, 1')
    a('s_lshl_b32 s95, s95, 2')
    a(f's_mov_b32 s90, {C_MODB}')
    a('s_mov_b32 s91, 5')
    a('s_add_u32 s45, s45, s86')
    a(f's_add_u32 s101, s45, {C_LN2}')
    a(f's_branch {L("CHKRB")}')
    a.label(L('FA'))
    a(f's_mov_b32 s99, {T_FA}')
    a('s_mov_b32 s56, s44')
    a('s_mul_i32 s57, s100, 3')
    a('s_add_u32 s57, s57, s46')
    a('s_lshl_b32 s45, s44, 10')
    a(f's_add_u32 s94, s45, {C_LN2}')
    a('s_mov_b32 s95, 1')
    a('s_add_u32 s45, s45, s86')
    a(f's_add_u32 s101, s45, {C_FA}')
    a(f's_branch {L("CHKRB")}')
    a.label(L('FB'))
    a(f's_mov_b32 s99, {T_FB}')
    a('s_lshl_b32 s45, s44, 10')
    a(f's_add_u32 s94, s45, {C_FA}')
    a('s_mov_b32 s95, 3')
    a('s_mov_b32 s101, 0')
    a('s_lshl_b32 s45, s46, 3')
    a('s_add_u32 s47, s45, s100')
    a('s_cmp_lt_u32 s46, 2')
    a(f's_cbranch_scc1 {L("FB2")}')
    a('s_lshl_b32 s45, s43, 2')
    a('s_add_u32 s45, s45, s100')
    a('s_and_b32 s45, s45, 7')
    a('s_add_u32 s47, s45, 16')
    a('s_cmp_ge_u32 s45, 4')
    a(f's_cselect_b32 s99, {T_NULL}, s99')
    a.label(L('FB2'))
    a('s_cmp_ge_u32 s47, 10')
    a('s_cselect_b32 s45, 1, 0')
    a('s_cselect_b32 s46, 10, 0')
    a('s_sub_u32 s57, s47, s46')
    a('s_lshl_b32 s56, s44, 1')
    a('s_add_u32 s56, s56, s45')
    a.label(L('CHKRB'))
    a(f's_cmp_ge_u32 s44, {R0}')
    a(f's_cselect_b32 s99, {T_NULL}, s99')
    a(f's_branch {L("END")}')
    a.label(L('PERS'))
    a(f's_sub_u32 s42, s3, {Q_P}')
    a(f's_mov_b32 s90, {C_MODB}')
    a('s_mov_b32 s91, 5')
    a('s_mov_b32 s101, 0')
    a(f's_mov_b32 s99, {T_SUMP}')
    a('s_mov_b32 s56, s42')
    a('s_mov_b32 s57, s100')
    a('s_cmp_lt_u32 s42, 2')
    a(f's_cbranch_scc1 {L("END")}')
    a(f's_mov_b32 s99, {T_FAP}')
    a('s_sub_u32 s43, s42, 2')
    a('s_lshl_b32 s43, s43, 3')
    a('s_add_u32 s56, s43, s100')
    a('s_cmp_lt_u32 s42, 8')
    a(f's_cbranch_scc1 {L("END")}')
    a(f's_mov_b32 s99, {T_FBP}')
    a('s_sub_u32 s43, s42, 8')
    a('s_lshl_b32 s43, s43, 3')
    a('s_add_u32 s43, s43, s100')
    a('s_lshr_b32 s56, s43, 1')
    a('s_and_b32 s57, s43, 1')
    a(f's_branch {L("END")}')
    a.label(L('MOD'))
    a(f's_mov_b32 s99, {T_MOD}')
    a('s_lshl_b32 s56, s3, 3')
    a('s_add_u32 s56, s56, s100')
    a('s_cmp_lt_u32 s3, 3')
    a(f's_cselect_b32 s101, {C_MODA}, {C_MODB}' if False else f's_mov_b32 s101, {C_MODB}')
    a(f's_mov_b32 s45, {C_MODA}')
    a('s_cselect_b32 s101, s45, s101')
    a('s_add_u32 s101, s101, s86')
    a(f's_branch {L("END")}')
    a.label(L('LN1'))
    a(f's_mov_b32 s99, {T_LN1}')
    a(f's_sub_u32 s44, s3, {Q_LN1}')
    a('s_lshl_b32 s56, s44, 3')
    a('s_add_u32 s56, s56, s100')
    a(f's_mov_b32 s94, {C_MODA}')
    a('s_mov_b32 s95, 3')
    a('s_mov_b32 s97, 1')
    a('s_lshl_b32 s45, s44, 10')
    a('s_add_u32 s45, s45, s86')
    a(f's_add_u32 s101, s45, {C_LN1}')
    a(f's_branch {L("END")}')
    if NFINE:
        a.label(L('T1F'))
        a(f's_mov_b32 s99, {T_T1F}')
        a(f's_sub_u32 s44, s3, {Q_T1}')
        a('s_mul_i32 s56, s44, 5462')
        a('s_lshr_b32 s56, s56, 16')
        a('s_mul_i32 s45, s56, 12')
        a('s_sub_u32 s44, s44, s45')
        a(f's_add_u32 s56, s56, {NSELF}')
        a('s_lshr_b32 s58, s44, 2')
        a('s_mov_b32 s87, 4')
        a(f's_branch {L("T1C")}')
    a.label(L('T1'))
    a(f's_mov_b32 s99, {T_T1}')
    a(f's_sub_u32 s44, s3, {Q_T1N}')
    a('s_lshr_b32 s56, s44, 2')
    a(f's_add_u32 s56, s56, {NSELF + NFINE}')
    a('s_mov_b32 s87, 12')
    a.label(L('T1C'))
    a('s_and_b32 s44, s44, 3')
    a('s_lshl_b32 s57, s100, 2')
    a('s_add_u32 s57, s57, s44')
    a('s_lshl_b32 s45, s56, 10')
    a(f's_add_u32 s94, s45, {C_LN1}')
    a('s_mov_b32 s95, 1')
    a('s_mov_b32 s97, 1')
    a('s_add_u32 s45, s45, s86')
    a(f's_add_u32 s101, s45, {F_T1}')
    a.label(L('END'))

def poll(a, lbl, s_addr, s_thr, adaptive, zx_ok=True):
    a('v_and_b32 v8, 7, v1')
    a('v_lshlrev_b32 v8, 7, v8')
    a('v_mov_b32 v5, 0')
    a('s_mov_b32 s79, 0')
    if zx_ok:
        a(f's_cmp_lg_u32 s99, {T_LN2}')
        a(f's_cbranch_scc1 {lbl}_2')
        a('v_lshlrev_b32 v8, 7, v1')
        a('s_mov_b32 s79, 8192')
    a.label(f'{lbl}_2')
    a(f's_add_u32 s78, s{s_addr}, s79')
    a(f'buffer_load_dword v6, v8, s[32:35], s{s_addr} offen sc1')
    a(f'buffer_load_dword v7, v8, s[32:35], s78 offen sc1')
    if adaptive:
        a('buffer_load_dword v9, v5, s[32:35], s96 offen sc1')
    a('s_waitcnt vmcnt(0)')
    a('v_min_u32 v6, v6, v7')
    a(f'v_cmp_gt_u32 vcc, s{s_thr}, v6')
    if adaptive:
        a('v_readfirstlane_b32 s43, v9')
    a('s_cmp_eq_u64 vcc, 0')
    a(f's_cbranch_scc1 {lbl}_3')
    a('s_add_u32 s98, s98, 1')
    a('s_cmp_ge_u32 s98, 0x8000')
    a(f's_cbranch_scc1 {lbl}_3')
    if adaptive:
        a('s_cmp_ge_u32 s43, 64')
        a('s_cselect_b32 s97, 1, s97')
    a(f's_sleep {W_SHORT}')
    if adaptive:
        a('s_cmp_eq_u32 s97, 1')
        a(f's_cbranch_scc1 {lbl}_2')
        for _ in range(W_SLEEP // 127): a('s_sleep 127')
        if W_SLEEP % 127: a(f's_sleep {W_SLEEP % 127}')
    a(f's_branch {lbl}_2')

def k_mega(a):
    from k_t1v import t1v_body
    from k_post import FA, FB, LN2B
    fa, fb, ln2 = FA(), FB(), LN2B()
    name = 'mega_kernel'
    kernel_header(a, name)
    a('s_cmp_ge_u32 s2, 256')
    a('s_cbranch_scc1 MG_END')
    a(f's_load_dwordx2 s[52:53], s[0:1], {KA["ws"]}')
    a(f's_load_dwordx2 s[96:97], s[0:1], {KA["dbg"]}')
    lane_decomp(a)
    for r in range(4, 16): a(f'v_mov_b32 v{r}, 0')
    for o in (fa, fb):
        for r in range(o.g.VA, o.g.VA + 2 * o.g.NC + 1):
            a(f'v_mov_b32 v{r}, 0')
    a('s_waitcnt lgkmcnt(0)')
    NW = 640 * 6144 * 2
    make_srd(a, 32, 52, WS_SIZE)
    a('s_mov_b32 s88, 0')
    a('s_mov_b32 s85, 0')
    if LOG:
        l = a.newlabel('KL')
        a('s_cmp_lg_u32 s40, 0')
        a(f's_cbranch_scc1 {l}')
        a('s_memrealtime s[98:99]')
        a('s_lshl_b32 s43, s2, 12')
        a(f's_add_u32 s42, s43, {WS_LOG + 131*4}')
        a('s_waitcnt lgkmcnt(0)')
        a('v_mov_b32 v250, s98')
        a('v_mov_b32 v251, 0')
        a('s_mov_b64 exec, 1')
        a('buffer_store_dword v250, v251, s[32:35], s42 offen')
        a('s_mov_b64 exec, -1')
        a.label(l)
    a('s_getreg_b32 s46, hwreg(HW_REG_XCC_ID)')
    a('s_and_b32 s46, s46, 7')
    a('s_and_b32 s54, s2, 7')
    a('s_lshr_b32 s55, s2, 3')
    a('s_cmp_lg_u32 s46, s54')
    a('s_cselect_b32 s46, 0x10001, 1')
    if 'fb' in OPT:
        a('s_cmp_eq_u32 s2, 0')
        a('s_cselect_b32 s46, 0x10001, s46')
    role_map(a)
    a('s_mov_b32 s92, 1')
    if 'slow' in OPT: a('s_mov_b32 s92, 0')
    a('s_cmp_eq_u32 s93, 1')
    a('s_cbranch_scc1 ARRIVE')
    a('s_mov_b32 s46, 1')
    a('s_cmp_lt_u32 s55, 8')
    a('s_cbranch_scc1 ARRIVE')
    a('s_lshl_b32 s42, s54, 3')
    a('s_add_u32 s42, s42, s55')
    a('s_sub_u32 s42, s42, 8')
    a('v_lshlrev_b32 v10, 4, v0')
    for r in range(4):
        a(f'v_mov_b32 v{4+r}, -1')
        a(f'v_mov_b32 v{12+r}, 0')
    a('s_lshl_b32 s43, s42, 15')
    a(f's_add_u32 s43, s43, {WS_MEMF}')
    for i in range(4):
        a(f'buffer_store_dwordx4 v[4:7], v10, s[32:35], s43 offen sc1')
        if i < 3: a('s_add_u32 s43, s43, 8192')
    assert CNT_BYTES % 64 == 0 and (CNT_BYTES // 64) % 16 == 0
    a(f's_mul_i32 s43, s42, {CNT_BYTES // 64}')
    a(f's_add_u32 s43, s43, {WS_CNT}')
    a(f'v_cmp_gt_u32 vcc, {CNT_BYTES // 64 // 16}, v0')
    a('s_and_saveexec_b64 s[44:45], vcc')
    a('s_cbranch_execz NOCZ')
    a('buffer_store_dwordx4 v[12:15], v10, s[32:35], s43 offen sc1')
    a.label('NOCZ')
    a('s_mov_b64 exec, s[44:45]')
    a('s_waitcnt vmcnt(0)')
    a('s_barrier')
    a.label('ARRIVE')
    a('s_cmp_lg_u32 s40, 0')
    a('s_cbranch_scc1 ARR2')
    a('s_lshr_b32 s42, s2, 3')
    a('s_and_b32 s42, s42, 3')
    a('s_lshl_b32 s42, s42, 6')
    a('v_mov_b32 v4, s42')
    a('v_mov_b32 v5, s46')
    a('s_mov_b64 exec, 1')
    a('global_atomic_add v4, v5, s[96:97] sc1')
    a('s_mov_b64 exec, -1')
    a.label('ARR2')
    a('s_branch DISPATCH')
    a.label('FALLBACK')
    a('s_waitcnt vmcnt(0) lgkmcnt(0)')
    a('s_barrier')
    a('s_setprio 0')
    lane_decomp(a)
    register(a)
    a.label('DISPATCH')
    a(f's_load_dwordx4 s[4:7], s[0:1], {KA["wq"]}')
    a(f's_load_dwordx4 s[48:51], s[0:1], {KA["wv"]}')
    a(f's_load_dwordx2 s[94:95], s[0:1], {KA["mem0"]}')
    a('s_waitcnt lgkmcnt(0)')
    a('s_mov_b32 s100, s54')
    a('s_cmp_eq_u32 s93, 0')
    a('s_cbranch_scc1 WENTRY0')
    make_srd(a, 8, 4, NW)
    make_srd(a, 12, 6, NW)
    make_srd(a, 16, 48, NW)
    make_srd(a, 28, 50, NW)
    make_srd(a, 36, 94, 8 * 1280)
    k_chain4.chain4_body(a, mega=dict(S0=S0, S1=S1, F_T1=F_T1, F_ZX=F_ZX, T1THR=T1THR, NSELF=NSELF, C_LN1=C_LN1, LOG=(WS_LOG if LOG else None), **(dict(EARLYPOLL=early_poll, EARLYCHK=early_chk) if EP else dict(GATE=gate))))
    lane_decomp(a)
    a('s_mov_b32 s55, -1')
    a.label('WENTRY0')
    a('s_mov_b32 s98, 0')
    if LOG:
        a('s_lshl_b32 s80, s2, 12')
        a(f's_add_u32 s80, s80, {WS_LOG + 1024}')
    a('s_mov_b32 s3, s55')
    a('s_cmp_eq_u32 s55, -1')
    a('s_cbranch_scc0 WFIRST')
    a.label('WLOOP')
    a('s_cmp_lg_u32 s40, 0')
    a('s_cbranch_scc1 WL_1')
    a('s_mov_b64 exec, 1')
    a('v_mov_b32 v4, 1')
    a('v_mov_b32 v5, 0')
    a('s_lshl_b32 s42, s100, 7')
    a(f's_add_u32 s42, s42, {C_QH}')
    a('buffer_atomic_add v4, v5, s[32:35], s42 offen sc0 sc1')
    a(f'v_mov_b32 v5, {L_SLOT}')
    a('s_waitcnt vmcnt(0)')
    a('ds_write_b32 v5, v4')
    a('s_waitcnt lgkmcnt(0)')
    a('s_mov_b64 exec, -1')
    a.label('WL_1')
    a('s_barrier')
    a(f'v_mov_b32 v5, {L_SLOT}')
    a('ds_read_b32 v4, v5')
    a('s_waitcnt lgkmcnt(0)')
    a('v_readfirstlane_b32 s3, v4')
    a('s_add_u32 s3, s3, 16')
    a.label('WFIRST')
    a(f's_cmp_ge_u32 s3, {Q_END}')
    a('s_cbranch_scc1 MG_END0')
    if LOG:
        rt(a, 81)
        a('s_lshl_b32 s83, s100, 16')
        a('s_or_b32 s83, s83, s3')
    decode(a)
    a(f's_cmp_eq_u32 s99, {T_NULL}')
    a('s_cbranch_scc1 WNULL')
    a('s_cmp_eq_u32 s91, 0')
    a('s_cbranch_scc1 WPRE')
    a('s_cmp_lg_u32 s40, 0')
    a('s_cbranch_scc1 WP_3')
    poll(a, 'WP', 90, 91, False, zx_ok=False)
    a.label('WP_3')
    a('s_barrier')
    a.label('WPRE')
    if LOG: a('s_mov_b32 s82, s81')
    for t, l in ((T_LN2, 'P_LN2'), (T_FA, 'P_FA'), (T_FB, 'P_FB'), (T_LN1, 'P_LN1'), (T_SUMP, 'B_SUMP'), (T_FAP, 'B_FAP'), (T_FBP, 'B_FBP')):
        a(f's_cmp_eq_u32 s99, {t}')
        a(f's_cbranch_scc1 {l}')
    a.label('WWAIT')
    a('s_cmp_eq_u32 s95, 0')
    a('s_cbranch_scc1 WL_3')
    gate(a, 'GW')
    a('s_cmp_lg_u32 s40, 0')
    a('s_cbranch_scc1 WL_3')
    poll(a, 'WL', 94, 95, True)
    a.label('WL_3')
    a('s_barrier')
    if LOG: rt(a, 82)
    for t, l in ((T_T1, 'B_T1'),) + (((T_T1F, 'B_T1F'),) if NFINE else ()) + ((T_LN2, 'B_LN2'), (T_FA, 'B_FA'), (T_FB, 'B_FB'), (T_MOD, 'B_MOD')):
        a(f's_cmp_eq_u32 s99, {t}')
        a(f's_cbranch_scc1 {l}')
    body_ln1(a, 'LN1')
    a('s_branch WDONE')
    a.label('WNULL')
    a('s_barrier')
    a('s_branch WLOOP')
    for nm, o in (('LN2', ln2), ('FA', fa), ('FB', fb)):
        a.label(f'P_{nm}')
        o.pre(a)
        a('s_branch WWAIT')
    a.label('P_LN1')
    ln1_pre(a)
    a('s_branch WWAIT')
    a.label('B_MOD')
    body_mod(a, 'MOD')
    a('s_branch WDONE')
    a.label('B_T1')
    t1v_body(a, 'T1', SFX)
    a('s_branch WDONE')
    if NFINE:
        a.label('B_T1F')
        t1v_body(a, 'T1F', SFX, nm=1)
        a('s_branch WDONE')
    for nm, o in (('LN2', ln2), ('FA', fa), ('FB', fb)):
        a.label(f'B_{nm}')
        o.main(a)
        a('s_branch WDONE')
    cfg = dict(S0=S0, S1=S1, F_ZX=F_ZX, F_SUM=F_SUM, F_FA=F_FA, LOG=(WS_LOG if LOG else None))
    for nm, fn in (('SUMP', k_fine.sump), ('FAP', k_fine.fap), ('FBP', k_fine.fbp)):
        a.label(f'B_{nm}')
        fn(a, cfg)
        a('s_branch WDONE')
    a.label('WDONE')
    a('s_waitcnt vmcnt(0) lgkmcnt(0)')
    a('s_barrier')
    gate(a, 'GD')
    a('s_cmp_lg_u32 s40, 0')
    a('s_cbranch_scc1 WLOOP')
    if LOG: log_entry(a)
    a('s_cmp_eq_u32 s101, 0')
    a('s_cbranch_scc1 WLOOP')
    a('s_mov_b64 exec, 1')
    a('v_mov_b32 v4, s87')
    a('v_mov_b32 v5, 0')
    a('buffer_atomic_add v4, v5, s[32:35], s101 offen sc1')
    a('s_mov_b64 exec, -1')
    a('s_branch WLOOP')
    a.label('MG_END0')
    if 'tmo' in OPT:
        a('s_cmp_lt_u32 s98, 0x8000')
        a('s_cbranch_scc1 MG_END')
        a(f's_load_dwordx2 s[96:97], s[0:1], {KA["dbg"]}')
        a('s_waitcnt lgkmcnt(0)')
        a('v_mov_b32 v4, 0')
        a('v_mov_b32 v5, 1')
        a('s_mov_b64 exec, 1')
        a('global_atomic_add v4, v5, s[96:97] offset:16')
        a('s_mov_b64 exec, -1')
    a.label('MG_END')
    a('s_endpgm')
    return name, kernel_desc(name, 256, 102, 256)
```

```python
import sys
sys.path.insert(0, 'dev')
from asmlib import *
from gen import build
from k_mega7 import k_mega, LDS_MEGA
if __name__ == '__main__':
    ks = [(k_mega, 256, 512, LDS_MEGA)]
    build(ks, sys.argv[1] if len(sys.argv) > 1 else 'test.s')
```
